```python
import torch

def _softmax(x, axis=-1):
    return torch.softmax(x, dim=axis)
def _gelu(x):
    return torch.nn.functional.gelu(x, approximate="tanh")
def _silu(x):
    return torch.nn.functional.silu(x)
def _sigmoid(x):
    return torch.sigmoid(x)
def _layernorm(x, axis=-1, eps=1e-5):
    m = x.mean(dim=axis, keepdim=True)
    v = x.var(dim=axis, keepdim=True, unbiased=False)
    return (x - m) / torch.sqrt(v + eps)
def _scatter_add(tgt, idx, src, axis=0):
    return tgt.clone().index_add_(axis, idx, src)
def _segment_sum(src, seg, n):
    out = torch.zeros((n,) + src.shape[1:], dtype=src.dtype)
    return out.index_add_(0, seg, src)
def _pad(x, pw):
    flat = tuple(v for pair in reversed(pw) for v in pair)
    return torch.nn.functional.pad(x, flat)

kernel_name = 'gated_mix__mha_block__mixer_token_mlp__prompt'

def setup_inputs():

    _w = (lambda a: (lambda t: t.to(torch.bfloat16) if t.is_floating_point() else t)(torch.as_tensor(a)))
    def _A_setup():
        B, S, D, H = 1, 2048, 640, 32
        return {
            "x": _w((lambda *s: torch.randn(*s, dtype=torch.bfloat16) * 0.05)(B, S, D)),
            "wqkv": _w((lambda *s: torch.randn(*s, dtype=torch.bfloat16) * 0.8)(D, 3 * D)),
            "wo": _w((lambda *s: torch.randn(*s, dtype=torch.bfloat16) * 0.05)(D, D)),
        }
    _A_in = _A_setup()

    def _B_setup():
        B, S, D, F = 1, 2048, 640, 1536
        return {
            "x": _w((lambda *s: torch.randn(*s, dtype=torch.bfloat16) * 0.05)(B, S, D)),
            "w1": _w((lambda *s: torch.randn(*s, dtype=torch.bfloat16) * 0.8)(S, F) * (S ** -0.5)),
            "b1": _w((lambda *s: torch.randn(*s, dtype=torch.bfloat16) * 12.8)(F) * 0.02),
            "w2": _w((lambda *s: torch.randn(*s, dtype=torch.bfloat16) * 0.1)(F, S) * (F ** -0.5)),
            "b2": _w((lambda *s: torch.randn(*s, dtype=torch.bfloat16) * 0.8)(S) * 0.02),
        }
    _B_in = _B_setup()

    return {
        "A_x": _A_in["x"],
        "A_wqkv": _A_in["wqkv"],
        "A_wo": _A_in["wo"],
        "B_x": _B_in["x"],
        "B_w1": _B_in["w1"],
        "B_b1": _B_in["b1"],
        "B_w2": _B_in["w2"],
        "B_b2": _B_in["b2"],
        "gate_w": _w((lambda *s: torch.randn(*s, dtype=torch.bfloat16) * 0.05)(640) * 16.0),
    }

def reference(A_x, A_wqkv, A_wo, B_x, B_w1, B_b1, B_w2, B_b2, gate_w):
    def _A_ref(x, wqkv, wo):
        B, S, D = x.shape
        H = 32
        Dh = D // H
        qkv = (lambda x, *d: x.permute(*d))((x @ wqkv).reshape(B, S, 3, H, Dh), 2, 0, 3, 1, 4)
        q, k, v = qkv[0], qkv[1], qkv[2]
        scores = torch.einsum("bhqd,bhkd->bhqk", q, k) * (Dh ** -0.5)
        p = _softmax(scores, axis=-1)
        o = torch.einsum("bhqk,bhkd->bhqd", p, v)
        return (lambda x, *d: x.permute(*d))(o, 0, 2, 1, 3).reshape(B, S, D) @ wo

    def _B_ref(x, w1, b1, w2, b2):
        B, S, D = x.shape
        h = _layernorm(x, axis=-1)
        u = torch.einsum("bsd,sf->bdf", h, w1) + b1
        u = _gelu(u)
        y = torch.einsum("bdf,fs->bds", u, w2) + b2
        return (lambda x, *d: x.permute(*d))(y, 0, 2, 1)

    x = A_x
    g = _sigmoid((x * gate_w).sum(-1, keepdims=True))
    a = _A_ref(x, A_wqkv, A_wo)
    b = _B_ref(x, B_w1, B_b1, B_w2, B_b2)
    return g * a + (1 - g) * b
```

```python
import sys, math, struct

NAME = "gated_mix__mha_block__mixer_token_mlp__prompt"

QI = 0x000000
KI = 0x280000
VI = 0x500000
HI = 0x780000
UI = 0xA00000
OI = 0xC00000
GI = 0xE80000
FL = 0xE90000
F_H = FL
F_Q = FL + 0x400
F_U = FL + 0x1400
F_O = FL + 0x2400
FL_BYTES = 0x4400
STAMP = 0xF00000
WS_BYTES = 0x1000000

GREG = 25600
KVB = 102400
KVS = 11520
LNS = 148480
SYN = 158720
SY_PA = SYN
SY_PG = SYN + 32
SY_GOK = SYN + 48
SY_QOK = SYN + 52
SY_HOK = SYN + 56
LDS_BYTES = 163840

SPIN_LIMIT = 200000

def fbits(x):
    return "0x%08x" % struct.unpack("<I", struct.pack("<f", x))[0]

sX, sWQ, sWO, sW1, sW2, sWS, sOUT, sDBG = 4, 8, 12, 16, 20, 24, 28, 32
sB1, sB2, sGW = 36, 38, 40
sW, sXC, sI = 42, 43, 44
sSPIN = 45
def srd(n): return f"s[{n}:{n+3}]"
def vr(a, n): return f"v[{a}:{a+n-1}]" if n > 1 else f"v{a}"

class Gen:
    def __init__(s, kname, phases, fused, stamps=False, opt=None):
        s.L = []
        s.k = kname
        s.ph = phases
        s.fused = fused
        s.stamps = stamps
        s.uid = 0
        s.opt = opt or {}
    def __call__(s, t):
        for l in t.split("\n"):
            l = l.strip()
            if l: s.L.append("    " + l)
    def lab(s, n):
        s.L.append(f"{s.k}_{n}:")
    def ln(s, n):
        return f"{s.k}_{n}"
    def new(s, base):
        s.uid += 1
        return f"{base}{s.uid}"
    def stamp(s, i):
        if s.stamps:
            s(f"s_memrealtime s[{80+2*i}:{81+2*i}]\ns_waitcnt lgkmcnt(0)")
    def end_wave(s):
        if s.stamps:
            s.stamp(9)
            s(f"s_mul_i32 s46, s2, 12\ns_add_u32 s46, s46, s{sW}\ns_lshl_b32 s46, s46, 6\ns_add_u32 s46, s46, {STAMP}")
            s("s_mov_b64 exec, 1\nv_mov_b32 v1, 0")
            for i in range(10):
                s(f"v_mov_b32 v2, s{80+2*i}\nbuffer_store_dword v2, v1, {srd(sWS)}, s46 offen offset:{4*i}\ns_waitcnt vmcnt(0)")
        s("s_endpgm")

    def lds_spin(s, vaddr, need, vtmp, off=0, sleep=1):
        a, b = s.new("spin"), s.new("spind")
        s(f"s_mov_b32 s{sSPIN}, {SPIN_LIMIT*4}")
        s.lab(a)
        s(f"""ds_read_b32 v{vtmp}, v{vaddr} offset:{off}
        s_waitcnt lgkmcnt(0)
        v_cmp_gt_u32 vcc, {need}, v{vtmp}
        s_cbranch_vccz {s.ln(b)}
        s_sleep {sleep}
        s_sub_u32 s{sSPIN}, s{sSPIN}, 1
        s_cbranch_scc0 {s.ln(a)}""")
        s.lab(b)

    def poll(s, loads, sleep=2):
        a, b = s.new("poll"), s.new("polld")
        s(f"s_mov_b32 s{sSPIN}, {SPIN_LIMIT}")
        s.lab(a)
        regs = []
        for (vd, n, vo, r, so, imm) in loads:
            sfx = {1: "dword", 2: "dwordx2", 4: "dwordx4"}[n]
            s(f"buffer_load_{sfx} {vr(vd,n)}, v{vo}, {srd(r)}, {so} offen offset:{imm} sc1")
            regs += list(range(vd, vd+n))
        s("s_waitcnt vmcnt(0)")
        for q in regs[1:]:
            s(f"v_min_u32 v{regs[0]}, v{regs[0]}, v{q}")
        s(f"""v_cmp_eq_u32 vcc, 0, v{regs[0]}
        s_cbranch_vccz {s.ln(b)}
        s_sleep {sleep}
        s_sub_u32 s{sSPIN}, s{sSPIN}, 1
        s_cbranch_scc0 {s.ln(a)}""")
        s.lab(b)

    def set_flag(s, soff, va, vb):
        s(f"""s_mov_b64 exec, 1
        v_mov_b32 v{va}, 0
        v_mov_b32 v{vb}, 1
        buffer_store_dword v{vb}, v{va}, {srd(sWS)}, {soff} offen sc1
        s_mov_b64 exec, -1""")

    def lds_set(s, addr, val, va, vb):
        s(f"""v_mov_b32 v{va}, {addr}
        v_mov_b32 v{vb}, {val}
        ds_write_b32 v{va}, v{vb}""")

    def prologue(s):
        s(f"s_cmp_ge_u32 s2, 256\ns_cbranch_scc1 {s.ln('exit')}")
        for reg, off in ((sX,0),(sWQ,8),(sWS,88),(sGW,64),(sDBG,80),(sW1,32),(sW2,48),(sWO,16),(sOUT,72),(sB1,40),(sB2,56)):
            s(f"s_load_dwordx2 s[{reg}:{reg+1}], s[0:1], {off}")
        s("v_lshrrev_b32 v1, 6, v0\nv_and_b32 v0, 63, v0")
        s(f"v_readfirstlane_b32 s{sW}, v1")
        for reg, n in ((sX,2621440),(sWQ,2457600),(sWO,819200),(sW1,6291456),(sW2,6291456),(sWS,WS_BYTES),(sOUT,2621440),(sDBG,256)):
            s(f"s_mov_b32 s{reg+2}, {n}\ns_mov_b32 s{reg+3}, 0x00020000")
        s(f"s_and_b32 s{sXC}, s2, 7\ns_lshr_b32 s{sI}, s2, 3")
        if s.stamps:
            for i in range(10): s(f"s_mov_b32 s{80+2*i}, 0")
        s(f"""s_and_b32 s46, s{sXC}, 3
        s_lshl_b32 s46, s46, 2
        s_and_b32 s48, s{sI}, 3
        s_add_u32 s46, s46, s48
        s_lshr_b32 s47, s{sXC}, 2
        s_lshl_b32 s47, s47, 3
        s_lshr_b32 s48, s{sI}, 2
        s_add_u32 s47, s47, s48
        s_waitcnt lgkmcnt(0)""")
        s.stamp(0)
        s(f"""s_cmp_ge_u32 s{sW}, 8
        s_cbranch_scc1 {s.ln('grole')}""")
        if 'qkv' in s.ph:
            s(f"""s_cmp_eq_u32 s47, 15
            s_cbranch_scc1 {s.ln('qkv_idle')}
            s_cmp_lt_u32 s{sW}, 4
            s_cbranch_scc1 {s.ln('qkv_comp')}""")
            s.loader()
            s(f"s_branch {s.ln('att')}")
            s.lab("qkv_idle")
            for _ in range(11): s("s_barrier")
            s(f"s_branch {s.ln('att')}")
            s.lab("qkv_comp")
            s.qkv_compute()
        else:
            s("s_barrier")
        s.lab("att")
        if 'att' in s.ph:
            s.attention()
        s.end_wave()
        s.lab("grole")
        s.grole()
        s.end_wave()
        s.lab("exit")
        s("s_endpgm")

    def loader(s):
        s(f"""s_sub_u32 s48, s{sW}, 4
        v_lshrrev_b32 v1, 3, v0
        s_lshl_b32 s49, s48, 5
        v_add_u32 v1, s49, v1
        v_mul_u32_u24 v1, 1280, v1
        v_lshrrev_b32 v2, 4, v0
        v_and_b32 v3, 7, v0
        v_xor_b32 v3, v3, v2
        v_xor_b32 v4, 4, v3
        v_lshl_add_u32 v8, v3, 4, v1
        v_lshl_add_u32 v9, v4, 4, v1
        v_add_u32 v9, {10240-1024}, v9
        v_add_u32 v10, {2*(10240-1024)}, v8
        v_add_u32 v11, {2*(10240-1024)}, v9
        s_lshl_b32 s49, s48, 4
        v_add_u32 v1, s49, v2
        v_mul_u32_u24 v1, 3840, v1
        v_lshlrev_b32 v2, 2, v2
        v_and_b32 v3, 15, v0
        v_xor_b32 v3, v3, v2
        v_lshl_add_u32 v12, v3, 4, v1
        v_add_u32 v13, {15360-1024}, v12
        v_add_u32 v14, {2*(15360-1024)}, v12
        v_add_u32 v15, {3*(15360-1024)}, v12
        s_mul_i32 s50, s46, {128*1280}
        s_lshl_b32 s51, s47, 8
        s_lshl_b32 s52, s48, 12""")
        def issue(t):
            s(f"s_add_u32 m0, s52, {(t&3)*32768}\ns_nop 0")
            for n in range(4):
                s(f"buffer_load_dwordx4 v{8+n}, {srd(sX)}, s50 offen offset:{1024*n} lds")
            s(f"s_add_u32 m0, s52, {(t&3)*32768+16384}\ns_add_u32 s50, s50, 128")
            for n in range(4):
                s(f"buffer_load_dwordx4 v{12+n}, {srd(sWQ)}, s51 offen offset:{1024*n} lds")
            s(f"s_add_u32 s51, s51, {64*3840}")
        for t in range(4): issue(t)
        s("s_waitcnt vmcnt(24)\ns_barrier")
        s.stamp(1)
        for t in range(9):
            s(f"s_waitcnt vmcnt({(min(t+3,9)-(t+1))*8})\ns_barrier")
            if t+4 <= 9: issue(t+4)
        s("s_barrier")
        s.stamp(2)

    def qkv_compute(s):
        ACC, F = 64, (32, 48)
        s(f"""s_and_b32 s48, s{sW}, 1
        s_lshr_b32 s49, s{sW}, 1
        v_and_b32 v8, 31, v0
        v_lshrrev_b32 v9, 5, v0
        s_lshl_b32 s50, s48, 13
        v_lshl_add_u32 v10, v8, 7, s50
        v_bfe_u32 v11, v0, 1, 3
        v_xor_b32 v11, v11, v9""")
        for ks in range(4):
            s(f"v_xor_b32 v12, {2*ks}, v11\nv_lshl_add_u32 v{2+ks}, v12, 4, v10")
        s(f"""v_bfe_u32 v11, v0, 2, 2
        v_lshl_add_u32 v12, v9, 3, v11
        v_lshlrev_b32 v12, 8, v12
        v_bfe_u32 v13, v0, 4, 1
        v_lshl_add_u32 v12, v13, 5, v12
        v_and_b32 v13, 3, v0
        v_lshl_add_u32 v12, v13, 3, v12
        v_add_u32 v12, 16384, v12
        s_lshl_b32 s50, s49, 1
        v_xor_b32 v11, s50, v11
        v_lshl_add_u32 v6, v11, 6, v12
        v_xor_b32 v7, 64, v6""")
        for r in range(64): s(f"v_mov_b32 v{ACC+r}, 0")
        def reads(buf, sl, ks):
            b = F[buf]; o = sl*32768
            return [f"ds_read_b128 {vr(b,4)}, v{2+ks} offset:{o}",
                    f"ds_read_b64_tr_b16 {vr(b+8,2)}, v6 offset:{o+ks*4096}",
                    f"ds_read_b64_tr_b16 {vr(b+10,2)}, v6 offset:{o+ks*4096+1024}",
                    f"ds_read_b128 {vr(b+4,4)}, v{2+ks} offset:{o+4096}",
                    f"ds_read_b64_tr_b16 {vr(b+12,2)}, v7 offset:{o+ks*4096}",
                    f"ds_read_b64_tr_b16 {vr(b+14,2)}, v7 offset:{o+ks*4096+1024}"]
        def mf(buf, i, j, isv):
            b = F[buf]; xa = vr(b+4*i,4); wa = vr(b+8+4*j,4); d = vr(ACC+16*(2*i+j),16)
            return f"v_mfma_f32_32x32x16_bf16 {d}, {xa if isv else wa}, {wa if isv else xa}, {d}"
        s("s_barrier")
        s.stamp(1)
        for l in reads(0,0,0): s(l)
        s(f"s_mov_b32 s51, 5\ns_cmp_ge_u32 s47, 10\ns_cbranch_scc1 {s.ln('qkv_v')}")
        for isv in (0, 1):
            if isv: s.lab("qkv_v")
            lp = s.new("qkvl")
            s.lab(lp)
            for sl in range(2):
                for ks in range(4):
                    buf = ks & 1
                    if ks < 3:
                        R = reads(buf^1, sl, ks+1)
                        s("s_waitcnt lgkmcnt(3)"); s(mf(buf,0,0,isv))
                        s("s_waitcnt lgkmcnt(2)"); s(mf(buf,1,0,isv))
                        s("s_waitcnt lgkmcnt(0)")
                        for l in R[:3]: s(l)
                        s(mf(buf,0,1,isv))
                        for l in R[3:]: s(l)
                        s(mf(buf,1,1,isv))
                    else:
                        R = reads(buf^1, sl^1, 0)
                        s("s_waitcnt lgkmcnt(3)"); s(mf(buf,0,0,isv))
                        s("s_waitcnt lgkmcnt(0)")
                        if sl == 1:
                            for a in range(2,8): s(f"v_xor_b32 v{a}, 0x10000, v{a}")
                        s(mf(buf,1,0,isv))
                        s("s_barrier")
                        for l in R[:3]: s(l)
                        s(mf(buf,0,1,isv))
                        for l in R[3:]: s(l)
                        s(mf(buf,1,1,isv))
            s(f"s_sub_u32 s51, s51, 1\ns_cmp_lg_u32 s51, 0\ns_cbranch_scc1 {s.ln(lp)}")
            s.stamp(2)
            P = 32
            if not isv:
                s(f"""s_cmp_lt_u32 s47, 5
                s_cselect_b32 s52, {fbits(20**-0.5*math.log2(math.e))}, 1.0
                s_mov_b32 s53, s52
                v_lshlrev_b32 v2, 15, v9
                v_lshl_add_u32 v2, v8, 4, v2
                s_lshl_b32 s54, s47, 4
                s_lshl_b32 s55, s49, 3
                s_add_u32 s54, s54, s55
                s_lshl_b32 s54, s54, 15
                s_lshl_b32 s55, s46, 11
                s_add_u32 s54, s54, s55
                s_lshl_b32 s55, s48, 10
                s_add_u32 s54, s54, s55
                s_waitcnt lgkmcnt(0)""")
            else:
                s(f"""s_sub_u32 s54, s47, 10
                s_lshl_b32 s54, s54, 7
                s_lshl_b32 s55, s49, 6
                s_add_u32 s54, s54, s55
                v_add_u32 v4, s54, v8
                v_mul_u32_u24 v6, 320, v9""")
                for j in range(2):
                    s(f"""v_mul_u32_u24 v5, 3277, v4
                    v_lshrrev_b32 v5, 16, v5
                    v_mul_u32_u24 v{2+j}, {81920-320}, v5
                    v_lshl_add_u32 v{2+j}, v4, 4, v{2+j}
                    v_add_u32 v{2+j}, v{2+j}, v6
                    v_add_u32 v4, 32, v4""")
                s(f"""s_lshl_b32 s54, s46, 1
                s_add_u32 s54, s54, s48
                s_mul_i32 s54, s54, {8*320}
                s_add_u32 s54, s54, {VI}
                s_waitcnt lgkmcnt(0)""")
            n = 0
            for j in range(2):
                for gp in range(2):
                    for i in range(2):
                        a = ACC + 16*(2*i+j) + 8*gp
                        p = P + 4*(n % 8); n += 1
                        if not isv:
                            for q in range(4):
                                s(f"v_pk_mul_f32 {vr(a+2*q,2)}, {vr(a+2*q,2)}, s[52:53]")
                        for q in range(4):
                            s(f"v_cvt_pk_bf16_f32 v{p+q}, v{a+2*q}, v{a+2*q+1}")
                        s(f"s_nop 1\nv_permlane32_swap_b32 v{p}, v{p+2}\nv_permlane32_swap_b32 v{p+1}, v{p+3}")
                        if not isv:
                            s(f"buffer_store_dwordx4 {vr(p,4)}, v2, {srd(sWS)}, s54 offen offset:{512*i} sc1")
                        else:
                            s(f"buffer_store_dwordx4 {vr(p,4)}, v{2+j}, {srd(sWS)}, s54 offen offset:{(4*i+2*gp)*320} sc1")
                    if not isv: s("s_add_u32 s54, s54, 65536")
            if not isv: s(f"s_branch {s.ln('qkv_pub')}")
        s.lab("qkv_pub")
        if s.fused:
            s(f"""s_lshl_b32 s54, s47, 1
            s_add_u32 s54, s54, s49
            s_lshl_b32 s54, s54, 5
            s_lshl_b32 s55, s46, 1
            s_add_u32 s54, s54, s55
            s_add_u32 s54, s54, s48
            s_lshl_b32 s54, s54, 2
            s_add_u32 s54, s54, {F_Q}
            v_mov_b32 v4, {SY_GOK}""")
            s.lds_spin(4, 1, 5)
            s("s_waitcnt vmcnt(0)")
            s.set_flag("s54", 4, 5)
        s.stamp(3)

    def attention(s):
        Q1, Q2, K1, K2, V0, V1 = 8, 12, 16, 14, 20, 24
        S = (32, 48); O = 64
        aK1, aK2, aV, vK, vV, vIDX, aPW, vPR, aPR, vPC = 2, 3, 4, 5, 6, 7, 28, 29, 30, 31
        sH, sQB, sP, sODD, sKO, sVO, sMK, sMV, sN, sNEED, sTOK = 46, 47, 48, 49, 50, 51, 52, 53, 54, 55, 56
        EK, EV = "s[58:59]", "s[60:61]"
        sKB, sVB = 62, 63
        s(f"""s_setprio {s.opt.get('aprio', 1)}
        s_lshl_b32 s{sH}, s{sXC}, 2
        s_and_b32 s57, s{sI}, 3
        s_add_u32 s{sH}, s{sH}, s57
        s_lshr_b32 s{sQB}, s{sI}, 2
        s_lshr_b32 s{sP}, s{sH}, 1
        s_and_b32 s{sODD}, s{sH}, 1
        s_mov_b32 s58, -1
        s_mov_b32 s59, 0xffff
        s_mov_b32 s60, 0xffefffff
        s_mov_b32 s61, 0x1ff
        s_mul_i32 s{sKB}, s{sP}, {5*32768}
        s_add_u32 s{sKB}, s{sKB}, {KI}
        s_mul_i32 s{sVB}, s{sH}, 81920
        s_add_u32 s{sVB}, s{sVB}, {VI}
        s_mul_i32 s{sMK}, s{sW}, 768
        s_add_u32 s{sMK}, s{sMK}, {KVB}
        s_mul_i32 s{sMV}, s{sW}, 672
        s_add_u32 s{sMV}, s{sMV}, {KVB+6144}
        s_lshl_b32 s{sTOK}, s{sQB}, 8
        s_lshl_b32 s57, s{sW}, 5
        s_add_u32 s{sTOK}, s{sTOK}, s57
        v_and_b32 v80, 31, v0
        v_lshrrev_b32 v81, 5, v0
        v_and_b32 v82, 15, v0
        v_lshrrev_b32 v83, 4, v0""")
        s(f"""s_mul_i32 s57, s{sODD}, 3
        v_add_u32 v84, s57, v83
        v_cmp_gt_u32 vcc, 2, v83
        s_lshl_b32 s64, s{sW}, 8
        s_nop 0
        v_cndmask_b32 v84, 2, v84, vcc
        v_lshlrev_b32 v84, 15, v84
        v_lshl_add_u32 v84, v82, 4, v84
        v_add_u32 v{vK}, s64, v84""")
        s(f"""v_cmp_lt_u32 vcc, 20, v0
        s_mul_i32 s64, s{sW}, 640
        v_subrev_u32 v84, 1, v0
        v_cndmask_b32 v84, v0, v84, vcc
        v_lshlrev_b32 v84, 4, v84
        v_add_u32 v{vV}, s64, v84""")
        s(f"""v_bfe_u32 v84, v0, 4, 1
        v_mul_u32_u24 v84, 768, v84
        v_lshl_add_u32 v84, v82, 4, v84
        v_add_u32 v84, {KVB}, v84
        v_lshl_add_u32 v{aK1}, v81, 8, v84
        v_lshl_add_u32 v{aK2}, v81, 3, v84
        v_add_u32 v{aK2}, 512, v{aK2}
        v_min_u32 v84, 20, v80
        v_subrev_u32 v85, 12, v80
        v_cmp_lt_u32 vcc, 27, v80
        v_mul_u32_u24 v86, 336, v81
        v_mov_b32 v{vIDX}, 0xdddd
        v_cndmask_b32 v84, v84, v85, vcc
        v_lshl_add_u32 v84, v84, 4, v86
        v_add_u32 v{aV}, {KVB+6144}, v84
        s_lshl_b32 s64, s{sW}, 2
        s_add_u32 s64, s64, {SY_PA}
        v_mov_b32 v{aPW}, s64
        v_and_b32 v84, 7, v0
        v_lshlrev_b32 v84, 2, v84
        v_add_u32 v{aPR}, {SY_PA}, v84
        v_mov_b32 v{vPC}, 1""")
        for r in range(16): s(f"v_mov_b32 v{O+r}, 0")
        for r in range(8): s(f"v_mov_b32 v{S[1]+8+r}, 0")
        for r in range(4): s(f"v_mov_b32 v{V1+r}, 0")
        nx = s.new("a")
        s(f"""s_cmp_lg_u32 s{sW}, 5
        s_cbranch_scc1 {s.ln(nx)}
        v_mul_u32_u24 v84, {KVS}, v83
        v_mul_u32_u24 v85, 336, v82
        v_add_u32 v84, v84, v85
        v_add_u32 v84, {KVB+6144+320}, v84
        v_mov_b32 v88, 0x3f803f80
        v_mov_b32 v89, 0x3f803f80
        v_mov_b32 v90, 0x3f803f80
        v_mov_b32 v91, 0x3f803f80
        ds_write_b128 v84, v[88:91]""")
        s.lab(nx)
        if s.fused:
            nx = s.new("a")
            s(f"""s_cmp_lg_u32 s{sW}, 4
            s_cbranch_scc1 {s.ln(nx)}
            s_mul_i32 s64, s{sP}, 5
            s_lshl_b32 s65, s{sODD}, 1
            s_add_u32 s64, s64, s65
            v_lshl_add_u32 v84, v81, 1, s64
            v_lshrrev_b32 v84, 3, v84
            v_lshlrev_b32 v84, 7, v84
            v_lshl_add_u32 v84, v80, 2, v84
            s_mul_i32 s64, s{sH}, 20
            v_mul_u32_u24 v85, 19, v81
            v_add_u32 v85, s64, v85
            v_lshrrev_b32 v85, 6, v85
            v_lshlrev_b32 v85, 7, v85
            v_lshl_add_u32 v85, v80, 2, v85
            s_mov_b32 s64, {F_Q}
            v_mov_b32 v86, {SY_GOK}""")
            s.lds_spin(86, 1, 87)
            s.poll([(88,1,84,sWS,"s64",0),(89,1,84,sWS,"s64",1280),(90,1,85,sWS,"s64",2560)], sleep=1)
            s.lds_set(SY_QOK, 1, 84, 85)
            s.lab(nx)
            s(f"v_mov_b32 v86, {SY_QOK}")
            s.lds_spin(86, 1, 87)
        s.stamp(4)
        s(f"""s_mul_i32 s57, s{sODD}, 3
        v_add_u32 v84, s57, v81
        v_lshlrev_b32 v84, 15, v84
        v_lshl_add_u32 v84, v80, 4, v84
        v_lshlrev_b32 v85, 4, v80
        v_lshl_add_u32 v85, v81, 3, v85
        s_lshl_b32 s64, s{sTOK}, 4
        s_add_u32 s64, s64, s{sKB}
        s_sub_u32 s64, s64, {KI-QI}
        s_add_u32 s65, s64, 65536
        s_lshl_b32 s{sN}, s{sQB}, 1""")
        def dma(slot):
            return [f"s_and_b32 s57, s{sN}, 15",
                    f"s_mul_i32 s{sVO}, s57, 5120",
                    f"s_lshl_b32 s{sKO}, s57, 11",
                    f"s_cmp_lt_u32 s66, 16",
                    f"s_cselect_b32 s67, s{sKB}, {WS_BYTES}",
                    f"s_cselect_b32 s68, s{sVB}, {WS_BYTES}",
                    f"s_add_u32 s{sKO}, s{sKO}, s67",
                    f"s_add_u32 s{sVO}, s{sVO}, s68",
                    f"s_add_u32 m0, s{sMK}, {slot*KVS}",
                    f"s_mov_b64 exec, {EK}",
                    f"buffer_load_dwordx4 v{vK}, {srd(sWS)}, s{sKO} offen sc1 lds",
                    f"s_add_u32 m0, s{sMV}, {slot*KVS}",
                    f"s_mov_b64 exec, {EV}",
                    f"buffer_load_dwordx4 v{vV}, {srd(sWS)}, s{sVO} offen sc1 lds",
                    f"s_mov_b64 exec, -1",
                    f"s_add_u32 s{sN}, s{sN}, 1",
                    f"s_add_u32 s66, s66, 1"]
        s("s_mov_b32 s66, 0")
        for l in dma(0): s(l)
        s(f"""buffer_load_dwordx4 {vr(Q1,4)}, v84, {srd(sWS)}, s64 offen sc1
        buffer_load_dwordx2 {vr(Q2,2)}, v85, {srd(sWS)}, s65 offen sc1""")
        for l in dma(1): s(l)
        for l in dma(2): s(l)
        s(f"""s_waitcnt vmcnt(4) lgkmcnt(0)
        ds_write_b32 v{aPW}, v{vPC}
        v_cmp_eq_u32 vcc, s{sODD}, v81
        v_add_u32 v{vPC}, 1, v{vPC}
        s_mov_b32 s{sNEED}, 2
        v_cndmask_b32 v{Q2}, 0, v{Q2}, vcc
        v_cndmask_b32 v{Q2+1}, 0, v{Q2+1}, vcc""")
        s.lds_spin(aPR, 1, vPR)
        s.stamp(5)
        def off(T):
            T %= 16
            return (T >> 2)*KVS, T & 3
        def rK1(T):
            b, tt = off(T); return f"ds_read_b128 {vr(K1,4)}, v{aK1} offset:{b+tt*1536}"
        def rK2(T):
            b, tt = off(T); return f"ds_read_b64 {vr(K2,2)}, v{aK2} offset:{b+tt*1536}"
        def rV(T, a):
            b, tt = off(T); return f"ds_read_b128 {vr((V0,V1)[a],4)}, v{aV} offset:{b+(4*tt+2*a)*336}"
        def qk0(d): return f"v_mfma_f32_32x32x16_bf16 {vr(d,16)}, {vr(K1,4)}, {vr(Q1,4)}, 0"
        def qk1(d): return f"v_mfma_f32_32x32x8_bf16 {vr(d,16)}, {vr(K2,2)}, {vr(Q2,2)}, {vr(d,16)}"
        def pv(v, p): return f"v_smfmac_f32_32x32x32_bf16 {vr(O,16)}, {vr(v,4)}, {vr(p,8)}, v{vIDX}"
        s(rK1(0)); s(rK2(0)); s("s_waitcnt lgkmcnt(0)")
        s(qk0(S[0])); s(qk1(S[0]))
        s(rK1(1)); s(rK2(1)); s(rV(0,0))
        s("s_mov_b32 s69, 4\ns_nop 7")
        lp = s.new("attl")
        s.L.append(".p2align 6")
        s.lab(lp)
        for T in range(16):
            cur, nxt = S[T & 1], S[(T & 1) ^ 1]
            E = [f"v_exp_f32 v{cur+i}, v{cur+i}" for i in range(16)]
            tt = T & 3
            if tt == 2:
                ok = s.new("ok")
                s(E[0]); s(E[1])
                s("s_waitcnt lgkmcnt(0)")
                s(pv(V1, nxt+8))
                s(f"v_cmp_gt_u32 vcc, s{sNEED}, v{vPR}")
                s(rV(T,1))
                s(f"s_cbranch_vccz {s.ln(ok)}")
                s.lds_spin(aPR, f"s{sNEED}", vPR)
                s.lab(ok)
                D = dma(((T >> 2) + 3) & 3)
                s(E[2]); s("\n".join(D[0:4])); s(E[3]); s("\n".join(D[4:8])); s(E[4])
                s(qk0(nxt)); s(rK1(T+2))
                s(E[5]); s(E[6]); s(E[7])
                s(qk1(nxt)); s(rK2(T+2))
                s("\n".join(D[8:15]))
                s(E[8]); s("\n".join(D[15:17])); s(f"s_add_u32 s{sNEED}, s{sNEED}, 1")
                s(E[9]); s(E[10]); s(E[11])
                s(pv(V0, cur)); s(rV(T+1,0))
                for e in E[12:]: s(e)
            else:
                s(E[0]); s(E[1])
                s("s_waitcnt lgkmcnt(2)")
                s(pv(V1, nxt+8)); s(rV(T,1))
                if tt == 0:
                    s(f"s_waitcnt vmcnt(2)\nds_write_b32 v{aPW}, v{vPC}")
                s(E[2]); s(E[3]); s(E[4])
                s(qk0(nxt)); s(rK1(T+2))
                s(E[5]); s(E[6]); s(E[7])
                s(f"s_waitcnt lgkmcnt({3 if tt == 0 else 2})")
                s(qk1(nxt)); s(rK2(T+2))
                s(E[8]); s(E[9]); s(E[10]); s(E[11])
                if tt == 0: s(f"v_add_u32 v{vPC}, 1, v{vPC}")
                s(pv(V0, cur)); s(rV(T+1,0))
                if tt == 1: s(f"ds_read_b32 v{vPR}, v{aPR}")
                for e in E[12:]: s(e)
                if tt == 3: s("s_nop 0")
        s(f"s_sub_u32 s69, s69, 1\ns_cmp_lg_u32 s69, 0\ns_cbranch_scc1 {s.ln(lp)}")
        s("s_waitcnt lgkmcnt(0)")
        s(pv(V1, S[1]+8))
        s.stamp(6)
        if s.fused:
            s(f"v_mov_b32 v86, {SY_HOK}")
            s.lds_spin(86, 1, 87)
        s(f"""v_lshlrev_b32 v84, 2, v80
        s_lshl_b32 s64, s{sTOK}, 2
        s_add_u32 s64, s64, {GI}
        buffer_load_dword v85, v84, {srd(sWS)}, s64 offen sc1
        v_lshlrev_b32 v84, 4, v80
        v_lshl_add_u32 v86, v81, 15, v84
        s_lshl_b32 s64, s{sH}, 16
        s_lshl_b32 s65, s{sTOK}, 4
        s_add_u32 s65, s65, {OI}
        s_add_u32 s64, s64, s65
        s_add_u32 s57, s{sP}, 64
        s_lshl_b32 s57, s57, 15
        s_add_u32 s65, s65, s57
        s_xor_b32 s57, s{sP}, s{sH}
        s_and_b32 s57, s57, 1
        s_lshl_b32 s57, s57, 3
        s_add_u32 s65, s65, s57
        v_cmp_eq_u32 vcc, 0, v81
        s_nop 1
        v_cndmask_b32 v87, v{O+8}, v{O+12}, vcc
        v_rcp_f32 v88, v87
        s_waitcnt vmcnt(0)
        v_mul_f32 v88, v88, v85""")
        for r in range(12): s(f"v_mul_f32 v{O+r}, v{O+r}, v88")
        for q in range(6): s(f"v_cvt_pk_bf16_f32 v{32+q}, v{O+2*q}, v{O+2*q+1}")
        s(f"""buffer_store_dwordx4 v[32:35], v86, {srd(sWS)}, s64 offen sc1
        s_mov_b32 exec_hi, 0
        buffer_store_dwordx2 v[36:37], v84, {srd(sWS)}, s65 offen sc1
        s_mov_b32 exec_hi, -1""")
        if s.fused:
            s(f"""s_lshl_b32 s64, s{sTOK}, 2
            s_lshl_b32 s65, s{sH}, 2
            s_add_u32 s64, s64, s65
            s_add_u32 s64, s64, {F_O}
            s_waitcnt vmcnt(0)""")
            s.set_flag("s64", 84, 85)
        s.stamp(7)

    def grole(s):
        sJ = 48
        s(f"s_sub_u32 s{sJ}, s{sW}, 8")
        s(f"""v_and_b32 v1, 15, v0
        v_lshlrev_b32 v1, 2, v1
        v_add_u32 v1, {SYN}, v1
        v_mov_b32 v2, 0
        ds_write_b32 v1, v2""")
        if 'qkv' in s.ph:
            s.layernorm(sJ)
        else:
            s("s_waitcnt lgkmcnt(0)\ns_barrier")
        s.stamp(2)
        s(f"""s_lshl_b32 s49, s{sJ}, 2
        s_add_u32 s49, s49, {SY_PG}
        v_mov_b32 v160, s49
        v_and_b32 v161, 3, v0
        v_lshlrev_b32 v161, 2, v161
        v_add_u32 v161, {SY_PG}, v161
        s_mul_i32 s49, s{sJ}, {GREG}""")
        s.gsync_n = 0
        if 'g1' in s.ph: s.gemm1(sJ)
        if 'g2' in s.ph: s.gemm2(sJ)

    def gpost(s):
        s.gsync_n += 1
        s(f"s_waitcnt lgkmcnt(0)\nv_mov_b32 v162, {s.gsync_n}\nds_write_b32 v160, v162")
    def gwait(s):
        s.lds_spin(161, s.gsync_n, 163)

    def layernorm(s, sJ):
        X = (8, 13); GWR = 18; XV = (24, 34); GV = 44
        s(f"""s_and_b32 s49, s{sXC}, 3
        s_lshl_b32 s49, s49, 6
        s_lshr_b32 s50, s{sXC}, 2
        s_lshl_b32 s50, s50, 5
        s_add_u32 s49, s49, s50
        s_add_u32 s49, s49, s{sI}
        s_lshl_b32 s50, s49, 3
        s_lshl_b32 s51, s{sJ}, 1
        s_add_u32 s50, s50, s51
        s_mul_i32 s51, s50, 1280
        v_lshlrev_b32 v3, 2, v0""")
        for r in range(2):
            for i in range(5):
                s(f"buffer_load_dword v{X[r]+i}, v3, {srd(sX)}, s51 offen offset:{1280*r+256*i}")
        for i in range(5):
            s(f"global_load_dword v{GWR+i}, v3, s[{sGW}:{sGW+1}] offset:{256*i}")
        if s.fused:
            nx = s.new("g")
            s(f"""s_cmp_lg_u32 s2, 0
            s_cbranch_scc1 {s.ln(nx)}
            s_cmp_lg_u32 s{sJ}, 1
            s_cbranch_scc1 {s.ln(nx)}
            v_lshlrev_b32 v1, 4, v0
            v_mov_b32 v4, 0
            v_mov_b32 v5, 0
            v_mov_b32 v6, 0
            v_mov_b32 v7, 0
            s_mov_b32 s52, {FL}""")
            for n in range(FL_BYTES // 1024):
                s(f"buffer_store_dwordx4 v[4:7], v1, {srd(sWS)}, s52 offen offset:{(n&3)*1024} sc1")
                if n & 3 == 3: s("s_add_u32 s52, s52, 4096")
            s(f"""s_waitcnt vmcnt(0)
            s_mov_b64 exec, 1
            v_mov_b32 v5, 1
            buffer_store_dword v5, v4, {srd(sDBG)}, 0 offen sc1
            s_mov_b64 exec, -1""")
            s.lab(nx)
        s("s_waitcnt lgkmcnt(0)\ns_barrier")
        s("s_waitcnt vmcnt(0)")
        s.stamp(1)
        for r in range(2):
            for i in range(5):
                s(f"v_lshlrev_b32 v{XV[r]+2*i}, 16, v{X[r]+i}\nv_and_b32 v{XV[r]+2*i+1}, 0xffff0000, v{X[r]+i}")
        for i in range(5):
            s(f"v_lshlrev_b32 v{GV+2*i}, 16, v{GWR+i}\nv_and_b32 v{GV+2*i+1}, 0xffff0000, v{GWR+i}")
        for r in range(2):
            s(f"v_add_f32 v{4+r}, v{XV[r]}, v{XV[r]+1}\nv_mul_f32 v{6+r}, v{XV[r]}, v{GV}")
        for e in range(1, 10):
            for r in range(2):
                if e >= 2: s(f"v_add_f32 v{4+r}, v{4+r}, v{XV[r]+e}")
                s(f"v_fmac_f32 v{6+r}, v{XV[r]+e}, v{GV+e}")
        def reduce(regs):
            for m in ("row_shr:1 row_mask:0xf", "row_shr:2 row_mask:0xf", "row_shr:4 row_mask:0xf", "row_shr:8 row_mask:0xf",
                      "row_bcast:15 row_mask:0xa", "row_bcast:31 row_mask:0xc"):
                s("s_nop 1")
                for q in regs:
                    s(f"v_add_f32_dpp v{q}, v{q}, v{q} {m} bank_mask:0xf")
        reduce((4,5,6,7))
        s(f"""v_mul_f32 v4, {fbits(1/640)}, v4
        v_mul_f32 v5, {fbits(1/640)}, v5
        v_mul_f32 v6, {fbits(-math.log2(math.e))}, v6
        v_mul_f32 v7, {fbits(-math.log2(math.e))}, v7
        v_readlane_b32 s52, v4, 63
        v_readlane_b32 s53, v5, 63
        v_exp_f32 v6, v6
        v_exp_f32 v7, v7
        s_barrier""")
        s("""v_add_f32 v6, 1.0, v6
        v_add_f32 v7, 1.0, v7
        v_rcp_f32 v6, v6
        v_rcp_f32 v7, v7""")
        for r in range(2):
            for e in range(10): s(f"v_subrev_f32 v{XV[r]+e}, s{52+r}, v{XV[r]+e}")
        s(f"""s_lshl_b32 s54, s50, 2
        s_add_u32 s54, s54, {GI}
        v_mov_b32 v1, 0
        s_mov_b32 exec_lo, 0
        s_mov_b32 exec_hi, 0x80000000
        buffer_store_dwordx2 v[6:7], v1, {srd(sWS)}, s54 offen sc1
        s_mov_b64 exec, -1""")
        for r in range(2): s(f"v_mul_f32 v{4+r}, v{XV[r]}, v{XV[r]}")
        for e in range(1, 10):
            for r in range(2): s(f"v_fmac_f32 v{4+r}, v{XV[r]+e}, v{XV[r]+e}")
        reduce((4,5))
        s(f"""v_mov_b32 v1, {fbits(1e-5)}
        v_fmac_f32 v1, {fbits(1/640)}, v4
        v_mov_b32 v2, {fbits(1e-5)}
        v_fmac_f32 v2, {fbits(1/640)}, v5
        v_rsq_f32 v1, v1
        v_rsq_f32 v2, v2
        s_lshl_b32 s54, s{sJ}, 2
        s_add_u32 s54, s54, {LNS}
        v_readlane_b32 s52, v1, 63
        v_readlane_b32 s53, v2, 63
        v_lshlrev_b32 v1, 5, v0
        v_add_u32 v1, s54, v1""")
        for e in range(10):
            for r in range(2): s(f"v_mul_f32 v{XV[r]+e}, s{52+r}, v{XV[r]+e}")
            s(f"v_cvt_pk_bf16_f32 v{8+e}, v{XV[0]+e}, v{XV[1]+e}")
            s(f"ds_write_b32 v1, v{8+e} offset:{(e>>1)*2048 + (e&1)*16}")
        s("s_waitcnt lgkmcnt(0)\ns_barrier")
        s(f"""s_mul_i32 s54, s{sJ}, 2560
        v_lshlrev_b32 v1, 4, v0
        v_add_u32 v1, s54, v1
        v_add_u32 v2, {LNS}, v1
        ds_read_b128 v[8:11], v2
        ds_read_b128 v[12:15], v2 offset:1024
        ds_read_b128 v[16:19], v2 offset:2048
        s_mul_i32 s54, s49, 10240
        s_add_u32 s54, s54, {HI}
        s_waitcnt lgkmcnt(0)
        buffer_store_dwordx4 v[8:11], v1, {srd(sWS)}, s54 offen sc1
        buffer_store_dwordx4 v[12:15], v1, {srd(sWS)}, s54 offen offset:1024 sc1
        s_mov_b32 exec_hi, 0
        buffer_store_dwordx4 v[16:19], v1, {srd(sWS)}, s54 offen offset:2048 sc1
        s_mov_b32 exec_hi, -1
        s_barrier
        s_barrier""")
        if s.fused:
            s(f"v_mov_b32 v1, 0\nbuffer_load_dword v2, v1, {srd(sDBG)}, 0 offen sc1")
        s("s_barrier\ns_waitcnt vmcnt(0)\ns_barrier")
        if s.fused:
            late, done, done2 = s.new("g"), s.new("g"), s.new("g")
            s(f"""v_readfirstlane_b32 s55, v2
            s_lshl_b32 s54, s49, 2
            s_add_u32 s54, s54, {F_H}
            s_cmp_lg_u32 s{sJ}, 0
            s_cbranch_scc1 {s.ln(done)}
            s_cmp_eq_u32 s55, 0
            s_cbranch_scc1 {s.ln(late)}""")
            s.set_flag("s54", 4, 5)
            s.lds_set(SY_GOK, 1, 4, 5)
            s(f"s_branch {s.ln(done)}")
            s.lab(late)
            for _ in range(4): s("s_barrier")
            s.poll([(2,1,1,sDBG,"0",0)])
            s.set_flag("s54", 4, 5)
            s.lds_set(SY_GOK, 1, 4, 5)
            s(f"s_branch {s.ln(done2)}")
            s.lab(done)
            for _ in range(4): s("s_barrier")
            s.lab(done2)
        else:
            for _ in range(4): s("s_barrier")

    def hpoll(s):
        s(f"v_mov_b32 v4, {SY_GOK}")
        s.lds_spin(4, 1, 5)
        s(f"v_lshlrev_b32 v4, 4, v0\ns_mov_b32 s57, {F_H}")
        s.poll([(8,4,4,sWS,"s57",0)])
        s.lds_set(SY_HOK, 1, 4, 5)

    def gemm1(s, sJ):
        D = 4
        ACC, HB, AB = 64, 128, (16, 24)
        vA0, vA1, vH, aT0, aT1 = 2, 3, 6, 12, 13
        sDT, sFT, sOW, sOH = 50, 51, 52, 53
        skip, fin = s.new("g1skip"), s.new("g1fin")
        s(f"""s_cmp_ge_u32 s{sI}, 30
        s_cbranch_scc1 {s.ln(skip)}
        s_mul_i32 s{sFT}, s{sI}, 52
        s_lshr_b32 s{sFT}, s{sFT}, 8
        s_mul_i32 s54, s{sFT}, 5
        s_sub_u32 s{sDT}, s{sI}, s54
        s_and_b32 s54, s{sXC}, 1
        s_mul_i32 s54, s54, 5
        s_add_u32 s{sDT}, s{sDT}, s54
        s_lshr_b32 s54, s{sXC}, 1
        s_mul_i32 s54, s54, 6
        s_add_u32 s{sFT}, s{sFT}, s54
        s_mul_i32 s{sOW}, s{sJ}, {512*3072}
        s_lshl_b32 s54, s{sFT}, 7
        s_add_u32 s{sOW}, s{sOW}, s54
        s_mul_i32 s{sOH}, s{sJ}, {64*10240}
        s_lshl_b32 s54, s{sDT}, 10
        s_add_u32 s{sOH}, s{sOH}, s54
        s_add_u32 s{sOH}, s{sOH}, {HI}
        v_lshrrev_b32 v4, 3, v0
        v_mul_u32_u24 v4, 3072, v4
        v_bfe_u32 v5, v0, 4, 1
        v_lshlrev_b32 v7, 2, v5
        v_and_b32 v8, 7, v0
        v_xor_b32 v7, v7, v8
        v_lshl_add_u32 v{vA0}, v7, 4, v4
        v_add_u32 v{vA1}, {8*3072-1024}, v{vA0}
        v_lshrrev_b32 v14, 5, v0
        v_and_b32 v15, 31, v0
        v_mul_u32_u24 v4, 10240, v14
        v_lshl_add_u32 v{vH}, v15, 4, v4
        v_bfe_u32 v7, v0, 2, 2
        v_lshl_add_u32 v4, v14, 3, v7
        v_lshlrev_b32 v4, 7, v4
        v_lshl_add_u32 v4, v5, 5, v4
        v_and_b32 v8, 3, v0
        v_lshl_add_u32 v4, v8, 3, v4
        v_lshrrev_b32 v7, 1, v7
        v_lshl_add_u32 v4, v7, 6, v4
        v_add_u32 v{aT0}, s49, v4
        v_xor_b32 v4, 64, v4
        v_add_u32 v{aT1}, s49, v4""")
        def dW(t):
            return [f"s_add_u32 m0, s49, {(t%D)*2048}\ns_nop 0\nbuffer_load_dwordx4 v{vA0}, {srd(sW1)}, s{sOW} offen lds",
                    f"buffer_load_dwordx4 v{vA1}, {srd(sW1)}, s{sOW} offen offset:1024 lds\ns_add_u32 s{sOW}, s{sOW}, {16*3072}"]
        def lH(t):
            b = HB + 8*(t % D)
            return [f"buffer_load_dwordx4 {vr(b,4)}, v{vH}, {srd(sWS)}, s{sOH} offen sc1",
                    f"buffer_load_dwordx4 {vr(b+4,4)}, v{vH}, {srd(sWS)}, s{sOH} offen offset:512 sc1\ns_add_u32 s{sOH}, s{sOH}, 20480"]
        def rd(t):
            b = AB[t & 1]; o = (t % D)*2048
            return [f"ds_read_b64_tr_b16 {vr(b,2)}, v{aT0} offset:{o}", f"ds_read_b64_tr_b16 {vr(b+2,2)}, v{aT0} offset:{o+512}",
                    f"ds_read_b64_tr_b16 {vr(b+4,2)}, v{aT1} offset:{o}", f"ds_read_b64_tr_b16 {vr(b+6,2)}, v{aT1} offset:{o+512}"]
        def mf(t, fi, di):
            d = vr(ACC+16*(2*fi+di),16)
            return f"v_mfma_f32_32x32x16_bf16 {d}, {vr(AB[t&1]+4*fi,4)}, {vr(HB+8*(t%D)+4*di,4)}, {d}"
        for t in range(D):
            for l in dW(t): s(l)
        for r in range(64): s(f"v_mov_b32 v{ACC+r}, 0")
        if s.fused: s.hpoll()
        s.stamp(3)
        for t in range(D):
            for l in lH(t): s(l)
        s(f"s_waitcnt vmcnt({2*(D-2)})")
        for l in rd(0): s(l)
        def step(t, more, wv):
            if wv is not None: s(f"s_waitcnt vmcnt({wv})")
            if more != 'last':
                for l in rd(t+1): s(l)
                s("s_waitcnt lgkmcnt(4)")
            else:
                s("s_waitcnt lgkmcnt(0)")
            W = dW(t) if more is True else ["", ""]
            Hh = lH(t) if more is True else ["", ""]
            s(mf(t,0,0)); s(W[0]); s(mf(t,1,0)); s(W[1]); s(Hh[0]); s(mf(t,0,1)); s(mf(t,1,1)); s(Hh[1])
        for t in range(D):
            step(t, True, max(0, 2*(D-2-t)) + 4*min(t, D-2) if t < D-1 else 4*(D-2))
        lp = s.new("g1l")
        s(f"s_mov_b32 s54, {32//D - 2}")
        s.lab(lp)
        for t in range(D): step(t, True, 4*(D-2))
        s(f"s_sub_u32 s54, s54, 1\ns_cmp_lg_u32 s54, 0\ns_cbranch_scc1 {s.ln(lp)}")
        for t in range(D):
            step(t, False if t < D-1 else 'last', 4*(D-2-t) if t < D-1 else None)
        s.stamp(4)
        s(f"""v_lshlrev_b32 v4, 4, v0
        v_add_u32 v5, s49, v4
        s_lshl_b32 s54, s{sJ}, 12
        v_add_u32 v4, s54, v4
        v_add_u32 v7, {2*GREG}, v4
        s_lshr_b32 s55, s{sJ}, 1
        s_and_b32 s56, s{sJ}, 1
        s_lshl_b32 s54, s{sFT}, 1
        s_add_u32 s55, s55, s54
        s_lshl_b32 s54, s{sDT}, 1
        s_add_u32 s56, s56, s54
        s_lshl_b32 s54, s55, 6
        v_lshl_add_u32 v8, v14, 3, s54
        s_nop 4""")
        for q in range(4):
            s(f"global_load_dwordx2 {vr(40+2*q,2)}, v8, s[{sB1}:{sB1+1}] offset:{16*q}")
        for n in range(16):
            s(f"ds_write_b128 v5, {vr(ACC+4*n,4)} offset:{1024*n}")
        s.gpost(); s.gwait()
        for src in range(4):
            for q in range(4):
                s(f"ds_read_b128 {vr(ACC+16*src+4*q,4)}, v{4 if src < 2 else 7} offset:{(src&1)*GREG + 1024*q}")
        s("s_waitcnt vmcnt(0)")
        for q in range(8):
            s(f"v_lshlrev_b32 v{16+2*q}, 16, v{40+q}\nv_and_b32 v{17+2*q}, 0xffff0000, v{40+q}")
        s.gpost()
        c0 = -2*math.sqrt(2/math.pi)*math.log2(math.e); c1 = c0*0.044715
        s(f"s_mov_b32 s57, {fbits(c1)}\nv_mov_b32 v9, {fbits(c0)}")
        for r in range(0, 16, 2):
            s(f"v_pk_add_f32 {vr(ACC+r,2)}, {vr(ACC+r,2)}, {vr(ACC+16+r,2)}")
            s(f"v_pk_add_f32 {vr(ACC+32+r,2)}, {vr(ACC+32+r,2)}, {vr(ACC+48+r,2)}")
            s(f"v_pk_add_f32 {vr(16+r,2)}, {vr(16+r,2)}, {vr(ACC+r,2)}")
            s(f"v_pk_add_f32 {vr(16+r,2)}, {vr(16+r,2)}, {vr(ACC+32+r,2)}")
        for r in range(16): s(f"v_mul_f32 v{ACC+r}, v{16+r}, v{16+r}")
        for r in range(16): s(f"v_fma_f32 v{ACC+r}, v{ACC+r}, s57, v9")
        for r in range(16): s(f"v_mul_f32 v{ACC+r}, v{ACC+r}, v{16+r}")
        for r in range(16): s(f"v_exp_f32 v{ACC+r}, v{ACC+r}")
        for r in range(16): s(f"v_add_f32 v{ACC+r}, 1.0, v{ACC+r}")
        for r in range(16): s(f"v_rcp_f32 v{ACC+r}, v{ACC+r}")
        for r in range(16): s(f"v_mul_f32 v{ACC+r}, v{ACC+r}, v{16+r}")
        for q in range(8): s(f"v_cvt_pk_bf16_f32 v{40+q}, v{ACC+2*q}, v{ACC+2*q+1}")
        s(f"""s_mul_i32 s54, s55, {4*10240}
        s_lshl_b32 s57, s56, 9
        s_add_u32 s54, s54, s57
        s_add_u32 s54, s54, {UI}
        s_add_u32 s57, s54, 20480
        buffer_store_dwordx4 v[40:43], v{vH}, {srd(sWS)}, s54 offen sc1
        buffer_store_dwordx4 v[44:47], v{vH}, {srd(sWS)}, s57 offen sc1""")
        if s.fused:
            s(f"""s_mul_i32 s54, s56, 48
            s_add_u32 s54, s54, s55
            s_lshl_b32 s54, s54, 2
            s_add_u32 s54, s54, {F_U}
            s_waitcnt vmcnt(0)""")
            s.set_flag("s54", 4, 5)
        s.gwait()
        s(f"s_branch {s.ln(fin)}")
        s.lab(skip)
        if s.fused: s.hpoll()
        s.lab(fin)
        s.stamp(5)

    def gemm2(s, sJ):
        ACC, UB, BB = 64, (24, 44), 144
        vW, vU, aT = 2, 3, 8
        sST, sDT, sOW, sOU = 50, 51, 52, 53
        NS = 4
        s(f"""s_lshl_b32 s{sST}, s{sXC}, 2
        s_and_b32 s54, s{sI}, 3
        s_add_u32 s{sST}, s{sST}, s54
        s_lshr_b32 s{sDT}, s{sI}, 2
        s_mul_i32 s{sOW}, s{sJ}, {384*4096}
        s_lshl_b32 s54, s{sST}, 7
        s_add_u32 s{sOW}, s{sOW}, s54
        s_mul_i32 s{sOU}, s{sJ}, {48*10240}
        s_mul_i32 s54, s{sDT}, 1280
        s_add_u32 s{sOU}, s{sOU}, s54
        s_add_u32 s{sOU}, s{sOU}, {UI}
        v_lshrrev_b32 v14, 4, v0
        v_and_b32 v15, 15, v0
        v_lshrrev_b32 v4, 3, v0
        v_lshlrev_b32 v4, 12, v4
        v_lshlrev_b32 v5, 1, v14
        v_and_b32 v6, 7, v0
        v_xor_b32 v5, v5, v6
        v_lshl_add_u32 v{vW}, v5, 4, v4
        v_mul_u32_u24 v4, 10240, v14
        v_lshl_add_u32 v{vU}, v15, 4, v4
        v_lshrrev_b32 v4, 5, v0
        v_bfe_u32 v5, v0, 2, 3
        v_lshl_add_u32 v4, v4, 4, v5
        v_lshlrev_b32 v4, 7, v4
        v_and_b32 v6, 3, v0
        v_lshl_add_u32 v4, v6, 3, v4
        v_add_u32 v4, s49, v4
        v_lshrrev_b32 v5, 1, v5""")
        for si in range(4):
            s(f"v_xor_b32 v6, {si}, v5\nv_lshl_add_u32 v{aT+si}, v6, 5, v4")
        def dW(t):
            L = []
            for n in range(4):
                pre = f"s_add_u32 m0, s49, {(t%NS)*4096}\ns_nop 0\n" if n == 0 else ""
                inc = 32768-1024 if n < 3 else 32768+3*1024
                L.append(pre + f"buffer_load_dwordx4 v{vW}, {srd(sW2)}, s{sOW} offen offset:{1024*n} lds\ns_add_u32 s{sOW}, s{sOW}, {inc}")
            return L
        def lU(t):
            L = [f"buffer_load_dwordx4 {vr(UB[t&1]+4*di,4)}, v{vU}, {srd(sWS)}, s{sOU} offen offset:{256*di} sc1" for di in range(5)]
            L[4] += f"\ns_add_u32 s{sOU}, s{sOU}, 40960"
            return L
        def rd(t, si):
            o = (t % NS)*4096
            return f"ds_read_b64_tr_b16 {vr(BB+4*si,2)}, v{aT+si} offset:{o}\nds_read_b64_tr_b16 {vr(BB+4*si+2,2)}, v{aT+si} offset:{o+1024}"
        def mf(t, si, di):
            d = vr(ACC+20*si+4*di,4)
            return f"v_mfma_f32_16x16x32_bf16 {d}, {vr(UB[t&1]+4*di,4)}, {vr(BB+4*si,4)}, {d}"
        for t in range(3):
            for l in dW(t): s(l)
        for r in range(80): s(f"v_mov_b32 v{ACC+r}, 0")
        if s.fused:
            s(f"""s_mul_i32 s54, s{sDT}, 80
            s_lshr_b32 s54, s54, 5
            s_mul_i32 s54, s54, 48
            s_mul_i32 s55, s{sJ}, 12
            s_add_u32 s54, s54, s55
            s_lshl_b32 s54, s54, 2
            s_add_u32 s54, s54, {F_U}
            v_min_u32 v4, 2, v14
            v_mul_u32_u24 v4, 48, v4
            v_min_u32 v5, 11, v15
            v_add_lshl_u32 v4, v4, v5, 2""")
            s.poll([(5,1,4,sWS,"s54",0)])
        s.stamp(6)
        for t in range(2):
            for l in lU(t): s(l)
        s("s_waitcnt vmcnt(10)")
        for si in range(4): s(rd(0, si))
        NT = 12
        for t in range(NT):
            if t == 0: s("s_waitcnt vmcnt(5)")
            else:
                younger = (4 if t+2 < NT else 0) + (5 if t+1 < NT else 0)
                s(f"s_waitcnt vmcnt({younger})")
            W = dW(t+3) if t+3 < NT else [""]*4
            U = lU(t+2) if t+2 < NT else [""]*5
            for si in range(4):
                s(f"s_waitcnt lgkmcnt({6 if t+1 < NT else 2*(3-si)})")
                for di in range(5):
                    s(mf(t, si, di))
                    if si == 3: s(U[di])
                    if si == 1 and di < 4: s(W[di])
                if t+1 < NT: s(rd(t+1, si))
        s.stamp(7)
        s(f"""v_lshlrev_b32 v4, 4, v0
        v_add_u32 v5, s49, v4
        s_mul_i32 s54, s{sJ}, 5120
        v_add_u32 v4, s54, v4
        v_add_u32 v7, {2*GREG}, v4
        s_lshl_b32 s55, s{sST}, 6
        s_lshl_b32 s54, s{sJ}, 4
        s_add_u32 s55, s55, s54
        v_add_lshl_u32 v6, s55, v15, 1
        v_lshlrev_b32 v12, 1, v6
        s_mov_b32 s54, {GI}
        s_nop 4
        global_load_ushort v16, v6, s[{sB2}:{sB2+1}]
        buffer_load_dword v18, v12, {srd(sWS)}, s54 offen sc1""")
        for n in range(20):
            s(f"ds_write_b128 v5, {vr(ACC+4*n,4)} offset:{1024*n}")
        s.gpost(); s.gwait()
        for src in range(4):
            for q in range(5):
                s(f"ds_read_b128 {vr(ACC+20*src+4*q,4)}, v{4 if src < 2 else 7} offset:{(src&1)*GREG + 1024*q}")
        for m in range(5):
            s(f"""v_add_u32 v4, {64*m}, v0
            v_mul_u32_u24 v5, 6554, v4
            v_lshrrev_b32 v5, 16, v5
            v_mul_u32_u24 v6, {1280-160}, v5
            v_lshl_add_u32 v{8+m}, v4, 4, v6""")
        s(f"""s_mul_i32 s56, s{sJ}, {160*1280}
        s_mul_i32 s54, s{sDT}, 160
        s_add_u32 s56, s56, s54
        s_waitcnt vmcnt(0)
        v_lshlrev_b32 v16, 16, v16
        v_sub_f32 v18, 1.0, v18""")
        s.gpost()
        AC = 24
        s("v_mov_b32 v17, v16\nv_mov_b32 v19, v18")
        for r in range(0, 20, 2):
            s(f"v_pk_add_f32 {vr(ACC+r,2)}, {vr(ACC+r,2)}, {vr(ACC+20+r,2)}")
            s(f"v_pk_add_f32 {vr(ACC+40+r,2)}, {vr(ACC+40+r,2)}, {vr(ACC+60+r,2)}")
            s(f"v_pk_add_f32 {vr(ACC+r,2)}, {vr(ACC+r,2)}, v[16:17]")
            s(f"v_pk_add_f32 {vr(ACC+r,2)}, {vr(ACC+r,2)}, {vr(ACC+40+r,2)}")
            s(f"v_pk_mul_f32 {vr(AC+r,2)}, {vr(ACC+r,2)}, v[18:19]")
        s.gwait()
        s("s_mov_b32 m0, s49")
        for n in range(25):
            s(f"s_nop 0\nbuffer_load_dwordx4 v{8+n%5}, {srd(sWO)}, s56 offen lds\ns_add_u32 m0, m0, 1024")
            if n % 5 == 4: s(f"s_add_u32 s56, s56, {32*1280}")
        s(f"""v_lshrrev_b32 v4, 5, v0
        v_mul_u32_u24 v4, 20, v4
        v_bfe_u32 v5, v0, 2, 3
        v_add_u32 v4, v4, v5
        v_mul_u32_u24 v4, 160, v4
        v_and_b32 v6, 3, v0
        v_lshl_add_u32 v2, v6, 3, v4
        v_add_u32 v3, 51200, v2
        v_bfe_u32 v5, v0, 2, 2
        v_mul_u32_u24 v4, 40, v14
        v_add_u32 v4, v4, v5
        v_add_u32 v4, 16, v4
        v_mul_u32_u24 v4, 160, v4
        v_lshl_add_u32 v4, v6, 3, v4
        v_and_b32 v6, 1, v14
        v_mul_u32_u24 v6, 3200, v6
        v_sub_u32 v5, v4, v6
        v_add_u32 v5, 3200, v5
        v_add_u32 v4, v4, v6
        v_add_u32 v6, 51200, v4
        v_add_u32 v7, 51200, v5
        v_lshlrev_b32 v13, 15, v14
        v_lshl_add_u32 v13, v15, 4, v13
        s_lshl_b32 s56, s55, 4
        s_add_u32 s56, s56, {OI}
        s_waitcnt vmcnt(0)""")
        s.gpost(); s.gwait()
        OB = 64; WB = (44, 144)
        def rdo(t):
            b = WB[t & 1]; L = []
            for di in range(5):
                if t < 16:
                    a = 2 if t < 8 else 3; o = (t % 8)*6400 + 32*di
                    L.append(f"ds_read_b64_tr_b16 {vr(b+4*di,2)}, v{a} offset:{o}\nds_read_b64_tr_b16 {vr(b+4*di+2,2)}, v{a} offset:{o+1280}")
                else:
                    tp = t-16; a = 4 if tp < 2 else 6; o = (tp % 2)*25600 + 32*di
                    L.append(f"ds_read_b64_tr_b16 {vr(b+4*di,2)}, v{a} offset:{o}\nds_read_b64_tr_b16 {vr(b+4*di+2,2)}, v{a+1} offset:{o}")
            return L
        for l in rdo(0): s(l)
        if s.fused:
            s(f"""s_lshr_b32 s54, s55, 5
            s_lshl_b32 s54, s54, 7
            s_add_u32 s54, s54, {F_O}
            v_and_b32 v8, 31, v0
            v_lshlrev_b32 v8, 2, v8""")
            s.poll([(9,1,8,sWS,"s54",0)], sleep=1)
        s.stamp(8)
        s("s_setprio 2")
        for t in range(20):
            s(f"buffer_load_dwordx4 {vr(OB+4*t,4)}, v13, {srd(sWS)}, s56 offen sc1\ns_add_u32 s56, s56, 131072")
        for t in range(20):
            R = rdo(t+1) if t+1 < 20 else [""]*5
            s(f"s_waitcnt vmcnt({19-t}) lgkmcnt(0)")
            for di in range(5):
                d = vr(AC+4*di,4)
                s(f"v_mfma_f32_16x16x32_bf16 {d}, {vr(WB[t&1]+4*di,4)}, {vr(OB+4*t,4)}, {d}")
                s(R[di])
        s(f"""v_add_u32 v2, s55, v15
        v_mul_u32_u24 v2, 1280, v2
        v_lshl_add_u32 v2, v14, 3, v2
        s_mul_i32 s54, s{sDT}, 160
        s_nop 4""")
        for di in range(5):
            s(f"""v_cvt_pk_bf16_f32 v{4+2*di}, v{AC+4*di}, v{AC+4*di+1}
            v_cvt_pk_bf16_f32 v{5+2*di}, v{AC+4*di+2}, v{AC+4*di+3}
            buffer_store_dwordx2 {vr(4+2*di,2)}, v2, {srd(sOUT)}, s54 offen offset:{32*di}""")

    def text(s):
        s.prologue()
        head = f".globl {s.k}\n.p2align 8\n.type {s.k},@function\n{s.k}:\n"
        return head + "\n".join(s.L) + "\n"

def kd(k):
    return f""".amdhsa_kernel {k}
  .amdhsa_next_free_vgpr 168
  .amdhsa_next_free_sgpr 102
  .amdhsa_accum_offset 168
  .amdhsa_group_segment_fixed_size 0
  .amdhsa_kernarg_size 96
  .amdhsa_user_sgpr_count 2
  .amdhsa_user_sgpr_kernarg_segment_ptr 1
  .amdhsa_system_sgpr_workgroup_id_x 1
.end_amdhsa_kernel
"""

def build(mode="fused", stamps=False, opt=None):
    geo = f"grid=(256,1,1) block=(768,1,1) lds={LDS_BYTES}"
    if mode == "fused":
        ks = [(NAME + "_kernel", ('qkv','att','g1','g2'))]
        hdr = f"; @launch {geo}\n"
    else:
        ks = [("pa_kernel", ('qkv',)), ("pb_kernel", ('att','g1')), ("pc_kernel", ('g2',))]
        hdr = "".join(f"; @launch kernel={k} {geo}\n" for k, _ in ks)
    out = hdr + '.amdgcn_target "amdgcn-amd-amdhsa--gfx950"\n.text\n'
    for k, ph in ks:
        out += Gen(k, ph, mode == "fused", stamps, opt).text()
    out += '.section .rodata,"a"\n'
    for k, _ in ks:
        out += ".p2align 6\n" + kd(k)
    return out

if __name__ == "__main__":
    mode = sys.argv[1] if len(sys.argv) > 1 else "fused"
    stamps = len(sys.argv) > 3 and sys.argv[3] == "stamps"
    open(sys.argv[2], "w").write(build(mode, stamps))
```

```python
import sys, math, struct

NAME = "gated_mix__mha_block__mixer_token_mlp__prompt"

QI = 0x000000
KI = 0x280000
VI = 0x500000
HI = 0x780000
UI = 0xA00000
OI = 0xC00000
GI = 0xE80000
FL = 0xE90000
FSP = 64
F_H = FL
F_Q = FL + 0x4000
F_U = FL + 0x8000
F_O = FL + 0xC000
FL_BYTES = 0x10000
STAMP = 0xF00000
WS_BYTES = 0x1000000

GREG = 25600
KVB = 102400
KVS = 11520
LNS = 148480
SYN = 158720
SY_PA = SYN
SY_PG = SYN + 32
SY_GOK = SYN + 48
SY_QOK = SYN + 52
SY_HOK = SYN + 56
SY_UOK = SYN + 60
SY_OOK = SYN + 64
SY_CQ = SYN + 68
SY_CU = SYN + 72
SY_CO = SYN + 76
LDS_BYTES = 163840

SPIN_LIMIT = 200000

def fbits(x):
    return "0x%08x" % struct.unpack("<I", struct.pack("<f", x))[0]

sX, sWQ, sWO, sW1, sW2, sWS, sOUT, sDBG = 4, 8, 12, 16, 20, 24, 28, 32
sB1, sB2, sGW = 36, 38, 40
sW, sXC, sI = 42, 43, 44
sSPIN = 45
def srd(n): return f"s[{n}:{n+3}]"
def vr(a, n): return f"v[{a}:{a+n-1}]" if n > 1 else f"v{a}"

class Gen:
    def __init__(s, kname, phases, fused, stamps=False, opt=None):
        s.L = []
        s.k = kname
        s.ph = phases
        s.fused = fused
        s.stamps = stamps
        s.uid = 0
        s.opt = opt or {}
    def __call__(s, t):
        for l in t.split("\n"):
            l = l.strip()
            if l: s.L.append("    " + l)
    def lab(s, n):
        s.L.append(f"{s.k}_{n}:")
    def ln(s, n):
        return f"{s.k}_{n}"
    def new(s, base):
        s.uid += 1
        return f"{base}{s.uid}"
    def stamp(s, i):
        if s.stamps:
            s(f"s_memrealtime s[76:77]\ns_memtime s[78:79]\ns_waitcnt lgkmcnt(0)\ns_mov_b32 s{80+2*i}, s76\ns_mov_b32 s{81+2*i}, s78")
    def end_wave(s):
        if s.stamps:
            s.stamp(9)
            s(f"s_mul_i32 s46, s2, 12\ns_add_u32 s46, s46, s{sW}\ns_lshl_b32 s46, s46, 7\ns_add_u32 s46, s46, {STAMP}")
            s("s_mov_b64 exec, 1\nv_mov_b32 v1, 0")
            for i in range(20):
                s(f"v_mov_b32 v{2+i}, s{80+i}\nbuffer_store_dword v{2+i}, v1, {srd(sWS)}, s46 offen offset:{4*i}")
        s("s_endpgm")

    def lds_spin(s, vaddr, need, vtmp, off=0, sleep=1):
        a, b = s.new("spin"), s.new("spind")
        s(f"s_mov_b32 s{sSPIN}, {SPIN_LIMIT*4}")
        s.lab(a)
        s(f"""ds_read_b32 v{vtmp}, v{vaddr} offset:{off}
        s_waitcnt lgkmcnt(0)
        v_cmp_gt_u32 vcc, {need}, v{vtmp}
        s_cbranch_vccz {s.ln(b)}
        s_sleep {sleep}
        s_sub_u32 s{sSPIN}, s{sSPIN}, 1
        s_cbranch_scc0 {s.ln(a)}""")
        s.lab(b)

    def poll(s, loads, sleep=2):
        a, b = s.new("poll"), s.new("polld")
        s(f"s_mov_b32 s{sSPIN}, {SPIN_LIMIT}")
        s.lab(a)
        regs = []
        for (vd, n, vo, r, so, imm) in loads:
            sfx = {1: "dword", 2: "dwordx2", 4: "dwordx4"}[n]
            s(f"buffer_load_{sfx} {vr(vd,n)}, v{vo}, {srd(r)}, {so} offen offset:{imm} sc1")
            regs += list(range(vd, vd+n))
        s("s_waitcnt vmcnt(0)")
        for q in regs[1:]:
            s(f"v_min_u32 v{regs[0]}, v{regs[0]}, v{q}")
        s(f"""v_cmp_eq_u32 vcc, 0, v{regs[0]}
        s_cbranch_vccz {s.ln(b)}
        s_sleep {sleep}
        s_sub_u32 s{sSPIN}, s{sSPIN}, 1
        s_cbranch_scc0 {s.ln(a)}""")
        s.lab(b)

    def set_flag(s, soff, va, vb):
        s(f"""s_mov_b64 exec, 1
        v_mov_b32 v{va}, 0
        v_mov_b32 v{vb}, 1
        buffer_store_dword v{vb}, v{va}, {srd(sWS)}, {soff} offen sc1
        s_mov_b64 exec, -1""")

    def arrive(s, cnt, n, soff, va, vb):
        nx = s.new("arr")
        s(f"""s_mov_b64 exec, 1
        v_mov_b32 v{va}, {cnt}
        v_mov_b32 v{vb}, 1
        s_waitcnt vmcnt(0)
        ds_add_rtn_u32 v{va}, v{va}, v{vb}
        s_waitcnt lgkmcnt(0)
        v_cmp_eq_u32 vcc, {n-1}, v{va}
        v_mov_b32 v{va}, 0
        s_cbranch_vccz {s.ln(nx)}
        buffer_store_dword v{vb}, v{va}, {srd(sWS)}, {soff} offen sc1""")
        s.lab(nx)
        s("s_mov_b64 exec, -1")

    def lds_set(s, addr, val, va, vb):
        s(f"""v_mov_b32 v{va}, {addr}
        v_mov_b32 v{vb}, {val}
        ds_write_b32 v{va}, v{vb}""")

    def prologue(s):
        s(f"s_cmp_ge_u32 s2, 256\ns_cbranch_scc1 {s.ln('exit')}")
        for reg, off in ((sX,0),(sWQ,8),(sWS,88),(sGW,64),(sDBG,80),(sW1,32),(sW2,48),(sWO,16),(sOUT,72),(sB1,40),(sB2,56)):
            s(f"s_load_dwordx2 s[{reg}:{reg+1}], s[0:1], {off}")
        s("v_lshrrev_b32 v1, 6, v0\nv_and_b32 v0, 63, v0")
        s(f"v_readfirstlane_b32 s{sW}, v1")
        for reg, n in ((sX,2621440),(sWQ,2457600),(sWO,819200),(sW1,6291456),(sW2,6291456),(sWS,WS_BYTES),(sOUT,2621440),(sDBG,256)):
            s(f"s_mov_b32 s{reg+2}, {n}\ns_mov_b32 s{reg+3}, 0x00020000")
        s(f"s_and_b32 s{sXC}, s2, 7\ns_lshr_b32 s{sI}, s2, 3")
        if s.stamps:
            for i in range(10): s(f"s_mov_b32 s{80+2*i}, 0")
        s(f"""s_and_b32 s46, s{sXC}, 3
        s_lshl_b32 s46, s46, 2
        s_and_b32 s48, s{sI}, 3
        s_add_u32 s46, s46, s48
        s_lshr_b32 s47, s{sXC}, 2
        s_lshl_b32 s47, s47, 3
        s_lshr_b32 s48, s{sI}, 2
        s_add_u32 s47, s47, s48
        s_waitcnt lgkmcnt(0)""")
        s.stamp(0)
        s(f"""s_cmp_lt_u32 s{sW}, 8
        s_cbranch_scc1 {s.ln('arole')}
        s_setprio 3
        s_sub_u32 s48, s{sW}, 8""")
        if 'qkv' in s.ph and not s.opt.get('noln'): s.ln_loads(48)
        s(f"s_branch {s.ln('grole')}")
        s.lab("arole")
        if 'qkv' in s.ph:
            s(f"""s_cmp_eq_u32 s47, 15
            s_cbranch_scc1 {s.ln('qkv_idle')}
            s_cmp_lt_u32 s{sW}, 4
            s_cbranch_scc1 {s.ln('qkv_comp')}""")
            s.loader()
            s(f"s_branch {s.ln('att')}")
            s.lab("qkv_idle")
            if s.fused:
                nx = s.new("idle")
                s(f"""s_cmp_lg_u32 s{sW}, 0
                s_cbranch_scc1 {s.ln(nx)}
                v_lshlrev_b32 v1, 4, v0
                v_mov_b32 v4, 0
                v_mov_b32 v5, 0
                v_mov_b32 v6, 0
                v_mov_b32 v7, 0
                s_lshl_b32 s52, s46, 12
                s_add_u32 s52, s52, {FL}""")
                for n in range(4):
                    s(f"buffer_store_dwordx4 v[4:7], v1, {srd(sWS)}, s52 offen offset:{n*1024} sc1")
                s(f"""s_lshl_b32 s52, s46, 2
                s_mov_b64 exec, 1
                s_waitcnt vmcnt(0)
                v_mov_b32 v5, 1
                buffer_store_dword v5, v4, {srd(sDBG)}, s52 offen sc1
                s_mov_b64 exec, -1""")
                s.lab(nx)
            if s.opt.get('pf1', 1):
                nopf, pfd = s.new("nopf"), s.new("pfd")
                s(f"""s_cmp_ge_u32 s{sW}, 4
                s_cbranch_scc1 {s.ln(nopf)}
                s_lshl_b32 s52, s46, 2
                s_add_u32 s52, s52, s{sW}
                v_lshlrev_b32 v1, 7, v0""")
                def pf(n):
                    s(f"""s_mul_i32 s53, s52, 2731
                    s_lshr_b32 s53, s53, 16
                    s_mul_i32 s54, s53, 24
                    s_sub_u32 s54, s52, s54
                    s_mul_i32 s55, s54, 43
                    s_lshr_b32 s55, s55, 8
                    s_mul_i32 s53, s53, {16*3072}
                    s_lshl_b32 s54, s54, 13
                    s_mul_i32 s55, s55, {512*3072 - 6*8192}
                    s_add_u32 s53, s53, s54
                    s_add_u32 s53, s53, s55
                    buffer_load_dword v{100+n}, v1, {srd(sW1)}, s53 offen
                    s_add_u32 s52, s52, 64""")
                s("s_sleep 4")
                pf(0)
                s("s_barrier")
                pf(1)
                for _ in range(4): s("s_barrier")
                pf(2)
                for _ in range(7): s("s_barrier")
                for n in range(3, 6):
                    s("s_waitcnt vmcnt(0)"); pf(n)
                s("s_waitcnt vmcnt(0)")
                if s.fused:
                    s(f"""s_mov_b64 exec, 1
                    v_mov_b32 v4, {SY_CQ}
                    v_mov_b32 v5, 1
                    ds_add_u32 v4, v5
                    s_mov_b64 exec, -1""")
                s(f"s_branch {s.ln('att')}")
                s.lab(nopf)
                for _ in range(12): s("s_barrier")
            else:
                for _ in range(12): s("s_barrier")
                if s.fused: s.lds_set(SY_CQ, 4, 4, 5)
            s(f"s_branch {s.ln('att')}")
            s.lab("qkv_comp")
            s.qkv_compute()
        else:
            s("s_barrier")
        s.lab("att")
        if 'att' in s.ph:
            s.attention()
        s.end_wave()
        s.lab("grole")
        s.grole()
        s.end_wave()
        s.lab("exit")
        s("s_endpgm")

    def code_prefetch(s):
        here = s.new("pc")
        s("s_getpc_b64 s[50:51]")
        s.lab(here)
        s(f"""s_sub_u32 s50, s50, {s.ln(here)}-code_begin
        s_subb_u32 s51, s51, 0
        s_lshl_b32 s52, s{sW}, 5
        s_add_u32 s52, s52, s{sI}
        s_lshl_b32 s52, s52, 2
        v_and_b32 v1, 3, v0
        v_add_lshl_u32 v1, v1, s52, 7
        v_min_u32 v1, code_end-code_begin-4, v1
        s_mov_b64 exec, 15
        global_load_dword v165, v1, s[50:51]
        s_mov_b64 exec, -1""")

    def loader(s):
        s(f"""s_sub_u32 s48, s{sW}, 4
        v_lshrrev_b32 v1, 3, v0
        s_lshl_b32 s49, s48, 5
        v_add_u32 v1, s49, v1
        v_mul_u32_u24 v1, 1280, v1
        v_lshrrev_b32 v2, 4, v0
        v_and_b32 v3, 7, v0
        v_xor_b32 v3, v3, v2
        v_xor_b32 v4, 4, v3
        v_lshl_add_u32 v8, v3, 4, v1
        v_lshl_add_u32 v9, v4, 4, v1
        v_add_u32 v9, {10240-1024}, v9
        v_add_u32 v10, {2*(10240-1024)}, v8
        v_add_u32 v11, {2*(10240-1024)}, v9
        s_lshl_b32 s49, s48, 4
        v_add_u32 v1, s49, v2
        v_mul_u32_u24 v1, 3840, v1
        v_lshlrev_b32 v2, 2, v2
        v_and_b32 v3, 15, v0
        v_xor_b32 v3, v3, v2
        v_lshl_add_u32 v12, v3, 4, v1
        v_add_u32 v13, {15360-1024}, v12
        v_add_u32 v14, {2*(15360-1024)}, v12
        v_add_u32 v15, {3*(15360-1024)}, v12
        s_mul_i32 s50, s46, {128*1280}
        s_lshl_b32 s51, s47, 8
        s_lshl_b32 s52, s48, 12""")
        nt = " nt" if s.opt.get('qnt') else ""
        rot = s.opt.get('qrot', 3)
        if rot in (1, 2):
            s(f"""s_and_b32 s53, s{sI}, 3
            s_mul_i32 s53, s53, 5
            s_lshr_b32 s53, s53, 1
            s_lshr_b32 s54, s{sI}, 2
            s_add_u32 s53, s53, s54""")
            if rot == 2: s(f"s_and_b32 s54, s{sXC}, 3\ns_add_u32 s53, s53, s54")
            s("s_cmp_ge_u32 s53, 10\ns_cselect_b32 s54, 10, 0\ns_sub_u32 s53, s53, s54")
        elif rot == 0:
            s("s_mov_b32 s53, 0")
        else:
            T = {3: ["0412385679", "1250349678", "2306145789", "3012745689"],
                 4: ["0123456789", "1230567498", "2301674589", "3012745698"],
                 5: ["0213546879", "1032457698", "0132547689", "1023456798"],
                 6: ["0216354879", "1032745698", "0132485679", "1023549678"]}[rot]
            def enc(o):
                v = 0
                for j, ch in enumerate(o): v |= int(ch) << (4*j)
                return v
            s(f"""s_lshr_b32 s54, s{sI}, 2
            s_add_u32 s54, s54, s{sI}
            s_bitcmp1_b32 s54, 0
            s_cselect_b32 s56, {enc(T[1]) & 0xffffffff}, {0}
            s_cselect_b32 s57, {enc(T[1]) >> 32}, {0}
            s_cselect_b32 s58, {enc(T[3]) & 0xffffffff}, {0}
            s_cselect_b32 s59, {enc(T[3]) >> 32}, {0}
            s_cselect_b32 s60, 0, {enc(T[0]) & 0xffffffff}
            s_cselect_b32 s61, 0, {enc(T[0]) >> 32}
            s_cselect_b32 s62, 0, {enc(T[2]) & 0xffffffff}
            s_cselect_b32 s63, 0, {enc(T[2]) >> 32}
            s_or_b64 s[56:57], s[56:57], s[60:61]
            s_or_b64 s[58:59], s[58:59], s[62:63]
            s_bitcmp1_b32 s54, 1
            s_cselect_b64 s[56:57], s[58:59], s[56:57]
            s_and_b32 s53, s56, 15""")
        spf = s.opt.get('spf', 0)
        if spf:
            s(f"""s_mul_i32 s64, s46, 15
            s_add_u32 s64, s64, s47
            s_mul_i32 s64, s64, 3328
            s_min_u32 s64, s64, {786432-3328}
            s_mul_i32 s65, s48, {512*3072}
            s_add_u32 s64, s64, s65
            s_add_u32 s64, s64, {256*3072}
            s_add_u32 s64, s64, s{sW1}
            s_addc_u32 s65, s{sW1+1}, 0""")
        cnt = [0]
        def sp(t):
            if spf and t >= 2 and cnt[0] < 52:
                s(f"s_load_dword s70, s[64:65], {64*cnt[0]}"); cnt[0] += 1
        def issue(t):
            s(f"""s_lshl_b32 s54, s53, 7
            s_add_u32 m0, s52, {(t&3)*32768}
            s_add_u32 s54, s54, s50""")
            for n in range(4):
                s(f"buffer_load_dwordx4 v{8+n}, {srd(sX)}, s54 offen offset:{1024*n}{nt} lds"); sp(t)
            s(f"""s_mul_i32 s54, s53, {64*3840}
            s_add_u32 m0, s52, {(t&3)*32768+16384}
            s_add_u32 s54, s54, s51""")
            for n in range(4):
                s(f"buffer_load_dwordx4 v{12+n}, {srd(sWQ)}, s54 offen offset:{1024*n}{nt} lds"); sp(t)
            if rot < 3: s("s_add_u32 s53, s53, 1\ns_cmp_eq_u32 s53, 10\ns_cselect_b32 s53, 0, s53")
            else: s("s_lshr_b64 s[56:57], s[56:57], 4\ns_and_b32 s53, s56, 15")
        issue(0); issue(1)
        for t in range(10):
            s(f"s_waitcnt vmcnt({8 if t < 9 else 0})")
            if s.opt.get('ldstamp') and t < 6: s.stamp(3+t)
            s("s_barrier")
            if t == 0: s.stamp(1)
            if t+2 <= 9: issue(t+2)
        s("s_barrier\ns_barrier\ns_waitcnt lgkmcnt(0)")
        s.stamp(2)

    def qkv_compute(s):
        ACC, F = 64, (32, 48, 128, 144)
        if s.opt.get('cpf', 1): s.code_prefetch()
        s(f"""s_and_b32 s48, s{sW}, 1
        s_lshr_b32 s49, s{sW}, 1
        v_and_b32 v8, 31, v0
        v_lshrrev_b32 v9, 5, v0
        s_lshl_b32 s50, s48, 13
        v_lshl_add_u32 v10, v8, 7, s50
        v_bfe_u32 v11, v0, 1, 3
        v_xor_b32 v11, v11, v9""")
        for ks in range(4):
            s(f"v_xor_b32 v12, {2*ks}, v11\nv_lshl_add_u32 v{2+ks}, v12, 4, v10")
        s(f"""v_bfe_u32 v11, v0, 2, 2
        v_lshl_add_u32 v12, v9, 3, v11
        v_lshlrev_b32 v12, 8, v12
        v_bfe_u32 v13, v0, 4, 1
        v_lshl_add_u32 v12, v13, 5, v12
        v_and_b32 v13, 3, v0
        v_lshl_add_u32 v12, v13, 3, v12
        v_add_u32 v12, 16384, v12
        s_lshl_b32 s50, s49, 1
        v_xor_b32 v11, s50, v11
        v_lshl_add_u32 v6, v11, 6, v12
        v_xor_b32 v7, 64, v6""")
        for r in range(64): s(f"v_mov_b32 v{ACC+r}, 0")
        def reads(buf, sl, ks):
            b = F[buf]; o = sl*32768
            return [f"ds_read_b128 {vr(b,4)}, v{2+ks} offset:{o}",
                    f"ds_read_b64_tr_b16 {vr(b+8,2)}, v6 offset:{o+ks*4096}",
                    f"ds_read_b64_tr_b16 {vr(b+10,2)}, v6 offset:{o+ks*4096+1024}",
                    f"ds_read_b128 {vr(b+4,4)}, v{2+ks} offset:{o+4096}",
                    f"ds_read_b64_tr_b16 {vr(b+12,2)}, v7 offset:{o+ks*4096}",
                    f"ds_read_b64_tr_b16 {vr(b+14,2)}, v7 offset:{o+ks*4096+1024}"]
        def mf(buf, i, j, isv):
            b = F[buf]; xa = vr(b+4*i,4); wa = vr(b+8+4*j,4); d = vr(ACC+16*(2*i+j),16)
            return f"v_mfma_f32_32x32x16_bf16 {d}, {xa if isv else wa}, {wa if isv else xa}, {d}"
        s("s_barrier")
        s.stamp(1)
        for l in reads(0,0,0) + reads(1,0,1): s(l)
        s(f"s_mov_b32 s51, 5\ns_cmp_ge_u32 s47, 10\ns_cbranch_scc1 {s.ln('qkv_v')}")
        for isv in (0, 1):
            if isv: s.lab("qkv_v")
            lp = s.new("qkvl")
            s.lab(lp)
            for n in range(8):
                buf = n & 3
                R = reads((n+2) & 3, ((n+2) >> 2) & 1, (n+2) & 3)
                s("s_waitcnt lgkmcnt(6)")
                s(mf(buf,0,0,isv))
                if n == 6:
                    for a in (2,6,7): s(f"v_xor_b32 v{a}, 0x10000, v{a}")
                if n == 7:
                    for a in (3,4,5): s(f"v_xor_b32 v{a}, 0x10000, v{a}")
                if buf == 2: s("s_barrier")
                s(R[0]); s(R[1])
                s(mf(buf,1,0,isv))
                s(R[2]); s(R[3])
                s(mf(buf,0,1,isv))
                s(R[4]); s(R[5])
                s(mf(buf,1,1,isv))
            s(f"s_sub_u32 s51, s51, 1\ns_cmp_lg_u32 s51, 0\ns_cbranch_scc1 {s.ln(lp)}")
            s("s_barrier")
            s.stamp(2)
            P = 32
            if not isv:
                s(f"""s_cmp_lt_u32 s47, 5
                s_cselect_b32 s52, {fbits(20**-0.5*math.log2(math.e))}, 1.0
                s_mov_b32 s53, s52
                v_lshlrev_b32 v2, 15, v9
                v_lshl_add_u32 v2, v8, 4, v2
                s_lshl_b32 s54, s47, 4
                s_lshl_b32 s55, s49, 3
                s_add_u32 s54, s54, s55
                s_lshl_b32 s54, s54, 15
                s_lshl_b32 s55, s46, 11
                s_add_u32 s54, s54, s55
                s_lshl_b32 s55, s48, 10
                s_add_u32 s54, s54, s55
                s_waitcnt lgkmcnt(0)""")
            else:
                s(f"""s_sub_u32 s54, s47, 10
                s_lshl_b32 s54, s54, 7
                s_lshl_b32 s55, s49, 6
                s_add_u32 s54, s54, s55
                v_add_u32 v4, s54, v8
                v_mul_u32_u24 v6, 320, v9""")
                for j in range(2):
                    s(f"""v_mul_u32_u24 v5, 3277, v4
                    v_lshrrev_b32 v5, 16, v5
                    v_mul_u32_u24 v{2+j}, {81920-320}, v5
                    v_lshl_add_u32 v{2+j}, v4, 4, v{2+j}
                    v_add_u32 v{2+j}, v{2+j}, v6
                    v_add_u32 v4, 32, v4""")
                s(f"""s_lshl_b32 s54, s46, 1
                s_add_u32 s54, s54, s48
                s_mul_i32 s54, s54, {8*320}
                s_add_u32 s54, s54, {VI}
                s_waitcnt lgkmcnt(0)""")
            n = 0
            for j in range(2):
                for gp in range(2):
                    for i in range(2):
                        a = ACC + 16*(2*i+j) + 8*gp
                        p = P + 4*(n % 8); n += 1
                        if not isv:
                            for q in range(4):
                                s(f"v_pk_mul_f32 {vr(a+2*q,2)}, {vr(a+2*q,2)}, s[52:53]")
                        for q in range(4):
                            s(f"v_cvt_pk_bf16_f32 v{p+q}, v{a+2*q}, v{a+2*q+1}")
                        s(f"s_nop 1\nv_permlane32_swap_b32 v{p}, v{p+2}\nv_permlane32_swap_b32 v{p+1}, v{p+3}")
                        if not isv:
                            s(f"buffer_store_dwordx4 {vr(p,4)}, v2, {srd(sWS)}, s54 offen offset:{512*i} sc1")
                        else:
                            s(f"buffer_store_dwordx4 {vr(p,4)}, v{2+j}, {srd(sWS)}, s54 offen offset:{(4*i+2*gp)*320} sc1")
                    if not isv: s("s_add_u32 s54, s54, 65536")
            if not isv: s(f"s_branch {s.ln('qkv_pub')}")
        s.lab("qkv_pub")
        if s.fused:
            s(f"""s_lshl_b32 s54, s47, 4
            s_add_u32 s54, s54, s46
            s_mul_i32 s54, s54, {FSP}
            s_add_u32 s54, s54, {F_Q}
            v_mov_b32 v4, {SY_GOK}""")
            s.lds_spin(4, 1, 5)
            s.arrive(SY_CQ, 4, "s54", 4, 5)
        s.stamp(3)

    def attention(s):
        Q1, Q2, K1, K2, V0, V1 = 8, 12, 16, 14, 20, 24
        S = (32, 48); O = 64
        aK1, aK2, aV, vK, vV, vIDX, aPW, vPR, aPR, vPC = 2, 3, 4, 5, 6, 7, 28, 29, 30, 31
        sH, sQB, sP, sODD, sKO, sVO, sMK, sMV, sN, sNEED, sTOK = 46, 47, 48, 49, 50, 51, 52, 53, 54, 55, 56
        EK, EV = "s[58:59]", "s[60:61]"
        sKB, sVB = 62, 63
        s(f"""s_setprio {s.opt.get('aprio', 1)}
        s_lshl_b32 s{sH}, s{sXC}, 2
        s_and_b32 s57, s{sI}, 3
        s_add_u32 s{sH}, s{sH}, s57
        s_lshr_b32 s{sQB}, s{sI}, 2
        s_lshr_b32 s{sP}, s{sH}, 1
        s_and_b32 s{sODD}, s{sH}, 1
        s_mov_b32 s58, -1
        s_mov_b32 s59, 0xffff
        s_mov_b32 s60, 0xffefffff
        s_mov_b32 s61, 0x1ff
        s_mul_i32 s{sKB}, s{sP}, {5*32768}
        s_add_u32 s{sKB}, s{sKB}, {KI}
        s_mul_i32 s{sVB}, s{sH}, 81920
        s_add_u32 s{sVB}, s{sVB}, {VI}
        s_mul_i32 s{sMK}, s{sW}, 768
        s_add_u32 s{sMK}, s{sMK}, {KVB}
        s_mul_i32 s{sMV}, s{sW}, 672
        s_add_u32 s{sMV}, s{sMV}, {KVB+6144}
        s_lshl_b32 s{sTOK}, s{sQB}, 8
        s_lshl_b32 s57, s{sW}, 5
        s_add_u32 s{sTOK}, s{sTOK}, s57
        v_and_b32 v80, 31, v0
        v_lshrrev_b32 v81, 5, v0
        v_and_b32 v82, 15, v0
        v_lshrrev_b32 v83, 4, v0""")
        s(f"""s_mul_i32 s57, s{sODD}, 3
        v_add_u32 v84, s57, v83
        v_cmp_gt_u32 vcc, 2, v83
        s_lshl_b32 s64, s{sW}, 8
        s_nop 0
        v_cndmask_b32 v84, 2, v84, vcc
        v_lshlrev_b32 v84, 15, v84
        v_lshl_add_u32 v84, v82, 4, v84
        v_add_u32 v{vK}, s64, v84""")
        s(f"""v_cmp_lt_u32 vcc, 20, v0
        s_mul_i32 s64, s{sW}, 640
        v_subrev_u32 v84, 1, v0
        v_cndmask_b32 v84, v0, v84, vcc
        v_lshlrev_b32 v84, 4, v84
        v_add_u32 v{vV}, s64, v84""")
        s(f"""v_bfe_u32 v84, v0, 4, 1
        v_mul_u32_u24 v84, 768, v84
        v_lshl_add_u32 v84, v82, 4, v84
        v_add_u32 v84, {KVB}, v84
        v_lshl_add_u32 v{aK1}, v81, 8, v84
        v_lshl_add_u32 v{aK2}, v81, 3, v84
        v_add_u32 v{aK2}, 512, v{aK2}
        v_min_u32 v84, 20, v80
        v_subrev_u32 v85, 12, v80
        v_cmp_lt_u32 vcc, 27, v80
        v_mul_u32_u24 v86, 336, v81
        v_mov_b32 v{vIDX}, 0xdddd
        v_cndmask_b32 v84, v84, v85, vcc
        v_lshl_add_u32 v84, v84, 4, v86
        v_add_u32 v{aV}, {KVB+6144}, v84
        s_lshl_b32 s64, s{sW}, 2
        s_add_u32 s64, s64, {SY_PA}
        v_mov_b32 v{aPW}, s64
        v_and_b32 v84, 7, v0
        v_lshlrev_b32 v84, 2, v84
        v_add_u32 v{aPR}, {SY_PA}, v84
        v_mov_b32 v{vPC}, 1""")
        for r in range(16): s(f"v_mov_b32 v{O+r}, 0")
        for r in range(8): s(f"v_mov_b32 v{S[1]+8+r}, 0")
        for r in range(4): s(f"v_mov_b32 v{V1+r}, 0")
        nx = s.new("a")
        s(f"""s_cmp_lg_u32 s{sW}, 5
        s_cbranch_scc1 {s.ln(nx)}
        v_mul_u32_u24 v84, {KVS}, v83
        v_mul_u32_u24 v85, 336, v82
        v_add_u32 v84, v84, v85
        v_add_u32 v84, {KVB+6144+320}, v84
        v_mov_b32 v88, 0x3f803f80
        v_mov_b32 v89, 0x3f803f80
        v_mov_b32 v90, 0x3f803f80
        v_mov_b32 v91, 0x3f803f80
        ds_write_b128 v84, v[88:91]""")
        s.lab(nx)
        if s.fused:
            nx = s.new("a")
            s(f"""s_cmp_lg_u32 s{sW}, 4
            s_cbranch_scc1 {s.ln(nx)}
            s_mul_i32 s64, s{sP}, 5
            s_lshl_b32 s65, s{sODD}, 1
            s_add_u32 s64, s64, s65
            v_bfe_u32 v86, v0, 4, 1
            v_lshl_add_u32 v84, v86, 1, s64
            v_lshrrev_b32 v84, 4, v84
            s_mul_i32 s64, s{sH}, 20
            v_mul_u32_u24 v85, 19, v86
            v_add_u32 v85, s64, v85
            v_lshrrev_b32 v85, 7, v85
            v_add_u32 v85, 5, v85
            v_cmp_eq_u32 vcc, 0, v81
            s_lshl_b32 s64, s{sQB}, 1
            v_and_b32 v87, 1, v0
            v_cndmask_b32 v85, v85, v84, vcc
            v_add_u32 v85, 5, v85
            v_lshl_add_u32 v85, v85, 4, v82
            v_mul_u32_u24 v85, {FSP}, v85
            v_add_u32 v87, s64, v87
            v_lshl_add_u32 v84, v84, 4, v87
            v_mul_u32_u24 v84, {FSP}, v84
            s_mov_b32 s64, {F_Q}
            v_mov_b32 v86, {SY_GOK}""")
            s.lds_spin(86, 1, 87)
            s.lds_spin(86, 4, 87, off=SY_CQ-SY_GOK)
            s.poll([(88,1,85,sWS,"s64",0),(89,1,84,sWS,"s64",0)], sleep=s.opt.get('psl', 4))
            s.lds_set(SY_QOK, 1, 84, 85)
            s.lab(nx)
            s(f"v_mov_b32 v86, {SY_QOK}")
            s.lds_spin(86, 1, 87)
        s.stamp(4)
        s(f"""s_mul_i32 s57, s{sODD}, 3
        v_add_u32 v84, s57, v81
        v_lshlrev_b32 v84, 15, v84
        v_lshl_add_u32 v84, v80, 4, v84
        v_lshlrev_b32 v85, 4, v80
        v_lshl_add_u32 v85, v81, 3, v85
        s_lshl_b32 s64, s{sTOK}, 4
        s_add_u32 s64, s64, s{sKB}
        s_sub_u32 s64, s64, {KI-QI}
        s_add_u32 s65, s64, 65536
        s_lshl_b32 s{sN}, s{sQB}, 1""")
        def dma(slot):
            return [f"s_and_b32 s57, s{sN}, 15",
                    f"s_mul_i32 s{sVO}, s57, 5120",
                    f"s_lshl_b32 s{sKO}, s57, 11",
                    f"s_cmp_lt_u32 s66, 16",
                    f"s_cselect_b32 s67, s{sKB}, {WS_BYTES}",
                    f"s_cselect_b32 s68, s{sVB}, {WS_BYTES}",
                    f"s_add_u32 s{sKO}, s{sKO}, s67",
                    f"s_add_u32 s{sVO}, s{sVO}, s68",
                    f"s_add_u32 m0, s{sMK}, {slot*KVS}",
                    f"s_mov_b64 exec, {EK}",
                    f"buffer_load_dwordx4 v{vK}, {srd(sWS)}, s{sKO} offen sc1 lds",
                    f"s_add_u32 m0, s{sMV}, {slot*KVS}",
                    f"s_mov_b64 exec, {EV}",
                    f"buffer_load_dwordx4 v{vV}, {srd(sWS)}, s{sVO} offen sc1 lds",
                    f"s_mov_b64 exec, -1",
                    f"s_add_u32 s{sN}, s{sN}, 1",
                    f"s_add_u32 s66, s66, 1"]
        s("s_mov_b32 s66, 0")
        for l in dma(0): s(l)
        s(f"""buffer_load_dwordx4 {vr(Q1,4)}, v84, {srd(sWS)}, s64 offen sc1
        buffer_load_dwordx2 {vr(Q2,2)}, v85, {srd(sWS)}, s65 offen sc1""")
        if s.fused:
            s(f"v_mov_b32 v86, {SY_HOK}")
            s.lds_spin(86, 1, 87)
        s(f"""v_lshlrev_b32 v84, 2, v80
        s_lshl_b32 s64, s{sTOK}, 2
        s_add_u32 s64, s64, {GI}
        buffer_load_dword v92, v84, {srd(sWS)}, s64 offen sc1""")
        for l in dma(1): s(l)
        for l in dma(2): s(l)
        s(f"""s_waitcnt vmcnt(4) lgkmcnt(0)
        ds_write_b32 v{aPW}, v{vPC}
        v_cmp_eq_u32 vcc, s{sODD}, v81
        v_add_u32 v{vPC}, 1, v{vPC}
        s_mov_b32 s{sNEED}, 2
        v_cndmask_b32 v{Q2}, 0, v{Q2}, vcc
        v_cndmask_b32 v{Q2+1}, 0, v{Q2+1}, vcc""")
        s.lds_spin(aPR, 1, vPR)
        s.stamp(5)
        def off(T):
            T %= 16
            return (T >> 2)*KVS, T & 3
        def rK1(T):
            b, tt = off(T); return f"ds_read_b128 {vr(K1,4)}, v{aK1} offset:{b+tt*1536}"
        def rK2(T):
            b, tt = off(T); return f"ds_read_b64 {vr(K2,2)}, v{aK2} offset:{b+tt*1536}"
        def rV(T, a):
            b, tt = off(T); return f"ds_read_b128 {vr((V0,V1)[a],4)}, v{aV} offset:{b+(4*tt+2*a)*336}"
        def qk0(d): return f"v_mfma_f32_32x32x16_bf16 {vr(d,16)}, {vr(K1,4)}, {vr(Q1,4)}, 0"
        def qk1(d): return f"v_mfma_f32_32x32x8_bf16 {vr(d,16)}, {vr(K2,2)}, {vr(Q2,2)}, {vr(d,16)}"
        def pv(v, p): return f"v_smfmac_f32_32x32x32_bf16 {vr(O,16)}, {vr(v,4)}, {vr(p,8)}, v{vIDX}"
        s(rK1(0)); s(rK2(0)); s("s_waitcnt lgkmcnt(0)")
        s(qk0(S[0])); s(qk1(S[0]))
        s(rK1(1)); s(rK2(1)); s(rV(0,0))
        s("s_mov_b32 s69, 4\ns_nop 7")
        lp = s.new("attl")
        s.L.append(".p2align 6")
        s.lab(lp)
        for T in range(16):
            cur, nxt = S[T & 1], S[(T & 1) ^ 1]
            E = [f"v_exp_f32 v{cur+i}, v{cur+i}" for i in range(16)]
            tt = T & 3
            if tt == 2:
                ok = s.new("ok")
                s(E[0]); s(E[1])
                s("s_waitcnt lgkmcnt(0)")
                s(pv(V1, nxt+8))
                s(f"v_cmp_gt_u32 vcc, s{sNEED}, v{vPR}")
                s(rV(T,1))
                s(f"s_cbranch_vccz {s.ln(ok)}")
                s.lds_spin(aPR, f"s{sNEED}", vPR)
                s.lab(ok)
                D = dma(((T >> 2) + 3) & 3)
                s(E[2]); s("\n".join(D[0:4])); s(E[3]); s("\n".join(D[4:8])); s(E[4])
                s(qk0(nxt)); s(rK1(T+2))
                s(E[5]); s(E[6]); s(E[7])
                s(qk1(nxt)); s(rK2(T+2))
                s("\n".join(D[8:15]))
                s(E[8]); s("\n".join(D[15:17])); s(f"s_add_u32 s{sNEED}, s{sNEED}, 1")
                s(E[9]); s(E[10]); s(E[11])
                s(pv(V0, cur)); s(rV(T+1,0))
                for e in E[12:]: s(e)
            else:
                s(E[0]); s(E[1])
                s("s_waitcnt lgkmcnt(2)")
                s(pv(V1, nxt+8)); s(rV(T,1))
                if tt == 0:
                    s(f"s_waitcnt vmcnt(2)\nds_write_b32 v{aPW}, v{vPC}")
                s(E[2]); s(E[3]); s(E[4])
                s(qk0(nxt)); s(rK1(T+2))
                s(E[5]); s(E[6]); s(E[7])
                s(f"s_waitcnt lgkmcnt({3 if tt == 0 else 2})")
                s(qk1(nxt)); s(rK2(T+2))
                s(E[8]); s(E[9]); s(E[10]); s(E[11])
                if tt == 0: s(f"v_add_u32 v{vPC}, 1, v{vPC}")
                s(pv(V0, cur)); s(rV(T+1,0))
                if tt == 1: s(f"ds_read_b32 v{vPR}, v{aPR}")
                for e in E[12:]: s(e)
                if tt == 3: s("s_nop 0")
        s(f"s_sub_u32 s69, s69, 1\ns_cmp_lg_u32 s69, 0\ns_cbranch_scc1 {s.ln(lp)}")
        s("s_waitcnt lgkmcnt(0)")
        s(pv(V1, S[1]+8))
        s.stamp(6)
        s(f"""v_lshlrev_b32 v84, 4, v80
        v_lshl_add_u32 v86, v81, 15, v84
        s_lshl_b32 s64, s{sH}, 16
        s_lshl_b32 s65, s{sTOK}, 4
        s_add_u32 s65, s65, {OI}
        s_add_u32 s64, s64, s65
        s_add_u32 s57, s{sP}, 64
        s_lshl_b32 s57, s57, 15
        s_add_u32 s65, s65, s57
        s_xor_b32 s57, s{sP}, s{sH}
        s_and_b32 s57, s57, 1
        s_lshl_b32 s57, s57, 3
        s_add_u32 s65, s65, s57
        v_cmp_eq_u32 vcc, 0, v81
        s_nop 1
        v_cndmask_b32 v87, v{O+8}, v{O+12}, vcc
        v_rcp_f32 v88, v87
        s_nop 0
        v_mul_f32 v88, v88, v92""")
        for r in range(12): s(f"v_mul_f32 v{O+r}, v{O+r}, v88")
        for q in range(6): s(f"v_cvt_pk_bf16_f32 v{32+q}, v{O+2*q}, v{O+2*q+1}")
        s(f"""buffer_store_dwordx4 v[32:35], v86, {srd(sWS)}, s64 offen sc1
        s_mov_b32 exec_hi, 0
        buffer_store_dwordx2 v[36:37], v84, {srd(sWS)}, s65 offen sc1
        s_mov_b32 exec_hi, -1""")
        if s.fused:
            s(f"""s_lshl_b32 s64, s{sQB}, 5
            s_add_u32 s64, s64, s{sH}
            s_mul_i32 s64, s64, {FSP}
            s_add_u32 s64, s64, {F_O}""")
            s.arrive(SY_CO, 8, "s64", 84, 85)
        s.stamp(7)

    def grole(s):
        sJ = 48
        pass
        s(f"""v_lshlrev_b32 v1, 2, v0
        v_add_u32 v1, {SYN}, v1
        v_mov_b32 v2, 0
        ds_write_b32 v1, v2""")
        if s.opt.get('noln'):
            for _ in range(12): s("s_barrier")
        elif 'qkv' in s.ph:
            s.layernorm(sJ)
        else:
            s("s_waitcnt lgkmcnt(0)\ns_barrier")
        s.stamp(2)
        s(f"""s_lshl_b32 s49, s{sJ}, 2
        s_add_u32 s49, s49, {SY_PG}
        v_mov_b32 v160, s49
        v_and_b32 v161, 3, v0
        v_lshlrev_b32 v161, 2, v161
        v_add_u32 v161, {SY_PG}, v161
        s_mul_i32 s49, s{sJ}, {GREG}""")
        s.gsync_n = 0
        if 'g1' in s.ph: s.gemm1(sJ)
        if 'g2' in s.ph: s.gemm2(sJ)

    def gpost(s):
        s.gsync_n += 1
        s(f"s_waitcnt lgkmcnt(0)\nv_mov_b32 v162, {s.gsync_n}\nds_write_b32 v160, v162")
    def gwait(s):
        s.lds_spin(161, s.gsync_n, 163, sleep=2)

    def ln_loads(s, sJ):
        X = (8, 13); GWR = 18
        s(f"""s_and_b32 s49, s{sXC}, 3
        s_lshl_b32 s49, s49, 6
        s_lshr_b32 s50, s{sXC}, 2
        s_lshl_b32 s50, s50, 5
        s_add_u32 s49, s49, s50
        s_add_u32 s49, s49, s{sI}
        s_lshl_b32 s50, s49, 3
        s_lshl_b32 s51, s{sJ}, 1
        s_add_u32 s50, s50, s51
        s_mul_i32 s51, s50, 1280
        v_lshlrev_b32 v3, 2, v0""")
        for r in range(2):
            for i in range(5):
                s(f"buffer_load_dword v{X[r]+i}, v3, {srd(sX)}, s51 offen offset:{1280*r+256*i}")
        for i in range(5):
            s(f"global_load_dword v{GWR+i}, v3, s[{sGW}:{sGW+1}] offset:{256*i}")

    def layernorm(s, sJ):
        X = (8, 13); GWR = 18; XV = (24, 34); GV = 44
        s("s_waitcnt vmcnt(0)")
        s.stamp(1)
        for r in range(2):
            for i in range(5):
                s(f"v_lshlrev_b32 v{XV[r]+2*i}, 16, v{X[r]+i}\nv_and_b32 v{XV[r]+2*i+1}, 0xffff0000, v{X[r]+i}")
        for i in range(5):
            s(f"v_lshlrev_b32 v{GV+2*i}, 16, v{GWR+i}\nv_and_b32 v{GV+2*i+1}, 0xffff0000, v{GWR+i}")
        for r in range(2):
            s(f"v_add_f32 v{4+r}, v{XV[r]}, v{XV[r]+1}\nv_mul_f32 v{6+r}, v{XV[r]}, v{GV}")
        for e in range(1, 10):
            for r in range(2):
                if e >= 2: s(f"v_add_f32 v{4+r}, v{4+r}, v{XV[r]+e}")
                s(f"v_fmac_f32 v{6+r}, v{XV[r]+e}, v{GV+e}")
        def reduce(regs):
            for m in ("row_shr:1 row_mask:0xf", "row_shr:2 row_mask:0xf", "row_shr:4 row_mask:0xf", "row_shr:8 row_mask:0xf",
                      "row_bcast:15 row_mask:0xa", "row_bcast:31 row_mask:0xc"):
                s("s_nop 1")
                for q in regs:
                    s(f"v_add_f32_dpp v{q}, v{q}, v{q} {m} bank_mask:0xf")
        reduce((4,5,6,7))
        s(f"""v_mul_f32 v4, {fbits(1/640)}, v4
        v_mul_f32 v5, {fbits(1/640)}, v5
        v_mul_f32 v6, {fbits(-math.log2(math.e))}, v6
        v_mul_f32 v7, {fbits(-math.log2(math.e))}, v7
        v_readlane_b32 s52, v4, 63
        v_readlane_b32 s53, v5, 63
        v_exp_f32 v6, v6
        v_exp_f32 v7, v7
        s_nop 0""")
        s("""v_add_f32 v6, 1.0, v6
        v_add_f32 v7, 1.0, v7
        v_rcp_f32 v6, v6
        v_rcp_f32 v7, v7""")
        for r in range(2):
            for e in range(10): s(f"v_subrev_f32 v{XV[r]+e}, s{52+r}, v{XV[r]+e}")
        s(f"""s_lshl_b32 s54, s50, 2
        s_add_u32 s54, s54, {GI}
        v_mov_b32 v1, 0
        s_mov_b32 exec_lo, 0
        s_mov_b32 exec_hi, 0x80000000
        buffer_store_dwordx2 v[6:7], v1, {srd(sWS)}, s54 offen sc1
        s_mov_b64 exec, -1""")
        for r in range(2): s(f"v_mul_f32 v{4+r}, v{XV[r]}, v{XV[r]}")
        for e in range(1, 10):
            for r in range(2): s(f"v_fmac_f32 v{4+r}, v{XV[r]+e}, v{XV[r]+e}")
        reduce((4,5))
        s(f"""v_mov_b32 v1, {fbits(1e-5)}
        v_fmac_f32 v1, {fbits(1/640)}, v4
        v_mov_b32 v2, {fbits(1e-5)}
        v_fmac_f32 v2, {fbits(1/640)}, v5
        v_rsq_f32 v1, v1
        v_rsq_f32 v2, v2
        s_mul_i32 s54, s{sJ}, 2560
        s_add_u32 s55, s54, {LNS}
        v_readlane_b32 s52, v1, 63
        v_readlane_b32 s53, v2, 63
        v_lshlrev_b32 v1, 3, v0
        v_add_u32 v1, s55, v1""")
        if s.opt.get('ldstamp'): s.stamp(3)
        lnb = s.opt.get('lnb', 1)
        if lnb: s("s_waitcnt lgkmcnt(0)\ns_barrier")
        for e in range(10):
            for r in range(2): s(f"v_mul_f32 v{XV[r]+e}, s{52+r}, v{XV[r]+e}")
            s(f"v_cvt_pk_bf16_f32 v{8+e}, v{XV[0]+e}, v{XV[1]+e}")
            if e & 1: s(f"ds_write_b64 v1, {vr(7+e,2)} offset:{(e>>1)*512}")
        s(f"""v_lshlrev_b32 v1, 4, v0
        v_add_u32 v1, s54, v1
        v_lshrrev_b32 v2, 2, v1
        v_add_u32 v2, {LNS}, v2
        s_waitcnt lgkmcnt(0)
        s_barrier""")
        for u in range(3):
            s(f"ds_read2st64_b32 {vr(8+4*u,2)}, v2 offset0:{u} offset1:{u+10}\nds_read2st64_b32 {vr(10+4*u,2)}, v2 offset0:{u+20} offset1:{u+30}")
        s(f"""
        s_mul_i32 s54, s49, 10240
        s_add_u32 s54, s54, {HI}
        s_waitcnt lgkmcnt(0)
        buffer_store_dwordx4 v[8:11], v1, {srd(sWS)}, s54 offen sc1
        buffer_store_dwordx4 v[12:15], v1, {srd(sWS)}, s54 offen offset:1024 sc1
        s_mov_b32 exec_hi, 0
        buffer_store_dwordx4 v[16:19], v1, {srd(sWS)}, s54 offen offset:2048 sc1
        s_mov_b32 exec_hi, -1
        s_barrier""")
        if not lnb: s("s_barrier")
        if s.fused:
            nx = s.new("g")
            s(f"""v_and_b32 v1, 15, v0
            v_lshlrev_b32 v1, 2, v1
            s_cmp_lg_u32 s{sJ}, 0
            s_cbranch_scc1 {s.ln(nx)}
            buffer_load_dword v2, v1, {srd(sDBG)}, 0 offen sc1""")
            s.lab(nx)
        s("s_barrier\ns_waitcnt vmcnt(0)\ns_barrier")
        if s.fused:
            late, done, done2 = s.new("g"), s.new("g"), s.new("g")
            s(f"""v_cmp_eq_u32 vcc, 0, v2
            s_lshl_b32 s54, s49, 2
            s_add_u32 s54, s54, {F_H}
            s_cmp_lg_u32 s{sJ}, 0
            s_cbranch_scc1 {s.ln(done)}
            s_cbranch_vccnz {s.ln(late)}""")
            s.set_flag("s54", 4, 5)
            s.lds_set(SY_GOK, 1, 4, 5)
            s(f"s_branch {s.ln(done)}")
            s.lab(late)
            for _ in range(7): s("s_barrier")
            s.poll([(2,1,1,sDBG,"0",0)])
            s.set_flag("s54", 4, 5)
            s.lds_set(SY_GOK, 1, 4, 5)
            s(f"s_branch {s.ln(done2)}")
            s.lab(done)
            for _ in range(7): s("s_barrier")
            s.lab(done2)
        else:
            for _ in range(7): s("s_barrier")

    def gpoll(s, pre, loads, ok, sleep, lsl=4):
        nx = s.new("gp")
        s(f"v_mov_b32 v164, {SYN}\ns_cmp_lg_u32 s48, 0\ns_cbranch_scc1 {s.ln(nx)}")
        for addr, need in pre: s.lds_spin(164, need, 165, off=addr-SYN, sleep=lsl)
        s.poll(loads, sleep=sleep)
        s(f"v_mov_b32 v165, 1\nds_write_b32 v164, v165 offset:{ok-SYN}")
        s.lab(nx)
        s.lds_spin(164, 1, 165, off=ok-SYN, sleep=lsl)

    def hpoll(s):
        s(f"v_lshlrev_b32 v4, 4, v0\ns_mov_b32 s57, {F_H}")
        s("s_cmp_eq_u32 s47, 15\ns_cselect_b32 s56, 4, 0")
        s.gpoll([(SY_GOK, 1), (SY_CQ, "s56")], [(8,4,4,sWS,"s57",0)], SY_HOK, 8)

    def pf2(s):
        nt2 = " nt" if s.opt.get('w2nt') else ""
        s(f"""s_lshl_b32 s60, s{sI}, 2
        s_add_u32 s60, s60, s48
        s_mul_i32 s61, s60, {12*4096}
        s_lshl_b32 s62, s{sXC}, 9
        s_add_u32 s61, s61, s62
        v_min_u32 v9, 47, v0
        v_lshrrev_b32 v10, 2, v9
        v_lshlrev_b32 v10, 12, v10
        v_and_b32 v9, 3, v9
        v_lshl_add_u32 v9, v9, 7, v10
        buffer_load_dword v166, v9, {srd(sW2)}, s61 offen{nt2}
        s_mul_i32 s61, s60, 6400
        v_min_u32 v9, 49, v0
        v_lshlrev_b32 v9, 7, v9
        buffer_load_dword v167, v9, {srd(sWO)}, s61 offen""")
        return 2

    def gemm1(s, sJ):
        D = 4
        ACC, HB, AB = 64, 128, (16, 24)
        vA0, vA1, vH, aT0, aT1 = 2, 3, 6, 12, 13
        sDT, sFT, sOW, sOH = 50, 51, 52, 53
        skip, fin = s.new("g1skip"), s.new("g1fin")
        s(f"""s_cmp_ge_u32 s{sI}, 30
        s_cbranch_scc1 {s.ln(skip)}
        s_mul_i32 s{sFT}, s{sI}, 52
        s_lshr_b32 s{sFT}, s{sFT}, 8
        s_mul_i32 s54, s{sFT}, 5
        s_sub_u32 s{sDT}, s{sI}, s54
        s_mul_i32 s58, s{sDT}, {6 if s.opt.get('g1rot', 0) else 0}
        s_mul_i32 s59, s{sFT}, {5 if s.opt.get('g1rot', 0) else 0}
        s_add_u32 s58, s58, s59
        s_and_b32 s58, s58, 31
        s_mov_b32 s59, s58
        s_and_b32 s54, s{sXC}, 1
        s_mul_i32 s54, s54, 5
        s_add_u32 s{sDT}, s{sDT}, s54
        s_lshr_b32 s54, s{sXC}, 1
        s_mul_i32 s54, s54, 6
        s_add_u32 s{sFT}, s{sFT}, s54
        s_mul_i32 s{sOW}, s{sJ}, {512*3072}
        s_lshl_b32 s54, s{sFT}, 7
        s_add_u32 s{sOW}, s{sOW}, s54
        s_mul_i32 s{sOH}, s{sJ}, {64*10240}
        s_lshl_b32 s54, s{sDT}, 10
        s_add_u32 s{sOH}, s{sOH}, s54
        s_add_u32 s{sOH}, s{sOH}, {HI}
        v_lshrrev_b32 v4, 3, v0
        v_mul_u32_u24 v4, 3072, v4
        v_bfe_u32 v5, v0, 4, 1
        v_lshlrev_b32 v7, 2, v5
        v_and_b32 v8, 7, v0
        v_xor_b32 v7, v7, v8
        v_lshl_add_u32 v{vA0}, v7, 4, v4
        v_add_u32 v{vA1}, {8*3072-1024}, v{vA0}
        v_lshrrev_b32 v14, 5, v0
        v_and_b32 v15, 31, v0
        v_mul_u32_u24 v4, 10240, v14
        v_lshl_add_u32 v{vH}, v15, 4, v4
        v_bfe_u32 v7, v0, 2, 2
        v_lshl_add_u32 v4, v14, 3, v7
        v_lshlrev_b32 v4, 7, v4
        v_lshl_add_u32 v4, v5, 5, v4
        v_and_b32 v8, 3, v0
        v_lshl_add_u32 v4, v8, 3, v4
        v_lshrrev_b32 v7, 1, v7
        v_lshl_add_u32 v4, v7, 6, v4
        v_add_u32 v{aT0}, s49, v4
        v_xor_b32 v4, 64, v4
        v_add_u32 v{aT1}, s49, v4""")
        nt1 = " nt" if s.opt.get('w1nt') else ""
        def dW(t):
            return [f"s_mul_i32 s60, s58, {16*3072}\ns_add_u32 m0, s49, {(t%D)*2048}\ns_add_u32 s60, s60, s{sOW}\nbuffer_load_dwordx4 v{vA0}, {srd(sW1)}, s60 offen{nt1} lds",
                    f"buffer_load_dwordx4 v{vA1}, {srd(sW1)}, s60 offen offset:1024{nt1} lds\ns_add_u32 s58, s58, 1\ns_and_b32 s58, s58, 31"]
        def lH(t):
            b = HB + 8*(t % D)
            return [f"s_mul_i32 s61, s59, 20480\ns_add_u32 s61, s61, s{sOH}\nbuffer_load_dwordx4 {vr(b,4)}, v{vH}, {srd(sWS)}, s61 offen sc1",
                    f"buffer_load_dwordx4 {vr(b+4,4)}, v{vH}, {srd(sWS)}, s61 offen offset:512 sc1\ns_add_u32 s59, s59, 1\ns_and_b32 s59, s59, 31"]
        def rd(t):
            b = AB[t & 1]; o = (t % D)*2048
            return [f"ds_read_b64_tr_b16 {vr(b,2)}, v{aT0} offset:{o}", f"ds_read_b64_tr_b16 {vr(b+2,2)}, v{aT0} offset:{o+512}",
                    f"ds_read_b64_tr_b16 {vr(b+4,2)}, v{aT1} offset:{o}", f"ds_read_b64_tr_b16 {vr(b+6,2)}, v{aT1} offset:{o+512}"]
        def mf(t, fi, di):
            d = vr(ACC+16*(2*fi+di),16)
            return f"v_mfma_f32_32x32x16_bf16 {d}, {vr(AB[t&1]+4*fi,4)}, {vr(HB+8*(t%D)+4*di,4)}, {d}"
        hold = s.opt.get('ghold', 0) if s.fused else 0
        if hold == 1:
            s.hpoll()
            s.lds_spin(164, 1, 165, off=SY_PA-SYN)
        for t in range(D):
            for l in dW(t): s(l)
        for r in range(64): s(f"v_mov_b32 v{ACC+r}, 0")
        if s.fused and not hold: s.hpoll()
        s.stamp(3)
        s(f"s_setprio {s.opt.get('gprio', 0)}")
        for t in range(D):
            for l in lH(t): s(l)
        s(f"s_waitcnt vmcnt({2*(D-2)})")
        for l in rd(0): s(l)
        def step(t, more, wv):
            if wv is not None: s(f"s_waitcnt vmcnt({wv})")
            if more != 'last':
                for l in rd(t+1): s(l)
                s("s_waitcnt lgkmcnt(4)")
            else:
                s("s_waitcnt lgkmcnt(0)")
            W = dW(t) if more is True else ["", ""]
            Hh = lH(t) if more is True else ["", ""]
            s(mf(t,0,0)); s(W[0]); s(mf(t,1,0)); s(W[1]); s(Hh[0]); s(mf(t,0,1)); s(mf(t,1,1)); s(Hh[1])
        for t in range(D):
            step(t, True, max(0, 2*(D-2-t)) + 4*min(t, D-2) if t < D-1 else 4*(D-2))
        lp = s.new("g1l")
        s(f"s_mov_b32 s54, {32//D - 2}")
        s.lab(lp)
        for t in range(D): step(t, True, 4*(D-2))
        s(f"s_sub_u32 s54, s54, 1\ns_cmp_lg_u32 s54, 0\ns_cbranch_scc1 {s.ln(lp)}")
        for t in range(D):
            step(t, False if t < D-1 else 'last', 4*(D-2-t) if t < D-1 else None)
        s.stamp(4)
        s("s_setprio 3")
        s(f"""v_lshlrev_b32 v4, 4, v0
        v_add_u32 v5, s49, v4
        s_lshl_b32 s54, s{sJ}, 12
        v_add_u32 v4, s54, v4
        v_add_u32 v7, {2*GREG}, v4
        s_lshr_b32 s55, s{sJ}, 1
        s_and_b32 s56, s{sJ}, 1
        s_lshl_b32 s54, s{sFT}, 1
        s_add_u32 s55, s55, s54
        s_lshl_b32 s54, s{sDT}, 1
        s_add_u32 s56, s56, s54
        s_lshl_b32 s54, s55, 6
        v_lshl_add_u32 v8, v14, 3, s54
        s_nop 4""")
        for q in range(4):
            s(f"global_load_dwordx2 {vr(40+2*q,2)}, v8, s[{sB1}:{sB1+1}] offset:{16*q}")
        npf = s.pf2() if s.opt.get('pf2', 1) and 'g2' in s.ph else 0
        for n in range(16):
            s(f"ds_write_b128 v5, {vr(ACC+4*n,4)} offset:{1024*n}")
        s.gpost(); s.gwait()
        for src in range(4):
            for q in range(4):
                s(f"ds_read_b128 {vr(ACC+16*src+4*q,4)}, v{4 if src < 2 else 7} offset:{(src&1)*GREG + 1024*q}")
        s(f"s_waitcnt vmcnt({npf})")
        for q in range(8):
            s(f"v_lshlrev_b32 v{16+2*q}, 16, v{40+q}\nv_and_b32 v{17+2*q}, 0xffff0000, v{40+q}")
        s.gpost()
        c0 = -2*math.sqrt(2/math.pi)*math.log2(math.e); c1 = c0*0.044715
        s(f"s_mov_b32 s57, {fbits(c1)}\nv_mov_b32 v9, {fbits(c0)}")
        for r in range(0, 16, 2):
            s(f"v_pk_add_f32 {vr(ACC+r,2)}, {vr(ACC+r,2)}, {vr(ACC+16+r,2)}")
            s(f"v_pk_add_f32 {vr(ACC+32+r,2)}, {vr(ACC+32+r,2)}, {vr(ACC+48+r,2)}")
            s(f"v_pk_add_f32 {vr(16+r,2)}, {vr(16+r,2)}, {vr(ACC+r,2)}")
            s(f"v_pk_add_f32 {vr(16+r,2)}, {vr(16+r,2)}, {vr(ACC+32+r,2)}")
        for r in range(16): s(f"v_mul_f32 v{ACC+r}, v{16+r}, v{16+r}")
        for r in range(16): s(f"v_fma_f32 v{ACC+r}, v{ACC+r}, s57, v9")
        for r in range(16): s(f"v_mul_f32 v{ACC+r}, v{ACC+r}, v{16+r}")
        for r in range(16): s(f"v_exp_f32 v{ACC+r}, v{ACC+r}")
        for r in range(16): s(f"v_add_f32 v{ACC+r}, 1.0, v{ACC+r}")
        for r in range(16): s(f"v_rcp_f32 v{ACC+r}, v{ACC+r}")
        for r in range(16): s(f"v_mul_f32 v{ACC+r}, v{ACC+r}, v{16+r}")
        for q in range(8): s(f"v_cvt_pk_bf16_f32 v{40+q}, v{ACC+2*q}, v{ACC+2*q+1}")
        s(f"""s_mul_i32 s54, s55, {4*10240}
        s_lshl_b32 s57, s56, 9
        s_add_u32 s54, s54, s57
        s_add_u32 s54, s54, {UI}
        s_add_u32 s57, s54, 20480
        buffer_store_dwordx4 v[40:43], v{vH}, {srd(sWS)}, s54 offen sc1
        buffer_store_dwordx4 v[44:47], v{vH}, {srd(sWS)}, s57 offen sc1""")
        if s.fused:
            s(f"""s_mul_i32 s54, s{sDT}, 24
            s_add_u32 s54, s54, s{sFT}
            s_mul_i32 s54, s54, {FSP}
            s_add_u32 s54, s54, {F_U}""")
            s.arrive(SY_CU, 4, "s54", 4, 5)
        s.gwait()
        s(f"s_branch {s.ln(fin)}")
        s.lab(skip)
        if s.fused:
            s.hpoll()
            s.lds_spin(164, 1, 165, off=SY_PA-SYN, sleep=4)
        if s.opt.get('pf3', 1):
            lp = s.new("pf3")
            s(f"""s_setprio 0
            s_and_b32 s52, s2, 15
            s_lshl_b32 s52, s52, 2
            s_add_u32 s52, s52, s{sJ}
            s_lshr_b32 s53, s52, 4
            s_mul_i32 s53, s53, {384*4096}
            s_and_b32 s54, s52, 15
            s_lshl_b32 s54, s54, 13
            s_add_u32 s53, s53, s54
            v_lshlrev_b32 v1, 7, v0
            s_mov_b32 s54, 12""")
            s.lab(lp)
            s(f"""buffer_load_dword v166, v1, {srd(sW2)}, s53 offen
            s_add_u32 s53, s53, 131072
            s_waitcnt vmcnt({s.opt.get('pf3d', 0)})
            s_sub_u32 s54, s54, 1
            s_cmp_lg_u32 s54, 0
            s_cbranch_scc1 {s.ln(lp)}
            s_lshl_b32 s53, s52, 13
            buffer_load_dword v166, v1, {srd(sWO)}, s53 offen
            s_add_u32 s53, s53, 524288
            s_waitcnt vmcnt(0)
            buffer_load_dword v166, v1, {srd(sWO)}, s53 offen
            s_waitcnt vmcnt(0)
            s_setprio 3""")
        if npf: s.pf2()
        s.lab(fin)
        s.stamp(5)

    def gemm2(s, sJ):
        ACC, UB, BB = 64, (24, 44), 144
        vW, vU, aT = 2, 3, 8
        sST, sDT, sOW, sOU = 50, 51, 52, 53
        NS = 4
        s(f"""s_lshl_b32 s{sST}, s{sXC}, 2
        s_and_b32 s54, s{sI}, 3
        s_add_u32 s{sST}, s{sST}, s54
        s_lshr_b32 s{sDT}, s{sI}, 2
        s_lshl_b32 s58, s54, 1
        s_add_u32 s58, s58, s{sDT}
        s_mul_i32 s58, s58, {3 if s.opt.get('g2rot', 0) else 0}
        s_lshr_b32 s58, s58, 1
        s_cmp_ge_u32 s58, 12
        s_cselect_b32 s59, 12, 0
        s_sub_u32 s58, s58, s59
        s_mov_b32 s59, s58
        s_mul_i32 s{sOW}, s{sJ}, {384*4096}
        s_lshl_b32 s54, s{sST}, 7
        s_add_u32 s{sOW}, s{sOW}, s54
        s_mul_i32 s{sOU}, s{sJ}, {48*10240}
        s_mul_i32 s54, s{sDT}, 1280
        s_add_u32 s{sOU}, s{sOU}, s54
        s_add_u32 s{sOU}, s{sOU}, {UI}
        v_lshrrev_b32 v14, 4, v0
        v_and_b32 v15, 15, v0
        v_lshrrev_b32 v4, 3, v0
        v_lshlrev_b32 v4, 12, v4
        v_lshlrev_b32 v5, 1, v14
        v_and_b32 v6, 7, v0
        v_xor_b32 v5, v5, v6
        v_lshl_add_u32 v{vW}, v5, 4, v4
        v_mul_u32_u24 v4, 10240, v14
        v_lshl_add_u32 v{vU}, v15, 4, v4
        v_lshrrev_b32 v4, 5, v0
        v_bfe_u32 v5, v0, 2, 3
        v_lshl_add_u32 v4, v4, 4, v5
        v_lshlrev_b32 v4, 7, v4
        v_and_b32 v6, 3, v0
        v_lshl_add_u32 v4, v6, 3, v4
        v_add_u32 v4, s49, v4
        v_lshrrev_b32 v5, 1, v5""")
        for si in range(4):
            s(f"v_xor_b32 v6, {si}, v5\nv_lshl_add_u32 v{aT+si}, v6, 5, v4")
        nt2 = " nt" if s.opt.get('w2nt') else ""
        def dW(t):
            L = []
            for n in range(4):
                pre = f"s_lshl_b32 s60, s58, 17\ns_add_u32 m0, s49, {(t%NS)*4096}\ns_add_u32 s60, s60, s{sOW}\n" if n == 0 else ""
                post = f"s_add_u32 s60, s60, {32768-1024}" if n < 3 else "s_add_u32 s58, s58, 1\ns_cmp_eq_u32 s58, 12\ns_cselect_b32 s58, 0, s58"
                L.append(pre + f"buffer_load_dwordx4 v{vW}, {srd(sW2)}, s60 offen offset:{1024*n}{nt2} lds\n" + post)
            return L
        def lU(t):
            L = [f"buffer_load_dwordx4 {vr(UB[t&1]+4*di,4)}, v{vU}, {srd(sWS)}, s61 offen offset:{256*di} sc1" for di in range(5)]
            L[0] = f"s_mul_i32 s61, s59, 40960\ns_add_u32 s61, s61, s{sOU}\n" + L[0]
            L[4] += "\ns_add_u32 s59, s59, 1\ns_cmp_eq_u32 s59, 12\ns_cselect_b32 s59, 0, s59"
            return L
        def rd(t, si):
            o = (t % NS)*4096
            return f"ds_read_b64_tr_b16 {vr(BB+4*si,2)}, v{aT+si} offset:{o}\nds_read_b64_tr_b16 {vr(BB+4*si+2,2)}, v{aT+si} offset:{o+1024}"
        def mf(t, si, di):
            d = vr(ACC+20*si+4*di,4)
            return f"v_mfma_f32_16x16x32_bf16 {d}, {vr(UB[t&1]+4*di,4)}, {vr(BB+4*si,4)}, {d}"
        for t in range(3):
            for l in dW(t): s(l)
        for r in range(80): s(f"v_mov_b32 v{ACC+r}, 0")
        if s.fused:
            s(f"""s_mul_i32 s54, s{sDT}, 80
            s_lshr_b32 s54, s54, 6
            s_mul_i32 s54, s54, {24*FSP}
            s_add_u32 s54, s54, {F_U}
            v_min_u32 v4, 47, v0
            v_mul_u32_u24 v4, {FSP}, v4""")
            s.gpoll([], [(5,1,4,sWS,"s54",0)], SY_UOK, 8)
        s.stamp(6)
        s(f"s_setprio {s.opt.get('gprio', 0)}")
        for t in range(2):
            for l in lU(t): s(l)
        s("s_waitcnt vmcnt(10)")
        for si in range(4): s(rd(0, si))
        NT = 12
        for t in range(NT):
            if t == 0: s("s_waitcnt vmcnt(5)")
            else:
                younger = (4 if t+2 < NT else 0) + (5 if t+1 < NT else 0)
                s(f"s_waitcnt vmcnt({younger})")
            W = dW(t+3) if t+3 < NT else [""]*4
            U = lU(t+2) if t+2 < NT else [""]*5
            for si in range(4):
                s(f"s_waitcnt lgkmcnt({6 if t+1 < NT else 2*(3-si)})")
                for di in range(5):
                    s(mf(t, si, di))
                    if si == 3: s(U[di])
                    if si == 1 and di < 4: s(W[di])
                if t+1 < NT: s(rd(t+1, si))
        s.stamp(7)
        s("s_setprio 3")
        s(f"""v_lshlrev_b32 v4, 4, v0
        v_add_u32 v5, s49, v4
        s_mul_i32 s54, s{sJ}, 5120
        v_add_u32 v4, s54, v4
        v_add_u32 v7, {2*GREG}, v4
        s_lshl_b32 s55, s{sST}, 6
        s_lshl_b32 s54, s{sJ}, 4
        s_add_u32 s55, s55, s54
        v_add_lshl_u32 v6, s55, v15, 1
        v_lshlrev_b32 v12, 1, v6
        s_mov_b32 s54, {GI}
        s_nop 4
        global_load_ushort v16, v6, s[{sB2}:{sB2+1}]
        buffer_load_dword v18, v12, {srd(sWS)}, s54 offen sc1""")
        for n in range(20):
            s(f"ds_write_b128 v5, {vr(ACC+4*n,4)} offset:{1024*n}")
        s.gpost(); s.gwait()
        for src in range(4):
            for q in range(5):
                s(f"ds_read_b128 {vr(ACC+20*src+4*q,4)}, v{4 if src < 2 else 7} offset:{(src&1)*GREG + 1024*q}")
        for m in range(5):
            s(f"""v_add_u32 v4, {64*m}, v0
            v_mul_u32_u24 v5, 6554, v4
            v_lshrrev_b32 v5, 16, v5
            v_mul_u32_u24 v6, {1280-160}, v5
            v_lshl_add_u32 v{8+m}, v4, 4, v6""")
        s(f"""s_mul_i32 s56, s{sJ}, {160*1280}
        s_mul_i32 s54, s{sDT}, 160
        s_add_u32 s56, s56, s54
        s_waitcnt vmcnt(0)
        v_lshlrev_b32 v16, 16, v16
        v_sub_f32 v18, 1.0, v18""")
        s.gpost()
        AC = 24
        s("v_mov_b32 v17, v16\nv_mov_b32 v19, v18")
        for r in range(0, 20, 2):
            s(f"v_pk_add_f32 {vr(ACC+r,2)}, {vr(ACC+r,2)}, {vr(ACC+20+r,2)}")
            s(f"v_pk_add_f32 {vr(ACC+40+r,2)}, {vr(ACC+40+r,2)}, {vr(ACC+60+r,2)}")
            s(f"v_pk_add_f32 {vr(ACC+r,2)}, {vr(ACC+r,2)}, v[16:17]")
            s(f"v_pk_add_f32 {vr(ACC+r,2)}, {vr(ACC+r,2)}, {vr(ACC+40+r,2)}")
            s(f"v_pk_mul_f32 {vr(AC+r,2)}, {vr(ACC+r,2)}, v[18:19]")
        s.gwait()
        s("s_mov_b32 m0, s49")
        for n in range(25):
            s(f"s_nop 0\nbuffer_load_dwordx4 v{8+n%5}, {srd(sWO)}, s56 offen lds\ns_add_u32 m0, m0, 1024")
            if n % 5 == 4: s(f"s_add_u32 s56, s56, {32*1280}")
        s(f"""v_lshrrev_b32 v4, 5, v0
        v_mul_u32_u24 v4, 20, v4
        v_bfe_u32 v5, v0, 2, 3
        v_add_u32 v4, v4, v5
        v_mul_u32_u24 v4, 160, v4
        v_and_b32 v6, 3, v0
        v_lshl_add_u32 v2, v6, 3, v4
        v_add_u32 v3, 51200, v2
        v_bfe_u32 v5, v0, 2, 2
        v_mul_u32_u24 v4, 40, v14
        v_add_u32 v4, v4, v5
        v_add_u32 v4, 16, v4
        v_mul_u32_u24 v4, 160, v4
        v_lshl_add_u32 v4, v6, 3, v4
        v_and_b32 v6, 1, v14
        v_mul_u32_u24 v6, 3200, v6
        v_sub_u32 v5, v4, v6
        v_add_u32 v5, 3200, v5
        v_add_u32 v4, v4, v6
        v_add_u32 v6, 51200, v4
        v_add_u32 v7, 51200, v5
        v_lshlrev_b32 v13, 15, v14
        v_lshl_add_u32 v13, v15, 4, v13
        s_lshl_b32 s56, s55, 4
        s_add_u32 s56, s56, {OI}
        s_waitcnt vmcnt(0)""")
        s.gpost(); s.gwait()
        OB = 64; WB = (44, 144)
        def rdo(t):
            b = WB[t & 1]; L = []
            for di in range(5):
                if t < 16:
                    a = 2 if t < 8 else 3; o = (t % 8)*6400 + 32*di
                    L.append(f"ds_read_b64_tr_b16 {vr(b+4*di,2)}, v{a} offset:{o}\nds_read_b64_tr_b16 {vr(b+4*di+2,2)}, v{a} offset:{o+1280}")
                else:
                    tp = t-16; a = 4 if tp < 2 else 6; o = (tp % 2)*25600 + 32*di
                    L.append(f"ds_read_b64_tr_b16 {vr(b+4*di,2)}, v{a} offset:{o}\nds_read_b64_tr_b16 {vr(b+4*di+2,2)}, v{a+1} offset:{o}")
            return L
        for l in rdo(0): s(l)
        if s.fused:
            s(f"""s_lshr_b32 s54, s55, 8
            s_mul_i32 s54, s54, {32*FSP}
            s_add_u32 s54, s54, {F_O}
            v_and_b32 v8, 31, v0
            v_mul_u32_u24 v8, {FSP}, v8""")
            s.gpoll([(SY_CO, 8)], [(9,1,8,sWS,"s54",0)], SY_OOK, s.opt.get('psl', 4), lsl=2)
        s.stamp(8)
        for t in range(20):
            s(f"buffer_load_dwordx4 {vr(OB+4*t,4)}, v13, {srd(sWS)}, s56 offen sc1\ns_add_u32 s56, s56, 131072")
        for t in range(20):
            R = rdo(t+1) if t+1 < 20 else [""]*5
            s(f"s_waitcnt vmcnt({19-t}) lgkmcnt(0)")
            for di in range(5):
                d = vr(AC+4*di,4)
                s(f"v_mfma_f32_16x16x32_bf16 {d}, {vr(WB[t&1]+4*di,4)}, {vr(OB+4*t,4)}, {d}")
                s(R[di])
        s(f"""v_add_u32 v2, s55, v15
        v_mul_u32_u24 v2, 1280, v2
        v_lshl_add_u32 v2, v14, 3, v2
        s_mul_i32 s54, s{sDT}, 160
        s_nop 4""")
        for di in range(5):
            s(f"""v_cvt_pk_bf16_f32 v{4+2*di}, v{AC+4*di}, v{AC+4*di+1}
            v_cvt_pk_bf16_f32 v{5+2*di}, v{AC+4*di+2}, v{AC+4*di+3}
            buffer_store_dwordx2 {vr(4+2*di,2)}, v2, {srd(sOUT)}, s54 offen offset:{32*di}""")

    def text(s):
        s.prologue()
        head = f".globl {s.k}\n.p2align 8\n.type {s.k},@function\n{s.k}:\n"
        return head + "\n".join(s.L) + "\n"

def kd(k):
    return f""".amdhsa_kernel {k}
  .amdhsa_next_free_vgpr 168
  .amdhsa_next_free_sgpr 102
  .amdhsa_accum_offset 168
  .amdhsa_group_segment_fixed_size 0
  .amdhsa_kernarg_size 96
  .amdhsa_user_sgpr_count 2
  .amdhsa_user_sgpr_kernarg_segment_ptr 1
  .amdhsa_system_sgpr_workgroup_id_x 1
.end_amdhsa_kernel
"""

def build(mode="fused", stamps=False, opt=None):
    geo = f"grid=(256,1,1) block=(768,1,1) lds={LDS_BYTES}"
    if mode == "fused":
        ks = [(NAME + "_kernel", ('qkv','att','g1','g2'))]
        hdr = f"; @launch {geo}\n"
    else:
        if mode == "multi": mode = "qkv,att+g1,g2"
        ks = [(f"p{i}_kernel", tuple(p.split("+"))) for i, p in enumerate(mode.split(","))]
        hdr = "".join(f"; @launch kernel={k} {geo}\n" for k, _ in ks)
    out = hdr + '.amdgcn_target "amdgcn-amd-amdhsa--gfx950"\n.text\ncode_begin:\n'
    for i, (k, ph) in enumerate(ks):
        out += Gen(k, ph, mode == "fused", stamps and i == len(ks)-1, opt).text()
    out += 'code_end:\n.section .rodata,"a"\n'
    for k, _ in ks:
        out += ".p2align 6\n" + kd(k)
    return out

if __name__ == "__main__":
    mode = sys.argv[1] if len(sys.argv) > 1 else "fused"
    stamps = "stamp" in sys.argv[2]
    opt = {}
    for a in sys.argv[3:]:
        k, v = a.split("="); opt[k] = int(v)
    open(sys.argv[2], "w").write(build(mode, stamps, opt))
```

```python
import sys, math, struct

NAME = "gated_mix__mha_block__mixer_token_mlp__prompt"

QI = 0x000000
KI = 0x280000
VI = 0x500000
HI = 0x780000
UI = 0xA00000
OI = 0xC00000
GI = 0xE80000
FL = 0xE90000
FSP = 64
F_H = FL
F_Q = FL + 0x4000
F_P = FL + 0x400
F_U = FL + 0x8000
F_O = FL + 0xC000
FL_BYTES = 0x10000
STAMP = 0xF00000
PI = 0x1000000
WS_BYTES = 0x1800000

GREG = 25600
KVB = 102400
KVS = 11520
LNS = 148480
SYN = 163584
SY_PA = SYN
SY_PG = SYN + 32
SY_QOK = SYN + 52
SY_POK = SYN + 56
SY_UOK = SYN + 60
SY_OOK = SYN + 64
SY_CQ = SYN + 68
SY_CU = SYN + 72
SY_CO = SYN + 76
SY_CP = SYN + 80
DUMMY = 163328
LDS_BYTES = 163840

SPIN_LIMIT = 200000

def fbits(x):
    return "0x%08x" % struct.unpack("<I", struct.pack("<f", x))[0]

sX, sWQ, sWO, sW1, sW2, sWS, sOUT, sDBG = 4, 8, 12, 16, 20, 24, 28, 32
sB1, sB2, sGW = 36, 38, 40
sW, sXC, sI = 42, 43, 44
sSPIN = 45
sRT, sCT = 46, 47
sN1, sD1, sF1 = 3, 100, 101
def srd(n): return f"s[{n}:{n+3}]"
def vr(a, n): return f"v[{a}:{a+n-1}]" if n > 1 else f"v{a}"

class Gen:
    def __init__(s, kname, stamps=False, opt=None):
        s.L = []
        s.k = kname
        s.stamps = stamps
        s.uid = 0
        s.cold = []
        s.opt = opt or {}
    def __call__(s, t):
        for l in t.split("\n"):
            l = l.strip()
            if l: s.L.append("    " + l)
    def lab(s, n):
        s.L.append(f"{s.k}_{n}:")
    def ln(s, n):
        return f"{s.k}_{n}"
    def new(s, base):
        s.uid += 1
        return f"{base}{s.uid}"
    def stamp(s, i):
        if s.stamps:
            s(f"s_memrealtime s[76:77]\ns_memtime s[78:79]\ns_waitcnt lgkmcnt(0)\ns_mov_b32 s{80+2*i}, s76\ns_mov_b32 s{81+2*i}, s78")
    def end_wave(s):
        if s.stamps:
            s.stamp(9)
            s(f"s_mul_i32 s46, s2, 12\ns_add_u32 s46, s46, s{sW}\ns_lshl_b32 s46, s46, 7\ns_add_u32 s46, s46, {STAMP}")
            s("s_mov_b64 exec, 1\nv_mov_b32 v1, 0")
            for i in range(20):
                s(f"v_mov_b32 v{2+i}, s{80+i}\nbuffer_store_dword v{2+i}, v1, {srd(sWS)}, s46 offen offset:{4*i}")
        s("s_endpgm")

    def lds_spin(s, vaddr, need, vtmp, off=0, sleep=1):
        a, b = s.new("spin"), s.new("spind")
        s(f"s_mov_b32 s{sSPIN}, {SPIN_LIMIT*4}")
        s.lab(a)
        s(f"""ds_read_b32 v{vtmp}, v{vaddr} offset:{off}
        s_waitcnt lgkmcnt(0)
        v_cmp_gt_u32 vcc, {need}, v{vtmp}
        s_cbranch_vccz {s.ln(b)}
        s_sleep {sleep}
        s_sub_u32 s{sSPIN}, s{sSPIN}, 1
        s_cbranch_scc0 {s.ln(a)}""")
        s.lab(b)

    def spin_ool(s, vaddr, need, vtmp, off=0, sleep=0):
        out, back = s.new("ool"), s.new("back")
        s(f"s_cbranch_vccnz {s.ln(out)}")
        s.lab(back)
        keep = s.L; s.L = []
        s.lab(out)
        s.lds_spin(vaddr, need, vtmp, off=off, sleep=sleep)
        s(f"s_branch {s.ln(back)}")
        s.cold += s.L; s.L = keep
    def flush_cold(s):
        s.L += s.cold; s.cold = []

    def poll_issue(s, loads):
        regs = []
        for (vd, n, vo, r, so, imm) in loads:
            sfx = {1: "dword", 2: "dwordx2", 4: "dwordx4"}[n]
            s(f"buffer_load_{sfx} {vr(vd,n)}, v{vo}, {srd(r)}, {so} offen offset:{imm} sc1")
            regs += list(range(vd, vd+n))
        return regs
    def poll(s, loads, sleep=2, pre=None):
        a, b, c = s.new("poll"), s.new("polld"), s.new("pollc")
        s(f"s_mov_b32 s{sSPIN}, {SPIN_LIMIT}")
        if pre is not None: s(f"s_waitcnt vmcnt({pre})\ns_branch {s.ln(c)}")
        s.lab(a)
        regs = s.poll_issue(loads)
        s("s_waitcnt vmcnt(0)")
        s.lab(c)
        for q in regs[1:]:
            s(f"v_min_u32 v{regs[0]}, v{regs[0]}, v{q}")
        s(f"""v_cmp_eq_u32 vcc, 0, v{regs[0]}
        s_cbranch_vccz {s.ln(b)}
        s_sleep {sleep}
        s_sub_u32 s{sSPIN}, s{sSPIN}, 1
        s_cbranch_scc0 {s.ln(a)}""")
        s.lab(b)

    def set_flag(s, soff, va, vb):
        s(f"""s_mov_b64 exec, 1
        v_mov_b32 v{va}, 0
        v_mov_b32 v{vb}, 1
        buffer_store_dword v{vb}, v{va}, {srd(sWS)}, {soff} offen sc1
        s_mov_b64 exec, -1""")

    def arrive(s, cnt, n, soff, va, vb):
        nx = s.new("arr")
        s(f"""s_mov_b64 exec, 1
        v_mov_b32 v{va}, {cnt}
        v_mov_b32 v{vb}, 1
        s_waitcnt vmcnt(0)
        ds_add_rtn_u32 v{va}, v{va}, v{vb}
        s_waitcnt lgkmcnt(0)
        v_cmp_eq_u32 vcc, {n-1}, v{va}
        v_mov_b32 v{va}, 0
        s_cbranch_vccz {s.ln(nx)}
        buffer_store_dword v{vb}, v{va}, {srd(sWS)}, {soff} offen sc1""")
        s.lab(nx)
        s("s_mov_b64 exec, -1")

    def lds_set(s, addr, val, va, vb):
        s(f"""v_mov_b32 v{va}, {addr}
        v_mov_b32 v{vb}, {val}
        ds_write_b32 v{va}, v{vb}""")

    def kwait(s):
        s("s_waitcnt lgkmcnt(0)")
        if s.stamps: s("s_mov_b32 s80, s76\ns_mov_b32 s81, s78")

    def prologue(s):
        if s.stamps: s("s_memrealtime s[76:77]\ns_memtime s[78:79]")
        s(f"s_cmp_ge_u32 s2, 256\ns_cbranch_scc1 {s.ln('exit')}")
        for reg, off in ((sX,0),(sWS,88)):
            s(f"s_load_dwordx2 s[{reg}:{reg+1}], s[0:1], {off}")
        s(f"s_lshr_b32 s{sI}, s2, 3")
        if s.opt.get('cpf', 1): s.code_prefetch()
        for reg, off in ((sWQ,8),(sGW,64),(sDBG,80),(sW1,32),(sW2,48),(sWO,16),(sOUT,72),(sB1,40),(sB2,56)):
            s(f"s_load_dwordx2 s[{reg}:{reg+1}], s[0:1], {off}")
        s("v_lshrrev_b32 v1, 6, v0\nv_and_b32 v0, 63, v0")
        s(f"v_readfirstlane_b32 s{sW}, v1")
        s(f"s_mov_b32 s{sX+3}, 0x00020000")
        for reg, n in ((sX,2621440),(sWQ,2457600),(sWO,819200),(sW1,6291456),(sW2,f"s{sW1+2}"),(sWS,WS_BYTES),(sOUT,f"s{sX+2}"),(sDBG,256)):
            s(f"s_mov_b32 s{reg+2}, {n}")
            if reg != sX: s(f"s_mov_b32 s{reg+3}, s{sX+3}")
        s(f"s_and_b32 s{sXC}, s2, 7")
        if s.stamps:
            for i in range(1, 10): s(f"s_mov_b32 s{80+2*i}, 0")
        s(f"""s_and_b32 s{sRT}, s{sXC}, 3
        s_lshl_b32 s{sRT}, s{sRT}, 2
        s_and_b32 s48, s{sI}, 3
        s_add_u32 s{sRT}, s{sRT}, s48
        s_lshr_b32 s49, s{sXC}, 2
        s_lshl_b32 s{sCT}, s49, 3
        s_lshr_b32 s48, s{sI}, 2
        s_add_u32 s{sCT}, s{sCT}, s48
        s_lshl_b32 s{sN1}, s49, 5
        s_add_u32 s{sN1}, s{sN1}, s{sI}
        s_min_u32 s{sN1}, s{sN1}, 59
        s_mul_i32 s{sF1}, s{sN1}, 52
        s_lshr_b32 s{sF1}, s{sF1}, 8
        s_mul_i32 s48, s{sF1}, 5
        s_sub_u32 s{sD1}, s{sN1}, s48
        s_cmp_ge_u32 s{sW}, 8
        s_cbranch_scc1 {s.ln('grole')}
        s_cmp_eq_u32 s{sCT}, 15
        s_cbranch_scc1 {s.ln('idle')}
        s_cmp_lt_u32 s{sW}, 4
        s_cbranch_scc1 {s.ln('qkv_comp')}""")
        s.loader()
        s(f"s_branch {s.ln('att')}")
        s.lab("idle")
        s.kwait()
        nx = s.new("idle")
        s(f"""s_cmp_lg_u32 s{sW}, 0
        s_cbranch_scc1 {s.ln(nx)}
        v_lshlrev_b32 v1, 4, v0
        v_mov_b32 v4, 0
        v_mov_b32 v5, 0
        v_mov_b32 v6, 0
        v_mov_b32 v7, 0
        s_lshl_b32 s52, s{sRT}, 12
        s_add_u32 s52, s52, {FL}""")
        for n in range(4):
            s(f"buffer_store_dwordx4 v[4:7], v1, {srd(sWS)}, s52 offen offset:{n*1024} sc1")
        s(f"""s_lshl_b32 s52, s{sRT}, 2
        s_mov_b64 exec, 1
        s_waitcnt vmcnt(0)
        v_mov_b32 v5, 1
        buffer_store_dword v5, v4, {srd(sDBG)}, s52 offen sc1
        s_mov_b64 exec, -1""")
        s.lab(nx)
        for _ in range(16): s("s_barrier")
        s(f"s_cmp_lt_u32 s{sW}, 4\ns_cbranch_scc1 {s.ln('att')}\ns_barrier\ns_barrier\ns_branch {s.ln('att')}")
        s.lab("qkv_comp")
        s.qkv_compute()
        s.lab("att")
        s.attention()
        s.end_wave()
        s.flush_cold()
        s.att_slow()
        s.lab("grole2")
        s.grole()
        s.end_wave()
        s.lab("exit")
        s("s_endpgm")

    def code_prefetch(s):
        here, nx = s.new("pc"), s.new("pc")
        s("s_getpc_b64 s[50:51]")
        s.lab(here)
        s(f"""s_lshl_b32 s52, s{sI}, 3
        v_cmp_gt_u32 vcc, 64, v0
        v_add_u32 v1, s52, v0
        s_movk_i32 s54, 72
        v_cmp_gt_u32 s[52:53], s54, v0
        v_cndmask_b32 v1, v1, v0, vcc
        v_lshlrev_b32 v1, 7, v1
        v_min_u32 v1, code_end-{s.ln(here)}-4, v1
        s_mov_b64 exec, s[52:53]
        s_cbranch_execz {s.ln(nx)}
        global_load_dword v165, v1, s[50:51]""")
        s.lab(nx)
        s("s_mov_b64 exec, -1")

    def loader(s):
        if s.opt.get('lprio'): s(f"s_setprio {s.opt['lprio']}")
        s(f"""s_sub_u32 s48, s{sW}, 4
        v_lshrrev_b32 v1, 3, v0
        s_lshl_b32 s49, s48, 5
        v_add_u32 v1, s49, v1
        v_mul_u32_u24 v1, 1280, v1
        v_lshrrev_b32 v2, 4, v0
        v_and_b32 v3, 7, v0
        v_xor_b32 v3, v3, v2
        v_xor_b32 v4, 4, v3
        v_lshl_add_u32 v8, v3, 4, v1
        v_lshl_add_u32 v9, v4, 4, v1
        v_add_u32 v9, {10240-1024}, v9
        v_add_u32 v10, {2*(10240-1024)}, v8
        v_add_u32 v11, {2*(10240-1024)}, v9
        s_lshl_b32 s49, s48, 4
        v_add_u32 v1, s49, v2
        v_mul_u32_u24 v1, 3840, v1
        v_lshlrev_b32 v2, 2, v2
        v_and_b32 v3, 15, v0
        v_xor_b32 v3, v3, v2
        v_lshl_add_u32 v12, v3, 4, v1
        v_add_u32 v13, {15360-1024}, v12
        v_add_u32 v14, {2*(15360-1024)}, v12
        v_add_u32 v15, {3*(15360-1024)}, v12
        s_mul_i32 s50, s{sRT}, {128*1280}
        s_lshl_b32 s51, s{sCT}, 8
        s_lshl_b32 s52, s48, 12""")
        nt = " nt" if s.opt.get('qnt') else ""
        rot = s.opt.get('qrot', 3)
        if rot in (1, 2):
            s(f"""s_and_b32 s53, s{sI}, 3
            s_mul_i32 s53, s53, 5
            s_lshr_b32 s53, s53, 1
            s_lshr_b32 s54, s{sI}, 2
            s_add_u32 s53, s53, s54""")
            if rot == 2: s(f"s_and_b32 s54, s{sXC}, 3\ns_add_u32 s53, s53, s54")
            s("s_cmp_ge_u32 s53, 10\ns_cselect_b32 s54, 10, 0\ns_sub_u32 s53, s53, s54")
        elif rot == 0:
            s("s_mov_b32 s53, 0")
        else:
            T = {3: ["0412385679", "1250349678", "2306145789", "3012745689"],
                 4: ["0123456789", "1230567498", "2301674589", "3012745698"],
                 5: ["0213546879", "1032457698", "0132547689", "1023456798"],
                 6: ["0216354879", "1032745698", "0132485679", "1023549678"]}[rot]
            def enc(o):
                v = 0
                for j, ch in enumerate(o): v |= int(ch) << (4*j)
                return v
            s(f"""s_lshr_b32 s54, s{sI}, 2
            s_add_u32 s54, s54, s{sI}
            s_bitcmp1_b32 s54, 0
            s_cselect_b32 s56, {enc(T[1]) & 0xffffffff}, {0}
            s_cselect_b32 s57, {enc(T[1]) >> 32}, {0}
            s_cselect_b32 s58, {enc(T[3]) & 0xffffffff}, {0}
            s_cselect_b32 s59, {enc(T[3]) >> 32}, {0}
            s_cselect_b32 s60, 0, {enc(T[0]) & 0xffffffff}
            s_cselect_b32 s61, 0, {enc(T[0]) >> 32}
            s_cselect_b32 s62, 0, {enc(T[2]) & 0xffffffff}
            s_cselect_b32 s63, 0, {enc(T[2]) >> 32}
            s_or_b64 s[56:57], s[56:57], s[60:61]
            s_or_b64 s[58:59], s[58:59], s[62:63]
            s_bitcmp1_b32 s54, 1
            s_cselect_b64 s[56:57], s[58:59], s[56:57]
            s_and_b32 s53, s56, 15""")
        def issue(t):
            s(f"""s_lshl_b32 s54, s53, 7
            s_add_u32 m0, s52, {(t&3)*32768}
            s_add_u32 s54, s54, s50""")
            for n in range(4):
                s(f"buffer_load_dwordx4 v{8+n}, {srd(sX)}, s54 offen offset:{1024*n}{nt} lds")
            s(f"""s_mul_i32 s54, s53, {64*3840}
            s_add_u32 m0, s52, {(t&3)*32768+16384}
            s_add_u32 s54, s54, s51""")
            for n in range(4):
                s(f"buffer_load_dwordx4 v{12+n}, {srd(sWQ)}, s54 offen offset:{1024*n}{nt} lds")
            if rot < 3: s("s_add_u32 s53, s53, 1\ns_cmp_eq_u32 s53, 10\ns_cselect_b32 s53, 0, s53")
            else: s("s_lshr_b64 s[56:57], s[56:57], 4\ns_and_b32 s53, s56, 15")
        def issue1(t):
            s(f"""s_mul_i32 s54, s53, {64*1280}
            s_add_u32 m0, s52, {(t&3)*32768}
            s_add_u32 s54, s54, s50""")
            for n in range(4):
                s(f"buffer_load_dwordx4 v{16+n}, {srd(sWS)}, s54 offen offset:{1024*n} sc1 lds")
            s(f"""s_mul_i32 s54, s53, {64*3072}
            s_add_u32 m0, s52, {(t&3)*32768+16384}
            s_add_u32 s54, s54, s51""")
            for n in range(4):
                s(f"buffer_load_dwordx4 v{20+n}, {srd(sW1)}, s54 offen offset:{1024*n} lds")
            s("s_add_u32 s53, s53, 1\ns_and_b32 s53, s53, 7")
        pfq = s.opt.get('pfq', 1)
        tpf = s.opt.get('tpf', 1)
        stag = s.opt.get('stag', 2)
        pfts = [tpf + k for k in range({0: 1, 1: 4, 2: 8}[stag])] if pfq else []
        th = s.opt.get('th', 7)
        ops = []
        s.kwait()
        if s.opt.get('b0st'): s.stamp(3)
        issue(0)
        if s.opt.get('b0st'): s.stamp(4)
        npre = s.opt.get('npre', 1)
        ops += [('s', 0)]
        if npre == 2: issue(1); ops += [('s', 1)]
        if s.opt.get('b0st'): s.stamp(5)
        s(f"""v_lshrrev_b32 v2, 4, v0
        v_add_u32 v2, s49, v2
        v_mul_u32_u24 v1, 3072, v2
        v_lshl_add_u32 v20, v3, 4, v1
        v_add_u32 v21, {12288-1024}, v20
        v_add_u32 v22, {2*(12288-1024)}, v20
        v_add_u32 v23, {3*(12288-1024)}, v20
        v_mul_u32_u24 v1, 1280, v2
        v_lshl_add_u32 v16, v3, 4, v1
        v_add_u32 v17, 4096, v16
        v_add_u32 v18, 8192, v16
        v_add_u32 v19, 12288, v16
        s_and_b32 s66, s{sXC}, 3
        s_lshl_b32 s55, s66, 8
        s_add_u32 s55, s55, {F_H}
        v_lshlrev_b32 v2, 2, v0
        s_lshr_b32 s67, s{sI}, 2
        s_add_u32 s67, s67, s{sI}
        s_and_b32 s67, s67, 3
        s_cmp_ge_u32 s{sXC}, 4
        s_cselect_b32 s60, 12, 14
        s_cselect_b32 s61, 5, 4
        s_mov_b32 s62, {-(-65536//14)}
        s_cmov_b32 s62, {-(-65536//12)}
        s_cselect_b32 s63, 1536, 0
        s_mul_i32 s64, s60, s61
        s_sub_u32 s64, s64, 1
        v_min_u32 v1, s64, v0
        v_mul_u32_u24 v4, s62, v1
        v_lshrrev_b32 v4, 16, v4
        v_mul_u32_u24 v5, s60, v4
        v_sub_u32 v1, v1, v5
        s_lshl_b32 s64, s{sI}, 2
        s_add_u32 s64, s64, s48
        s_mul_i32 s64, s64, s61
        v_add_u32 v4, s64, v4
        v_min_u32 v4, 511, v4
        v_mul_u32_u24 v4, 3072, v4
        v_lshl_add_u32 v1, v1, 7, v4
        s_mul_i32 s64, s66, {512*3072}
        s_add_u32 s64, s64, s63""")
        if stag == 2: s(f"s_mul_i32 s67, s{sI}, s61\ns_lshr_b32 s67, s67, 4")
        if npre == 1: issue(1); ops += [('s', 1)]
        over = s.new("over")
        s(f"s_branch {s.ln(over)}")
        s.lab("grole")
        s.gfront()
        s(f"s_branch {s.ln('grole2')}")
        s.lab(over)
        if s.opt.get('b0st'): s.stamp(6)
        hl = [(3,1,2,sWS,"s55",0)]
        def younger(tag):
            k = ops.index(tag)
            return sum(8 if o[0] == 's' else 1 for o in ops[k+1:])
        for t in range(18):
            s(f"s_waitcnt vmcnt({younger(('s', t))})")
            if s.opt.get('ldstamp') and s.opt['ldstamp'] <= t < s.opt['ldstamp']+6: s.stamp(3 + t - s.opt['ldstamp'])
            if s.opt.get('b0st') and t == 0: s.stamp(7)
            s("s_barrier")
            if t == 0: s.stamp(1)
            if t == 8:
                if not s.opt.get('noln'): s.poll(hl, sleep=8, pre=younger(('h', th)))
                s(f"""s_mul_i32 s50, s66, {512*1280}
                s_lshl_b32 s54, s{sD1}, 8
                s_add_u32 s50, s50, s54
                s_add_u32 s50, s50, {HI}
                s_mul_i32 s51, s66, {512*3072}
                s_lshl_b32 s54, s{sF1}, 8
                s_add_u32 s51, s51, s54""")
                r1 = s.opt.get('g1rot', 0)
                if r1 == 0: s("s_mov_b32 s53, 0")
                if r1 == 1: s(f"s_and_b32 s53, s{sF1}, 7")
                if r1 == 2: s(f"s_lshl_b32 s53, s{sD1}, 1\ns_add_u32 s53, s53, s{sF1}\ns_and_b32 s53, s53, 7")
            if t == th:
                s.poll_issue(hl); ops.append(('h', t))
            if t+2 <= 9: issue(t+2); ops.append(('s', t+2))
            elif t+2 <= 17: issue1(t+2); ops.append(('s', t+2))
            if t in pfts:
                if stag: s(f"s_cmp_eq_u32 s67, {t - tpf}\ns_cselect_b32 s54, s64, 0x1000000")
                s(f"buffer_load_dword v165, v1, {srd(sW1)}, s{54 if stag else 64} offen{' nt' if s.opt.get('pfnt') else ''}")
                ops.append(('x', t))
                if s.opt.get('pfnt') == 2:
                    s(f"buffer_load_dword v166, v1, {srd(sW1)}, s{54 if stag else 64} offen sc1"); ops.append(('y', t))
        s.stamp(2)
        if s.opt.get('ldstamp'): s.end_wave()

    def gemm_ops(s, xaddr, aW):
        ACC, F = 64, (32, 48, 128, 144)
        def tr(b, a, o): return [f"ds_read_b64_tr_b16 {vr(b,2)}, v{a} offset:{o}", f"ds_read_b64_tr_b16 {vr(b+2,2)}, v{a} offset:{o+1024}"]
        def reads(buf, sl, ks):
            b = F[buf]; o = sl*32768
            L = []
            for i in range(2):
                if isinstance(xaddr, int): L += tr(b+4*i, xaddr+i, o+ks*4096)
                else:
                    a0, o0 = xaddr(i, ks); L.append(f"ds_read_b128 {vr(b+4*i,4)}, v{a0} offset:{o+o0}")
                L += tr(b+8+4*i, aW+i, o+ks*4096)
            return L
        def mf(buf, i, j, isv):
            b = F[buf]; xa = vr(b+4*i,4); wa = vr(b+8+4*j,4); d = vr(ACC+16*(2*i+j),16)
            return f"v_mfma_f32_32x32x16_bf16 {d}, {xa if isv else wa}, {wa if isv else xa}, {d}"
        return reads, mf
    def gemm_loop(s, reads, mf, isv, tog6, tog7, scnt, skip_last):
        lp = s.new("gl")
        s.lab(lp)
        for n in range(8):
            buf = n & 3
            R = reads((n+2) & 3, ((n+2) >> 2) & 1, (n+2) & 3)
            s(f"s_waitcnt lgkmcnt({len(R)})")
            c1, c2 = (2, 4) if len(R) == 6 else (3, 6)
            s(mf(buf,0,0,isv))
            if n == 6:
                for a in tog6: s(f"v_xor_b32 v{a}, 0x10000, v{a}")
            if n == 7:
                for a in tog7: s(f"v_xor_b32 v{a}, 0x10000, v{a}")
            if n == 6 and skip_last:
                nx = s.new("nb")
                s(f"s_cmp_eq_u32 s{scnt}, 1\ns_cbranch_scc1 {s.ln(nx)}\ns_barrier")
                s.lab(nx)
            elif buf == 2: s("s_barrier")
            s("\n".join(R[:c1]))
            s(mf(buf,1,0,isv))
            s("\n".join(R[c1:c2]))
            s(mf(buf,0,1,isv))
            s("\n".join(R[c2:]))
            s(mf(buf,1,1,isv))
        s(f"s_sub_u32 s{scnt}, s{scnt}, 1\ns_cmp_lg_u32 s{scnt}, 0\ns_cbranch_scc1 {s.ln(lp)}")

    def qkv_compute(s):
        ACC = 64
        s.kwait()
        if s.opt.get('b0st'): s.stamp(5)
        s(f"""s_and_b32 s48, s{sW}, 1
        s_lshr_b32 s49, s{sW}, 1
        v_and_b32 v8, 31, v0
        v_lshrrev_b32 v9, 5, v0
        s_lshl_b32 s50, s48, 13
        v_lshl_add_u32 v10, v8, 7, s50
        v_bfe_u32 v11, v0, 1, 3
        v_xor_b32 v11, v11, v9""")
        for ks in range(4):
            s(f"v_xor_b32 v12, {2*ks}, v11\nv_lshl_add_u32 v{2+ks}, v12, 4, v10")
        s(f"""v_bfe_u32 v11, v0, 2, 2
        v_lshl_add_u32 v12, v9, 3, v11
        v_lshlrev_b32 v12, 8, v12
        v_bfe_u32 v13, v0, 4, 1
        v_lshl_add_u32 v12, v13, 5, v12
        v_and_b32 v13, 3, v0
        v_lshl_add_u32 v12, v13, 3, v12
        v_add_u32 v12, 16384, v12
        s_lshl_b32 s50, s49, 1
        v_xor_b32 v11, s50, v11
        v_lshl_add_u32 v6, v11, 6, v12
        v_xor_b32 v7, 64, v6""")
        for r in range(64): s(f"v_mov_b32 v{ACC+r}, 0")
        reads, mf = s.gemm_ops(lambda i, ks: (2+ks, 4096*i), 6)
        if s.opt.get('b0st'): s.stamp(7)
        s(f"s_setprio {s.opt.get('cprio', 2)}\ns_barrier")
        s.stamp(1)
        for l in reads(0,0,0) + reads(1,0,1): s(l)
        s(f"s_mov_b32 s51, 5\ns_cmp_ge_u32 s47, 10\ns_cbranch_scc1 {s.ln('qkv_v')}")
        for isv in (0, 1):
            if isv: s.lab("qkv_v")
            s.gemm_loop(reads, mf, isv, (2,6,7), (3,4,5), 51, False)
            s(f"s_setprio {s.opt.get('eprio', 3)}")
            nb = [10]
            def bar():
                nb[0] += 1; s("s_barrier")
            cuts = {0: (0,), 1: (0, 4), 2: (0, 3, 6), 3: (0, 2, 4, 6), 4: (4,), 5: (2, 6)}[s.opt.get('ecut', 4)]
            s.stamp(2)
            P = 32
            if not isv:
                s(f"""s_cmp_lt_u32 s47, 5
                s_cselect_b32 s52, {fbits(20**-0.5*math.log2(math.e))}, 1.0
                s_mov_b32 s53, s52
                v_lshlrev_b32 v2, 15, v9
                v_lshl_add_u32 v2, v8, 4, v2
                s_lshl_b32 s54, s47, 4
                s_lshl_b32 s55, s49, 3
                s_add_u32 s54, s54, s55
                s_lshl_b32 s54, s54, 15
                s_lshl_b32 s55, s46, 11
                s_add_u32 s54, s54, s55
                s_lshl_b32 s55, s48, 10
                s_add_u32 s54, s54, s55
                s_waitcnt lgkmcnt(0)""")
            else:
                s(f"""s_sub_u32 s54, s47, 10
                s_lshl_b32 s54, s54, 7
                s_lshl_b32 s55, s49, 6
                s_add_u32 s54, s54, s55
                v_add_u32 v4, s54, v8
                v_mul_u32_u24 v6, 320, v9""")
                for j in range(2):
                    s(f"""v_mul_u32_u24 v5, 3277, v4
                    v_lshrrev_b32 v5, 16, v5
                    v_mul_u32_u24 v{2+j}, {81920-320}, v5
                    v_lshl_add_u32 v{2+j}, v4, 4, v{2+j}
                    v_add_u32 v{2+j}, v{2+j}, v6
                    v_add_u32 v4, 32, v4""")
                s(f"""s_lshl_b32 s54, s46, 1
                s_add_u32 s54, s54, s48
                s_mul_i32 s54, s54, {8*320}
                s_add_u32 s54, s54, {VI}
                s_waitcnt lgkmcnt(0)""")
            n = 0
            for j in range(2):
                for gp in range(2):
                    for i in range(2):
                        a = ACC + 16*(2*i+j) + 8*gp
                        if n in cuts: bar()
                        p = P + 4*(n % 8); n += 1
                        if not isv:
                            for q in range(4):
                                s(f"v_pk_mul_f32 {vr(a+2*q,2)}, {vr(a+2*q,2)}, s[52:53]")
                        for q in range(4):
                            s(f"v_cvt_pk_bf16_f32 v{p+q}, v{a+2*q}, v{a+2*q+1}")
                        s(f"s_nop 1\nv_permlane32_swap_b32 v{p}, v{p+2}\nv_permlane32_swap_b32 v{p+1}, v{p+3}")
                        if s.opt.get('nost'): pass
                        elif not isv:
                            s(f"buffer_store_dwordx4 {vr(p,4)}, v2, {srd(sWS)}, s54 offen offset:{512*i} sc1")
                        else:
                            s(f"buffer_store_dwordx4 {vr(p,4)}, v{2+j}, {srd(sWS)}, s54 offen offset:{(4*i+2*gp)*320} sc1")
                    if not isv: s("s_add_u32 s54, s54, 65536")
            if not isv: s(f"s_branch {s.ln('qkv_pub')}")
        s.lab("qkv_pub")
        s(f"""s_lshl_b32 s54, s47, 4
        s_add_u32 s54, s54, s46
        s_mul_i32 s54, s54, {FSP}
        s_add_u32 s54, s54, {F_Q}""")
        while nb[0] < s.opt.get('barr', 12): bar()
        s("s_waitcnt vmcnt(0)")
        bar()
        nx = s.new("q")
        s(f"s_cmp_lg_u32 s{sW}, 0\ns_cbranch_scc1 {s.ln(nx)}")
        s.set_flag("s54", 4, 5)
        s.lab(nx)
        s.stamp(3)
        while nb[0] < 15: bar()

    def attention(s):
        Q1, Q2, K1, K2, V0, V1 = 8, 12, 16, 14, 20, 24
        S = (32, 48); O = 64
        aK1, aK2, aV, vK, vV, vIDX, aPW, vPR, aPR, vPC = 2, 3, 4, 5, 6, 7, 28, 29, 30, 31
        sH, sQB, sP, sODD, sKO, sVO, sMK, sMV, sN, sNEED, sTOK = 48, 49, 50, 51, 52, 53, 54, 55, 56, 3, 100
        EK, EV = "s[58:59]", "s[60:61]"
        sKB, sVB = 62, 63
        s(f"""s_setprio 3
        s_lshl_b32 s{sH}, s{sXC}, 2
        s_and_b32 s57, s{sI}, 3
        s_add_u32 s{sH}, s{sH}, s57
        s_lshr_b32 s{sQB}, s{sI}, 2
        s_lshr_b32 s{sP}, s{sH}, 1
        s_and_b32 s{sODD}, s{sH}, 1
        s_mov_b32 s58, -1
        s_mov_b32 s59, 0xffff
        s_mov_b32 s60, 0xffefffff
        s_mov_b32 s61, 0x1ff
        s_mul_i32 s{sKB}, s{sP}, {5*32768}
        s_add_u32 s{sKB}, s{sKB}, {KI}
        s_mul_i32 s{sVB}, s{sH}, 81920
        s_add_u32 s{sVB}, s{sVB}, {VI}
        s_mul_i32 s{sMK}, s{sW}, 768
        s_add_u32 s{sMK}, s{sMK}, {KVB}
        s_mul_i32 s{sMV}, s{sW}, 672
        s_add_u32 s{sMV}, s{sMV}, {KVB+6144}
        s_lshl_b32 s{sTOK}, s{sQB}, 8
        s_lshl_b32 s57, s{sW}, 5
        s_add_u32 s{sTOK}, s{sTOK}, s57
        v_and_b32 v80, 31, v0
        v_lshrrev_b32 v81, 5, v0
        v_and_b32 v82, 15, v0
        v_lshrrev_b32 v83, 4, v0""")
        s(f"""s_mul_i32 s57, s{sODD}, 3
        v_add_u32 v84, s57, v83
        v_cmp_gt_u32 vcc, 2, v83
        s_lshl_b32 s64, s{sW}, 8
        s_nop 0
        v_cndmask_b32 v84, 2, v84, vcc
        v_lshlrev_b32 v84, 15, v84
        v_lshl_add_u32 v84, v82, 4, v84
        v_add_u32 v{vK}, s64, v84""")
        s(f"""v_cmp_lt_u32 vcc, 20, v0
        s_mul_i32 s64, s{sW}, 640
        v_subrev_u32 v84, 1, v0
        v_cndmask_b32 v84, v0, v84, vcc
        v_lshlrev_b32 v84, 4, v84
        v_add_u32 v{vV}, s64, v84""")
        s(f"""v_bfe_u32 v84, v0, 4, 1
        v_mul_u32_u24 v84, 768, v84
        v_lshl_add_u32 v84, v82, 4, v84
        v_add_u32 v84, {KVB}, v84
        v_lshl_add_u32 v{aK1}, v81, 8, v84
        v_lshl_add_u32 v{aK2}, v81, 3, v84
        v_add_u32 v{aK2}, 512, v{aK2}
        v_min_u32 v84, 20, v80
        v_subrev_u32 v85, 12, v80
        v_cmp_lt_u32 vcc, 27, v80
        v_mul_u32_u24 v86, 336, v81
        v_mov_b32 v{vIDX}, 0xdddd
        v_cndmask_b32 v84, v84, v85, vcc
        v_lshl_add_u32 v84, v84, 4, v86
        v_add_u32 v{aV}, {KVB+6144}, v84
        s_lshl_b32 s64, s{sW}, 2
        s_add_u32 s64, s64, {SY_PA}
        v_mov_b32 v{aPW}, s64
        v_and_b32 v84, 7, v0
        v_lshlrev_b32 v84, 2, v84
        v_add_u32 v{aPR}, {SY_PA}, v84
        v_mov_b32 v{vPC}, 1""")
        for r in range(16): s(f"v_mov_b32 v{O+r}, 0")
        for r in range(8): s(f"v_mov_b32 v{S[1]+8+r}, 0")
        for r in range(4): s(f"v_mov_b32 v{V1+r}, 0")
        s(f"""s_mul_i32 s57, s{sODD}, 3
        v_add_u32 v93, s57, v81
        v_lshlrev_b32 v93, 15, v93
        v_lshl_add_u32 v93, v80, 4, v93
        v_lshlrev_b32 v94, 4, v80
        v_lshl_add_u32 v94, v81, 3, v94
        v_add_u32 v94, 0x10000, v94
        v_lshlrev_b32 v95, 2, v80
        s_lshl_b32 s70, s{sTOK}, 4
        s_add_u32 s70, s70, s{sKB}
        s_sub_u32 s70, s70, {KI-QI}
        s_lshl_b32 s71, s{sTOK}, 2
        s_add_u32 s71, s71, {GI}
        s_lshl_b32 s{sN}, s{sQB}, 1
        s_mov_b32 s66, 0""")
        def dma(slot):
            return [f"s_and_b32 s57, s{sN}, 15",
                    f"s_mul_i32 s{sVO}, s57, 5120",
                    f"s_lshl_b32 s{sKO}, s57, 11",
                    f"s_cmp_lt_u32 s66, 16",
                    f"s_cselect_b32 s67, s{sKB}, {WS_BYTES}",
                    f"s_cselect_b32 s68, s{sVB}, {WS_BYTES}",
                    f"s_add_u32 s{sKO}, s{sKO}, s67",
                    f"s_add_u32 s{sVO}, s{sVO}, s68",
                    f"s_add_u32 m0, s{sMK}, {slot*KVS}",
                    f"s_mov_b64 exec, {EK}",
                    f"buffer_load_dwordx4 v{vK}, {srd(sWS)}, s{sKO} offen sc1 lds",
                    f"s_add_u32 m0, s{sMV}, {slot*KVS}",
                    f"s_mov_b64 exec, {EV}",
                    f"buffer_load_dwordx4 v{vV}, {srd(sWS)}, s{sVO} offen sc1 lds",
                    f"s_mov_b64 exec, -1",
                    f"s_add_u32 s{sN}, s{sN}, 1",
                    f"s_add_u32 s66, s66, 1"]
        D0 = dma(0)
        s("\n".join(D0[:9]))
        hi, w1, w23, nidle = s.new("a"), s.new("a"), s.new("a"), s.new("a")
        ql = [(88,1,85,sWS,"s64",0),(89,1,84,sWS,"s64",0),(90,1,95,sWS,"s65",0)][:2 if s.opt.get('noln') else 3]
        s(f"""s_cmp_ge_u32 s{sW}, 4
        s_cbranch_scc1 {s.ln(hi)}
        s_cmp_lg_u32 s{sW}, 0
        s_cbranch_scc1 {s.ln(w1)}
        s_mul_i32 s64, s{sP}, 5
        s_lshl_b32 s65, s{sODD}, 1
        s_add_u32 s64, s64, s65
        v_bfe_u32 v86, v0, 4, 1
        v_lshl_add_u32 v84, v86, 1, s64
        v_lshrrev_b32 v84, 4, v84
        s_mul_i32 s64, s{sH}, 20
        v_mul_u32_u24 v85, 19, v86
        v_add_u32 v85, s64, v85
        v_lshrrev_b32 v85, 7, v85
        v_add_u32 v85, 5, v85
        v_cmp_eq_u32 vcc, 0, v81
        s_lshl_b32 s64, s{sQB}, 1
        v_and_b32 v87, 1, v0
        v_cndmask_b32 v85, v85, v84, vcc
        v_add_u32 v85, 5, v85
        v_lshl_add_u32 v85, v85, 4, v82
        v_mul_u32_u24 v85, {FSP}, v85
        v_add_u32 v87, s64, v87
        v_lshl_add_u32 v84, v84, 4, v87
        v_mul_u32_u24 v84, {FSP}, v84
        s_barrier
        s_cmp_lg_u32 s{sCT}, 15
        s_cbranch_scc1 {s.ln(nidle)}
        s_mul_i32 s64, s{sRT}, {FSP}
        s_add_u32 s64, s64, {F_Q + 14*16*FSP}
        v_mov_b32 v86, 0""")
        s.poll([(88,1,86,sWS,"s64",0)], sleep=8)
        s.lab(nidle)
        s(f"""s_mov_b32 s64, {F_Q}
        s_lshl_b32 s65, s{sQB}, 7
        s_add_u32 s65, s65, {F_H}""")
        if s.opt.get('epoll', 1):
            s.poll_issue(ql)
            s("s_barrier")
            s.poll(ql, sleep=s.opt.get('psl', 4), pre=0)
        else:
            s("s_barrier")
            s.poll(ql, sleep=s.opt.get('psl', 4))
        s.lds_set(SY_QOK, 1, 84, 85)
        s(f"s_branch {s.ln(hi)}")
        s.lab(w1)
        s(f"""s_barrier
        s_barrier
        s_cmp_lg_u32 s{sW}, 1
        s_cbranch_scc1 {s.ln(hi)}
        v_mul_u32_u24 v84, {KVS}, v83
        v_mul_u32_u24 v85, 336, v82
        v_add_u32 v84, v84, v85
        v_add_u32 v84, {KVB+6144+320}, v84
        v_mov_b32 v88, 0x3f803f80
        v_mov_b32 v89, 0x3f803f80
        v_mov_b32 v90, 0x3f803f80
        v_mov_b32 v91, 0x3f803f80
        ds_write_b128 v84, v[88:91]""")
        s.lab(hi)
        s(f"v_mov_b32 v86, {SY_QOK}")
        s.lds_spin(86, 1, 87)
        s.stamp(4)
        if s.opt.get('dbgx') == 2 or s.opt.get('ldstamp'): s.end_wave()
        s("\n".join(D0[9:]))
        s(f"""buffer_load_dwordx4 {vr(Q1,4)}, v93, {srd(sWS)}, s70 offen sc1
        buffer_load_dwordx2 {vr(Q2,2)}, v94, {srd(sWS)}, s70 offen sc1""")
        for l in dma(1): s(l)
        for l in dma(2): s(l)
        s(f"buffer_load_dword v92, v95, {srd(sWS)}, s71 offen sc1")
        s(f"""s_waitcnt vmcnt(5) lgkmcnt(0)
        ds_write_b32 v{aPW}, v{vPC}
        v_cmp_eq_u32 vcc, s{sODD}, v81
        v_add_u32 v{vPC}, 1, v{vPC}
        s_mov_b32 s{sNEED}, 2
        v_cndmask_b32 v{Q2}, 0, v{Q2}, vcc
        v_cndmask_b32 v{Q2+1}, 0, v{Q2+1}, vcc""")
        s.lds_spin(aPR, 1, vPR)
        s.stamp(5)
        def off(T):
            T %= 16
            return (T >> 2)*KVS, T & 3
        def rK1(T):
            b, tt = off(T); return f"ds_read_b128 {vr(K1,4)}, v{aK1} offset:{b+tt*1536}"
        def rK2(T):
            b, tt = off(T); return f"ds_read_b64 {vr(K2,2)}, v{aK2} offset:{b+tt*1536}"
        def rV(T, a):
            b, tt = off(T); return f"ds_read_b128 {vr((V0,V1)[a],4)}, v{aV} offset:{b+(4*tt+2*a)*336}"
        def qk0(d): return f"v_mfma_f32_32x32x16_bf16 {vr(d,16)}, {vr(K1,4)}, {vr(Q1,4)}, 0"
        def qk1(d): return f"v_mfma_f32_32x32x8_bf16 {vr(d,16)}, {vr(K2,2)}, {vr(Q2,2)}, {vr(d,16)}"
        def pv(v, p): return f"v_smfmac_f32_32x32x32_bf16 {vr(O,16)}, {vr(v,4)}, {vr(p,8)}, v{vIDX}"
        s(rK1(0)); s(rK2(0)); s("s_waitcnt lgkmcnt(0)")
        s(qk0(S[0])); s(qk1(S[0]))
        s(rK1(1)); s(rK2(1)); s(rV(0,0))
        s("s_mov_b32 s69, 4\ns_nop 7")
        ap = s.opt.get('aprio', 1)
        def loop(pat):
          lp = s.new("attl")
          s.L.append(".p2align 6")
          s.lab(lp)
          for T in range(16):
              cur, nxt = S[T & 1], S[(T & 1) ^ 1]
              E = [f"v_exp_f32 v{cur+i}, v{cur+i}" for i in range(16)]
              tt = T & 3
              if pat is not None and pat[T] != pat[T-1]: s(f"s_setprio {pat[T]}")
              if tt == 2:
                  ok = s.new("ok")
                  s(E[0]); s(E[1])
                  s("s_waitcnt lgkmcnt(0)")
                  s(pv(V1, nxt+8))
                  s(f"v_cmp_gt_u32 vcc, s{sNEED}, v{vPR}")
                  s(rV(T,1))
                  s.spin_ool(aPR, f"s{sNEED}", vPR, sleep=1)
                  D = dma(((T >> 2) + 3) & 3)
                  s(E[2]); s("\n".join(D[0:4])); s(E[3]); s("\n".join(D[4:8])); s(E[4])
                  s(qk0(nxt)); s(rK1(T+2))
                  s(E[5]); s(E[6]); s(E[7])
                  s(qk1(nxt)); s(rK2(T+2))
                  if s.opt.get('adma', 1): s("s_setprio 3")
                  s("\n".join(D[8:15]))
                  if s.opt.get('adma', 1): s(f"s_setprio {pat[T] if pat else ap}")
                  s(E[8]); s("\n".join(D[15:17])); s(f"s_add_u32 s{sNEED}, s{sNEED}, 1")
                  s(E[9]); s(E[10]); s(E[11])
                  s(pv(V0, cur)); s(rV(T+1,0))
                  for e in E[12:]: s(e)
              else:
                  s(E[0]); s(E[1])
                  s("s_waitcnt lgkmcnt(2)")
                  s(pv(V1, nxt+8)); s(rV(T,1))
                  if tt == 0:
                      s(f"s_waitcnt vmcnt(2)\nds_write_b32 v{aPW}, v{vPC}")
                  s(E[2]); s(E[3]); s(E[4])
                  s(qk0(nxt)); s(rK1(T+2))
                  s(E[5]); s(E[6]); s(E[7])
                  s(f"s_waitcnt lgkmcnt({3 if tt == 0 else 2})")
                  s(qk1(nxt)); s(rK2(T+2))
                  s(E[8]); s(E[9]); s(E[10]); s(E[11])
                  if tt == 0: s(f"v_add_u32 v{vPC}, 1, v{vPC}")
                  s(pv(V0, cur)); s(rV(T+1,0))
                  if tt == 1: s(f"ds_read_b32 v{vPR}, v{aPR}")
                  for e in E[12:]: s(e)
                  if tt == 3: s("s_nop 0")
          if s.opt.get('qst') and s.stamps:
              for k, c in ((1, 4), (2, 3), (3, 2)):
                  nx = s.new("st")
                  s(f"s_cmp_lg_u32 s69, {c}\ns_cbranch_scc1 {s.ln(nx)}")
                  s.stamp(k)
                  s.lab(nx)
          s(f"s_sub_u32 s69, s69, 1\ns_cmp_lg_u32 s69, 0\ns_cbranch_scc1 {s.ln(lp)}")
        ap = s.opt.get('aprio', 1)
        pm = s.opt.get('apat', 109)
        if pm:
            young, join = s.new("young"), s.new("join")
            s(f"s_cmp_ge_u32 s{sW}, 4\ns_cbranch_scc1 {s.ln(young)}\ns_setprio {ap}")
            loop(None)
            s(f"s_branch {s.ln(join)}")
            s.lab(young)
            pat = [(s.opt.get('ylo', ap), s.opt.get('yhi', ap+1))[(pm >> (T % 8)) & 1] for T in range(16)]
            s(f"s_setprio {pat[15]}")
            loop(pat)
            s.lab(join)
        else:
            s(f"s_setprio {ap}")
            loop(None)
        s("s_setprio 3")
        s(f"s_waitcnt lgkmcnt(0)\nds_write_b32 v{aPW}, v{vPC}")
        s(pv(V1, S[1]+8))
        s.stamp(6)
        s(f"""v_lshlrev_b32 v84, 4, v80
        v_lshl_add_u32 v86, v81, 15, v84
        s_lshl_b32 s64, s{sH}, 16
        s_lshl_b32 s65, s{sTOK}, 4
        s_add_u32 s65, s65, {OI}
        s_add_u32 s64, s64, s65
        s_add_u32 s57, s{sP}, 64
        s_lshl_b32 s57, s57, 15
        s_add_u32 s65, s65, s57
        s_xor_b32 s57, s{sP}, s{sH}
        s_and_b32 s57, s57, 1
        s_lshl_b32 s57, s57, 3
        s_add_u32 s65, s65, s57
        v_cmp_eq_u32 s[72:73], 0, v81
        v_add_f32 v88, abs(v{O}), abs(v{O+1})
        v_add_f32 v89, abs(v{O+2}), abs(v{O+3})""")
        for r in range(4, 12, 2):
            s(f"v_add_f32 v88, v88, abs(v{O+r})\nv_add_f32 v89, v89, abs(v{O+r+1})")
        slow, norm = s.new("slow"), s.new("norm")
        s(f"""v_cndmask_b32 v87, v{O+8}, v{O+12}, s[72:73]
        v_add_f32 v88, v88, v89
        v_cmp_nle_f32 vcc, {fbits(2.0**-30)}, v87
        s_mov_b64 s[74:75], vcc
        v_cmp_nge_f32 vcc, {fbits(2.0**60)}, v87
        s_or_b64 s[74:75], s[74:75], vcc
        v_cmp_nge_f32 vcc, {fbits(2.0**126)}, v88
        s_or_b64 vcc, s[74:75], vcc
        s_cbranch_vccnz {s.ln(slow)}""")
        s.lab(norm)
        s(f"""v_rcp_f32 v88, v87
        s_nop 0
        v_mul_f32 v88, v88, v92""")
        s.slow_args = (slow, norm, Q1, Q2, K1, K2, V0, V1, S, O, vIDX, sKB, sVB)
        for r in range(12): s(f"v_mul_f32 v{O+r}, v{O+r}, v88")
        for q in range(6): s(f"v_cvt_pk_bf16_f32 v{32+q}, v{O+2*q}, v{O+2*q+1}")
        s(f"""buffer_store_dwordx4 v[32:35], v86, {srd(sWS)}, s64 offen sc1
        s_mov_b32 exec_hi, 0
        buffer_store_dwordx2 v[36:37], v84, {srd(sWS)}, s65 offen sc1
        s_mov_b32 exec_hi, -1""")
        if True:
            s(f"""s_lshl_b32 s64, s{sQB}, 5
            s_add_u32 s64, s64, s{sH}
            s_mul_i32 s64, s64, {FSP}
            s_add_u32 s64, s64, {F_O}""")
            s.arrive(SY_CO, 8, "s64", 84, 85)
        s.stamp(7)

    def att_slow(s):
        slow, norm, Q1, Q2, K1, K2, V0, V1, S, O, vIDX, sKB, sVB = s.slow_args
        S0, C = S
        l1, l2 = s.new("slowa"), s.new("slowb")
        s.lab(slow)
        ldk = f"""buffer_load_dwordx4 {vr(K1,4)}, v93, {srd(sWS)}, s67 offen sc1
        buffer_load_dwordx2 {vr(K2,2)}, v94, {srd(sWS)}, s67 offen sc1"""
        s(f"""s_waitcnt vmcnt(0) lgkmcnt(0)
        v_mov_b32 v88, 0xff800000
        s_mov_b32 s67, s{sKB}
        s_mov_b32 s69, 64""")
        s.lab(l1)
        s(ldk)
        s(f"""s_waitcnt vmcnt(0)
        v_mfma_f32_32x32x16_bf16 {vr(S0,16)}, {vr(K1,4)}, {vr(Q1,4)}, 0
        v_mfma_f32_32x32x8_bf16 {vr(S0,16)}, {vr(K2,2)}, {vr(Q2,2)}, {vr(S0,16)}
        s_add_u32 s67, s67, 512
        s_nop 15""")
        for r in range(0, 16, 2): s(f"v_max3_f32 v88, v88, v{S0+r}, v{S0+r+1}")
        s(f"""s_sub_u32 s69, s69, 1
        s_cmp_lg_u32 s69, 0
        s_cbranch_scc1 {s.ln(l1)}
        v_mov_b32 v89, v88
        s_nop 1
        v_permlane32_swap_b32 v88, v89
        s_nop 1
        v_max_f32 v88, v88, v89
        v_mul_u32_u24 v89, 320, v81
        v_lshl_add_u32 v89, v80, 4, v89""")
        for r in range(16): s(f"v_sub_f32 v{C+r}, 0, v88\nv_mov_b32 v{O+r}, 0")
        for r in range(4): s(f"v_mov_b32 v{V0+r}, 0x3f803f80\nv_mov_b32 v{V1+r}, 0x3f803f80")
        s(f"""s_mov_b32 s67, s{sKB}
        s_mov_b32 s68, s{sVB}
        s_mov_b32 s69, 64
        s_mov_b32 s74, 0xfffff
        s_mov_b32 s75, 0xfffff""")
        s.lab(l2)
        s(ldk)
        s(f"""s_mov_b64 exec, s[74:75]
        buffer_load_dwordx4 {vr(V0,4)}, v89, {srd(sWS)}, s68 offen sc1
        buffer_load_dwordx4 {vr(V1,4)}, v89, {srd(sWS)}, s68 offen offset:640 sc1
        s_mov_b64 exec, -1
        s_waitcnt vmcnt(0)
        v_mfma_f32_32x32x16_bf16 {vr(S0,16)}, {vr(K1,4)}, {vr(Q1,4)}, {vr(C,16)}
        v_mfma_f32_32x32x8_bf16 {vr(S0,16)}, {vr(K2,2)}, {vr(Q2,2)}, {vr(S0,16)}
        s_add_u32 s67, s67, 512
        s_add_u32 s68, s68, 1280
        s_nop 15""")
        for r in range(16): s(f"v_exp_f32 v{S0+r}, v{S0+r}")
        s(f"""s_nop 1
        v_smfmac_f32_32x32x32_bf16 {vr(O,16)}, {vr(V0,4)}, {vr(S0,8)}, v{vIDX}
        v_smfmac_f32_32x32x32_bf16 {vr(O,16)}, {vr(V1,4)}, {vr(S0+8,8)}, v{vIDX}
        s_sub_u32 s69, s69, 1
        s_cmp_lg_u32 s69, 0
        s_nop 7
        s_cbranch_scc1 {s.ln(l2)}
        s_nop 15
        v_cndmask_b32 v87, v{O+8}, v{O+12}, s[72:73]
        s_branch {s.ln(norm)}""")

    def gfront(s):
        sJ = 48
        s(f"s_setprio 3\ns_sub_u32 s{sJ}, s{sW}, 8")
        s.ln_loads(sJ)
        s(f"""v_lshlrev_b32 v1, 2, v0
        v_add_u32 v1, {SYN}, v1
        v_mov_b32 v2, 0
        ds_write_b32 v1, v2""")
        if s.opt.get('noln'):
            s('s_barrier'); s.gtiles(sJ); s.nb = 1
        else: s.nb = s.layernorm(sJ)

    def grole(s):
        sJ = 48
        pre = s.gsetup(sJ)
        nb = s.nb
        assert nb <= s.opt.get('th', 7)
        s("s_setprio 0")
        lines = "\n".join(pre).split("\n")
        k = 11 - nb
        per = -(-len(lines) // k)
        for q in range(k):
            s("\n".join(lines[q*per:(q+1)*per])); s("s_barrier")
        s.stamp(2)
        s.gsync_n = 0
        s.gemm1(sJ)
        s.gemm2(sJ)

    def gtiles(s, sJ):
        s(f"""s_and_b32 s50, s{sXC}, 3
        s_lshl_b32 s51, s{sF1}, 2
        s_and_b32 s54, s{sJ}, 2
        s_add_u32 s51, s51, s54
        s_lshr_b32 s54, s50, 1
        s_add_u32 s51, s51, s54
        s_lshl_b32 s52, s{sD1}, 1
        s_and_b32 s54, s{sJ}, 1
        s_add_u32 s52, s52, s54
        s_lshl_b32 s52, s52, 1
        s_and_b32 s54, s50, 1
        s_add_u32 s52, s52, s54
        s_lshl_b32 s62, s{sXC}, 2
        s_and_b32 s54, s{sI}, 3
        s_add_u32 s62, s62, s54
        s_lshr_b32 s63, s{sI}, 2
        s_lshl_b32 s66, s62, 6
        s_lshl_b32 s54, s{sJ}, 4
        s_add_u32 s66, s66, s54
        s_lshl_b32 s54, s51, 6
        v_lshrrev_b32 v1, 5, v0
        v_lshl_add_u32 v1, v1, 3, s54
        v_and_b32 v2, 15, v0
        v_add_lshl_u32 v2, s66, v2, 1""")
        for q in range(4):
            s(f"global_load_dwordx2 {vr(54+2*q,2)}, v1, s[{sB1}:{sB1+1}] offset:{16*q}")
        s(f"global_load_ushort v62, v2, s[{sB2}:{sB2+1}]")

    def gsetup(s, sJ):
        B = []
        B.append(f"""s_mul_i32 s49, s{sJ}, {GREG}
        s_lshl_b32 s54, s{sJ}, 2
        s_add_u32 s54, s54, {SY_PG}
        v_mov_b32 v160, s54
        v_lshrrev_b32 v48, 4, v0
        v_and_b32 v49, 15, v0
        v_lshrrev_b32 v50, 5, v0
        v_and_b32 v51, 31, v0
        v_and_b32 v52, 3, v0
        v_bfe_u32 v53, v0, 2, 2
        v_lshlrev_b32 v161, 2, v52
        v_add_u32 v161, {SY_PG}, v161
        v_mov_b32 v164, {SYN}
        v_lshrrev_b32 v30, 3, v0
        v_and_b32 v31, 7, v0
        v_lshlrev_b32 v13, 1, v48
        v_xor_b32 v13, v13, v31
        v_lshlrev_b32 v30, 12, v30
        v_lshl_add_u32 v13, v13, 4, v30
        v_mul_u32_u24 v28, 10240, v50
        v_lshl_add_u32 v28, v51, 4, v28""")
        B.append(f"""v_lshl_add_u32 v26, v50, 3, v53
        v_lshlrev_b32 v26, 8, v26
        v_and_b32 v31, 1, v48
        v_lshl_add_u32 v26, v31, 5, v26
        v_lshl_add_u32 v26, v52, 3, v26
        v_add_u32 v24, 0x10000, v26
        v_add_u32 v26, {0x10000 + 16384}, v26
        s_and_b32 s54, s52, 3
        v_xor_b32 v30, s54, v53
        v_lshl_add_u32 v24, v30, 6, v24
        v_xor_b32 v25, 64, v24
        s_and_b32 s54, s51, 3
        v_xor_b32 v30, s54, v53
        v_lshl_add_u32 v26, v30, 6, v26
        v_xor_b32 v27, 64, v26
        """)
        B.append(f"""s_mul_i32 s64, s{sJ}, {384*4096}
        s_lshl_b32 s54, s62, 7
        s_add_u32 s64, s64, s54
        s_mul_i32 s65, s{sJ}, {48*10240}
        s_mul_i32 s54, s63, 1280
        s_add_u32 s65, s65, s54
        s_add_u32 s65, s65, {UI}
        v_mul_u32_u24 v14, 10240, v48
        v_lshl_add_u32 v14, v49, 4, v14
        v_bfe_u32 v30, v0, 2, 3
        v_lshl_add_u32 v31, v50, 4, v30
        v_lshlrev_b32 v31, 7, v31
        v_lshl_add_u32 v31, v52, 3, v31
        v_add_u32 v31, s49, v31
        v_lshrrev_b32 v32, 1, v30
        v_xor_b32 v32, s{sJ}, v32
        """ + "\n".join(f"v_xor_b32 v33, {si}, v32\nv_lshl_add_u32 v{15+si}, v33, 5, v31" for si in range(4)) + f"""
        v_lshlrev_b32 v12, 15, v48
        v_lshl_add_u32 v12, v49, 4, v12
        v_add_u32 v19, s66, v49
        v_mul_u32_u24 v19, 1280, v19
        v_lshl_add_u32 v19, v48, 3, v19""")
        B.append("\n".join(f"""v_add_u32 v31, {64*m}, v0
            v_mul_u32_u24 v32, 6554, v31
            v_lshrrev_b32 v32, 16, v32
            v_mul_u32_u24 v32, {1280-160}, v32
            v_lshl_add_u32 v{1+m}, v31, 4, v32""" for m in range(5)))
        B.append(f"""v_mul_u32_u24 v31, 20, v50
        v_add_u32 v31, v31, v30
        v_mul_u32_u24 v31, 160, v31
        v_lshl_add_u32 v6, v52, 3, v31
        v_add_u32 v7, 51200, v6
        v_mul_u32_u24 v31, 40, v48
        v_add_u32 v31, v31, v53
        v_add_u32 v31, 16, v31
        v_mul_u32_u24 v31, 160, v31
        v_lshl_add_u32 v31, v52, 3, v31
        v_and_b32 v32, 1, v48
        v_mul_u32_u24 v32, 3200, v32
        v_sub_u32 v9, v31, v32
        v_add_u32 v9, 3200, v9
        v_add_u32 v8, v31, v32
        v_add_u32 v10, 51200, v8
        v_add_u32 v11, 51200, v9""")
        B.append("\n".join(f"v_mov_b32 v{r}, 0" for r in range(80, 128)))
        B.append("s_waitcnt vmcnt(0)\n" + "\n".join(f"v_lshlrev_b32 v{64+2*q}, 16, v{54+q}\nv_and_b32 v{65+2*q}, 0xffff0000, v{54+q}" for q in range(8)) + "\nv_lshlrev_b32 v20, 16, v62")
        return B

    def xaddr(s, sJ, vw, vr0):
        s(f"v_lshlrev_b32 v{vw}, 4, v0")
        for n in range(1, 4):
            s(f"s_xor_b32 s54, s{sJ}, {n}\ns_mul_i32 s54, s54, {GREG}\ns_add_u32 s54, s54, {(n-1)*4096}\nv_add_u32 v{vr0+n-1}, s54, v{vw}")
        s(f"v_add_u32 v{vw}, s49, v{vw}")

    def gpost(s):
        s.gsync_n += 1
        s(f"s_waitcnt lgkmcnt(0)\nv_mov_b32 v162, {s.gsync_n}\nds_write_b32 v160, v162")
    def gwait(s):
        s.lds_spin(161, s.gsync_n, 163, sleep=2)

    def ln_loads(s, sJ):
        X = (8, 13); GWR = 18
        s(f"""s_and_b32 s67, s{sXC}, 3
        s_lshl_b32 s67, s67, 6
        s_lshr_b32 s68, s{sXC}, 2
        s_lshl_b32 s68, s68, 5
        s_add_u32 s67, s67, s68
        s_add_u32 s67, s67, s{sI}
        s_lshl_b32 s68, s67, 3
        s_lshl_b32 s69, s{sJ}, 1
        s_add_u32 s68, s68, s69
        s_mul_i32 s69, s68, 1280
        v_and_b32 v1, 31, v0
        v_lshrrev_b32 v3, 5, v0
        v_lshlrev_b32 v2, 3, v1
        v_lshlrev_b32 v1, 4, v1
        v_mul_u32_u24 v19, 1280, v3
        v_add_u32 v18, v19, v1
        v_add_u32 v19, v19, v2""")
        s.kwait()
        if s.opt.get('noln'): return
        s(f"""buffer_load_dwordx4 v[8:11], v18, {srd(sX)}, s69 offen
        buffer_load_dwordx4 v[12:15], v18, {srd(sX)}, s69 offen offset:512
        buffer_load_dwordx2 v[16:17], v19, {srd(sX)}, s69 offen offset:1024
        global_load_dwordx4 v[20:23], v1, s[{sGW}:{sGW+1}]
        global_load_dwordx4 v[24:27], v1, s[{sGW}:{sGW+1}] offset:512
        global_load_dwordx2 v[28:29], v2, s[{sGW}:{sGW+1}] offset:1024""")

    def layernorm(s, sJ):
        X, GW, XV = 8, 20, 32
        nb = [0]
        def bar():
            nb[0] += 1; s("s_barrier")
        gl = [(31,1,30,sDBG,"0",0)]
        s(f"""s_mov_b32 s70, 0x3f803f80
        s_lshl_b32 s55, s68, 2
        s_add_u32 s55, s55, {GI}
        s_add_u32 s69, s69, {HI}
        v_lshlrev_b32 v3, 2, v3
        v_and_b32 v30, 15, v0
        v_lshlrev_b32 v30, 2, v30
        s_waitcnt vmcnt(0)""")
        s.stamp(1)
        for i in range(10):
            s(f"v_dot2_f32_bf16 v4, v{X+i}, s70, {'v4' if i else 0}")
            s(f"v_dot2_f32_bf16 v5, v{X+i}, v{GW+i}, {'v5' if i else 0}")
        un = []
        for i in range(10):
            un += [f"v_lshlrev_b32 v{XV+2*i}, 16, v{X+i}", f"v_and_b32 v{XV+2*i+1}, 0xffff0000, v{X+i}"]
        def fill(n):
            for _ in range(n): s(un.pop(0) if un else "s_nop 0")
        fill(3)
        for k in (8, 4, 2, 1):
            for q in (4, 5): s(f"v_add_f32_dpp v{q}, v{q}, v{q} row_ror:{k} row_mask:0xf bank_mask:0xf")
            fill(1)
        s("v_mov_b32 v6, v4\nv_mov_b32 v7, v5"); fill(2)
        s("v_permlane16_swap_b32 v4, v6\nv_permlane16_swap_b32 v5, v7"); fill(2)
        s(f"""v_add_f32 v4, v4, v6
        v_add_f32 v5, v5, v7
        v_mul_f32 v4, {fbits(-1/640)}, v4
        v_mul_f32 v5, {fbits(-math.log2(math.e))}, v5
        v_exp_f32 v5, v5""")
        fill(len(un))
        s("v_add_f32 v5, 1.0, v5\nv_rcp_f32 v2, v5")
        for e in range(0, 20, 2): s(f"v_pk_add_f32 {vr(XV+e,2)}, {vr(XV+e,2)}, v[4:5] op_sel_hi:[1,0]")
        for e in range(0, 20, 2):
            a = (6, 52)[(e >> 1) & 1]
            if e < 4: s(f"v_pk_mul_f32 {vr(a,2)}, {vr(XV+e,2)}, {vr(XV+e,2)}")
            else: s(f"v_pk_fma_f32 {vr(a,2)}, {vr(XV+e,2)}, {vr(XV+e,2)}, {vr(a,2)}")
        s("v_pk_add_f32 v[6:7], v[6:7], v[52:53]\nv_add_f32 v6, v6, v7")
        for k in (8, 4, 2, 1):
            s(f"s_nop 1\nv_add_f32_dpp v6, v6, v6 row_ror:{k} row_mask:0xf bank_mask:0xf")
        s(f"""v_mov_b32 v7, v6
        v_mov_b32 v4, {fbits(1e-5)}
        s_nop 0
        v_permlane16_swap_b32 v6, v7
        s_nop 1
        v_add_f32 v6, v6, v7
        v_fmac_f32 v4, {fbits(1/640)}, v6
        v_rsq_f32 v4, v4
        s_nop 0""")
        for e in range(0, 20, 2):
            s(f"v_pk_mul_f32 {vr(XV+e,2)}, {vr(XV+e,2)}, v[4:5] op_sel_hi:[1,0]")
        for i in range(10): s(f"v_cvt_pk_bf16_f32 v{X+i}, v{XV+2*i}, v{XV+2*i+1}")
        nx, done = s.new("g"), s.new("g")
        s(f"""buffer_store_dwordx4 v[8:11], v18, {srd(sWS)}, s69 offen sc1
        buffer_store_dwordx4 v[12:15], v18, {srd(sWS)}, s69 offen offset:512 sc1
        buffer_store_dwordx2 v[16:17], v19, {srd(sWS)}, s69 offen offset:1024 sc1
        s_mov_b32 exec_lo, 1
        s_mov_b32 exec_hi, 1
        buffer_store_dword v2, v3, {srd(sWS)}, s55 offen sc1
        s_mov_b64 exec, -1
        s_cmp_lg_u32 s{sJ}, 0
        s_cbranch_scc1 {s.ln(nx)}""")
        s.poll_issue(gl)
        s.lab(nx)
        if s.opt.get('b0st'): s.stamp(7)
        s("s_waitcnt lgkmcnt(0)")
        for _ in range(s.opt.get('lnw', 2)): bar()
        s("s_waitcnt vmcnt(0)")
        bar()
        s(f"""s_lshl_b32 s54, s67, 2
        s_add_u32 s54, s54, {F_H}
        s_cmp_lg_u32 s{sJ}, 0
        s_cbranch_scc1 {s.ln(done)}""")
        s.poll(gl, sleep=4, pre=0)
        s.set_flag("s54", 4, 5)
        s.lab(done)
        s.gtiles(sJ)
        return nb[0]

    def gpoll(s, pre, loads, ok, sleep, lsl=4):
        nx = s.new("gp")
        s(f"s_cmp_lg_u32 s48, 0\ns_cbranch_scc1 {s.ln(nx)}")
        for addr, need in pre: s.lds_spin(164, need, 165, off=addr-SYN, sleep=lsl)
        s.poll(loads, sleep=sleep)
        s(f"v_mov_b32 v165, 1\nds_write_b32 v164, v165 offset:{ok-SYN}")
        s.lab(nx)
        s.lds_spin(164, 1, 165, off=ok-SYN, sleep=lsl)

    def pfwo(s):
        s(f"""s_lshl_b32 s60, s{sI}, 2
        s_add_u32 s60, s60, s48
        s_mul_i32 s61, s60, 6400
        v_min_u32 v30, 49, v0
        v_lshlrev_b32 v30, 7, v30
        buffer_load_dword v167, v30, {srd(sWO)}, s61 offen""")

    def gemm1(s, sJ):
        ACC = 64
        skip, fin = s.new("g1skip"), s.new("g1fin")
        s(f"s_cmp_eq_u32 s{sCT}, 15\ns_cbranch_scc1 {s.ln(skip)}")
        reads, mf = s.gemm_ops(24, 26)
        s(f"s_setprio {s.opt.get('gp1', 1)}")
        for l in reads(0,0,0) + reads(1,0,1): s(l)
        s("s_mov_b32 s54, 4")
        s.gemm_loop(reads, mf, 0, (24,25,26,27), (), 54, True)
        s.stamp(3)
        s(f"""s_setprio 3
        s_lshl_b32 s55, s{sN1}, 2
        s_lshl_b32 s57, s{sJ}, 11
        s_add_u32 s57, s57, {PI}
        v_lshlrev_b32 v29, 4, v0""")
        s.gpost()
        hold = s.opt.get('phold', 0)
        for n in range(1, 4):
            m = (0, 2, 1, 3)[n]
            p = 32 + 8*(n-1)
            s(f"""s_xor_b32 s54, s50, {m}
            s_add_u32 s54, s54, s55
            s_mul_i32 s54, s54, 24576
            s_add_u32 s54, s54, s57
            s_add_u32 s{57+n}, s54, {(n-1)*8192}""")
            for q in range(8): s(f"v_cvt_pk_bf16_f32 v{p+q}, v{ACC+16*n+2*q}, v{ACC+16*n+2*q+1}")
        if hold: s.lds_spin(164, 1, 165, off=(SY_QOK, SY_PA)[hold-1]-SYN, sleep=2)
        for n in range(1, 4):
            p = 32 + 8*(n-1)
            s(f"""buffer_store_dwordx4 {vr(p,4)}, v29, {srd(sWS)}, s{57+n} offen sc1
            buffer_store_dwordx4 {vr(p+4,4)}, v29, {srd(sWS)}, s{57+n} offen offset:1024 sc1""")
        s(f"""s_add_u32 s56, s55, s50
        s_mul_i32 s54, s56, {FSP}
        s_add_u32 s54, s54, {F_P}""")
        s.arrive(SY_CP, 4, "s54", 30, 31)
        s(f"""s_mul_i32 s54, s55, {FSP}
        s_add_u32 s54, s54, {F_P}
        v_and_b32 v30, 3, v0
        v_mul_u32_u24 v30, {FSP}, v30
        s_mul_i32 s56, s56, 24576
        s_add_u32 s56, s56, s57""")
        s.gpoll([(SY_CP, 4)], [(31,1,30,sWS,"s54",0)], SY_POK, 4)
        s.stamp(4)
        for n in range(3):
            p = 32 + 8*n
            s(f"""buffer_load_dwordx4 {vr(p,4)}, v29, {srd(sWS)}, s56 offen sc1
            buffer_load_dwordx4 {vr(p+4,4)}, v29, {srd(sWS)}, s56 offen offset:1024 sc1
            s_add_u32 s56, s56, 8192""")
        c0 = -2*math.sqrt(2/math.pi)*math.log2(math.e); c1 = c0*0.044715
        s(f"""s_mov_b32 s56, {fbits(c1)}
        s_mov_b32 s57, {fbits(c1)}
        v_mov_b32 v56, {fbits(c0)}
        v_mov_b32 v57, {fbits(c0)}
        s_mov_b32 s60, 1.0
        s_mov_b32 s61, 1.0""")
        T = ACC + 16
        for n in range(3):
            s(f"s_waitcnt vmcnt({4-2*n})")
            for q in range(8):
                s(f"v_lshlrev_b32 v{T+2*q}, 16, v{32+8*n+q}\nv_and_b32 v{T+2*q+1}, 0xffff0000, v{32+8*n+q}")
            for r in range(0, 16, 2): s(f"v_pk_add_f32 {vr(ACC+r,2)}, {vr(ACC+r,2)}, {vr(T+r,2)}")
        for r in range(0, 16, 2): s(f"v_pk_mul_f32 {vr(T+r,2)}, {vr(ACC+r,2)}, {vr(ACC+r,2)}")
        for r in range(0, 16, 2): s(f"v_pk_fma_f32 {vr(T+r,2)}, {vr(T+r,2)}, s[56:57], v[56:57]")
        for r in range(0, 16, 2): s(f"v_pk_mul_f32 {vr(T+r,2)}, {vr(T+r,2)}, {vr(ACC+r,2)}")
        for r in range(16): s(f"v_exp_f32 v{T+r}, v{T+r}")
        for r in range(0, 16, 2): s(f"v_pk_add_f32 {vr(T+r,2)}, {vr(T+r,2)}, s[60:61]")
        for r in range(16): s(f"v_rcp_f32 v{T+r}, v{T+r}")
        for r in range(0, 16, 2): s(f"v_pk_mul_f32 {vr(T+r,2)}, {vr(T+r,2)}, {vr(ACC+r,2)}")
        for q in range(8): s(f"v_cvt_pk_bf16_f32 v{40+q}, v{T+2*q}, v{T+2*q+1}")
        s(f"""s_mul_i32 s54, s51, {4*10240}
        s_lshl_b32 s57, s52, 9
        s_add_u32 s54, s54, s57
        s_add_u32 s54, s54, {UI}
        s_add_u32 s57, s54, 20480
        buffer_store_dwordx4 v[40:43], v28, {srd(sWS)}, s54 offen sc1
        buffer_store_dwordx4 v[44:47], v28, {srd(sWS)}, s57 offen sc1
        s_mul_i32 s54, s{sD1}, 12
        s_add_u32 s54, s54, s{sF1}
        s_lshl_b32 s54, s54, 2
        s_add_u32 s54, s54, s50
        s_mul_i32 s54, s54, {FSP}
        s_add_u32 s54, s54, {F_U}""")
        s.arrive(SY_CU, 4, "s54", 30, 31)
        s.gwait()
        s(f"s_branch {s.ln(fin)}")
        s.lab(skip)
        for _ in range(7): s("s_barrier")
        s("s_setprio 3")
        if s.opt.get('ldstamp'): s.end_wave()
        s.lds_spin(164, s.opt.get('skipw', 4), 165, off=SY_PA-SYN, sleep=8)
        s.lab(fin)
        s.pfwo()
        s.stamp(5)
        if s.opt.get('dbgx') or s.opt.get('ldstamp'): s.end_wave()

    def gemm2(s, sJ):
        ACC, UB, BB = 64, (24, 44), 144
        vW, vU, aT = 13, 14, 15
        sST, sDT, sOW, sOU, sTK = 62, 63, 64, 65, 66
        NS = 3
        def dW(t):
            L = []
            for n in range(4):
                pre = f"s_add_u32 m0, s49, {(t%NS)*4096}\ns_nop 0\n" if n == 0 else ""
                inc = 32768-1024 if n < 3 else 32768+3*1024
                L.append(pre + f"buffer_load_dwordx4 v{vW}, {srd(sW2)}, s{sOW} offen offset:{1024*n} lds\ns_add_u32 s{sOW}, s{sOW}, {inc}")
            return L
        def lU(t):
            L = [f"buffer_load_dwordx4 {vr(UB[t&1]+4*di,4)}, v{vU}, {srd(sWS)}, s{sOU} offen offset:{256*di} sc1" for di in range(5)]
            L[4] += f"\ns_add_u32 s{sOU}, s{sOU}, 40960"
            return L
        def rd(t, si):
            o = (t % NS)*4096
            return f"ds_read_b64_tr_b16 {vr(BB+4*si,2)}, v{aT+si} offset:{o}\nds_read_b64_tr_b16 {vr(BB+4*si+2,2)}, v{aT+si} offset:{o+1024}"
        def mf(t, si, di):
            d = vr(ACC+20*si+4*di,4)
            if s.opt.get('gnomf'): return "s_nop 3"
            return f"v_mfma_f32_16x16x32_bf16 {d}, {vr(UB[t&1]+4*di,4)}, {vr(BB+4*si,4)}, {d if t else 0}"
        def wo_dma(n0, n1):
            s(f"""s_mul_i32 s56, s{sJ}, {160*1280}
            s_mul_i32 s54, s{sDT}, 160
            s_add_u32 s56, s56, s54
            s_add_u32 s56, s56, {(n0//5)*32*1280}
            s_add_u32 m0, s49, {n0*1024}""")
            for n in range(n0, n1):
                s(f"s_nop 0\nbuffer_load_dwordx4 v{1+n%5}, {srd(sWO)}, s56 offen lds\ns_add_u32 m0, m0, 1024")
                if n % 5 == 4: s(f"s_add_u32 s56, s56, {32*1280}")
        s(f"s_setprio {s.opt.get('gp2', 0)}")
        for t in range(3):
            for l in dW(t): s(l)
        early = s.opt.get('woe', 1)
        if early: wo_dma(13, 25)
        s(f"""s_setprio 3
        s_mul_i32 s55, s{sDT}, 80
        s_lshr_b32 s54, s55, 7
        s_mul_i32 s54, s54, {48*FSP}
        s_add_u32 s54, s54, {F_U}
        s_add_u32 s55, s55, 79
        s_lshr_b32 s55, s55, 7
        s_mul_i32 s55, s55, {48*FSP}
        s_add_u32 s55, s55, {F_U}
        s_lshl_b32 s57, s{sST}, 5
        s_add_u32 s57, s57, {F_H}
        v_min_u32 v24, 47, v0
        v_mul_u32_u24 v24, {FSP}, v24
        v_and_b32 v25, 7, v0
        v_lshlrev_b32 v25, 2, v25""")
        s.gpoll([], [(26,1,24,sWS,"s54",0),(27,1,24,sWS,"s55",0),(28,1,25,sWS,"s57",0)], SY_UOK, 8)
        s(f"""s_lshl_b32 s54, s{sTK}, 2
        s_add_u32 s54, s54, {GI}
        v_and_b32 v22, 15, v0
        v_lshlrev_b32 v22, 2, v22
        s_setprio {s.opt.get('gp2', 0)}
        buffer_load_dword v22, v22, {srd(sWS)}, s54 offen sc1""")
        s.stamp(6)
        for t in range(2):
            for l in lU(t): s(l)
        s("s_waitcnt vmcnt(10)")
        for si in range(4): s(rd(0, si))
        NT = 12
        for t in range(NT):
            if t == s.opt.get('gp2t', 99): s(f"s_setprio {s.opt.get('gp2b', 0)}")
            pc0 = s.opt.get('pc0', 0)
            if pc0 and t > 0:
                s("s_setprio 3")
                s.lds_spin(164, min(17, pc0 + (t*s.opt.get('pcn', 12))//12), 165, off=SY_PA-SYN, sleep=4)
                s(f"s_setprio {s.opt.get('gp2', 0)}")
            if t == 0: s("s_waitcnt vmcnt(5)")
            else:
                younger = (4 if t+2 < NT else 0) + (5 if t+1 < NT else 0)
                s(f"s_waitcnt vmcnt({younger})")
            W = dW(t+3) if t+3 < NT and not s.opt.get('gnold') else [""]*4
            U = lU(t+2) if t+2 < NT and not s.opt.get('gnold') else [""]*5
            for si in range(4):
                s(f"s_waitcnt lgkmcnt({6 if t+1 < NT else 2*(3-si)})")
                for di in range(5):
                    s(mf(t, si, di))
                    if si == 3 and di < 4: s(W[di])
                if t+1 < NT: s(rd(t+1, si))
            for l in U: s(l)
        s.stamp(7)
        if s.opt.get('dbgy') == 1: s.end_wave()
        s("s_setprio 3")
        if s.opt.get('ehold'):
            s(f"v_and_b32 v48, 7, v0\nv_lshlrev_b32 v48, 2, v48\nv_add_u32 v48, {SY_PA}, v48")
            s.lds_spin(48, s.opt['ehold'], 165, sleep=8)
        s.xaddr(sJ, 48, 49)
        s(f"s_mul_i32 s54, s{sJ}, 3072\ns_add_u32 s54, s54, {LNS}\nv_lshlrev_b32 v56, 4, v0\nv_add_u32 v52, s54, v56")
        for n in range(1, 4):
            s(f"s_xor_b32 s54, s{sJ}, {n}\ns_mul_i32 s54, s54, 3072\ns_add_u32 s54, s54, {LNS + (n-1)*1024}\nv_add_u32 v{52+n}, s54, v56")
        pace = s.opt.get('pace2', 0)
        for n in range(1, 4):
            for q in range(5):
                if q < 4: s(f"ds_write_b128 v48, {vr(ACC+20*n+4*q,4)} offset:{(n-1)*4096+1024*q}")
                else: s(f"ds_write_b128 v52, {vr(ACC+20*n+4*q,4)} offset:{(n-1)*1024}")
                if pace: s(f"s_sleep {pace}")
        s.gpost(); s.gwait()
        for n in range(1, 4):
            for q in range(5):
                if q < 4: s(f"ds_read_b128 {vr(ACC+20*n+4*q,4)}, v{48+n} offset:{1024*q}")
                else: s(f"ds_read_b128 {vr(ACC+20*n+4*q,4)}, v{52+n}")
        s("v_sub_f32 v22, 1.0, v22\nv_mul_f32 v20, v20, v22\nv_mov_b32 v23, v22\nv_mov_b32 v21, v20")
        s.gpost()
        AC = 24
        s.gwait()
        wo_dma(0, 13 if early else 25)
        for r in range(0, 20, 2):
            s(f"v_pk_add_f32 {vr(ACC+r,2)}, {vr(ACC+r,2)}, {vr(ACC+20+r,2)}")
            s(f"v_pk_add_f32 {vr(ACC+40+r,2)}, {vr(ACC+40+r,2)}, {vr(ACC+60+r,2)}")
        for r in range(0, 20, 2): s(f"v_pk_add_f32 {vr(ACC+r,2)}, {vr(ACC+r,2)}, {vr(ACC+40+r,2)}")
        for r in range(0, 20, 2): s(f"v_pk_fma_f32 {vr(AC+r,2)}, {vr(ACC+r,2)}, v[22:23], v[20:21]")
        s(f"""s_lshl_b32 s56, s{sTK}, 4
        s_add_u32 s56, s56, {OI}
        s_waitcnt vmcnt(0)""")
        s.gpost(); s.gwait()
        OB = 64; WB = (44, 144)
        def rdo(t):
            b = WB[t & 1]; L = []
            for di in range(5):
                if t < 16:
                    a = 6 if t < 8 else 7; o = (t % 8)*6400 + 32*di
                    L.append(f"ds_read_b64_tr_b16 {vr(b+4*di,2)}, v{a} offset:{o}\nds_read_b64_tr_b16 {vr(b+4*di+2,2)}, v{a} offset:{o+1280}")
                else:
                    tp = t-16; a = 8 if tp < 2 else 10; o = (tp % 2)*25600 + 32*di
                    L.append(f"ds_read_b64_tr_b16 {vr(b+4*di,2)}, v{a} offset:{o}\nds_read_b64_tr_b16 {vr(b+4*di+2,2)}, v{a+1} offset:{o}")
            return L
        for l in rdo(0): s(l)
        if True:
            s(f"""s_lshr_b32 s54, s{sTK}, 8
            s_mul_i32 s54, s54, {32*FSP}
            s_add_u32 s54, s54, {F_O}
            v_and_b32 v1, 31, v0
            v_mul_u32_u24 v1, {FSP}, v1""")
            s.gpoll([(SY_CO, 8)], [(2,1,1,sWS,"s54",0)], SY_OOK, s.opt.get('psl', 4), lsl=2)
        s.stamp(8)
        if s.opt.get('dbgy') == 2: s.end_wave()
        def lO(t): return f"buffer_load_dwordx4 {vr(OB+4*t,4)}, v12, {srd(sWS)}, s56 offen sc1\ns_add_u32 s56, s56, 131072"
        PD = s.opt.get('opd', 8)
        for t in range(PD): s(lO(t))
        for t in range(20):
            R = rdo(t+1) if t+1 < 20 else [""]*5
            s(f"s_waitcnt vmcnt({min(PD-1, 19-t)}) lgkmcnt(0)")
            for di in range(5):
                d = vr(AC+4*di,4)
                s(f"v_mfma_f32_16x16x32_bf16 {d}, {vr(WB[t&1]+4*di,4)}, {vr(OB+4*t,4)}, {d}")
                s(R[di])
            if t+PD < 20: s(lO(t+PD))
        s(f"s_mul_i32 s54, s{sDT}, 160\ns_nop 7")
        for di in range(5):
            s(f"""v_cvt_pk_bf16_f32 v{2+2*di}, v{AC+4*di}, v{AC+4*di+1}
            v_cvt_pk_bf16_f32 v{3+2*di}, v{AC+4*di+2}, v{AC+4*di+3}
            buffer_store_dwordx2 {vr(2+2*di,2)}, v19, {srd(sOUT)}, s54 offen offset:{32*di}""")

    def text(s):
        s.prologue()
        head = f".globl {s.k}\n.p2align 8\n.type {s.k},@function\n{s.k}:\n"
        return head + "\n".join(s.L) + "\n"

def kd(k):
    return f""".amdhsa_kernel {k}
  .amdhsa_next_free_vgpr 168
  .amdhsa_next_free_sgpr 102
  .amdhsa_accum_offset 168
  .amdhsa_group_segment_fixed_size 0
  .amdhsa_kernarg_size 96
  .amdhsa_user_sgpr_count 2
  .amdhsa_user_sgpr_kernarg_segment_ptr 1
  .amdhsa_system_sgpr_workgroup_id_x 1
.end_amdhsa_kernel
"""

def build(mode="fused", stamps=False, opt=None):
    k = NAME + "_kernel"
    out = f"; @launch grid=(256,1,1) block=(768,1,1) lds={LDS_BYTES}\n"
    out += '.amdgcn_target "amdgcn-amd-amdhsa--gfx950"\n.text\ncode_begin:\n'
    out += Gen(k, stamps, opt).text()
    out += 'code_end:\n.section .rodata,"a"\n.p2align 6\n' + kd(k)
    return out

if __name__ == "__main__":
    mode = sys.argv[1] if len(sys.argv) > 1 else "fused"
    stamps = "stamp" in sys.argv[2]
    opt = {}
    for a in sys.argv[3:]:
        k, v = a.split("="); opt[k] = int(v)
    open(sys.argv[2], "w").write(build(mode, stamps, opt))
```

```python
import sys, math, struct

NAME = "gated_mix__mha_block__mixer_token_mlp__prompt"

QI = 0x000000
KI = 0x280000
VI = 0x500000
HI = 0x780000
UI = 0xA00000
OI = 0xC00000
GI = 0xE80000
FL = 0xE90000
FSP = 64
F_H = FL
F_Q = FL + 0x4000
F_U = FL + 0x8000
F_O = FL + 0xC000
FL_BYTES = 0x10000
STAMP = 0xF00000
WS_BYTES = 0x1000000

GREG = 25600
KVB = 102400
KVS = 11520
LNS = 148480
SYN = 163584
SY_PA = SYN
SY_PG = SYN + 32
SY_QOK = SYN + 52
SY_HOK = SYN + 56
SY_UOK = SYN + 60
SY_OOK = SYN + 64
SY_CQ = SYN + 68
SY_CU = SYN + 72
SY_CO = SYN + 76
LDS_BYTES = 163840

SPIN_LIMIT = 200000

def fbits(x):
    return "0x%08x" % struct.unpack("<I", struct.pack("<f", x))[0]

sX, sWQ, sWO, sW1, sW2, sWS, sOUT, sDBG = 4, 8, 12, 16, 20, 24, 28, 32
sB1, sB2, sGW = 36, 38, 40
sW, sXC, sI = 42, 43, 44
sSPIN = 45
def srd(n): return f"s[{n}:{n+3}]"
def vr(a, n): return f"v[{a}:{a+n-1}]" if n > 1 else f"v{a}"

class Gen:
    def __init__(s, kname, phases, fused, stamps=False, opt=None):
        s.L = []
        s.k = kname
        s.ph = phases
        s.fused = fused
        s.stamps = stamps
        s.uid = 0
        s.opt = opt or {}
    def __call__(s, t):
        for l in t.split("\n"):
            l = l.strip()
            if l: s.L.append("    " + l)
    def lab(s, n):
        s.L.append(f"{s.k}_{n}:")
    def ln(s, n):
        return f"{s.k}_{n}"
    def new(s, base):
        s.uid += 1
        return f"{base}{s.uid}"
    def stamp(s, i):
        if s.stamps:
            s(f"s_memrealtime s[76:77]\ns_memtime s[78:79]\ns_waitcnt lgkmcnt(0)\ns_mov_b32 s{80+2*i}, s76\ns_mov_b32 s{81+2*i}, s78")
    def end_wave(s):
        if s.stamps:
            s.stamp(9)
            s(f"s_mul_i32 s46, s2, 12\ns_add_u32 s46, s46, s{sW}\ns_lshl_b32 s46, s46, 7\ns_add_u32 s46, s46, {STAMP}")
            s("s_mov_b64 exec, 1\nv_mov_b32 v1, 0")
            for i in range(20):
                s(f"v_mov_b32 v{2+i}, s{80+i}\nbuffer_store_dword v{2+i}, v1, {srd(sWS)}, s46 offen offset:{4*i}")
        s("s_endpgm")

    def lds_spin(s, vaddr, need, vtmp, off=0, sleep=1):
        a, b = s.new("spin"), s.new("spind")
        s(f"s_mov_b32 s{sSPIN}, {SPIN_LIMIT*4}")
        s.lab(a)
        s(f"""ds_read_b32 v{vtmp}, v{vaddr} offset:{off}
        s_waitcnt lgkmcnt(0)
        v_cmp_gt_u32 vcc, {need}, v{vtmp}
        s_cbranch_vccz {s.ln(b)}
        s_sleep {sleep}
        s_sub_u32 s{sSPIN}, s{sSPIN}, 1
        s_cbranch_scc0 {s.ln(a)}""")
        s.lab(b)

    def poll(s, loads, sleep=2):
        a, b = s.new("poll"), s.new("polld")
        s(f"s_mov_b32 s{sSPIN}, {SPIN_LIMIT}")
        s.lab(a)
        regs = []
        for (vd, n, vo, r, so, imm) in loads:
            sfx = {1: "dword", 2: "dwordx2", 4: "dwordx4"}[n]
            s(f"buffer_load_{sfx} {vr(vd,n)}, v{vo}, {srd(r)}, {so} offen offset:{imm} sc1")
            regs += list(range(vd, vd+n))
        s("s_waitcnt vmcnt(0)")
        for q in regs[1:]:
            s(f"v_min_u32 v{regs[0]}, v{regs[0]}, v{q}")
        s(f"""v_cmp_eq_u32 vcc, 0, v{regs[0]}
        s_cbranch_vccz {s.ln(b)}
        s_sleep {sleep}
        s_sub_u32 s{sSPIN}, s{sSPIN}, 1
        s_cbranch_scc0 {s.ln(a)}""")
        s.lab(b)

    def set_flag(s, soff, va, vb):
        s(f"""s_mov_b64 exec, 1
        v_mov_b32 v{va}, 0
        v_mov_b32 v{vb}, 1
        buffer_store_dword v{vb}, v{va}, {srd(sWS)}, {soff} offen sc1
        s_mov_b64 exec, -1""")

    def arrive(s, cnt, n, soff, va, vb):
        nx = s.new("arr")
        s(f"""s_mov_b64 exec, 1
        v_mov_b32 v{va}, {cnt}
        v_mov_b32 v{vb}, 1
        s_waitcnt vmcnt(0)
        ds_add_rtn_u32 v{va}, v{va}, v{vb}
        s_waitcnt lgkmcnt(0)
        v_cmp_eq_u32 vcc, {n-1}, v{va}
        v_mov_b32 v{va}, 0
        s_cbranch_vccz {s.ln(nx)}
        buffer_store_dword v{vb}, v{va}, {srd(sWS)}, {soff} offen sc1""")
        s.lab(nx)
        s("s_mov_b64 exec, -1")

    def lds_set(s, addr, val, va, vb):
        s(f"""v_mov_b32 v{va}, {addr}
        v_mov_b32 v{vb}, {val}
        ds_write_b32 v{va}, v{vb}""")

    def prologue(s):
        s(f"s_cmp_ge_u32 s2, 256\ns_cbranch_scc1 {s.ln('exit')}")
        for reg, off in ((sX,0),(sWQ,8),(sWS,88),(sGW,64),(sDBG,80),(sW1,32),(sW2,48),(sWO,16),(sOUT,72),(sB1,40),(sB2,56)):
            s(f"s_load_dwordx2 s[{reg}:{reg+1}], s[0:1], {off}")
        s("v_lshrrev_b32 v1, 6, v0\nv_and_b32 v0, 63, v0")
        s(f"v_readfirstlane_b32 s{sW}, v1")
        for reg, n in ((sX,2621440),(sWQ,2457600),(sWO,819200),(sW1,6291456),(sW2,6291456),(sWS,WS_BYTES),(sOUT,2621440),(sDBG,256)):
            s(f"s_mov_b32 s{reg+2}, {n}\ns_mov_b32 s{reg+3}, 0x00020000")
        s(f"s_and_b32 s{sXC}, s2, 7\ns_lshr_b32 s{sI}, s2, 3")
        if s.stamps:
            for i in range(10): s(f"s_mov_b32 s{80+2*i}, 0")
        s(f"""s_and_b32 s46, s{sXC}, 3
        s_lshl_b32 s46, s46, 2
        s_and_b32 s48, s{sI}, 3
        s_add_u32 s46, s46, s48
        s_lshr_b32 s47, s{sXC}, 2
        s_lshl_b32 s47, s47, 3
        s_lshr_b32 s48, s{sI}, 2
        s_add_u32 s47, s47, s48
        s_waitcnt lgkmcnt(0)""")
        s.stamp(0)
        s(f"""s_cmp_lt_u32 s{sW}, 8
        s_cbranch_scc1 {s.ln('arole')}
        s_setprio 3
        s_sub_u32 s48, s{sW}, 8""")
        if 'qkv' in s.ph: s.ln_loads(48)
        s.gtiles(48)
        s(f"s_branch {s.ln('grole')}")
        s.lab("arole")
        if 'qkv' in s.ph:
            s(f"""s_cmp_eq_u32 s47, 15
            s_cbranch_scc1 {s.ln('qkv_idle')}
            s_cmp_lt_u32 s{sW}, 4
            s_cbranch_scc1 {s.ln('qkv_comp')}""")
            s.loader()
            s(f"s_branch {s.ln('att')}")
            s.lab("qkv_idle")
            if s.fused:
                nx = s.new("idle")
                s(f"""s_cmp_lg_u32 s{sW}, 0
                s_cbranch_scc1 {s.ln(nx)}
                v_lshlrev_b32 v1, 4, v0
                v_mov_b32 v4, 0
                v_mov_b32 v5, 0
                v_mov_b32 v6, 0
                v_mov_b32 v7, 0
                s_lshl_b32 s52, s46, 12
                s_add_u32 s52, s52, {FL}""")
                for n in range(4):
                    s(f"buffer_store_dwordx4 v[4:7], v1, {srd(sWS)}, s52 offen offset:{n*1024} sc1")
                s(f"""s_lshl_b32 s52, s46, 2
                s_mov_b64 exec, 1
                s_waitcnt vmcnt(0)
                v_mov_b32 v5, 1
                buffer_store_dword v5, v4, {srd(sDBG)}, s52 offen sc1
                s_mov_b64 exec, -1""")
                s.lab(nx)
            for _ in range(12): s("s_barrier")
            if s.fused:
                nx = s.new("idle")
                s(f"""s_cmp_ge_u32 s{sW}, 4
                s_cbranch_scc1 {s.ln(nx)}
                s_cmp_lg_u32 s{sW}, 0
                s_cbranch_scc1 {s.ln('att')}
                s_mul_i32 s52, s46, {FSP}
                s_add_u32 s52, s52, {F_Q + 14*16*FSP}
                v_mov_b32 v6, 0""")
                s.poll([(5,1,6,sWS,"s52",0)], sleep=8)
                s.lds_set(SY_CQ, 4, 4, 5)
                s(f"s_branch {s.ln('att')}")
                s.lab(nx)
                s(f"v_mov_b32 v4, {SY_CQ}")
                s.lds_spin(4, 4, 5, sleep=4)
                s(f"""s_lshl_b32 s55, s{sW}, 8
                s_add_u32 s55, s55, {F_H - 1024}
                v_lshlrev_b32 v2, 2, v0
                s_branch {s.ln('hpoll')}""")
            else:
                s(f"s_branch {s.ln('att')}")
            s.lab("qkv_comp")
            s.qkv_compute()
        else:
            s("s_barrier")
        s.lab("att")
        if 'att' in s.ph:
            s.attention()
        s.end_wave()
        if 'att' in s.ph: s.att_slow()
        s.lab("grole")
        s.grole()
        s.end_wave()
        s.lab("exit")
        s("s_endpgm")

    def code_prefetch(s):
        here = s.new("pc")
        s("s_getpc_b64 s[50:51]")
        s.lab(here)
        s(f"""s_sub_u32 s50, s50, {s.ln(here)}-code_begin
        s_subb_u32 s51, s51, 0
        s_lshl_b32 s52, s{sW}, 5
        s_add_u32 s52, s52, s{sI}
        s_lshl_b32 s52, s52, 2
        v_and_b32 v1, 3, v0
        v_add_lshl_u32 v1, v1, s52, 7
        v_min_u32 v1, code_end-code_begin-4, v1
        s_mov_b64 exec, 15
        global_load_dword v165, v1, s[50:51]
        s_mov_b64 exec, -1""")

    def loader(s):
        s(f"""s_sub_u32 s48, s{sW}, 4
        v_lshrrev_b32 v1, 3, v0
        s_lshl_b32 s49, s48, 5
        v_add_u32 v1, s49, v1
        v_mul_u32_u24 v1, 1280, v1
        v_lshrrev_b32 v2, 4, v0
        v_and_b32 v3, 7, v0
        v_xor_b32 v3, v3, v2
        v_xor_b32 v4, 4, v3
        v_lshl_add_u32 v8, v3, 4, v1
        v_lshl_add_u32 v9, v4, 4, v1
        v_add_u32 v9, {10240-1024}, v9
        v_add_u32 v10, {2*(10240-1024)}, v8
        v_add_u32 v11, {2*(10240-1024)}, v9
        s_lshl_b32 s49, s48, 4
        v_add_u32 v1, s49, v2
        v_mul_u32_u24 v1, 3840, v1
        v_lshlrev_b32 v2, 2, v2
        v_and_b32 v3, 15, v0
        v_xor_b32 v3, v3, v2
        v_lshl_add_u32 v12, v3, 4, v1
        v_add_u32 v13, {15360-1024}, v12
        v_add_u32 v14, {2*(15360-1024)}, v12
        v_add_u32 v15, {3*(15360-1024)}, v12
        s_mul_i32 s50, s46, {128*1280}
        s_lshl_b32 s51, s47, 8
        s_lshl_b32 s52, s48, 12""")
        nt = " nt" if s.opt.get('qnt') else ""
        rot = s.opt.get('qrot', 3)
        if rot in (1, 2):
            s(f"""s_and_b32 s53, s{sI}, 3
            s_mul_i32 s53, s53, 5
            s_lshr_b32 s53, s53, 1
            s_lshr_b32 s54, s{sI}, 2
            s_add_u32 s53, s53, s54""")
            if rot == 2: s(f"s_and_b32 s54, s{sXC}, 3\ns_add_u32 s53, s53, s54")
            s("s_cmp_ge_u32 s53, 10\ns_cselect_b32 s54, 10, 0\ns_sub_u32 s53, s53, s54")
        elif rot == 0:
            s("s_mov_b32 s53, 0")
        else:
            T = {3: ["0412385679", "1250349678", "2306145789", "3012745689"],
                 4: ["0123456789", "1230567498", "2301674589", "3012745698"],
                 5: ["0213546879", "1032457698", "0132547689", "1023456798"],
                 6: ["0216354879", "1032745698", "0132485679", "1023549678"]}[rot]
            def enc(o):
                v = 0
                for j, ch in enumerate(o): v |= int(ch) << (4*j)
                return v
            s(f"""s_lshr_b32 s54, s{sI}, 2
            s_add_u32 s54, s54, s{sI}
            s_bitcmp1_b32 s54, 0
            s_cselect_b32 s56, {enc(T[1]) & 0xffffffff}, {0}
            s_cselect_b32 s57, {enc(T[1]) >> 32}, {0}
            s_cselect_b32 s58, {enc(T[3]) & 0xffffffff}, {0}
            s_cselect_b32 s59, {enc(T[3]) >> 32}, {0}
            s_cselect_b32 s60, 0, {enc(T[0]) & 0xffffffff}
            s_cselect_b32 s61, 0, {enc(T[0]) >> 32}
            s_cselect_b32 s62, 0, {enc(T[2]) & 0xffffffff}
            s_cselect_b32 s63, 0, {enc(T[2]) >> 32}
            s_or_b64 s[56:57], s[56:57], s[60:61]
            s_or_b64 s[58:59], s[58:59], s[62:63]
            s_bitcmp1_b32 s54, 1
            s_cselect_b64 s[56:57], s[58:59], s[56:57]
            s_and_b32 s53, s56, 15""")
        def issue(t):
            s(f"""s_lshl_b32 s54, s53, 7
            s_add_u32 m0, s52, {(t&3)*32768}
            s_add_u32 s54, s54, s50""")
            for n in range(4):
                s(f"buffer_load_dwordx4 v{8+n}, {srd(sX)}, s54 offen offset:{1024*n}{nt} lds")
            s(f"""s_mul_i32 s54, s53, {64*3840}
            s_add_u32 m0, s52, {(t&3)*32768+16384}
            s_add_u32 s54, s54, s51""")
            for n in range(4):
                s(f"buffer_load_dwordx4 v{12+n}, {srd(sWQ)}, s54 offen offset:{1024*n}{nt} lds")
            if rot < 3: s("s_add_u32 s53, s53, 1\ns_cmp_eq_u32 s53, 10\ns_cselect_b32 s53, 0, s53")
            else: s("s_lshr_b64 s[56:57], s[56:57], 4\ns_and_b32 s53, s56, 15")
        pfq = s.opt.get('pfq', 1)
        tpf = s.opt.get('tpf', 7)
        hp = 1 if s.fused else 0
        issue(0); issue(1)
        for t in range(10):
            extra = (hp if t > 7 else 0) + (pfq if (t == tpf+1 or (tpf == 7 and t == 9)) else 0)
            s(f"s_waitcnt vmcnt({(8 if t < 9 else 0) + extra})")
            if s.opt.get('ldstamp') and t < 6: s.stamp(3+t)
            s("s_barrier")
            if t == 0: s.stamp(1)
            if t+2 <= 9: issue(t+2)
            if t == 7 and hp:
                s(f"""s_lshl_b32 s55, s48, 8
                s_add_u32 s55, s55, {F_H}
                v_lshlrev_b32 v2, 2, v0
                buffer_load_dword v3, v2, {srd(sWS)}, s55 offen sc1""")
            if t == tpf and pfq:
                s(f"""s_mul_i32 s64, s46, 15
                s_add_u32 s64, s64, s47
                s_lshl_b32 s64, s64, 2
                s_add_u32 s64, s64, s48
                s_mul_i32 s64, s64, {52*128}
                v_min_u32 v1, 51, v0
                v_lshlrev_b32 v1, 7, v1
                buffer_load_dword v165, v1, {srd(sW1)}, s64 offen""")
        s("s_barrier")
        if hp:
            ok = s.new("hok")
            s(f"""s_waitcnt vmcnt({pfq if tpf == 7 else 0})
            v_cmp_eq_u32 vcc, 0, v3
            s_barrier
            s_cbranch_vccz {s.ln(ok)}""")
            s.lab("hpoll")
            s.poll([(3,1,2,sWS,"s55",0)], sleep=8)
            s.lab(ok)
            s(f"""s_mov_b64 exec, 1
            v_mov_b32 v4, {SY_HOK}
            v_mov_b32 v5, 1
            ds_add_u32 v4, v5
            s_mov_b64 exec, -1""")
        else:
            s("s_barrier")
        s.stamp(2)

    def qkv_compute(s):
        ACC, F = 64, (32, 48, 128, 144)
        if s.opt.get('cpf', 1): s.code_prefetch()
        s(f"""s_and_b32 s48, s{sW}, 1
        s_lshr_b32 s49, s{sW}, 1
        v_and_b32 v8, 31, v0
        v_lshrrev_b32 v9, 5, v0
        s_lshl_b32 s50, s48, 13
        v_lshl_add_u32 v10, v8, 7, s50
        v_bfe_u32 v11, v0, 1, 3
        v_xor_b32 v11, v11, v9""")
        for ks in range(4):
            s(f"v_xor_b32 v12, {2*ks}, v11\nv_lshl_add_u32 v{2+ks}, v12, 4, v10")
        s(f"""v_bfe_u32 v11, v0, 2, 2
        v_lshl_add_u32 v12, v9, 3, v11
        v_lshlrev_b32 v12, 8, v12
        v_bfe_u32 v13, v0, 4, 1
        v_lshl_add_u32 v12, v13, 5, v12
        v_and_b32 v13, 3, v0
        v_lshl_add_u32 v12, v13, 3, v12
        v_add_u32 v12, 16384, v12
        s_lshl_b32 s50, s49, 1
        v_xor_b32 v11, s50, v11
        v_lshl_add_u32 v6, v11, 6, v12
        v_xor_b32 v7, 64, v6""")
        for r in range(64): s(f"v_mov_b32 v{ACC+r}, 0")
        def reads(buf, sl, ks):
            b = F[buf]; o = sl*32768
            return [f"ds_read_b128 {vr(b,4)}, v{2+ks} offset:{o}",
                    f"ds_read_b64_tr_b16 {vr(b+8,2)}, v6 offset:{o+ks*4096}",
                    f"ds_read_b64_tr_b16 {vr(b+10,2)}, v6 offset:{o+ks*4096+1024}",
                    f"ds_read_b128 {vr(b+4,4)}, v{2+ks} offset:{o+4096}",
                    f"ds_read_b64_tr_b16 {vr(b+12,2)}, v7 offset:{o+ks*4096}",
                    f"ds_read_b64_tr_b16 {vr(b+14,2)}, v7 offset:{o+ks*4096+1024}"]
        def mf(buf, i, j, isv):
            b = F[buf]; xa = vr(b+4*i,4); wa = vr(b+8+4*j,4); d = vr(ACC+16*(2*i+j),16)
            return f"v_mfma_f32_32x32x16_bf16 {d}, {xa if isv else wa}, {wa if isv else xa}, {d}"
        s("s_barrier")
        s.stamp(1)
        for l in reads(0,0,0) + reads(1,0,1): s(l)
        s(f"s_mov_b32 s51, 5\ns_cmp_ge_u32 s47, 10\ns_cbranch_scc1 {s.ln('qkv_v')}")
        for isv in (0, 1):
            if isv: s.lab("qkv_v")
            lp = s.new("qkvl")
            s.lab(lp)
            for n in range(8):
                buf = n & 3
                R = reads((n+2) & 3, ((n+2) >> 2) & 1, (n+2) & 3)
                s("s_waitcnt lgkmcnt(6)")
                s(mf(buf,0,0,isv))
                if n == 6:
                    for a in (2,6,7): s(f"v_xor_b32 v{a}, 0x10000, v{a}")
                if n == 7:
                    for a in (3,4,5): s(f"v_xor_b32 v{a}, 0x10000, v{a}")
                if buf == 2: s("s_barrier")
                s(R[0]); s(R[1])
                s(mf(buf,1,0,isv))
                s(R[2]); s(R[3])
                s(mf(buf,0,1,isv))
                s(R[4]); s(R[5])
                s(mf(buf,1,1,isv))
            s(f"s_sub_u32 s51, s51, 1\ns_cmp_lg_u32 s51, 0\ns_cbranch_scc1 {s.ln(lp)}")
            s("s_barrier\ns_setprio 3")
            s.stamp(2)
            P = 32
            if not isv:
                s(f"""s_cmp_lt_u32 s47, 5
                s_cselect_b32 s52, {fbits(20**-0.5*math.log2(math.e))}, 1.0
                s_mov_b32 s53, s52
                v_lshlrev_b32 v2, 15, v9
                v_lshl_add_u32 v2, v8, 4, v2
                s_lshl_b32 s54, s47, 4
                s_lshl_b32 s55, s49, 3
                s_add_u32 s54, s54, s55
                s_lshl_b32 s54, s54, 15
                s_lshl_b32 s55, s46, 11
                s_add_u32 s54, s54, s55
                s_lshl_b32 s55, s48, 10
                s_add_u32 s54, s54, s55
                s_waitcnt lgkmcnt(0)""")
            else:
                s(f"""s_sub_u32 s54, s47, 10
                s_lshl_b32 s54, s54, 7
                s_lshl_b32 s55, s49, 6
                s_add_u32 s54, s54, s55
                v_add_u32 v4, s54, v8
                v_mul_u32_u24 v6, 320, v9""")
                for j in range(2):
                    s(f"""v_mul_u32_u24 v5, 3277, v4
                    v_lshrrev_b32 v5, 16, v5
                    v_mul_u32_u24 v{2+j}, {81920-320}, v5
                    v_lshl_add_u32 v{2+j}, v4, 4, v{2+j}
                    v_add_u32 v{2+j}, v{2+j}, v6
                    v_add_u32 v4, 32, v4""")
                s(f"""s_lshl_b32 s54, s46, 1
                s_add_u32 s54, s54, s48
                s_mul_i32 s54, s54, {8*320}
                s_add_u32 s54, s54, {VI}
                s_waitcnt lgkmcnt(0)""")
            n = 0
            for j in range(2):
                for gp in range(2):
                    for i in range(2):
                        a = ACC + 16*(2*i+j) + 8*gp
                        p = P + 4*(n % 8); n += 1
                        if not isv:
                            for q in range(4):
                                s(f"v_pk_mul_f32 {vr(a+2*q,2)}, {vr(a+2*q,2)}, s[52:53]")
                        for q in range(4):
                            s(f"v_cvt_pk_bf16_f32 v{p+q}, v{a+2*q}, v{a+2*q+1}")
                        s(f"s_nop 1\nv_permlane32_swap_b32 v{p}, v{p+2}\nv_permlane32_swap_b32 v{p+1}, v{p+3}")
                        if not isv:
                            s(f"buffer_store_dwordx4 {vr(p,4)}, v2, {srd(sWS)}, s54 offen offset:{512*i} sc1")
                        else:
                            s(f"buffer_store_dwordx4 {vr(p,4)}, v{2+j}, {srd(sWS)}, s54 offen offset:{(4*i+2*gp)*320} sc1")
                    if not isv: s("s_add_u32 s54, s54, 65536")
            if not isv: s(f"s_branch {s.ln('qkv_pub')}")
        s.lab("qkv_pub")
        if s.fused:
            s(f"""s_lshl_b32 s54, s47, 4
            s_add_u32 s54, s54, s46
            s_mul_i32 s54, s54, {FSP}
            s_add_u32 s54, s54, {F_Q}""")
            s.arrive(SY_CQ, 4, "s54", 4, 5)
        s.stamp(3)

    def attention(s):
        Q1, Q2, K1, K2, V0, V1 = 8, 12, 16, 14, 20, 24
        S = (32, 48); O = 64
        aK1, aK2, aV, vK, vV, vIDX, aPW, vPR, aPR, vPC = 2, 3, 4, 5, 6, 7, 28, 29, 30, 31
        sH, sQB, sP, sODD, sKO, sVO, sMK, sMV, sN, sNEED, sTOK = 46, 47, 48, 49, 50, 51, 52, 53, 54, 55, 56
        EK, EV = "s[58:59]", "s[60:61]"
        sKB, sVB = 62, 63
        s(f"""s_setprio 3
        s_lshl_b32 s{sH}, s{sXC}, 2
        s_and_b32 s57, s{sI}, 3
        s_add_u32 s{sH}, s{sH}, s57
        s_lshr_b32 s{sQB}, s{sI}, 2
        s_lshr_b32 s{sP}, s{sH}, 1
        s_and_b32 s{sODD}, s{sH}, 1
        s_mov_b32 s58, -1
        s_mov_b32 s59, 0xffff
        s_mov_b32 s60, 0xffefffff
        s_mov_b32 s61, 0x1ff
        s_mul_i32 s{sKB}, s{sP}, {5*32768}
        s_add_u32 s{sKB}, s{sKB}, {KI}
        s_mul_i32 s{sVB}, s{sH}, 81920
        s_add_u32 s{sVB}, s{sVB}, {VI}
        s_mul_i32 s{sMK}, s{sW}, 768
        s_add_u32 s{sMK}, s{sMK}, {KVB}
        s_mul_i32 s{sMV}, s{sW}, 672
        s_add_u32 s{sMV}, s{sMV}, {KVB+6144}
        s_lshl_b32 s{sTOK}, s{sQB}, 8
        s_lshl_b32 s57, s{sW}, 5
        s_add_u32 s{sTOK}, s{sTOK}, s57
        v_and_b32 v80, 31, v0
        v_lshrrev_b32 v81, 5, v0
        v_and_b32 v82, 15, v0
        v_lshrrev_b32 v83, 4, v0""")
        s(f"""s_mul_i32 s57, s{sODD}, 3
        v_add_u32 v84, s57, v83
        v_cmp_gt_u32 vcc, 2, v83
        s_lshl_b32 s64, s{sW}, 8
        s_nop 0
        v_cndmask_b32 v84, 2, v84, vcc
        v_lshlrev_b32 v84, 15, v84
        v_lshl_add_u32 v84, v82, 4, v84
        v_add_u32 v{vK}, s64, v84""")
        s(f"""v_cmp_lt_u32 vcc, 20, v0
        s_mul_i32 s64, s{sW}, 640
        v_subrev_u32 v84, 1, v0
        v_cndmask_b32 v84, v0, v84, vcc
        v_lshlrev_b32 v84, 4, v84
        v_add_u32 v{vV}, s64, v84""")
        s(f"""v_bfe_u32 v84, v0, 4, 1
        v_mul_u32_u24 v84, 768, v84
        v_lshl_add_u32 v84, v82, 4, v84
        v_add_u32 v84, {KVB}, v84
        v_lshl_add_u32 v{aK1}, v81, 8, v84
        v_lshl_add_u32 v{aK2}, v81, 3, v84
        v_add_u32 v{aK2}, 512, v{aK2}
        v_min_u32 v84, 20, v80
        v_subrev_u32 v85, 12, v80
        v_cmp_lt_u32 vcc, 27, v80
        v_mul_u32_u24 v86, 336, v81
        v_mov_b32 v{vIDX}, 0xdddd
        v_cndmask_b32 v84, v84, v85, vcc
        v_lshl_add_u32 v84, v84, 4, v86
        v_add_u32 v{aV}, {KVB+6144}, v84
        s_lshl_b32 s64, s{sW}, 2
        s_add_u32 s64, s64, {SY_PA}
        v_mov_b32 v{aPW}, s64
        v_and_b32 v84, 7, v0
        v_lshlrev_b32 v84, 2, v84
        v_add_u32 v{aPR}, {SY_PA}, v84
        v_mov_b32 v{vPC}, 1""")
        for r in range(16): s(f"v_mov_b32 v{O+r}, 0")
        for r in range(8): s(f"v_mov_b32 v{S[1]+8+r}, 0")
        for r in range(4): s(f"v_mov_b32 v{V1+r}, 0")
        s(f"""s_mul_i32 s57, s{sODD}, 3
        v_add_u32 v93, s57, v81
        v_lshlrev_b32 v93, 15, v93
        v_lshl_add_u32 v93, v80, 4, v93
        v_lshlrev_b32 v94, 4, v80
        v_lshl_add_u32 v94, v81, 3, v94
        v_add_u32 v94, 0x10000, v94
        v_lshlrev_b32 v95, 2, v80
        s_lshl_b32 s70, s{sTOK}, 4
        s_add_u32 s70, s70, s{sKB}
        s_sub_u32 s70, s70, {KI-QI}
        s_lshl_b32 s71, s{sTOK}, 2
        s_add_u32 s71, s71, {GI}
        s_lshl_b32 s{sN}, s{sQB}, 1
        s_mov_b32 s66, 0""")
        nx = s.new("a")
        s(f"""s_cmp_lg_u32 s{sW}, 5
        s_cbranch_scc1 {s.ln(nx)}
        v_mul_u32_u24 v84, {KVS}, v83
        v_mul_u32_u24 v85, 336, v82
        v_add_u32 v84, v84, v85
        v_add_u32 v84, {KVB+6144+320}, v84
        v_mov_b32 v88, 0x3f803f80
        v_mov_b32 v89, 0x3f803f80
        v_mov_b32 v90, 0x3f803f80
        v_mov_b32 v91, 0x3f803f80
        ds_write_b128 v84, v[88:91]""")
        s.lab(nx)
        if s.fused:
            nx = s.new("a")
            s(f"""s_cmp_lg_u32 s{sW}, 4
            s_cbranch_scc1 {s.ln(nx)}
            s_mul_i32 s64, s{sP}, 5
            s_lshl_b32 s65, s{sODD}, 1
            s_add_u32 s64, s64, s65
            v_bfe_u32 v86, v0, 4, 1
            v_lshl_add_u32 v84, v86, 1, s64
            v_lshrrev_b32 v84, 4, v84
            s_mul_i32 s64, s{sH}, 20
            v_mul_u32_u24 v85, 19, v86
            v_add_u32 v85, s64, v85
            v_lshrrev_b32 v85, 7, v85
            v_add_u32 v85, 5, v85
            v_cmp_eq_u32 vcc, 0, v81
            s_lshl_b32 s64, s{sQB}, 1
            v_and_b32 v87, 1, v0
            v_cndmask_b32 v85, v85, v84, vcc
            v_add_u32 v85, 5, v85
            v_lshl_add_u32 v85, v85, 4, v82
            v_mul_u32_u24 v85, {FSP}, v85
            v_add_u32 v87, s64, v87
            v_lshl_add_u32 v84, v84, 4, v87
            v_mul_u32_u24 v84, {FSP}, v84
            s_mov_b32 s64, {F_Q}
            v_mov_b32 v86, {SY_CQ}""")
            s.lds_spin(86, 4, 87)
            s.poll([(88,1,85,sWS,"s64",0),(89,1,84,sWS,"s64",0)], sleep=s.opt.get('psl', 4))
            s.lds_set(SY_QOK, 1, 84, 85)
            s.lab(nx)
        def dma(slot):
            return [f"s_and_b32 s57, s{sN}, 15",
                    f"s_mul_i32 s{sVO}, s57, 5120",
                    f"s_lshl_b32 s{sKO}, s57, 11",
                    f"s_cmp_lt_u32 s66, 16",
                    f"s_cselect_b32 s67, s{sKB}, {WS_BYTES}",
                    f"s_cselect_b32 s68, s{sVB}, {WS_BYTES}",
                    f"s_add_u32 s{sKO}, s{sKO}, s67",
                    f"s_add_u32 s{sVO}, s{sVO}, s68",
                    f"s_add_u32 m0, s{sMK}, {slot*KVS}",
                    f"s_mov_b64 exec, {EK}",
                    f"buffer_load_dwordx4 v{vK}, {srd(sWS)}, s{sKO} offen sc1 lds",
                    f"s_add_u32 m0, s{sMV}, {slot*KVS}",
                    f"s_mov_b64 exec, {EV}",
                    f"buffer_load_dwordx4 v{vV}, {srd(sWS)}, s{sVO} offen sc1 lds",
                    f"s_mov_b64 exec, -1",
                    f"s_add_u32 s{sN}, s{sN}, 1",
                    f"s_add_u32 s66, s66, 1"]
        D0 = dma(0)
        s("\n".join(D0[:9]))
        if s.fused:
            s(f"v_mov_b32 v86, {SY_QOK}")
            s.lds_spin(86, 4, 87, off=SY_HOK-SY_QOK)
            s.lds_spin(86, 1, 87)
        s.stamp(4)
        s("\n".join(D0[9:]))
        s(f"""buffer_load_dwordx4 {vr(Q1,4)}, v93, {srd(sWS)}, s70 offen sc1
        buffer_load_dwordx2 {vr(Q2,2)}, v94, {srd(sWS)}, s70 offen sc1""")
        for l in dma(1): s(l)
        for l in dma(2): s(l)
        s(f"buffer_load_dword v92, v95, {srd(sWS)}, s71 offen sc1")
        s(f"""s_waitcnt vmcnt(5) lgkmcnt(0)
        ds_write_b32 v{aPW}, v{vPC}
        v_cmp_eq_u32 vcc, s{sODD}, v81
        v_add_u32 v{vPC}, 1, v{vPC}
        s_mov_b32 s{sNEED}, 2
        v_cndmask_b32 v{Q2}, 0, v{Q2}, vcc
        v_cndmask_b32 v{Q2+1}, 0, v{Q2+1}, vcc""")
        s.lds_spin(aPR, 1, vPR)
        s.stamp(5)
        def off(T):
            T %= 16
            return (T >> 2)*KVS, T & 3
        def rK1(T):
            b, tt = off(T); return f"ds_read_b128 {vr(K1,4)}, v{aK1} offset:{b+tt*1536}"
        def rK2(T):
            b, tt = off(T); return f"ds_read_b64 {vr(K2,2)}, v{aK2} offset:{b+tt*1536}"
        def rV(T, a):
            b, tt = off(T); return f"ds_read_b128 {vr((V0,V1)[a],4)}, v{aV} offset:{b+(4*tt+2*a)*336}"
        def qk0(d): return f"v_mfma_f32_32x32x16_bf16 {vr(d,16)}, {vr(K1,4)}, {vr(Q1,4)}, 0"
        def qk1(d): return f"v_mfma_f32_32x32x8_bf16 {vr(d,16)}, {vr(K2,2)}, {vr(Q2,2)}, {vr(d,16)}"
        def pv(v, p): return f"v_smfmac_f32_32x32x32_bf16 {vr(O,16)}, {vr(v,4)}, {vr(p,8)}, v{vIDX}"
        s(rK1(0)); s(rK2(0)); s("s_waitcnt lgkmcnt(0)")
        s(qk0(S[0])); s(qk1(S[0]))
        s(rK1(1)); s(rK2(1)); s(rV(0,0))
        s("s_mov_b32 s69, 4\ns_nop 7")
        ap = s.opt.get('aprio', 1)
        def loop(pat):
          lp = s.new("attl")
          s.L.append(".p2align 6")
          s.lab(lp)
          for T in range(16):
              cur, nxt = S[T & 1], S[(T & 1) ^ 1]
              E = [f"v_exp_f32 v{cur+i}, v{cur+i}" for i in range(16)]
              tt = T & 3
              if pat is not None and pat[T] != pat[T-1]: s(f"s_setprio {pat[T]}")
              if tt == 2:
                  ok = s.new("ok")
                  s(E[0]); s(E[1])
                  s("s_waitcnt lgkmcnt(0)")
                  s(pv(V1, nxt+8))
                  s(f"v_cmp_gt_u32 vcc, s{sNEED}, v{vPR}")
                  s(rV(T,1))
                  s(f"s_cbranch_vccz {s.ln(ok)}")
                  s.lds_spin(aPR, f"s{sNEED}", vPR)
                  s.lab(ok)
                  D = dma(((T >> 2) + 3) & 3)
                  s(E[2]); s("\n".join(D[0:4])); s(E[3]); s("\n".join(D[4:8])); s(E[4])
                  s(qk0(nxt)); s(rK1(T+2))
                  s(E[5]); s(E[6]); s(E[7])
                  s(qk1(nxt)); s(rK2(T+2))
                  if s.opt.get('adma', 0): s("s_setprio 3")
                  s("\n".join(D[8:15]))
                  if s.opt.get('adma', 0): s(f"s_setprio {pat[T] if pat else ap}")
                  s(E[8]); s("\n".join(D[15:17])); s(f"s_add_u32 s{sNEED}, s{sNEED}, 1")
                  s(E[9]); s(E[10]); s(E[11])
                  s(pv(V0, cur)); s(rV(T+1,0))
                  for e in E[12:]: s(e)
              else:
                  s(E[0]); s(E[1])
                  s("s_waitcnt lgkmcnt(2)")
                  s(pv(V1, nxt+8)); s(rV(T,1))
                  if tt == 0:
                      s(f"s_waitcnt vmcnt(2)\nds_write_b32 v{aPW}, v{vPC}")
                  s(E[2]); s(E[3]); s(E[4])
                  s(qk0(nxt)); s(rK1(T+2))
                  s(E[5]); s(E[6]); s(E[7])
                  s(f"s_waitcnt lgkmcnt({3 if tt == 0 else 2})")
                  s(qk1(nxt)); s(rK2(T+2))
                  s(E[8]); s(E[9]); s(E[10]); s(E[11])
                  if tt == 0: s(f"v_add_u32 v{vPC}, 1, v{vPC}")
                  s(pv(V0, cur)); s(rV(T+1,0))
                  if tt == 1: s(f"ds_read_b32 v{vPR}, v{aPR}")
                  for e in E[12:]: s(e)
                  if tt == 3: s("s_nop 0")
          s(f"s_sub_u32 s69, s69, 1\ns_cmp_lg_u32 s69, 0\ns_cbranch_scc1 {s.ln(lp)}")
        ap = s.opt.get('aprio', 1)
        pm = s.opt.get('apat', 109)
        if pm:
            young, join = s.new("young"), s.new("join")
            s(f"s_cmp_ge_u32 s{sW}, 4\ns_cbranch_scc1 {s.ln(young)}\ns_setprio {ap}")
            loop(None)
            s(f"s_branch {s.ln(join)}")
            s.lab(young)
            pat = [(s.opt.get('ylo', ap), s.opt.get('yhi', ap+1))[(pm >> (T % 8)) & 1] for T in range(16)]
            s(f"s_setprio {pat[15]}")
            loop(pat)
            s.lab(join)
        else:
            s(f"s_setprio {ap}")
            loop(None)
        s("s_setprio 3")
        s("s_waitcnt lgkmcnt(0)")
        s(pv(V1, S[1]+8))
        s.stamp(6)
        s(f"""v_lshlrev_b32 v84, 4, v80
        v_lshl_add_u32 v86, v81, 15, v84
        s_lshl_b32 s64, s{sH}, 16
        s_lshl_b32 s65, s{sTOK}, 4
        s_add_u32 s65, s65, {OI}
        s_add_u32 s64, s64, s65
        s_add_u32 s57, s{sP}, 64
        s_lshl_b32 s57, s57, 15
        s_add_u32 s65, s65, s57
        s_xor_b32 s57, s{sP}, s{sH}
        s_and_b32 s57, s57, 1
        s_lshl_b32 s57, s57, 3
        s_add_u32 s65, s65, s57
        v_cmp_eq_u32 s[72:73], 0, v81
        v_add_f32 v88, abs(v{O}), abs(v{O+1})
        v_add_f32 v89, abs(v{O+2}), abs(v{O+3})""")
        for r in range(4, 12, 2):
            s(f"v_add_f32 v88, v88, abs(v{O+r})\nv_add_f32 v89, v89, abs(v{O+r+1})")
        slow, norm = s.new("slow"), s.new("norm")
        s(f"""v_cndmask_b32 v87, v{O+8}, v{O+12}, s[72:73]
        v_add_f32 v88, v88, v89
        v_cmp_nle_f32 vcc, {fbits(2.0**-30)}, v87
        s_mov_b64 s[74:75], vcc
        v_cmp_nge_f32 vcc, {fbits(2.0**60)}, v87
        s_or_b64 s[74:75], s[74:75], vcc
        v_cmp_nge_f32 vcc, {fbits(2.0**126)}, v88
        s_or_b64 vcc, s[74:75], vcc
        s_cbranch_vccnz {s.ln(slow)}""")
        s.lab(norm)
        s(f"""v_rcp_f32 v88, v87
        s_nop 0
        v_mul_f32 v88, v88, v92""")
        s.slow_args = (slow, norm, Q1, Q2, K1, K2, V0, V1, S, O, vIDX, sKB, sVB)
        for r in range(12): s(f"v_mul_f32 v{O+r}, v{O+r}, v88")
        for q in range(6): s(f"v_cvt_pk_bf16_f32 v{32+q}, v{O+2*q}, v{O+2*q+1}")
        s(f"""buffer_store_dwordx4 v[32:35], v86, {srd(sWS)}, s64 offen sc1
        s_mov_b32 exec_hi, 0
        buffer_store_dwordx2 v[36:37], v84, {srd(sWS)}, s65 offen sc1
        s_mov_b32 exec_hi, -1""")
        if s.fused:
            s(f"""s_lshl_b32 s64, s{sQB}, 5
            s_add_u32 s64, s64, s{sH}
            s_mul_i32 s64, s64, {FSP}
            s_add_u32 s64, s64, {F_O}""")
            s.arrive(SY_CO, 8, "s64", 84, 85)
        s.stamp(7)

    def att_slow(s):
        slow, norm, Q1, Q2, K1, K2, V0, V1, S, O, vIDX, sKB, sVB = s.slow_args
        S0, C = S
        l1, l2 = s.new("slowa"), s.new("slowb")
        s.lab(slow)
        ldk = f"""buffer_load_dwordx4 {vr(K1,4)}, v93, {srd(sWS)}, s67 offen sc1
        buffer_load_dwordx2 {vr(K2,2)}, v94, {srd(sWS)}, s67 offen sc1"""
        s(f"""s_waitcnt vmcnt(0) lgkmcnt(0)
        v_mov_b32 v88, 0xff800000
        s_mov_b32 s67, s{sKB}
        s_mov_b32 s69, 64""")
        s.lab(l1)
        s(ldk)
        s(f"""s_waitcnt vmcnt(0)
        v_mfma_f32_32x32x16_bf16 {vr(S0,16)}, {vr(K1,4)}, {vr(Q1,4)}, 0
        v_mfma_f32_32x32x8_bf16 {vr(S0,16)}, {vr(K2,2)}, {vr(Q2,2)}, {vr(S0,16)}
        s_add_u32 s67, s67, 512
        s_nop 15""")
        for r in range(0, 16, 2): s(f"v_max3_f32 v88, v88, v{S0+r}, v{S0+r+1}")
        s(f"""s_sub_u32 s69, s69, 1
        s_cmp_lg_u32 s69, 0
        s_cbranch_scc1 {s.ln(l1)}
        v_mov_b32 v89, v88
        s_nop 1
        v_permlane32_swap_b32 v88, v89
        s_nop 1
        v_max_f32 v88, v88, v89
        v_mul_u32_u24 v89, 320, v81
        v_lshl_add_u32 v89, v80, 4, v89""")
        for r in range(16): s(f"v_sub_f32 v{C+r}, 0, v88\nv_mov_b32 v{O+r}, 0")
        for r in range(4): s(f"v_mov_b32 v{V0+r}, 0x3f803f80\nv_mov_b32 v{V1+r}, 0x3f803f80")
        s(f"""s_mov_b32 s67, s{sKB}
        s_mov_b32 s68, s{sVB}
        s_mov_b32 s69, 64
        s_mov_b32 s74, 0xfffff
        s_mov_b32 s75, 0xfffff""")
        s.lab(l2)
        s(ldk)
        s(f"""s_mov_b64 exec, s[74:75]
        buffer_load_dwordx4 {vr(V0,4)}, v89, {srd(sWS)}, s68 offen sc1
        buffer_load_dwordx4 {vr(V1,4)}, v89, {srd(sWS)}, s68 offen offset:640 sc1
        s_mov_b64 exec, -1
        s_waitcnt vmcnt(0)
        v_mfma_f32_32x32x16_bf16 {vr(S0,16)}, {vr(K1,4)}, {vr(Q1,4)}, {vr(C,16)}
        v_mfma_f32_32x32x8_bf16 {vr(S0,16)}, {vr(K2,2)}, {vr(Q2,2)}, {vr(S0,16)}
        s_add_u32 s67, s67, 512
        s_add_u32 s68, s68, 1280
        s_nop 15""")
        for r in range(16): s(f"v_exp_f32 v{S0+r}, v{S0+r}")
        s(f"""s_nop 1
        v_smfmac_f32_32x32x32_bf16 {vr(O,16)}, {vr(V0,4)}, {vr(S0,8)}, v{vIDX}
        v_smfmac_f32_32x32x32_bf16 {vr(O,16)}, {vr(V1,4)}, {vr(S0+8,8)}, v{vIDX}
        s_sub_u32 s69, s69, 1
        s_cmp_lg_u32 s69, 0
        s_nop 7
        s_cbranch_scc1 {s.ln(l2)}
        s_nop 15
        v_cndmask_b32 v87, v{O+8}, v{O+12}, s[72:73]
        s_branch {s.ln(norm)}""")

    def grole(s):
        sJ = 48
        s(f"""v_lshlrev_b32 v1, 2, v0
        v_add_u32 v1, {SYN}, v1
        v_mov_b32 v2, 0
        ds_write_b32 v1, v2""")
        pre = s.gsetup(sJ)
        if 'qkv' in s.ph:
            s.layernorm(sJ)
            for blk in pre:
                s(blk); s("s_barrier")
            for _ in range(7 - len(pre)): s("s_barrier")
        else:
            s("s_waitcnt vmcnt(0) lgkmcnt(0)\ns_barrier")
            for blk in pre: s(blk)
        s.stamp(2)
        s.gsync_n = 0
        if 'g1' in s.ph: s.gemm1(sJ)
        if 'g2' in s.ph: s.gemm2(sJ)

    def gtiles(s, sJ):
        s(f"""s_mul_i32 s51, s{sI}, 52
        s_lshr_b32 s51, s51, 8
        s_mul_i32 s54, s51, 5
        s_sub_u32 s50, s{sI}, s54
        s_mul_i32 s58, s50, {6 if s.opt.get('g1rot', 0) else 0}
        s_mul_i32 s59, s51, {5 if s.opt.get('g1rot', 0) else 0}
        s_add_u32 s58, s58, s59
        s_and_b32 s58, s58, 31
        s_mov_b32 s59, s58
        s_and_b32 s54, s{sXC}, 1
        s_mul_i32 s54, s54, 5
        s_add_u32 s50, s50, s54
        s_lshr_b32 s54, s{sXC}, 1
        s_mul_i32 s54, s54, 6
        s_add_u32 s51, s51, s54
        s_min_u32 s51, s51, 23
        s_lshl_b32 s62, s{sXC}, 2
        s_and_b32 s54, s{sI}, 3
        s_add_u32 s62, s62, s54
        s_lshr_b32 s63, s{sI}, 2
        s_lshl_b32 s66, s62, 6
        s_lshl_b32 s54, s{sJ}, 4
        s_add_u32 s66, s66, s54
        s_lshl_b32 s54, s51, 1
        s_lshr_b32 s55, s{sJ}, 1
        s_add_u32 s54, s54, s55
        s_lshl_b32 s54, s54, 6
        v_lshrrev_b32 v1, 5, v0
        v_lshl_add_u32 v1, v1, 3, s54
        v_and_b32 v2, 15, v0
        v_add_lshl_u32 v2, s66, v2, 1""")
        for q in range(4):
            s(f"global_load_dwordx2 {vr(54+2*q,2)}, v1, s[{sB1}:{sB1+1}] offset:{16*q}")
        s(f"global_load_ushort v62, v2, s[{sB2}:{sB2+1}]")

    def gsetup(s, sJ):
        B = []
        B.append(f"""s_mul_i32 s49, s{sJ}, {GREG}
        s_lshl_b32 s54, s{sJ}, 2
        s_add_u32 s54, s54, {SY_PG}
        v_mov_b32 v160, s54
        v_lshrrev_b32 v48, 4, v0
        v_and_b32 v49, 15, v0
        v_lshrrev_b32 v50, 5, v0
        v_and_b32 v51, 31, v0
        v_and_b32 v52, 3, v0
        v_bfe_u32 v53, v0, 2, 2
        v_lshlrev_b32 v161, 2, v52
        v_add_u32 v161, {SY_PG}, v161
        v_mov_b32 v164, {SYN}
        s_mul_i32 s52, s{sJ}, {512*3072}
        s_lshl_b32 s54, s51, 7
        s_add_u32 s52, s52, s54
        s_mul_i32 s53, s{sJ}, {64*10240}
        s_lshl_b32 s54, s50, 10
        s_add_u32 s53, s53, s54
        s_add_u32 s53, s53, {HI}
        v_lshrrev_b32 v30, 3, v0
        v_mul_u32_u24 v24, 3072, v30
        v_and_b32 v31, 1, v48
        v_lshlrev_b32 v25, 2, v31
        v_and_b32 v26, 7, v0
        v_xor_b32 v25, v25, v26
        v_lshl_add_u32 v24, v25, 4, v24
        v_add_u32 v25, {8*3072-1024}, v24
        v_lshlrev_b32 v13, 1, v48
        v_xor_b32 v13, v13, v26
        v_lshlrev_b32 v30, 12, v30
        v_lshl_add_u32 v13, v13, 4, v30""")
        B.append(f"""s_and_b32 s54, s{sJ}, 1
        s_lshl_b32 s54, s54, 9
        v_mul_u32_u24 v26, 10240, v50
        v_lshl_add_u32 v26, v51, 4, v26
        v_add_u32 v26, s54, v26
        v_xor_b32 v27, 512, v26
        v_lshl_add_u32 v28, v50, 3, v53
        v_lshlrev_b32 v28, 7, v28
        v_lshl_add_u32 v28, v31, 5, v28
        v_lshl_add_u32 v28, v52, 3, v28
        v_lshrrev_b32 v30, 1, v53
        s_lshr_b32 s54, s{sJ}, 1
        v_xor_b32 v30, s54, v30
        v_lshl_add_u32 v28, v30, 6, v28
        v_xor_b32 v29, 64, v28
        v_add_u32 v28, s49, v28
        v_add_u32 v29, s49, v29
        """ + "\n".join(f"v_lshlrev_b32 v{64+2*q}, 16, v{54+q}\nv_and_b32 v{65+2*q}, 0xffff0000, v{54+q}" for q in range(8)) + "\nv_lshlrev_b32 v20, 16, v62")
        B.append(f"""s_mul_i32 s64, s{sJ}, {384*4096}
        s_lshl_b32 s54, s62, 7
        s_add_u32 s64, s64, s54
        s_mul_i32 s65, s{sJ}, {48*10240}
        s_mul_i32 s54, s63, 1280
        s_add_u32 s65, s65, s54
        s_add_u32 s65, s65, {UI}
        v_mul_u32_u24 v14, 10240, v48
        v_lshl_add_u32 v14, v49, 4, v14
        v_bfe_u32 v30, v0, 2, 3
        v_lshl_add_u32 v31, v50, 4, v30
        v_lshlrev_b32 v31, 7, v31
        v_lshl_add_u32 v31, v52, 3, v31
        v_add_u32 v31, s49, v31
        v_lshrrev_b32 v32, 1, v30
        v_xor_b32 v32, s{sJ}, v32
        """ + "\n".join(f"v_xor_b32 v33, {si}, v32\nv_lshl_add_u32 v{15+si}, v33, 5, v31" for si in range(4)) + f"""
        v_lshlrev_b32 v12, 15, v48
        v_lshl_add_u32 v12, v49, 4, v12
        v_add_u32 v19, s66, v49
        v_mul_u32_u24 v19, 1280, v19
        v_lshl_add_u32 v19, v48, 3, v19""")
        B.append("\n".join(f"""v_add_u32 v31, {64*m}, v0
            v_mul_u32_u24 v32, 6554, v31
            v_lshrrev_b32 v32, 16, v32
            v_mul_u32_u24 v32, {1280-160}, v32
            v_lshl_add_u32 v{1+m}, v31, 4, v32""" for m in range(5)))
        B.append(f"""v_mul_u32_u24 v31, 20, v50
        v_add_u32 v31, v31, v30
        v_mul_u32_u24 v31, 160, v31
        v_lshl_add_u32 v6, v52, 3, v31
        v_add_u32 v7, 51200, v6
        v_mul_u32_u24 v31, 40, v48
        v_add_u32 v31, v31, v53
        v_add_u32 v31, 16, v31
        v_mul_u32_u24 v31, 160, v31
        v_lshl_add_u32 v31, v52, 3, v31
        v_and_b32 v32, 1, v48
        v_mul_u32_u24 v32, 3200, v32
        v_sub_u32 v9, v31, v32
        v_add_u32 v9, 3200, v9
        v_add_u32 v8, v31, v32
        v_add_u32 v10, 51200, v8
        v_add_u32 v11, 51200, v9""")
        return B

    def xaddr(s, sJ, vw, vr0):
        s(f"v_lshlrev_b32 v{vw}, 4, v0")
        for n in range(1, 4):
            s(f"s_xor_b32 s54, s{sJ}, {n}\ns_mul_i32 s54, s54, {GREG}\ns_add_u32 s54, s54, {(n-1)*4096}\nv_add_u32 v{vr0+n-1}, s54, v{vw}")
        s(f"v_add_u32 v{vw}, s49, v{vw}")

    def gpost(s):
        s.gsync_n += 1
        s(f"s_waitcnt lgkmcnt(0)\nv_mov_b32 v162, {s.gsync_n}\nds_write_b32 v160, v162")
    def gwait(s):
        s.lds_spin(161, s.gsync_n, 163, sleep=2)

    def ln_loads(s, sJ):
        X = (8, 13); GWR = 18
        s(f"""s_and_b32 s67, s{sXC}, 3
        s_lshl_b32 s67, s67, 6
        s_lshr_b32 s68, s{sXC}, 2
        s_lshl_b32 s68, s68, 5
        s_add_u32 s67, s67, s68
        s_add_u32 s67, s67, s{sI}
        s_lshl_b32 s68, s67, 3
        s_lshl_b32 s69, s{sJ}, 1
        s_add_u32 s68, s68, s69
        s_mul_i32 s69, s68, 1280
        v_lshlrev_b32 v3, 2, v0""")
        for r in range(2):
            for i in range(5):
                s(f"buffer_load_dword v{X[r]+i}, v3, {srd(sX)}, s69 offen offset:{1280*r+256*i}")
        for i in range(5):
            s(f"global_load_dword v{GWR+i}, v3, s[{sGW}:{sGW+1}] offset:{256*i}")

    def layernorm(s, sJ):
        X = (8, 13); GWR = 18; XV = (24, 34); GV = 44
        s("s_waitcnt vmcnt(0)")
        s.stamp(1)
        for r in range(2):
            for i in range(5):
                s(f"v_lshlrev_b32 v{XV[r]+2*i}, 16, v{X[r]+i}\nv_and_b32 v{XV[r]+2*i+1}, 0xffff0000, v{X[r]+i}")
        for i in range(5):
            s(f"v_lshlrev_b32 v{GV+2*i}, 16, v{GWR+i}\nv_and_b32 v{GV+2*i+1}, 0xffff0000, v{GWR+i}")
        for r in range(2):
            s(f"v_add_f32 v{4+r}, v{XV[r]}, v{XV[r]+1}\nv_mul_f32 v{6+r}, v{XV[r]}, v{GV}")
        for e in range(1, 10):
            for r in range(2):
                if e >= 2: s(f"v_add_f32 v{4+r}, v{4+r}, v{XV[r]+e}")
                s(f"v_fmac_f32 v{6+r}, v{XV[r]+e}, v{GV+e}")
        def reduce(regs):
            for m in ("row_shr:1 row_mask:0xf", "row_shr:2 row_mask:0xf", "row_shr:4 row_mask:0xf", "row_shr:8 row_mask:0xf",
                      "row_bcast:15 row_mask:0xa", "row_bcast:31 row_mask:0xc"):
                s("s_nop 1")
                for q in regs:
                    s(f"v_add_f32_dpp v{q}, v{q}, v{q} {m} bank_mask:0xf")
        reduce((4,5,6,7))
        s(f"""v_mul_f32 v4, {fbits(1/640)}, v4
        v_mul_f32 v5, {fbits(1/640)}, v5
        v_mul_f32 v6, {fbits(-math.log2(math.e))}, v6
        v_mul_f32 v7, {fbits(-math.log2(math.e))}, v7
        v_readlane_b32 s70, v4, 63
        v_readlane_b32 s71, v5, 63
        v_exp_f32 v6, v6
        v_exp_f32 v7, v7
        s_nop 0""")
        s("""v_add_f32 v6, 1.0, v6
        v_add_f32 v7, 1.0, v7
        v_rcp_f32 v6, v6
        v_rcp_f32 v7, v7""")
        for r in range(2):
            for e in range(10): s(f"v_subrev_f32 v{XV[r]+e}, s{70+r}, v{XV[r]+e}")
        s(f"""s_lshl_b32 s54, s68, 2
        s_add_u32 s54, s54, {GI}
        v_mov_b32 v1, 0
        s_mov_b32 exec_lo, 0
        s_mov_b32 exec_hi, 0x80000000
        buffer_store_dwordx2 v[6:7], v1, {srd(sWS)}, s54 offen sc1
        s_mov_b64 exec, -1""")
        for r in range(2): s(f"v_mul_f32 v{4+r}, v{XV[r]}, v{XV[r]}")
        for e in range(1, 10):
            for r in range(2): s(f"v_fmac_f32 v{4+r}, v{XV[r]+e}, v{XV[r]+e}")
        reduce((4,5))
        s(f"""v_mov_b32 v1, {fbits(1e-5)}
        v_fmac_f32 v1, {fbits(1/640)}, v4
        v_mov_b32 v2, {fbits(1e-5)}
        v_fmac_f32 v2, {fbits(1/640)}, v5
        v_rsq_f32 v1, v1
        v_rsq_f32 v2, v2
        s_mul_i32 s54, s{sJ}, 2560
        s_add_u32 s55, s54, {LNS}
        v_readlane_b32 s70, v1, 63
        v_readlane_b32 s71, v2, 63
        v_lshlrev_b32 v1, 3, v0
        v_add_u32 v1, s55, v1""")
        if s.opt.get('ldstamp'): s.stamp(3)
        lnb = s.opt.get('lnb', 1)
        if lnb: s("s_waitcnt lgkmcnt(0)\ns_barrier")
        for e in range(10):
            for r in range(2): s(f"v_mul_f32 v{XV[r]+e}, s{70+r}, v{XV[r]+e}")
            s(f"v_cvt_pk_bf16_f32 v{8+e}, v{XV[0]+e}, v{XV[1]+e}")
            if e & 1: s(f"ds_write_b64 v1, {vr(7+e,2)} offset:{(e>>1)*512}")
        s(f"""v_lshlrev_b32 v1, 4, v0
        v_add_u32 v1, s54, v1
        v_lshrrev_b32 v2, 2, v1
        v_add_u32 v2, {LNS}, v2
        s_waitcnt lgkmcnt(0)
        s_barrier""")
        for u in range(3):
            s(f"ds_read2st64_b32 {vr(8+4*u,2)}, v2 offset0:{u} offset1:{u+10}\nds_read2st64_b32 {vr(10+4*u,2)}, v2 offset0:{u+20} offset1:{u+30}")
        s(f"""
        s_mul_i32 s54, s67, 10240
        s_add_u32 s54, s54, {HI}
        s_waitcnt lgkmcnt(0)
        buffer_store_dwordx4 v[8:11], v1, {srd(sWS)}, s54 offen sc1
        buffer_store_dwordx4 v[12:15], v1, {srd(sWS)}, s54 offen offset:1024 sc1
        s_mov_b32 exec_hi, 0
        buffer_store_dwordx4 v[16:19], v1, {srd(sWS)}, s54 offen offset:2048 sc1
        s_mov_b32 exec_hi, -1
        s_barrier""")
        if not lnb: s("s_barrier")
        if s.fused:
            nx = s.new("g")
            s(f"""v_and_b32 v1, 15, v0
            v_lshlrev_b32 v1, 2, v1
            s_cmp_lg_u32 s{sJ}, 0
            s_cbranch_scc1 {s.ln(nx)}
            buffer_load_dword v2, v1, {srd(sDBG)}, 0 offen sc1""")
            s.lab(nx)
        s("s_barrier\ns_waitcnt vmcnt(0)\ns_barrier")
        if s.fused:
            done, ok = s.new("g"), s.new("g")
            s(f"""v_cmp_eq_u32 vcc, 0, v2
            s_lshl_b32 s54, s67, 2
            s_add_u32 s54, s54, {F_H}
            s_cmp_lg_u32 s{sJ}, 0
            s_cbranch_scc1 {s.ln(done)}
            s_cbranch_vccz {s.ln(ok)}""")
            s.poll([(2,1,1,sDBG,"0",0)], sleep=4)
            s.lab(ok)
            s.set_flag("s54", 4, 5)
            s.lab(done)

    def gpoll(s, pre, loads, ok, sleep, lsl=4):
        nx = s.new("gp")
        s(f"s_cmp_lg_u32 s48, 0\ns_cbranch_scc1 {s.ln(nx)}")
        for addr, need in pre: s.lds_spin(164, need, 165, off=addr-SYN, sleep=lsl)
        s.poll(loads, sleep=sleep)
        s(f"v_mov_b32 v165, 1\nds_write_b32 v164, v165 offset:{ok-SYN}")
        s.lab(nx)
        s.lds_spin(164, 1, 165, off=ok-SYN, sleep=lsl)

    def pf2(s):
        nt2 = " nt" if s.opt.get('w2nt') else ""
        s(f"""s_lshl_b32 s60, s{sI}, 2
        s_add_u32 s60, s60, s48
        s_mul_i32 s61, s60, {12*4096}
        s_lshl_b32 s57, s{sXC}, 9
        s_add_u32 s61, s61, s57
        v_min_u32 v30, 47, v0
        v_lshrrev_b32 v31, 2, v30
        v_lshlrev_b32 v31, 12, v31
        v_and_b32 v30, 3, v30
        v_lshl_add_u32 v30, v30, 7, v31
        buffer_load_dword v166, v30, {srd(sW2)}, s61 offen{nt2}
        s_mul_i32 s61, s60, 6400
        v_min_u32 v30, 49, v0
        v_lshlrev_b32 v30, 7, v30
        buffer_load_dword v167, v30, {srd(sWO)}, s61 offen""")
        return 2

    def gemm1(s, sJ):
        D = s.opt.get('g1d', 4)
        ACC, HB, AB = 64, 128, (32, 40)
        vA0, vA1, vH0, vH1, aT0, aT1 = 24, 25, 26, 27, 28, 29
        sDT, sFT, sOW, sOH = 50, 51, 52, 53
        skip, fin = s.new("g1skip"), s.new("g1fin")
        s(f"s_cmp_ge_u32 s{sI}, 30\ns_cbranch_scc1 {s.ln(skip)}")
        def dW(t):
            return [f"s_mul_i32 s60, s58, {16*3072}\ns_add_u32 m0, s49, {(t%D)*2048}\ns_add_u32 s60, s60, s{sOW}\nbuffer_load_dwordx4 v{vA0}, {srd(sW1)}, s60 offen lds",
                    f"buffer_load_dwordx4 v{vA1}, {srd(sW1)}, s60 offen offset:1024 lds\ns_add_u32 s58, s58, 1\ns_and_b32 s58, s58, 31"]
        def lH(t):
            b = HB + 8*(t % D)
            return [f"s_mul_i32 s61, s59, 20480\ns_add_u32 s61, s61, s{sOH}\nbuffer_load_dwordx4 {vr(b,4)}, v{vH0}, {srd(sWS)}, s61 offen sc1",
                    f"buffer_load_dwordx4 {vr(b+4,4)}, v{vH1}, {srd(sWS)}, s61 offen sc1\ns_add_u32 s59, s59, 1\ns_and_b32 s59, s59, 31"]
        def rd(t):
            b = AB[t & 1]; o = (t % D)*2048
            return [f"ds_read_b64_tr_b16 {vr(b,2)}, v{aT0} offset:{o}", f"ds_read_b64_tr_b16 {vr(b+2,2)}, v{aT0} offset:{o+512}",
                    f"ds_read_b64_tr_b16 {vr(b+4,2)}, v{aT1} offset:{o}", f"ds_read_b64_tr_b16 {vr(b+6,2)}, v{aT1} offset:{o+512}"]
        def mf(t, fi, di, first=False):
            d = vr(ACC+16*(2*fi+di),16)
            c = "0" if first and (fi or di) else d
            return f"v_mfma_f32_32x32x16_bf16 {d}, {vr(AB[t&1]+4*fi,4)}, {vr(HB+8*(t%D)+4*di,4)}, {c}"
        s(f"s_setprio {s.opt.get('gp1', 0)}")
        if s.fused:
            s.lds_spin(164, 4, 165, off=SY_HOK-SYN)
            hold = s.opt.get('ghold', 0)
            if hold == 1: s.lds_spin(164, 1, 165, off=SY_PA-SYN, sleep=2)
            if hold == 2: s.lds_spin(164, 1, 165, off=SY_CQ-SYN, sleep=2)
        s.stamp(3)
        for t in range(D):
            for l in dW(t) + lH(t): s(l)
        s(f"s_waitcnt vmcnt({4*(D-1)})")
        for l in rd(0): s(l)
        def step(t, more, wv, first=False):
            if wv is not None: s(f"s_waitcnt vmcnt({wv})")
            if more != 'last':
                for l in rd(t+1): s(l)
                s("s_waitcnt lgkmcnt(4)")
            else:
                s("s_waitcnt lgkmcnt(0)")
            W = dW(t) if more is True else ["", ""]
            Hh = lH(t) if more is True else ["", ""]
            s(mf(t,0,0,first)); s(W[0]); s(mf(t,1,0,first)); s(W[1]); s(Hh[0]); s(mf(t,0,1,first)); s(mf(t,1,1,first)); s(Hh[1])
        lp, mid = s.new("g1l"), s.new("g1m")
        step(0, True, 4*(D-2), first=True)
        s(f"s_mov_b32 s54, {32//D - 1}\ns_branch {s.ln(mid)}")
        s.lab(lp)
        step(0, True, 4*(D-2))
        s.lab(mid)
        for t in range(1, D): step(t, True, 4*(D-2))
        s(f"s_sub_u32 s54, s54, 1\ns_cmp_lg_u32 s54, 0\ns_cbranch_scc1 {s.ln(lp)}")
        for t in range(D):
            step(t, False if t < D-1 else 'last', 4*(D-2-t) if t < D-1 else None)
        s.stamp(4)
        s("s_setprio 3")
        pf2m = s.opt.get('pf2', 1) if 'g2' in s.ph else 0
        if pf2m == 1: s.pf2()
        s.xaddr(sJ, 48, 49)
        pace = s.opt.get('pace', 1)
        for n in range(12):
            s(f"ds_write_b128 v48, {vr(ACC+16+4*n,4)} offset:{1024*n}")
            if pace and n < 11: s(f"s_sleep {pace}")
        s.gpost(); s.gwait()
        for n in range(3):
            for q in range(4):
                s(f"ds_read_b128 {vr(ACC+16+16*n+4*q,4)}, v{49+n} offset:{1024*q}")
        c0 = -2*math.sqrt(2/math.pi)*math.log2(math.e); c1 = c0*0.044715
        s(f"""s_mov_b32 s56, {fbits(c1)}
        s_mov_b32 s57, {fbits(c1)}
        v_mov_b32 v52, {fbits(c0)}
        v_mov_b32 v53, {fbits(c0)}
        s_mov_b32 s60, 1.0
        s_mov_b32 s61, 1.0""")
        s.gpost()
        T = ACC + 16
        for r in range(0, 16, 2):
            s(f"v_pk_add_f32 {vr(ACC+r,2)}, {vr(ACC+r,2)}, {vr(ACC+16+r,2)}")
            s(f"v_pk_add_f32 {vr(ACC+32+r,2)}, {vr(ACC+32+r,2)}, {vr(ACC+48+r,2)}")
        for r in range(0, 16, 2): s(f"v_pk_add_f32 {vr(ACC+r,2)}, {vr(ACC+r,2)}, {vr(ACC+32+r,2)}")
        for r in range(0, 16, 2): s(f"v_pk_mul_f32 {vr(T+r,2)}, {vr(ACC+r,2)}, {vr(ACC+r,2)}")
        for r in range(0, 16, 2): s(f"v_pk_fma_f32 {vr(T+r,2)}, {vr(T+r,2)}, s[56:57], v[52:53]")
        for r in range(0, 16, 2): s(f"v_pk_mul_f32 {vr(T+r,2)}, {vr(T+r,2)}, {vr(ACC+r,2)}")
        for r in range(16): s(f"v_exp_f32 v{T+r}, v{T+r}")
        for r in range(0, 16, 2): s(f"v_pk_add_f32 {vr(T+r,2)}, {vr(T+r,2)}, s[60:61]")
        for r in range(16): s(f"v_rcp_f32 v{T+r}, v{T+r}")
        for r in range(0, 16, 2): s(f"v_pk_mul_f32 {vr(T+r,2)}, {vr(T+r,2)}, {vr(ACC+r,2)}")
        for q in range(8): s(f"v_cvt_pk_bf16_f32 v{40+q}, v{T+2*q}, v{T+2*q+1}")
        s(f"""s_lshl_b32 s54, s{sFT}, 1
        s_lshr_b32 s55, s{sJ}, 1
        s_add_u32 s54, s54, s55
        s_mul_i32 s54, s54, {4*10240}
        s_lshl_b32 s57, s{sDT}, 10
        s_add_u32 s54, s54, s57
        s_add_u32 s54, s54, {UI}
        s_add_u32 s57, s54, 20480
        buffer_store_dwordx4 v[40:43], v{vH0}, {srd(sWS)}, s54 offen sc1
        buffer_store_dwordx4 v[44:47], v{vH0}, {srd(sWS)}, s57 offen sc1""")
        if s.fused:
            s(f"""s_mul_i32 s54, s{sDT}, 24
            s_add_u32 s54, s54, s{sFT}
            s_mul_i32 s54, s54, {FSP}
            s_add_u32 s54, s54, {F_U}""")
            s.arrive(SY_CU, 4, "s54", 30, 31)
        if pf2m == 2: s.pf2()
        s.gwait()
        s(f"s_branch {s.ln(fin)}")
        s.lab(skip)
        if s.fused:
            s.lds_spin(164, 4, 165, off=SY_HOK-SYN, sleep=4)
            s.lds_spin(164, s.opt.get('skipw', 1), 165, off=SY_PA-SYN, sleep=8)
        if s.opt.get('pf3', 1):
            lp = s.new("pf3")
            s(f"""s_setprio 0
            s_and_b32 s52, s2, 15
            s_lshl_b32 s52, s52, 2
            s_add_u32 s52, s52, s{sJ}
            s_lshr_b32 s53, s52, 4
            s_mul_i32 s53, s53, {384*4096}
            s_and_b32 s54, s52, 15
            s_lshl_b32 s54, s54, 13
            s_add_u32 s53, s53, s54
            v_lshlrev_b32 v30, 7, v0
            s_mov_b32 s54, {s.opt.get('pf3n', 12)}""")
            s.lab(lp)
            s(f"""buffer_load_dword v166, v30, {srd(sW2)}, s53 offen
            s_add_u32 s53, s53, 131072
            s_waitcnt vmcnt(0)
            s_sub_u32 s54, s54, 1
            s_cmp_lg_u32 s54, 0
            s_cbranch_scc1 {s.ln(lp)}
            s_setprio 3""")
        if pf2m: s.pf2()
        s.lab(fin)
        s.stamp(5)

    def gemm2(s, sJ):
        ACC, UB, BB = 64, (24, 44), 144
        vW, vU, aT = 13, 14, 15
        sST, sDT, sOW, sOU, sTK = 62, 63, 64, 65, 66
        NS = 3
        def dW(t):
            L = []
            for n in range(4):
                pre = f"s_add_u32 m0, s49, {(t%NS)*4096}\ns_nop 0\n" if n == 0 else ""
                inc = 32768-1024 if n < 3 else 32768+3*1024
                L.append(pre + f"buffer_load_dwordx4 v{vW}, {srd(sW2)}, s{sOW} offen offset:{1024*n} lds\ns_add_u32 s{sOW}, s{sOW}, {inc}")
            return L
        def lU(t):
            L = [f"buffer_load_dwordx4 {vr(UB[t&1]+4*di,4)}, v{vU}, {srd(sWS)}, s{sOU} offen offset:{256*di} sc1" for di in range(5)]
            L[4] += f"\ns_add_u32 s{sOU}, s{sOU}, 40960"
            return L
        def rd(t, si):
            o = (t % NS)*4096
            return f"ds_read_b64_tr_b16 {vr(BB+4*si,2)}, v{aT+si} offset:{o}\nds_read_b64_tr_b16 {vr(BB+4*si+2,2)}, v{aT+si} offset:{o+1024}"
        def mf(t, si, di):
            d = vr(ACC+20*si+4*di,4)
            return f"v_mfma_f32_16x16x32_bf16 {d}, {vr(UB[t&1]+4*di,4)}, {vr(BB+4*si,4)}, {d if t else 0}"
        def wo_dma(n0, n1):
            s(f"""s_mul_i32 s56, s{sJ}, {160*1280}
            s_mul_i32 s54, s{sDT}, 160
            s_add_u32 s56, s56, s54
            s_add_u32 s56, s56, {(n0//5)*32*1280}
            s_add_u32 m0, s49, {n0*1024}""")
            for n in range(n0, n1):
                s(f"s_nop 0\nbuffer_load_dwordx4 v{1+n%5}, {srd(sWO)}, s56 offen lds\ns_add_u32 m0, m0, 1024")
                if n % 5 == 4: s(f"s_add_u32 s56, s56, {32*1280}")
        s(f"""s_lshl_b32 s54, s{sTK}, 2
        s_add_u32 s54, s54, {GI}
        v_and_b32 v22, 15, v0
        v_lshlrev_b32 v22, 2, v22
        s_setprio {s.opt.get('gp2', 0)}
        buffer_load_dword v22, v22, {srd(sWS)}, s54 offen sc1""")
        for t in range(3):
            for l in dW(t): s(l)
        early = s.opt.get('woe', 1)
        if early: wo_dma(13, 25)
        if s.fused:
            s(f"""s_setprio 3
            s_mul_i32 s54, s{sDT}, 80
            s_lshr_b32 s54, s54, 6
            s_mul_i32 s54, s54, {24*FSP}
            s_add_u32 s54, s54, {F_U}
            v_min_u32 v24, 47, v0
            v_mul_u32_u24 v24, {FSP}, v24""")
            s.gpoll([], [(25,1,24,sWS,"s54",0)], SY_UOK, 8)
            s(f"s_setprio {s.opt.get('gp2', 0)}")
        s.stamp(6)
        for t in range(2):
            for l in lU(t): s(l)
        s("s_waitcnt vmcnt(10)")
        for si in range(4): s(rd(0, si))
        NT = 12
        for t in range(NT):
            if t == s.opt.get('gp2t', 99): s(f"s_setprio {s.opt.get('gp2b', 0)}")
            if t == 0: s("s_waitcnt vmcnt(5)")
            else:
                younger = (4 if t+2 < NT else 0) + (5 if t+1 < NT else 0)
                s(f"s_waitcnt vmcnt({younger})")
            W = dW(t+3) if t+3 < NT else [""]*4
            U = lU(t+2) if t+2 < NT else [""]*5
            for si in range(4):
                s(f"s_waitcnt lgkmcnt({6 if t+1 < NT else 2*(3-si)})")
                for di in range(5):
                    s(mf(t, si, di))
                    if si == 3 and di < 4: s(W[di])
                if t+1 < NT: s(rd(t+1, si))
            for l in U: s(l)
        s.stamp(7)
        s("s_setprio 3")
        s.xaddr(sJ, 48, 49)
        s(f"s_mul_i32 s54, s{sJ}, 3072\ns_add_u32 s54, s54, {LNS}\nv_lshlrev_b32 v56, 4, v0\nv_add_u32 v52, s54, v56")
        for n in range(1, 4):
            s(f"s_xor_b32 s54, s{sJ}, {n}\ns_mul_i32 s54, s54, 3072\ns_add_u32 s54, s54, {LNS + (n-1)*1024}\nv_add_u32 v{52+n}, s54, v56")
        pace = s.opt.get('pace2', 0)
        for n in range(1, 4):
            for q in range(5):
                if q < 4: s(f"ds_write_b128 v48, {vr(ACC+20*n+4*q,4)} offset:{(n-1)*4096+1024*q}")
                else: s(f"ds_write_b128 v52, {vr(ACC+20*n+4*q,4)} offset:{(n-1)*1024}")
                if pace: s(f"s_sleep {pace}")
        s.gpost(); s.gwait()
        for n in range(1, 4):
            for q in range(5):
                if q < 4: s(f"ds_read_b128 {vr(ACC+20*n+4*q,4)}, v{48+n} offset:{1024*q}")
                else: s(f"ds_read_b128 {vr(ACC+20*n+4*q,4)}, v{52+n}")
        s("v_sub_f32 v22, 1.0, v22\nv_mul_f32 v20, v20, v22\nv_mov_b32 v23, v22\nv_mov_b32 v21, v20")
        s.gpost()
        AC = 24
        s.gwait()
        wo_dma(0, 13 if early else 25)
        for r in range(0, 20, 2):
            s(f"v_pk_add_f32 {vr(ACC+r,2)}, {vr(ACC+r,2)}, {vr(ACC+20+r,2)}")
            s(f"v_pk_add_f32 {vr(ACC+40+r,2)}, {vr(ACC+40+r,2)}, {vr(ACC+60+r,2)}")
        for r in range(0, 20, 2): s(f"v_pk_add_f32 {vr(ACC+r,2)}, {vr(ACC+r,2)}, {vr(ACC+40+r,2)}")
        for r in range(0, 20, 2): s(f"v_pk_fma_f32 {vr(AC+r,2)}, {vr(ACC+r,2)}, v[22:23], v[20:21]")
        s(f"""s_lshl_b32 s56, s{sTK}, 4
        s_add_u32 s56, s56, {OI}
        s_waitcnt vmcnt(0)""")
        s.gpost(); s.gwait()
        OB = 64; WB = (44, 144)
        def rdo(t):
            b = WB[t & 1]; L = []
            for di in range(5):
                if t < 16:
                    a = 6 if t < 8 else 7; o = (t % 8)*6400 + 32*di
                    L.append(f"ds_read_b64_tr_b16 {vr(b+4*di,2)}, v{a} offset:{o}\nds_read_b64_tr_b16 {vr(b+4*di+2,2)}, v{a} offset:{o+1280}")
                else:
                    tp = t-16; a = 8 if tp < 2 else 10; o = (tp % 2)*25600 + 32*di
                    L.append(f"ds_read_b64_tr_b16 {vr(b+4*di,2)}, v{a} offset:{o}\nds_read_b64_tr_b16 {vr(b+4*di+2,2)}, v{a+1} offset:{o}")
            return L
        for l in rdo(0): s(l)
        if s.fused:
            s(f"""s_lshr_b32 s54, s{sTK}, 8
            s_mul_i32 s54, s54, {32*FSP}
            s_add_u32 s54, s54, {F_O}
            v_and_b32 v1, 31, v0
            v_mul_u32_u24 v1, {FSP}, v1""")
            s.gpoll([(SY_CO, 8)], [(2,1,1,sWS,"s54",0)], SY_OOK, s.opt.get('psl', 4), lsl=2)
        s.stamp(8)
        for t in range(20):
            s(f"buffer_load_dwordx4 {vr(OB+4*t,4)}, v12, {srd(sWS)}, s56 offen sc1\ns_add_u32 s56, s56, 131072")
        for t in range(20):
            R = rdo(t+1) if t+1 < 20 else [""]*5
            s(f"s_waitcnt vmcnt({19-t}) lgkmcnt(0)")
            for di in range(5):
                d = vr(AC+4*di,4)
                s(f"v_mfma_f32_16x16x32_bf16 {d}, {vr(WB[t&1]+4*di,4)}, {vr(OB+4*t,4)}, {d}")
                s(R[di])
        s(f"s_mul_i32 s54, s{sDT}, 160\ns_nop 7")
        for di in range(5):
            s(f"""v_cvt_pk_bf16_f32 v{2+2*di}, v{AC+4*di}, v{AC+4*di+1}
            v_cvt_pk_bf16_f32 v{3+2*di}, v{AC+4*di+2}, v{AC+4*di+3}
            buffer_store_dwordx2 {vr(2+2*di,2)}, v19, {srd(sOUT)}, s54 offen offset:{32*di}""")

    def text(s):
        s.prologue()
        head = f".globl {s.k}\n.p2align 8\n.type {s.k},@function\n{s.k}:\n"
        return head + "\n".join(s.L) + "\n"

def kd(k):
    return f""".amdhsa_kernel {k}
  .amdhsa_next_free_vgpr 168
  .amdhsa_next_free_sgpr 102
  .amdhsa_accum_offset 168
  .amdhsa_group_segment_fixed_size 0
  .amdhsa_kernarg_size 96
  .amdhsa_user_sgpr_count 2
  .amdhsa_user_sgpr_kernarg_segment_ptr 1
  .amdhsa_system_sgpr_workgroup_id_x 1
.end_amdhsa_kernel
"""

def build(mode="fused", stamps=False, opt=None):
    geo = f"grid=(256,1,1) block=(768,1,1) lds={LDS_BYTES}"
    if mode == "fused":
        ks = [(NAME + "_kernel", ('qkv','att','g1','g2'))]
        hdr = f"; @launch {geo}\n"
    else:
        if mode == "multi": mode = "qkv,att+g1,g2"
        ks = [(f"p{i}_kernel", tuple(p.split("+"))) for i, p in enumerate(mode.split(","))]
        hdr = "".join(f"; @launch kernel={k} {geo}\n" for k, _ in ks)
    out = hdr + '.amdgcn_target "amdgcn-amd-amdhsa--gfx950"\n.text\ncode_begin:\n'
    for i, (k, ph) in enumerate(ks):
        out += Gen(k, ph, mode == "fused", stamps and i == len(ks)-1, opt).text()
    out += 'code_end:\n.section .rodata,"a"\n'
    for k, _ in ks:
        out += ".p2align 6\n" + kd(k)
    return out

if __name__ == "__main__":
    mode = sys.argv[1] if len(sys.argv) > 1 else "fused"
    stamps = "stamp" in sys.argv[2]
    opt = {}
    for a in sys.argv[3:]:
        k, v = a.split("="); opt[k] = int(v)
    open(sys.argv[2], "w").write(build(mode, stamps, opt))
```

```python
import sys, math, struct

NAME = "gated_mix__mha_block__mixer_token_mlp__prompt"

QI = 0x000000
KI = 0x280000
VI = 0x500000
HI = 0x780000
UI = 0xA00000
OI = 0xC00000
GI = 0xE80000
FL = 0xE90000
FSP = 64
F_H = FL
F_Q = FL + 0x4000
F_P = FL + 0x400
F_U = FL + 0x8000
F_O = FL + 0xC000
FL_BYTES = 0x10000
STAMP = 0xF00000
PI = 0x1000000
WS_BYTES = 0x1800000

GREG = 25600
KVB = 102400
KVS = 11520
LNS = 148480
SYN = 163584
SY_PA = SYN
SY_PG = SYN + 32
SY_QOK = SYN + 52
SY_POK = SYN + 56
SY_UOK = SYN + 60
SY_OOK = SYN + 64
SY_CQ = SYN + 68
SY_CU = SYN + 72
SY_CO = SYN + 76
SY_CP = SYN + 80
DUMMY = 163328
LDS_BYTES = 163840

SPIN_LIMIT = 200000

def fbits(x):
    return "0x%08x" % struct.unpack("<I", struct.pack("<f", x))[0]

sX, sWQ, sWO, sW1, sW2, sWS, sOUT, sDBG = 4, 8, 12, 16, 20, 24, 28, 32
sB1, sB2, sGW = 36, 38, 40
sW, sXC, sI = 42, 43, 44
sSPIN = 45
sRT, sCT = 46, 47
sN1, sD1, sF1 = 3, 100, 101
def srd(n): return f"s[{n}:{n+3}]"
def vr(a, n): return f"v[{a}:{a+n-1}]" if n > 1 else f"v{a}"

class Gen:
    def __init__(s, kname, stamps=False, opt=None):
        s.L = []
        s.k = kname
        s.stamps = stamps
        s.uid = 0
        s.cold = []
        s.opt = opt or {}
    def __call__(s, t):
        for l in t.split("\n"):
            l = l.strip()
            if l: s.L.append("    " + l)
    def lab(s, n):
        s.L.append(f"{s.k}_{n}:")
    def ln(s, n):
        return f"{s.k}_{n}"
    def new(s, base):
        s.uid += 1
        return f"{base}{s.uid}"
    def stamp(s, i):
        if s.stamps:
            s(f"s_memrealtime s[76:77]\ns_memtime s[78:79]\ns_waitcnt lgkmcnt(0)\ns_mov_b32 s{80+2*i}, s76\ns_mov_b32 s{81+2*i}, s78")
    def end_wave(s):
        if 'probe' in s.opt:
            k = s.opt['probe'] % 10; w = s.opt['probe'] // 10
            s.stamp(9)
            lp, nx = s.new("pr"), s.new("pr")
            s(f"""s_cmp_lg_u32 s2, {s.opt.get('pwg', 100)}
            s_cbranch_scc1 {s.ln(nx)}
            s_cmp_lg_u32 s{sW}, {w}
            s_cbranch_scc1 {s.ln(nx)}
            s_add_u32 s46, s{80+2*k}, 10000""")
            s.lab(lp)
            s(f"""s_memrealtime s[76:77]
            s_waitcnt lgkmcnt(0)
            s_sub_u32 s47, s76, s46
            s_cmp_lt_i32 s47, 0
            s_cbranch_scc1 {s.ln(lp)}""")
            s.lab(nx)
            s("s_endpgm")
            return
        if s.stamps:
            s.stamp(9)
            s(f"s_mul_i32 s46, s2, 12\ns_add_u32 s46, s46, s{sW}\ns_lshl_b32 s46, s46, 7\ns_add_u32 s46, s46, {STAMP}")
            s("s_mov_b64 exec, 1\nv_mov_b32 v1, 0")
            for i in range(20):
                s(f"v_mov_b32 v{2+i}, s{80+i}\nbuffer_store_dword v{2+i}, v1, {srd(sWS)}, s46 offen offset:{4*i}")
        s("s_endpgm")

    def lds_spin(s, vaddr, need, vtmp, off=0, sleep=1):
        a, b = s.new("spin"), s.new("spind")
        s(f"s_mov_b32 s{sSPIN}, {SPIN_LIMIT*4}")
        s.lab(a)
        s(f"""ds_read_b32 v{vtmp}, v{vaddr} offset:{off}
        s_waitcnt lgkmcnt(0)
        v_cmp_gt_u32 vcc, {need}, v{vtmp}
        s_cbranch_vccz {s.ln(b)}
        s_sleep {sleep}
        s_sub_u32 s{sSPIN}, s{sSPIN}, 1
        s_cbranch_scc0 {s.ln(a)}""")
        s.lab(b)

    def spin_ool(s, vaddr, need, vtmp, off=0, sleep=0):
        out, back = s.new("ool"), s.new("back")
        s(f"s_cbranch_vccnz {s.ln(out)}")
        s.lab(back)
        keep = s.L; s.L = []
        s.lab(out)
        s.lds_spin(vaddr, need, vtmp, off=off, sleep=sleep)
        s(f"s_branch {s.ln(back)}")
        s.cold += s.L; s.L = keep
    def flush_cold(s):
        s.L += s.cold; s.cold = []

    def poll_issue(s, loads):
        regs = []
        for (vd, n, vo, r, so, imm) in loads:
            sfx = {1: "dword", 2: "dwordx2", 4: "dwordx4"}[n]
            s(f"buffer_load_{sfx} {vr(vd,n)}, v{vo}, {srd(r)}, {so} offen offset:{imm} sc1")
            regs += list(range(vd, vd+n))
        return regs
    def poll(s, loads, sleep=2, pre=None):
        a, b, c = s.new("poll"), s.new("polld"), s.new("pollc")
        s(f"s_mov_b32 s{sSPIN}, {SPIN_LIMIT}")
        if pre is not None: s(f"s_waitcnt vmcnt({pre})\ns_branch {s.ln(c)}")
        s.lab(a)
        regs = s.poll_issue(loads)
        s("s_waitcnt vmcnt(0)")
        s.lab(c)
        for q in regs[1:]:
            s(f"v_min_u32 v{regs[0]}, v{regs[0]}, v{q}")
        s(f"""v_cmp_eq_u32 vcc, 0, v{regs[0]}
        s_cbranch_vccz {s.ln(b)}
        s_sleep {sleep}
        s_sub_u32 s{sSPIN}, s{sSPIN}, 1
        s_cbranch_scc0 {s.ln(a)}""")
        s.lab(b)

    def set_flag(s, soff, va, vb):
        s(f"""s_mov_b64 exec, 1
        v_mov_b32 v{va}, 0
        v_mov_b32 v{vb}, 1
        buffer_store_dword v{vb}, v{va}, {srd(sWS)}, {soff} offen sc1
        s_mov_b64 exec, -1""")

    def arrive(s, cnt, n, soff, va, vb):
        nx = s.new("arr")
        s(f"""s_mov_b64 exec, 1
        v_mov_b32 v{va}, {cnt}
        v_mov_b32 v{vb}, 1
        s_waitcnt vmcnt(0)
        ds_add_rtn_u32 v{va}, v{va}, v{vb}
        s_waitcnt lgkmcnt(0)
        v_cmp_eq_u32 vcc, {n-1}, v{va}
        v_mov_b32 v{va}, 0
        s_cbranch_vccz {s.ln(nx)}
        buffer_store_dword v{vb}, v{va}, {srd(sWS)}, {soff} offen sc1""")
        s.lab(nx)
        s("s_mov_b64 exec, -1")

    def lds_set(s, addr, val, va, vb):
        s(f"""v_mov_b32 v{va}, {addr}
        v_mov_b32 v{vb}, {val}
        ds_write_b32 v{va}, v{vb}""")

    def kwait(s):
        s("s_waitcnt lgkmcnt(0)")
        if s.stamps: s("s_mov_b32 s80, s76\ns_mov_b32 s81, s78")

    def prologue(s):
        if s.stamps: s("s_memrealtime s[76:77]\ns_memtime s[78:79]")
        s(f"s_cmp_ge_u32 s2, 256\ns_cbranch_scc1 {s.ln('exit')}")
        for reg, off in ((sX,0),(sWS,88)):
            s(f"s_load_dwordx2 s[{reg}:{reg+1}], s[0:1], {off}")
        s(f"s_lshr_b32 s{sI}, s2, 3")
        if s.opt.get('cpf', 1): s.code_prefetch()
        for reg, off in ((sWQ,8),(sGW,64),(sDBG,80),(sW1,32),(sW2,48),(sWO,16),(sOUT,72),(sB1,40),(sB2,56)):
            s(f"s_load_dwordx2 s[{reg}:{reg+1}], s[0:1], {off}")
        s("v_lshrrev_b32 v1, 6, v0\nv_and_b32 v0, 63, v0")
        s(f"v_readfirstlane_b32 s{sW}, v1")
        s(f"s_mov_b32 s{sX+3}, 0x00020000")
        for reg, n in ((sX,2621440),(sWQ,2457600),(sWO,819200),(sW1,6291456),(sW2,f"s{sW1+2}"),(sWS,WS_BYTES),(sOUT,f"s{sX+2}"),(sDBG,256)):
            s(f"s_mov_b32 s{reg+2}, {n}")
            if reg != sX: s(f"s_mov_b32 s{reg+3}, s{sX+3}")
        s(f"s_and_b32 s{sXC}, s2, 7")
        if s.stamps:
            for i in range(1, 10): s(f"s_mov_b32 s{80+2*i}, 0")
        s(f"""s_and_b32 s{sRT}, s{sXC}, 3
        s_lshl_b32 s{sRT}, s{sRT}, 2
        s_and_b32 s48, s{sI}, 3
        s_add_u32 s{sRT}, s{sRT}, s48
        s_lshr_b32 s49, s{sXC}, 2
        s_lshl_b32 s{sCT}, s49, 3
        s_lshr_b32 s48, s{sI}, 2
        s_add_u32 s{sCT}, s{sCT}, s48
        s_lshl_b32 s{sN1}, s49, 5
        s_add_u32 s{sN1}, s{sN1}, s{sI}
        s_min_u32 s{sN1}, s{sN1}, 59
        s_mul_i32 s{sF1}, s{sN1}, 52
        s_lshr_b32 s{sF1}, s{sF1}, 8
        s_mul_i32 s48, s{sF1}, 5
        s_sub_u32 s{sD1}, s{sN1}, s48
        s_cmp_ge_u32 s{sW}, 8
        s_cbranch_scc1 {s.ln('grole')}
        s_cmp_eq_u32 s{sCT}, 15
        s_cbranch_scc1 {s.ln('idle')}
        s_cmp_lt_u32 s{sW}, 4
        s_cbranch_scc1 {s.ln('qkv_comp')}""")
        s.loader()
        s(f"s_branch {s.ln('att')}")
        s.lab("idle")
        s.kwait()
        nx = s.new("idle")
        s(f"""s_cmp_lg_u32 s{sW}, 0
        s_cbranch_scc1 {s.ln(nx)}
        v_lshlrev_b32 v1, 4, v0
        v_mov_b32 v4, 0
        v_mov_b32 v5, 0
        v_mov_b32 v6, 0
        v_mov_b32 v7, 0
        s_lshl_b32 s52, s{sRT}, 12
        s_add_u32 s52, s52, {FL}""")
        for n in range(4):
            s(f"buffer_store_dwordx4 v[4:7], v1, {srd(sWS)}, s52 offen offset:{n*1024} sc1")
        s(f"""s_lshl_b32 s52, s{sRT}, 2
        s_mov_b64 exec, 1
        s_waitcnt vmcnt(0)
        v_mov_b32 v5, 1
        buffer_store_dword v5, v4, {srd(sDBG)}, s52 offen sc1
        s_mov_b64 exec, -1""")
        s.lab(nx)
        for _ in range(16): s("s_barrier")
        s(f"s_cmp_lt_u32 s{sW}, 4\ns_cbranch_scc1 {s.ln('att')}\ns_barrier\ns_barrier\ns_branch {s.ln('att')}")
        s.lab("qkv_comp")
        s.qkv_compute()
        s.lab("att")
        s.attention()
        s.end_wave()
        s.flush_cold()
        s.att_slow()
        s.lab("grole2")
        s.grole()
        s.end_wave()
        s.lab("exit")
        s("s_endpgm")

    def code_prefetch(s):
        here, nx = s.new("pc"), s.new("pc")
        s("s_getpc_b64 s[50:51]")
        s.lab(here)
        s(f"""s_lshl_b32 s52, s{sI}, 3
        v_cmp_gt_u32 vcc, 64, v0
        v_add_u32 v1, s52, v0
        s_movk_i32 s54, 72
        v_cmp_gt_u32 s[52:53], s54, v0
        v_cndmask_b32 v1, v1, v0, vcc
        v_lshlrev_b32 v1, 7, v1
        v_min_u32 v1, code_end-{s.ln(here)}-4, v1
        s_mov_b64 exec, s[52:53]
        s_cbranch_execz {s.ln(nx)}
        global_load_dword v165, v1, s[50:51]""")
        s.lab(nx)
        s("s_mov_b64 exec, -1")

    def loader(s):
        if s.opt.get('lprio'): s(f"s_setprio {s.opt['lprio']}")
        s(f"""s_sub_u32 s48, s{sW}, 4
        v_lshrrev_b32 v1, 3, v0
        s_lshl_b32 s49, s48, 5
        v_add_u32 v1, s49, v1
        v_mul_u32_u24 v1, 1280, v1
        v_lshrrev_b32 v2, 4, v0
        v_and_b32 v3, 7, v0
        v_xor_b32 v3, v3, v2
        v_xor_b32 v4, 4, v3
        v_lshl_add_u32 v8, v3, 4, v1
        v_lshl_add_u32 v9, v4, 4, v1
        v_add_u32 v9, {10240-1024}, v9
        v_add_u32 v10, {2*(10240-1024)}, v8
        v_add_u32 v11, {2*(10240-1024)}, v9
        s_lshl_b32 s49, s48, 4
        v_add_u32 v1, s49, v2
        v_mul_u32_u24 v1, 3840, v1
        v_lshlrev_b32 v2, 2, v2
        v_and_b32 v3, 15, v0
        v_xor_b32 v3, v3, v2
        v_lshl_add_u32 v12, v3, 4, v1
        v_add_u32 v13, {15360-1024}, v12
        v_add_u32 v14, {2*(15360-1024)}, v12
        v_add_u32 v15, {3*(15360-1024)}, v12
        s_mul_i32 s50, s{sRT}, {128*1280}
        s_lshl_b32 s51, s{sCT}, 8
        s_lshl_b32 s52, s48, 12""")
        nt = " nt" if s.opt.get('qnt') else ""
        rot = s.opt.get('qrot', 3)
        if rot in (1, 2):
            s(f"""s_and_b32 s53, s{sI}, 3
            s_mul_i32 s53, s53, 5
            s_lshr_b32 s53, s53, 1
            s_lshr_b32 s54, s{sI}, 2
            s_add_u32 s53, s53, s54""")
            if rot == 2: s(f"s_and_b32 s54, s{sXC}, 3\ns_add_u32 s53, s53, s54")
            s("s_cmp_ge_u32 s53, 10\ns_cselect_b32 s54, 10, 0\ns_sub_u32 s53, s53, s54")
        elif rot == 0:
            s("s_mov_b32 s53, 0")
        else:
            T = {3: ["0412385679", "1250349678", "2306145789", "3012745689"],
                 4: ["0123456789", "1230567498", "2301674589", "3012745698"],
                 5: ["0213546879", "1032457698", "0132547689", "1023456798"],
                 6: ["0216354879", "1032745698", "0132485679", "1023549678"]}[rot]
            def enc(o):
                v = 0
                for j, ch in enumerate(o): v |= int(ch) << (4*j)
                return v
            s(f"""s_lshr_b32 s54, s{sI}, 2
            s_add_u32 s54, s54, s{sI}
            s_bitcmp1_b32 s54, 0
            s_cselect_b32 s56, {enc(T[1]) & 0xffffffff}, {0}
            s_cselect_b32 s57, {enc(T[1]) >> 32}, {0}
            s_cselect_b32 s58, {enc(T[3]) & 0xffffffff}, {0}
            s_cselect_b32 s59, {enc(T[3]) >> 32}, {0}
            s_cselect_b32 s60, 0, {enc(T[0]) & 0xffffffff}
            s_cselect_b32 s61, 0, {enc(T[0]) >> 32}
            s_cselect_b32 s62, 0, {enc(T[2]) & 0xffffffff}
            s_cselect_b32 s63, 0, {enc(T[2]) >> 32}
            s_or_b64 s[56:57], s[56:57], s[60:61]
            s_or_b64 s[58:59], s[58:59], s[62:63]
            s_bitcmp1_b32 s54, 1
            s_cselect_b64 s[56:57], s[58:59], s[56:57]
            s_and_b32 s53, s56, 15""")
        def issue(t):
            s(f"""s_lshl_b32 s54, s53, 7
            s_add_u32 m0, s52, {(t&3)*32768}
            s_add_u32 s54, s54, s50""")
            for n in range(4):
                s(f"buffer_load_dwordx4 v{8+n}, {srd(sX)}, s54 offen offset:{1024*n}{nt} lds")
            s(f"""s_mul_i32 s54, s53, {64*3840}
            s_add_u32 m0, s52, {(t&3)*32768+16384}
            s_add_u32 s54, s54, s51""")
            for n in range(4):
                s(f"buffer_load_dwordx4 v{12+n}, {srd(sWQ)}, s54 offen offset:{1024*n}{nt} lds")
            if rot < 3: s("s_add_u32 s53, s53, 1\ns_cmp_eq_u32 s53, 10\ns_cselect_b32 s53, 0, s53")
            else: s("s_lshr_b64 s[56:57], s[56:57], 4\ns_and_b32 s53, s56, 15")
        def issue1(t):
            s(f"""s_mul_i32 s54, s53, {64*1280}
            s_add_u32 m0, s52, {(t&3)*32768}
            s_add_u32 s54, s54, s50""")
            for n in range(4):
                s(f"buffer_load_dwordx4 v{16+n}, {srd(sWS)}, s54 offen offset:{1024*n} sc1 lds")
            s(f"""s_mul_i32 s54, s53, {64*3072}
            s_add_u32 m0, s52, {(t&3)*32768+16384}
            s_add_u32 s54, s54, s51""")
            for n in range(4):
                s(f"buffer_load_dwordx4 v{20+n}, {srd(sW1)}, s54 offen offset:{1024*n} lds")
            s("s_add_u32 s53, s53, 1\ns_and_b32 s53, s53, 7")
        pfq = s.opt.get('pfq', 1)
        tpf = s.opt.get('tpf', 1)
        stag = s.opt.get('stag', 2)
        pfts = [tpf + k for k in range({0: 1, 1: 4, 2: 8}[stag])] if pfq else []
        th = s.opt.get('th', 7)
        ops = []
        s.kwait()
        if s.opt.get('b0st'): s.stamp(3)
        issue(0)
        if s.opt.get('b0st'): s.stamp(4)
        npre = s.opt.get('npre', 1)
        ops += [('s', 0)]
        if npre == 2: issue(1); ops += [('s', 1)]
        if s.opt.get('b0st'): s.stamp(5)
        s(f"""v_lshrrev_b32 v2, 4, v0
        v_add_u32 v2, s49, v2
        v_mul_u32_u24 v1, 3072, v2
        v_lshl_add_u32 v20, v3, 4, v1
        v_add_u32 v21, {12288-1024}, v20
        v_add_u32 v22, {2*(12288-1024)}, v20
        v_add_u32 v23, {3*(12288-1024)}, v20
        v_mul_u32_u24 v1, 1280, v2
        v_lshl_add_u32 v16, v3, 4, v1
        v_add_u32 v17, 4096, v16
        v_add_u32 v18, 8192, v16
        v_add_u32 v19, 12288, v16
        s_and_b32 s66, s{sXC}, 3
        s_lshl_b32 s55, s66, 8
        s_add_u32 s55, s55, {F_H}
        v_lshlrev_b32 v2, 2, v0
        s_lshr_b32 s67, s{sI}, 2
        s_add_u32 s67, s67, s{sI}
        s_and_b32 s67, s67, 3
        s_cmp_ge_u32 s{sXC}, 4
        s_cselect_b32 s60, 12, 14
        s_cselect_b32 s61, 5, 4
        s_mov_b32 s62, {-(-65536//14)}
        s_cmov_b32 s62, {-(-65536//12)}
        s_cselect_b32 s63, 1536, 0
        s_mul_i32 s64, s60, s61
        s_sub_u32 s64, s64, 1
        v_min_u32 v1, s64, v0
        v_mul_u32_u24 v4, s62, v1
        v_lshrrev_b32 v4, 16, v4
        v_mul_u32_u24 v5, s60, v4
        v_sub_u32 v1, v1, v5
        s_lshl_b32 s64, s{sI}, 2
        s_add_u32 s64, s64, s48
        s_mul_i32 s64, s64, s61
        v_add_u32 v4, s64, v4
        v_min_u32 v4, 511, v4
        v_mul_u32_u24 v4, 3072, v4
        v_lshl_add_u32 v1, v1, 7, v4
        s_mul_i32 s64, s66, {512*3072}
        s_add_u32 s64, s64, s63""")
        if stag == 2: s(f"s_mul_i32 s67, s{sI}, s61\ns_lshr_b32 s67, s67, 4")
        if npre == 1: issue(1); ops += [('s', 1)]
        over = s.new("over")
        s(f"s_branch {s.ln(over)}")
        s.lab("grole")
        s.gfront()
        s(f"s_branch {s.ln('grole2')}")
        s.lab(over)
        if s.opt.get('b0st'): s.stamp(6)
        hl = [(3,1,2,sWS,"s55",0)]
        def younger(tag):
            k = ops.index(tag)
            return sum(8 if o[0] == 's' else 1 for o in ops[k+1:])
        for t in range(18):
            s(f"s_waitcnt vmcnt({younger(('s', t))})")
            if s.opt.get('ldstamp') and s.opt['ldstamp'] <= t < s.opt['ldstamp']+6: s.stamp(3 + t - s.opt['ldstamp'])
            if s.opt.get('b0st') and t == 0: s.stamp(7)
            s("s_barrier")
            if t == 0: s.stamp(1)
            if t == 8:
                if not s.opt.get('noln'): s.poll(hl, sleep=8, pre=younger(('h', th)))
                s(f"""s_mul_i32 s50, s66, {512*1280}
                s_lshl_b32 s54, s{sD1}, 8
                s_add_u32 s50, s50, s54
                s_add_u32 s50, s50, {HI}
                s_mul_i32 s51, s66, {512*3072}
                s_lshl_b32 s54, s{sF1}, 8
                s_add_u32 s51, s51, s54""")
                r1 = s.opt.get('g1rot', 0)
                if r1 == 0: s("s_mov_b32 s53, 0")
                if r1 == 1: s(f"s_and_b32 s53, s{sF1}, 7")
                if r1 == 2: s(f"s_lshl_b32 s53, s{sD1}, 1\ns_add_u32 s53, s53, s{sF1}\ns_and_b32 s53, s53, 7")
            if t == th:
                s.poll_issue(hl); ops.append(('h', t))
            if t+2 <= 9: issue(t+2); ops.append(('s', t+2))
            elif t+2 <= 17: issue1(t+2); ops.append(('s', t+2))
            if t in pfts:
                if stag: s(f"s_cmp_eq_u32 s67, {t - tpf}\ns_cselect_b32 s54, s64, 0x1000000")
                s(f"buffer_load_dword v165, v1, {srd(sW1)}, s{54 if stag else 64} offen{' nt' if s.opt.get('pfnt') else ''}")
                ops.append(('x', t))
                if s.opt.get('pfnt') == 2:
                    s(f"buffer_load_dword v166, v1, {srd(sW1)}, s{54 if stag else 64} offen sc1"); ops.append(('y', t))
        s.stamp(2)
        if s.opt.get('ldstamp'): s.end_wave()

    def gemm_ops(s, xaddr, aW):
        ACC, F = 64, (32, 48, 128, 144)
        def tr(b, a, o): return [f"ds_read_b64_tr_b16 {vr(b,2)}, v{a} offset:{o}", f"ds_read_b64_tr_b16 {vr(b+2,2)}, v{a} offset:{o+1024}"]
        def reads(buf, sl, ks):
            b = F[buf]; o = sl*32768
            L = []
            for i in range(2):
                if isinstance(xaddr, int): L += tr(b+4*i, xaddr+i, o+ks*4096)
                else:
                    a0, o0 = xaddr(i, ks); L.append(f"ds_read_b128 {vr(b+4*i,4)}, v{a0} offset:{o+o0}")
                L += tr(b+8+4*i, aW+i, o+ks*4096)
            return L
        def mf(buf, i, j, isv):
            b = F[buf]; xa = vr(b+4*i,4); wa = vr(b+8+4*j,4); d = vr(ACC+16*(2*i+j),16)
            return f"v_mfma_f32_32x32x16_bf16 {d}, {xa if isv else wa}, {wa if isv else xa}, {d}"
        return reads, mf
    def gemm_loop(s, reads, mf, isv, tog6, tog7, scnt, skip_last):
        lp = s.new("gl")
        s.lab(lp)
        for n in range(8):
            buf = n & 3
            R = reads((n+2) & 3, ((n+2) >> 2) & 1, (n+2) & 3)
            s(f"s_waitcnt lgkmcnt({len(R)})")
            c1, c2 = (2, 4) if len(R) == 6 else (3, 6)
            s(mf(buf,0,0,isv))
            if n == 6:
                for a in tog6: s(f"v_xor_b32 v{a}, 0x10000, v{a}")
            if n == 7:
                for a in tog7: s(f"v_xor_b32 v{a}, 0x10000, v{a}")
            if n == 6 and skip_last:
                nx = s.new("nb")
                s(f"s_cmp_eq_u32 s{scnt}, 1\ns_cbranch_scc1 {s.ln(nx)}\ns_barrier")
                s.lab(nx)
            elif buf == 2: s("s_barrier")
            s("\n".join(R[:c1]))
            s(mf(buf,1,0,isv))
            s("\n".join(R[c1:c2]))
            s(mf(buf,0,1,isv))
            s("\n".join(R[c2:]))
            s(mf(buf,1,1,isv))
        s(f"s_sub_u32 s{scnt}, s{scnt}, 1\ns_cmp_lg_u32 s{scnt}, 0\ns_cbranch_scc1 {s.ln(lp)}")

    def qkv_compute(s):
        ACC = 64
        s.kwait()
        if s.opt.get('b0st'): s.stamp(5)
        s(f"""s_and_b32 s48, s{sW}, 1
        s_lshr_b32 s49, s{sW}, 1
        v_and_b32 v8, 31, v0
        v_lshrrev_b32 v9, 5, v0
        s_lshl_b32 s50, s48, 13
        v_lshl_add_u32 v10, v8, 7, s50
        v_bfe_u32 v11, v0, 1, 3
        v_xor_b32 v11, v11, v9""")
        for ks in range(4):
            s(f"v_xor_b32 v12, {2*ks}, v11\nv_lshl_add_u32 v{2+ks}, v12, 4, v10")
        s(f"""v_bfe_u32 v11, v0, 2, 2
        v_lshl_add_u32 v12, v9, 3, v11
        v_lshlrev_b32 v12, 8, v12
        v_bfe_u32 v13, v0, 4, 1
        v_lshl_add_u32 v12, v13, 5, v12
        v_and_b32 v13, 3, v0
        v_lshl_add_u32 v12, v13, 3, v12
        v_add_u32 v12, 16384, v12
        s_lshl_b32 s50, s49, 1
        v_xor_b32 v11, s50, v11
        v_lshl_add_u32 v6, v11, 6, v12
        v_xor_b32 v7, 64, v6""")
        for r in range(64): s(f"v_mov_b32 v{ACC+r}, 0")
        reads, mf = s.gemm_ops(lambda i, ks: (2+ks, 4096*i), 6)
        if s.opt.get('b0st'): s.stamp(7)
        s(f"s_setprio {s.opt.get('cprio', 2)}\ns_barrier")
        s.stamp(1)
        for l in reads(0,0,0) + reads(1,0,1): s(l)
        s(f"s_mov_b32 s51, 5\ns_cmp_ge_u32 s47, 10\ns_cbranch_scc1 {s.ln('qkv_v')}")
        for isv in (0, 1):
            if isv: s.lab("qkv_v")
            s.gemm_loop(reads, mf, isv, (2,6,7), (3,4,5), 51, False)
            s(f"s_setprio {s.opt.get('eprio', 3)}")
            nb = [10]
            def bar():
                nb[0] += 1; s("s_barrier")
            cuts = {0: (0,), 1: (0, 4), 2: (0, 3, 6), 3: (0, 2, 4, 6), 4: (4,), 5: (2, 6)}[s.opt.get('ecut', 4)]
            s.stamp(2)
            P = 32
            if not isv:
                s(f"""s_cmp_lt_u32 s47, 5
                s_cselect_b32 s52, {fbits(20**-0.5*math.log2(math.e))}, 1.0
                s_mov_b32 s53, s52
                v_lshlrev_b32 v2, 15, v9
                v_lshl_add_u32 v2, v8, 4, v2
                s_lshl_b32 s54, s47, 4
                s_lshl_b32 s55, s49, 3
                s_add_u32 s54, s54, s55
                s_lshl_b32 s54, s54, 15
                s_lshl_b32 s55, s46, 11
                s_add_u32 s54, s54, s55
                s_lshl_b32 s55, s48, 10
                s_add_u32 s54, s54, s55
                s_waitcnt lgkmcnt(0)""")
            else:
                s(f"""s_sub_u32 s54, s47, 10
                s_lshl_b32 s54, s54, 7
                s_lshl_b32 s55, s49, 6
                s_add_u32 s54, s54, s55
                v_add_u32 v4, s54, v8
                v_mul_u32_u24 v6, 320, v9""")
                for j in range(2):
                    s(f"""v_mul_u32_u24 v5, 3277, v4
                    v_lshrrev_b32 v5, 16, v5
                    v_mul_u32_u24 v{2+j}, {81920-320}, v5
                    v_lshl_add_u32 v{2+j}, v4, 4, v{2+j}
                    v_add_u32 v{2+j}, v{2+j}, v6
                    v_add_u32 v4, 32, v4""")
                s(f"""s_lshl_b32 s54, s46, 1
                s_add_u32 s54, s54, s48
                s_mul_i32 s54, s54, {8*320}
                s_add_u32 s54, s54, {VI}
                s_waitcnt lgkmcnt(0)""")
            n = 0
            for j in range(2):
                for gp in range(2):
                    for i in range(2):
                        a = ACC + 16*(2*i+j) + 8*gp
                        if n in cuts: bar()
                        p = P + 4*(n % 8); n += 1
                        if not isv:
                            for q in range(4):
                                s(f"v_pk_mul_f32 {vr(a+2*q,2)}, {vr(a+2*q,2)}, s[52:53]")
                        for q in range(4):
                            s(f"v_cvt_pk_bf16_f32 v{p+q}, v{a+2*q}, v{a+2*q+1}")
                        s(f"s_nop 1\nv_permlane32_swap_b32 v{p}, v{p+2}\nv_permlane32_swap_b32 v{p+1}, v{p+3}")
                        if s.opt.get('nost'): pass
                        elif not isv:
                            s(f"buffer_store_dwordx4 {vr(p,4)}, v2, {srd(sWS)}, s54 offen offset:{512*i} sc1")
                        else:
                            s(f"buffer_store_dwordx4 {vr(p,4)}, v{2+j}, {srd(sWS)}, s54 offen offset:{(4*i+2*gp)*320} sc1")
                    if not isv: s("s_add_u32 s54, s54, 65536")
            if not isv: s(f"s_branch {s.ln('qkv_pub')}")
        s.lab("qkv_pub")
        s(f"""s_lshl_b32 s54, s47, 4
        s_add_u32 s54, s54, s46
        s_mul_i32 s54, s54, {FSP}
        s_add_u32 s54, s54, {F_Q}""")
        while nb[0] < s.opt.get('barr', 12): bar()
        s("s_waitcnt vmcnt(0)")
        bar()
        nx = s.new("q")
        s(f"s_cmp_lg_u32 s{sW}, 0\ns_cbranch_scc1 {s.ln(nx)}")
        s.set_flag("s54", 4, 5)
        s.lab(nx)
        s.stamp(3)
        while nb[0] < 15: bar()

    def attention(s):
        Q1, Q2, K1, K2, V0, V1 = 8, 12, 16, 14, 20, 24
        S = (32, 48); O = 64
        aK1, aK2, aV, vK, vV, vIDX, aPW, vPR, aPR, vPC = 2, 3, 4, 5, 6, 7, 28, 29, 30, 31
        sH, sQB, sP, sODD, sKO, sVO, sMK, sMV, sN, sNEED, sTOK = 48, 49, 50, 51, 52, 53, 54, 55, 56, 3, 100
        EK, EV = "s[58:59]", "s[60:61]"
        sKB, sVB = 62, 63
        s(f"""s_setprio 3
        s_lshl_b32 s{sH}, s{sXC}, 2
        s_and_b32 s57, s{sI}, 3
        s_add_u32 s{sH}, s{sH}, s57
        s_lshr_b32 s{sQB}, s{sI}, 2
        s_lshr_b32 s{sP}, s{sH}, 1
        s_and_b32 s{sODD}, s{sH}, 1
        s_mov_b32 s58, -1
        s_mov_b32 s59, 0xffff
        s_mov_b32 s60, 0xffefffff
        s_mov_b32 s61, 0x1ff
        s_mul_i32 s{sKB}, s{sP}, {5*32768}
        s_add_u32 s{sKB}, s{sKB}, {KI}
        s_mul_i32 s{sVB}, s{sH}, 81920
        s_add_u32 s{sVB}, s{sVB}, {VI}
        s_mul_i32 s{sMK}, s{sW}, 768
        s_add_u32 s{sMK}, s{sMK}, {KVB}
        s_mul_i32 s{sMV}, s{sW}, 672
        s_add_u32 s{sMV}, s{sMV}, {KVB+6144}
        s_lshl_b32 s{sTOK}, s{sQB}, 8
        s_lshl_b32 s57, s{sW}, 5
        s_add_u32 s{sTOK}, s{sTOK}, s57
        v_and_b32 v80, 31, v0
        v_lshrrev_b32 v81, 5, v0
        v_and_b32 v82, 15, v0
        v_lshrrev_b32 v83, 4, v0""")
        s(f"""s_mul_i32 s57, s{sODD}, 3
        v_add_u32 v84, s57, v83
        v_cmp_gt_u32 vcc, 2, v83
        s_lshl_b32 s64, s{sW}, 8
        s_nop 0
        v_cndmask_b32 v84, 2, v84, vcc
        v_lshlrev_b32 v84, 15, v84
        v_lshl_add_u32 v84, v82, 4, v84
        v_add_u32 v{vK}, s64, v84""")
        s(f"""v_cmp_lt_u32 vcc, 20, v0
        s_mul_i32 s64, s{sW}, 640
        v_subrev_u32 v84, 1, v0
        v_cndmask_b32 v84, v0, v84, vcc
        v_lshlrev_b32 v84, 4, v84
        v_add_u32 v{vV}, s64, v84""")
        s(f"""v_bfe_u32 v84, v0, 4, 1
        v_mul_u32_u24 v84, 768, v84
        v_lshl_add_u32 v84, v82, 4, v84
        v_add_u32 v84, {KVB}, v84
        v_lshl_add_u32 v{aK1}, v81, 8, v84
        v_lshl_add_u32 v{aK2}, v81, 3, v84
        v_add_u32 v{aK2}, 512, v{aK2}
        v_min_u32 v84, 20, v80
        v_subrev_u32 v85, 12, v80
        v_cmp_lt_u32 vcc, 27, v80
        v_mul_u32_u24 v86, 336, v81
        v_mov_b32 v{vIDX}, 0xdddd
        v_cndmask_b32 v84, v84, v85, vcc
        v_lshl_add_u32 v84, v84, 4, v86
        v_add_u32 v{aV}, {KVB+6144}, v84
        s_lshl_b32 s64, s{sW}, 2
        s_add_u32 s64, s64, {SY_PA}
        v_mov_b32 v{aPW}, s64
        v_and_b32 v84, 7, v0
        v_lshlrev_b32 v84, 2, v84
        v_add_u32 v{aPR}, {SY_PA}, v84
        v_mov_b32 v{vPC}, 1""")
        for r in range(16): s(f"v_mov_b32 v{O+r}, 0")
        for r in range(8): s(f"v_mov_b32 v{S[1]+8+r}, 0")
        for r in range(4): s(f"v_mov_b32 v{V1+r}, 0")
        s(f"""s_mul_i32 s57, s{sODD}, 3
        v_add_u32 v93, s57, v81
        v_lshlrev_b32 v93, 15, v93
        v_lshl_add_u32 v93, v80, 4, v93
        v_lshlrev_b32 v94, 4, v80
        v_lshl_add_u32 v94, v81, 3, v94
        v_add_u32 v94, 0x10000, v94
        v_lshlrev_b32 v95, 2, v80
        s_lshl_b32 s70, s{sTOK}, 4
        s_add_u32 s70, s70, s{sKB}
        s_sub_u32 s70, s70, {KI-QI}
        s_lshl_b32 s71, s{sTOK}, 2
        s_add_u32 s71, s71, {GI}
        s_lshl_b32 s{sN}, s{sQB}, 1
        s_mov_b32 s66, 0""")
        def dma(slot):
            return [f"s_and_b32 s57, s{sN}, 15",
                    f"s_mul_i32 s{sVO}, s57, 5120",
                    f"s_lshl_b32 s{sKO}, s57, 11",
                    f"s_cmp_lt_u32 s66, 16",
                    f"s_cselect_b32 s67, s{sKB}, {WS_BYTES}",
                    f"s_cselect_b32 s68, s{sVB}, {WS_BYTES}",
                    f"s_add_u32 s{sKO}, s{sKO}, s67",
                    f"s_add_u32 s{sVO}, s{sVO}, s68",
                    f"s_add_u32 m0, s{sMK}, {slot*KVS}",
                    f"s_mov_b64 exec, {EK}",
                    f"buffer_load_dwordx4 v{vK}, {srd(sWS)}, s{sKO} offen sc1 lds",
                    f"s_add_u32 m0, s{sMV}, {slot*KVS}",
                    f"s_mov_b64 exec, {EV}",
                    f"buffer_load_dwordx4 v{vV}, {srd(sWS)}, s{sVO} offen sc1 lds",
                    f"s_mov_b64 exec, -1",
                    f"s_add_u32 s{sN}, s{sN}, 1",
                    f"s_add_u32 s66, s66, 1"]
        D0 = dma(0)
        s("\n".join(D0[:9]))
        hi, w1, w23, nidle = s.new("a"), s.new("a"), s.new("a"), s.new("a")
        ql = [(88,1,85,sWS,"s64",0),(89,1,84,sWS,"s64",0),(90,1,95,sWS,"s65",0)][:2 if s.opt.get('noln') else 3]
        s(f"""s_cmp_ge_u32 s{sW}, 4
        s_cbranch_scc1 {s.ln(hi)}
        s_cmp_lg_u32 s{sW}, 0
        s_cbranch_scc1 {s.ln(w1)}
        s_mul_i32 s64, s{sP}, 5
        s_lshl_b32 s65, s{sODD}, 1
        s_add_u32 s64, s64, s65
        v_bfe_u32 v86, v0, 4, 1
        v_lshl_add_u32 v84, v86, 1, s64
        v_lshrrev_b32 v84, 4, v84
        s_mul_i32 s64, s{sH}, 20
        v_mul_u32_u24 v85, 19, v86
        v_add_u32 v85, s64, v85
        v_lshrrev_b32 v85, 7, v85
        v_add_u32 v85, 5, v85
        v_cmp_eq_u32 vcc, 0, v81
        s_lshl_b32 s64, s{sQB}, 1
        v_and_b32 v87, 1, v0
        v_cndmask_b32 v85, v85, v84, vcc
        v_add_u32 v85, 5, v85
        v_lshl_add_u32 v85, v85, 4, v82
        v_mul_u32_u24 v85, {FSP}, v85
        v_add_u32 v87, s64, v87
        v_lshl_add_u32 v84, v84, 4, v87
        v_mul_u32_u24 v84, {FSP}, v84
        s_barrier
        s_cmp_lg_u32 s{sCT}, 15
        s_cbranch_scc1 {s.ln(nidle)}
        s_mul_i32 s64, s{sRT}, {FSP}
        s_add_u32 s64, s64, {F_Q + 14*16*FSP}
        v_mov_b32 v86, 0""")
        s.poll([(88,1,86,sWS,"s64",0)], sleep=8)
        s.lab(nidle)
        s(f"""s_mov_b32 s64, {F_Q}
        s_lshl_b32 s65, s{sQB}, 7
        s_add_u32 s65, s65, {F_H}""")
        if s.opt.get('epoll', 1):
            s.poll_issue(ql)
            s("s_barrier")
            s.poll(ql, sleep=s.opt.get('psl', 4), pre=0)
        else:
            s("s_barrier")
            s.poll(ql, sleep=s.opt.get('psl', 4))
        s.lds_set(SY_QOK, 1, 84, 85)
        s(f"s_branch {s.ln(hi)}")
        s.lab(w1)
        s(f"""s_barrier
        s_barrier
        s_cmp_lg_u32 s{sW}, 1
        s_cbranch_scc1 {s.ln(hi)}
        v_mul_u32_u24 v84, {KVS}, v83
        v_mul_u32_u24 v85, 336, v82
        v_add_u32 v84, v84, v85
        v_add_u32 v84, {KVB+6144+320}, v84
        v_mov_b32 v88, 0x3f803f80
        v_mov_b32 v89, 0x3f803f80
        v_mov_b32 v90, 0x3f803f80
        v_mov_b32 v91, 0x3f803f80
        ds_write_b128 v84, v[88:91]""")
        s.lab(hi)
        s(f"v_mov_b32 v86, {SY_QOK}")
        s.lds_spin(86, 1, 87)
        s.stamp(4)
        if s.opt.get('dbgx') == 2 or s.opt.get('ldstamp'): s.end_wave()
        s("\n".join(D0[9:]))
        s(f"""buffer_load_dwordx4 {vr(Q1,4)}, v93, {srd(sWS)}, s70 offen sc1
        buffer_load_dwordx2 {vr(Q2,2)}, v94, {srd(sWS)}, s70 offen sc1""")
        for l in dma(1): s(l)
        for l in dma(2): s(l)
        s(f"buffer_load_dword v92, v95, {srd(sWS)}, s71 offen sc1")
        s(f"""s_waitcnt vmcnt(5) lgkmcnt(0)
        ds_write_b32 v{aPW}, v{vPC}
        v_cmp_eq_u32 vcc, s{sODD}, v81
        v_add_u32 v{vPC}, 1, v{vPC}
        s_mov_b32 s{sNEED}, 2
        v_cndmask_b32 v{Q2}, 0, v{Q2}, vcc
        v_cndmask_b32 v{Q2+1}, 0, v{Q2+1}, vcc""")
        s.lds_spin(aPR, 1, vPR)
        s.stamp(5)
        def off(T):
            T %= 16
            return (T >> 2)*KVS, T & 3
        def rK1(T):
            b, tt = off(T); return f"ds_read_b128 {vr(K1,4)}, v{aK1} offset:{b+tt*1536}"
        def rK2(T):
            b, tt = off(T); return f"ds_read_b64 {vr(K2,2)}, v{aK2} offset:{b+tt*1536}"
        def rV(T, a):
            b, tt = off(T); return f"ds_read_b128 {vr((V0,V1)[a],4)}, v{aV} offset:{b+(4*tt+2*a)*336}"
        def qk0(d): return f"v_mfma_f32_32x32x16_bf16 {vr(d,16)}, {vr(K1,4)}, {vr(Q1,4)}, 0"
        def qk1(d): return f"v_mfma_f32_32x32x8_bf16 {vr(d,16)}, {vr(K2,2)}, {vr(Q2,2)}, {vr(d,16)}"
        def pv(v, p): return f"v_smfmac_f32_32x32x32_bf16 {vr(O,16)}, {vr(v,4)}, {vr(p,8)}, v{vIDX}"
        s(rK1(0)); s(rK2(0)); s("s_waitcnt lgkmcnt(0)")
        s(qk0(S[0])); s(qk1(S[0]))
        s(rK1(1)); s(rK2(1)); s(rV(0,0))
        s("s_mov_b32 s69, 4\ns_nop 7")
        ap = s.opt.get('aprio', 1)
        def loop(pat):
          lp = s.new("attl")
          s.L.append(".p2align 6")
          s.lab(lp)
          for T in range(16):
              cur, nxt = S[T & 1], S[(T & 1) ^ 1]
              E = [f"v_exp_f32 v{cur+i}, v{cur+i}" for i in range(16)]
              tt = T & 3
              if pat is not None and pat[T] != pat[T-1]: s(f"s_setprio {pat[T]}")
              if tt == 2:
                  ok = s.new("ok")
                  s(E[0]); s(E[1])
                  s("s_waitcnt lgkmcnt(0)")
                  s(pv(V1, nxt+8))
                  s(f"v_cmp_gt_u32 vcc, s{sNEED}, v{vPR}")
                  s(rV(T,1))
                  s.spin_ool(aPR, f"s{sNEED}", vPR, sleep=1)
                  D = dma(((T >> 2) + 3) & 3)
                  s(E[2]); s("\n".join(D[0:4])); s(E[3]); s("\n".join(D[4:8])); s(E[4])
                  s(qk0(nxt)); s(rK1(T+2))
                  s(E[5]); s(E[6]); s(E[7])
                  s(qk1(nxt)); s(rK2(T+2))
                  if s.opt.get('adma', 1): s("s_setprio 3")
                  s("\n".join(D[8:15]))
                  if s.opt.get('adma', 1): s(f"s_setprio {pat[T] if pat else ap}")
                  s(E[8]); s("\n".join(D[15:17])); s(f"s_add_u32 s{sNEED}, s{sNEED}, 1")
                  s(E[9]); s(E[10]); s(E[11])
                  s(pv(V0, cur)); s(rV(T+1,0))
                  for e in E[12:]: s(e)
              else:
                  s(E[0]); s(E[1])
                  s("s_waitcnt lgkmcnt(2)")
                  s(pv(V1, nxt+8)); s(rV(T,1))
                  if tt == 0:
                      s(f"s_waitcnt vmcnt(2)\nds_write_b32 v{aPW}, v{vPC}")
                  s(E[2]); s(E[3]); s(E[4])
                  s(qk0(nxt)); s(rK1(T+2))
                  s(E[5]); s(E[6]); s(E[7])
                  s(f"s_waitcnt lgkmcnt({3 if tt == 0 else 2})")
                  s(qk1(nxt)); s(rK2(T+2))
                  s(E[8]); s(E[9]); s(E[10]); s(E[11])
                  if tt == 0: s(f"v_add_u32 v{vPC}, 1, v{vPC}")
                  s(pv(V0, cur)); s(rV(T+1,0))
                  if tt == 1: s(f"ds_read_b32 v{vPR}, v{aPR}")
                  for e in E[12:]: s(e)
                  if tt == 3: s("s_nop 0")
          if s.opt.get('qst') and s.stamps:
              for k, c in ((1, 4), (2, 3), (3, 2)):
                  nx = s.new("st")
                  s(f"s_cmp_lg_u32 s69, {c}\ns_cbranch_scc1 {s.ln(nx)}")
                  s.stamp(k)
                  s.lab(nx)
          s(f"s_sub_u32 s69, s69, 1\ns_cmp_lg_u32 s69, 0\ns_cbranch_scc1 {s.ln(lp)}")
        ap = s.opt.get('aprio', 1)
        pm = s.opt.get('apat', 109)
        if pm:
            young, join = s.new("young"), s.new("join")
            s(f"s_cmp_ge_u32 s{sW}, 4\ns_cbranch_scc1 {s.ln(young)}\ns_setprio {ap}")
            loop(None)
            s(f"s_branch {s.ln(join)}")
            s.lab(young)
            pat = [(s.opt.get('ylo', ap), s.opt.get('yhi', ap+1))[(pm >> (T % 8)) & 1] for T in range(16)]
            s(f"s_setprio {pat[15]}")
            loop(pat)
            s.lab(join)
        else:
            s(f"s_setprio {ap}")
            loop(None)
        s("s_setprio 3")
        s(f"s_waitcnt lgkmcnt(0)\nds_write_b32 v{aPW}, v{vPC}")
        s(pv(V1, S[1]+8))
        s.stamp(6)
        s(f"""v_lshlrev_b32 v84, 4, v80
        v_lshl_add_u32 v86, v81, 15, v84
        s_lshl_b32 s64, s{sH}, 16
        s_lshl_b32 s65, s{sTOK}, 4
        s_add_u32 s65, s65, {OI}
        s_add_u32 s64, s64, s65
        s_add_u32 s57, s{sP}, 64
        s_lshl_b32 s57, s57, 15
        s_add_u32 s65, s65, s57
        s_xor_b32 s57, s{sP}, s{sH}
        s_and_b32 s57, s57, 1
        s_lshl_b32 s57, s57, 3
        s_add_u32 s65, s65, s57
        v_cmp_eq_u32 s[72:73], 0, v81
        v_add_f32 v88, abs(v{O}), abs(v{O+1})
        v_add_f32 v89, abs(v{O+2}), abs(v{O+3})""")
        for r in range(4, 12, 2):
            s(f"v_add_f32 v88, v88, abs(v{O+r})\nv_add_f32 v89, v89, abs(v{O+r+1})")
        slow, norm = s.new("slow"), s.new("norm")
        s(f"""v_cndmask_b32 v87, v{O+8}, v{O+12}, s[72:73]
        v_add_f32 v88, v88, v89
        v_cmp_nle_f32 vcc, {fbits(2.0**-30)}, v87
        s_mov_b64 s[74:75], vcc
        v_cmp_nge_f32 vcc, {fbits(2.0**60)}, v87
        s_or_b64 s[74:75], s[74:75], vcc
        v_cmp_nge_f32 vcc, {fbits(2.0**126)}, v88
        s_or_b64 vcc, s[74:75], vcc
        s_cbranch_vccnz {s.ln(slow)}""")
        s.lab(norm)
        s(f"""v_rcp_f32 v88, v87
        s_nop 0
        v_mul_f32 v88, v88, v92""")
        s.slow_args = (slow, norm, Q1, Q2, K1, K2, V0, V1, S, O, vIDX, sKB, sVB)
        for r in range(12): s(f"v_mul_f32 v{O+r}, v{O+r}, v88")
        for q in range(6): s(f"v_cvt_pk_bf16_f32 v{32+q}, v{O+2*q}, v{O+2*q+1}")
        s(f"""buffer_store_dwordx4 v[32:35], v86, {srd(sWS)}, s64 offen sc1
        s_mov_b32 exec_hi, 0
        buffer_store_dwordx2 v[36:37], v84, {srd(sWS)}, s65 offen sc1
        s_mov_b32 exec_hi, -1""")
        if True:
            s(f"""s_lshl_b32 s64, s{sQB}, 5
            s_add_u32 s64, s64, s{sH}
            s_mul_i32 s64, s64, {FSP}
            s_add_u32 s64, s64, {F_O}""")
            s.arrive(SY_CO, 8, "s64", 84, 85)
        s.stamp(7)

    def att_slow(s):
        slow, norm, Q1, Q2, K1, K2, V0, V1, S, O, vIDX, sKB, sVB = s.slow_args
        S0, C = S
        l1, l2 = s.new("slowa"), s.new("slowb")
        s.lab(slow)
        ldk = f"""buffer_load_dwordx4 {vr(K1,4)}, v93, {srd(sWS)}, s67 offen sc1
        buffer_load_dwordx2 {vr(K2,2)}, v94, {srd(sWS)}, s67 offen sc1"""
        s(f"""s_waitcnt vmcnt(0) lgkmcnt(0)
        v_mov_b32 v88, 0xff800000
        s_mov_b32 s67, s{sKB}
        s_mov_b32 s69, 64""")
        s.lab(l1)
        s(ldk)
        s(f"""s_waitcnt vmcnt(0)
        v_mfma_f32_32x32x16_bf16 {vr(S0,16)}, {vr(K1,4)}, {vr(Q1,4)}, 0
        v_mfma_f32_32x32x8_bf16 {vr(S0,16)}, {vr(K2,2)}, {vr(Q2,2)}, {vr(S0,16)}
        s_add_u32 s67, s67, 512
        s_nop 15""")
        for r in range(0, 16, 2): s(f"v_max3_f32 v88, v88, v{S0+r}, v{S0+r+1}")
        s(f"""s_sub_u32 s69, s69, 1
        s_cmp_lg_u32 s69, 0
        s_cbranch_scc1 {s.ln(l1)}
        v_mov_b32 v89, v88
        s_nop 1
        v_permlane32_swap_b32 v88, v89
        s_nop 1
        v_max_f32 v88, v88, v89
        v_mul_u32_u24 v89, 320, v81
        v_lshl_add_u32 v89, v80, 4, v89""")
        for r in range(16): s(f"v_sub_f32 v{C+r}, 0, v88\nv_mov_b32 v{O+r}, 0")
        for r in range(4): s(f"v_mov_b32 v{V0+r}, 0x3f803f80\nv_mov_b32 v{V1+r}, 0x3f803f80")
        s(f"""s_mov_b32 s67, s{sKB}
        s_mov_b32 s68, s{sVB}
        s_mov_b32 s69, 64
        s_mov_b32 s74, 0xfffff
        s_mov_b32 s75, 0xfffff""")
        s.lab(l2)
        s(ldk)
        s(f"""s_mov_b64 exec, s[74:75]
        buffer_load_dwordx4 {vr(V0,4)}, v89, {srd(sWS)}, s68 offen sc1
        buffer_load_dwordx4 {vr(V1,4)}, v89, {srd(sWS)}, s68 offen offset:640 sc1
        s_mov_b64 exec, -1
        s_waitcnt vmcnt(0)
        v_mfma_f32_32x32x16_bf16 {vr(S0,16)}, {vr(K1,4)}, {vr(Q1,4)}, {vr(C,16)}
        v_mfma_f32_32x32x8_bf16 {vr(S0,16)}, {vr(K2,2)}, {vr(Q2,2)}, {vr(S0,16)}
        s_add_u32 s67, s67, 512
        s_add_u32 s68, s68, 1280
        s_nop 15""")
        for r in range(16): s(f"v_exp_f32 v{S0+r}, v{S0+r}")
        s(f"""s_nop 1
        v_smfmac_f32_32x32x32_bf16 {vr(O,16)}, {vr(V0,4)}, {vr(S0,8)}, v{vIDX}
        v_smfmac_f32_32x32x32_bf16 {vr(O,16)}, {vr(V1,4)}, {vr(S0+8,8)}, v{vIDX}
        s_sub_u32 s69, s69, 1
        s_cmp_lg_u32 s69, 0
        s_nop 7
        s_cbranch_scc1 {s.ln(l2)}
        s_nop 15
        v_cndmask_b32 v87, v{O+8}, v{O+12}, s[72:73]
        s_branch {s.ln(norm)}""")

    def gfront(s):
        sJ = 48
        s(f"s_setprio 3\ns_sub_u32 s{sJ}, s{sW}, 8")
        s.ln_loads(sJ)
        s(f"""v_lshlrev_b32 v1, 2, v0
        v_add_u32 v1, {SYN}, v1
        v_mov_b32 v2, 0
        ds_write_b32 v1, v2""")
        if s.opt.get('noln'):
            s('s_barrier'); s.gtiles(sJ); s.nb = 1
        else: s.nb = s.layernorm(sJ)

    def grole(s):
        sJ = 48
        pre = s.gsetup(sJ)
        nb = s.nb
        assert nb <= s.opt.get('th', 7)
        s("s_setprio 0")
        lines = "\n".join(pre).split("\n")
        k = 11 - nb
        per = -(-len(lines) // k)
        for q in range(k):
            s("\n".join(lines[q*per:(q+1)*per])); s("s_barrier")
        s.stamp(2)
        s.gsync_n = 0
        s.gemm1(sJ)
        s.gemm2(sJ)

    def gtiles(s, sJ):
        s(f"""s_and_b32 s50, s{sXC}, 3
        s_lshl_b32 s51, s{sF1}, 2
        s_and_b32 s54, s{sJ}, 2
        s_add_u32 s51, s51, s54
        s_lshr_b32 s54, s50, 1
        s_add_u32 s51, s51, s54
        s_lshl_b32 s52, s{sD1}, 1
        s_and_b32 s54, s{sJ}, 1
        s_add_u32 s52, s52, s54
        s_lshl_b32 s52, s52, 1
        s_and_b32 s54, s50, 1
        s_add_u32 s52, s52, s54
        s_lshl_b32 s62, s{sXC}, 2
        s_and_b32 s54, s{sI}, 3
        s_add_u32 s62, s62, s54
        s_lshr_b32 s63, s{sI}, 2
        s_lshl_b32 s66, s62, 6
        s_lshl_b32 s54, s{sJ}, 4
        s_add_u32 s66, s66, s54
        s_lshl_b32 s54, s51, 6
        v_lshrrev_b32 v1, 5, v0
        v_lshl_add_u32 v1, v1, 3, s54
        v_and_b32 v2, 15, v0
        v_add_lshl_u32 v2, s66, v2, 1""")
        for q in range(4):
            s(f"global_load_dwordx2 {vr(54+2*q,2)}, v1, s[{sB1}:{sB1+1}] offset:{16*q}")
        s(f"global_load_ushort v62, v2, s[{sB2}:{sB2+1}]")

    def gsetup(s, sJ):
        B = []
        B.append(f"""s_mul_i32 s49, s{sJ}, {GREG}
        s_lshl_b32 s54, s{sJ}, 2
        s_add_u32 s54, s54, {SY_PG}
        v_mov_b32 v160, s54
        v_lshrrev_b32 v48, 4, v0
        v_and_b32 v49, 15, v0
        v_lshrrev_b32 v50, 5, v0
        v_and_b32 v51, 31, v0
        v_and_b32 v52, 3, v0
        v_bfe_u32 v53, v0, 2, 2
        v_lshlrev_b32 v161, 2, v52
        v_add_u32 v161, {SY_PG}, v161
        v_mov_b32 v164, {SYN}
        v_lshrrev_b32 v30, 3, v0
        v_and_b32 v31, 7, v0
        v_lshlrev_b32 v13, 1, v48
        v_xor_b32 v13, v13, v31
        v_lshlrev_b32 v30, 12, v30
        v_lshl_add_u32 v13, v13, 4, v30
        v_mul_u32_u24 v28, 10240, v50
        v_lshl_add_u32 v28, v51, 4, v28""")
        B.append(f"""v_lshl_add_u32 v26, v50, 3, v53
        v_lshlrev_b32 v26, 8, v26
        v_and_b32 v31, 1, v48
        v_lshl_add_u32 v26, v31, 5, v26
        v_lshl_add_u32 v26, v52, 3, v26
        v_add_u32 v24, 0x10000, v26
        v_add_u32 v26, {0x10000 + 16384}, v26
        s_and_b32 s54, s52, 3
        v_xor_b32 v30, s54, v53
        v_lshl_add_u32 v24, v30, 6, v24
        v_xor_b32 v25, 64, v24
        s_and_b32 s54, s51, 3
        v_xor_b32 v30, s54, v53
        v_lshl_add_u32 v26, v30, 6, v26
        v_xor_b32 v27, 64, v26
        """)
        B.append(f"""s_mul_i32 s64, s{sJ}, {384*4096}
        s_lshl_b32 s54, s62, 7
        s_add_u32 s64, s64, s54
        s_mul_i32 s65, s{sJ}, {48*10240}
        s_mul_i32 s54, s63, 1280
        s_add_u32 s65, s65, s54
        s_add_u32 s65, s65, {UI}
        v_mul_u32_u24 v14, 10240, v48
        v_lshl_add_u32 v14, v49, 4, v14
        v_bfe_u32 v30, v0, 2, 3
        v_lshl_add_u32 v31, v50, 4, v30
        v_lshlrev_b32 v31, 7, v31
        v_lshl_add_u32 v31, v52, 3, v31
        v_add_u32 v31, s49, v31
        v_lshrrev_b32 v32, 1, v30
        v_xor_b32 v32, s{sJ}, v32
        """ + "\n".join(f"v_xor_b32 v33, {si}, v32\nv_lshl_add_u32 v{15+si}, v33, 5, v31" for si in range(4)) + f"""
        v_lshlrev_b32 v12, 15, v48
        v_lshl_add_u32 v12, v49, 4, v12
        v_add_u32 v19, s66, v49
        v_mul_u32_u24 v19, 1280, v19
        v_lshl_add_u32 v19, v48, 3, v19""")
        B.append("\n".join(f"""v_add_u32 v31, {64*m}, v0
            v_mul_u32_u24 v32, 6554, v31
            v_lshrrev_b32 v32, 16, v32
            v_mul_u32_u24 v32, {1280-160}, v32
            v_lshl_add_u32 v{1+m}, v31, 4, v32""" for m in range(5)))
        B.append(f"""v_mul_u32_u24 v31, 20, v50
        v_add_u32 v31, v31, v30
        v_mul_u32_u24 v31, 160, v31
        v_lshl_add_u32 v6, v52, 3, v31
        v_add_u32 v7, 51200, v6
        v_mul_u32_u24 v31, 40, v48
        v_add_u32 v31, v31, v53
        v_add_u32 v31, 16, v31
        v_mul_u32_u24 v31, 160, v31
        v_lshl_add_u32 v31, v52, 3, v31
        v_and_b32 v32, 1, v48
        v_mul_u32_u24 v32, 3200, v32
        v_sub_u32 v9, v31, v32
        v_add_u32 v9, 3200, v9
        v_add_u32 v8, v31, v32
        v_add_u32 v10, 51200, v8
        v_add_u32 v11, 51200, v9""")
        B.append("\n".join(f"v_mov_b32 v{r}, 0" for r in range(80, 128)))
        B.append("s_waitcnt vmcnt(0)\n" + "\n".join(f"v_lshlrev_b32 v{64+2*q}, 16, v{54+q}\nv_and_b32 v{65+2*q}, 0xffff0000, v{54+q}" for q in range(8)) + "\nv_lshlrev_b32 v20, 16, v62")
        return B

    def xaddr(s, sJ, vw, vr0):
        s(f"v_lshlrev_b32 v{vw}, 4, v0")
        for n in range(1, 4):
            s(f"s_xor_b32 s54, s{sJ}, {n}\ns_mul_i32 s54, s54, {GREG}\ns_add_u32 s54, s54, {(n-1)*4096}\nv_add_u32 v{vr0+n-1}, s54, v{vw}")
        s(f"v_add_u32 v{vw}, s49, v{vw}")

    def gpost(s):
        s.gsync_n += 1
        s(f"s_waitcnt lgkmcnt(0)\nv_mov_b32 v162, {s.gsync_n}\nds_write_b32 v160, v162")
    def gwait(s):
        s.lds_spin(161, s.gsync_n, 163, sleep=2)

    def ln_loads(s, sJ):
        X = (8, 13); GWR = 18
        s(f"""s_and_b32 s67, s{sXC}, 3
        s_lshl_b32 s67, s67, 6
        s_lshr_b32 s68, s{sXC}, 2
        s_lshl_b32 s68, s68, 5
        s_add_u32 s67, s67, s68
        s_add_u32 s67, s67, s{sI}
        s_lshl_b32 s68, s67, 3
        s_lshl_b32 s69, s{sJ}, 1
        s_add_u32 s68, s68, s69
        s_mul_i32 s69, s68, 1280
        v_and_b32 v1, 31, v0
        v_lshrrev_b32 v3, 5, v0
        v_lshlrev_b32 v2, 3, v1
        v_lshlrev_b32 v1, 4, v1
        v_mul_u32_u24 v19, 1280, v3
        v_add_u32 v18, v19, v1
        v_add_u32 v19, v19, v2""")
        s.kwait()
        if s.opt.get('noln'): return
        s(f"""buffer_load_dwordx4 v[8:11], v18, {srd(sX)}, s69 offen
        buffer_load_dwordx4 v[12:15], v18, {srd(sX)}, s69 offen offset:512
        buffer_load_dwordx2 v[16:17], v19, {srd(sX)}, s69 offen offset:1024
        global_load_dwordx4 v[20:23], v1, s[{sGW}:{sGW+1}]
        global_load_dwordx4 v[24:27], v1, s[{sGW}:{sGW+1}] offset:512
        global_load_dwordx2 v[28:29], v2, s[{sGW}:{sGW+1}] offset:1024""")

    def layernorm(s, sJ):
        X, GW, XV = 8, 20, 32
        nb = [0]
        def bar():
            nb[0] += 1; s("s_barrier")
        gl = [(31,1,30,sDBG,"0",0)]
        s(f"""s_mov_b32 s70, 0x3f803f80
        s_lshl_b32 s55, s68, 2
        s_add_u32 s55, s55, {GI}
        s_add_u32 s69, s69, {HI}
        v_lshlrev_b32 v3, 2, v3
        v_and_b32 v30, 15, v0
        v_lshlrev_b32 v30, 2, v30
        s_waitcnt vmcnt(0)""")
        s.stamp(1)
        for i in range(10):
            s(f"v_dot2_f32_bf16 v4, v{X+i}, s70, {'v4' if i else 0}")
            s(f"v_dot2_f32_bf16 v5, v{X+i}, v{GW+i}, {'v5' if i else 0}")
        un = []
        for i in range(10):
            un += [f"v_lshlrev_b32 v{XV+2*i}, 16, v{X+i}", f"v_and_b32 v{XV+2*i+1}, 0xffff0000, v{X+i}"]
        def fill(n):
            for _ in range(n): s(un.pop(0) if un else "s_nop 0")
        fill(3)
        for k in (8, 4, 2, 1):
            for q in (4, 5): s(f"v_add_f32_dpp v{q}, v{q}, v{q} row_ror:{k} row_mask:0xf bank_mask:0xf")
            fill(1)
        s("v_mov_b32 v6, v4\nv_mov_b32 v7, v5"); fill(2)
        s("v_permlane16_swap_b32 v4, v6\nv_permlane16_swap_b32 v5, v7"); fill(2)
        s(f"""v_add_f32 v4, v4, v6
        v_add_f32 v5, v5, v7
        v_mul_f32 v4, {fbits(-1/640)}, v4
        v_mul_f32 v5, {fbits(-math.log2(math.e))}, v5
        v_exp_f32 v5, v5""")
        fill(len(un))
        s("v_add_f32 v5, 1.0, v5\nv_rcp_f32 v2, v5")
        for e in range(0, 20, 2): s(f"v_pk_add_f32 {vr(XV+e,2)}, {vr(XV+e,2)}, v[4:5] op_sel_hi:[1,0]")
        for e in range(0, 20, 2):
            a = (6, 52)[(e >> 1) & 1]
            if e < 4: s(f"v_pk_mul_f32 {vr(a,2)}, {vr(XV+e,2)}, {vr(XV+e,2)}")
            else: s(f"v_pk_fma_f32 {vr(a,2)}, {vr(XV+e,2)}, {vr(XV+e,2)}, {vr(a,2)}")
        s("v_pk_add_f32 v[6:7], v[6:7], v[52:53]\nv_add_f32 v6, v6, v7")
        for k in (8, 4, 2, 1):
            s(f"s_nop 1\nv_add_f32_dpp v6, v6, v6 row_ror:{k} row_mask:0xf bank_mask:0xf")
        s(f"""v_mov_b32 v7, v6
        v_mov_b32 v4, {fbits(1e-5)}
        s_nop 0
        v_permlane16_swap_b32 v6, v7
        s_nop 1
        v_add_f32 v6, v6, v7
        v_fmac_f32 v4, {fbits(1/640)}, v6
        v_rsq_f32 v4, v4
        s_nop 0""")
        for e in range(0, 20, 2):
            s(f"v_pk_mul_f32 {vr(XV+e,2)}, {vr(XV+e,2)}, v[4:5] op_sel_hi:[1,0]")
        for i in range(10): s(f"v_cvt_pk_bf16_f32 v{X+i}, v{XV+2*i}, v{XV+2*i+1}")
        nx, done = s.new("g"), s.new("g")
        s(f"""buffer_store_dwordx4 v[8:11], v18, {srd(sWS)}, s69 offen sc1
        buffer_store_dwordx4 v[12:15], v18, {srd(sWS)}, s69 offen offset:512 sc1
        buffer_store_dwordx2 v[16:17], v19, {srd(sWS)}, s69 offen offset:1024 sc1
        s_mov_b32 exec_lo, 1
        s_mov_b32 exec_hi, 1
        buffer_store_dword v2, v3, {srd(sWS)}, s55 offen sc1
        s_mov_b64 exec, -1
        s_cmp_lg_u32 s{sJ}, 0
        s_cbranch_scc1 {s.ln(nx)}""")
        s.poll_issue(gl)
        s.lab(nx)
        if s.opt.get('b0st'): s.stamp(7)
        s("s_waitcnt lgkmcnt(0)")
        for _ in range(s.opt.get('lnw', 2)): bar()
        s("s_waitcnt vmcnt(0)")
        bar()
        s(f"""s_lshl_b32 s54, s67, 2
        s_add_u32 s54, s54, {F_H}
        s_cmp_lg_u32 s{sJ}, 0
        s_cbranch_scc1 {s.ln(done)}""")
        s.poll(gl, sleep=4, pre=0)
        s.set_flag("s54", 4, 5)
        s.lab(done)
        s.gtiles(sJ)
        return nb[0]

    def gpoll(s, pre, loads, ok, sleep, lsl=4):
        nx = s.new("gp")
        s(f"s_cmp_lg_u32 s48, 0\ns_cbranch_scc1 {s.ln(nx)}")
        for addr, need in pre: s.lds_spin(164, need, 165, off=addr-SYN, sleep=lsl)
        s.poll(loads, sleep=sleep)
        s(f"v_mov_b32 v165, 1\nds_write_b32 v164, v165 offset:{ok-SYN}")
        s.lab(nx)
        s.lds_spin(164, 1, 165, off=ok-SYN, sleep=lsl)

    def pfwo(s):
        s(f"""s_lshl_b32 s60, s{sI}, 2
        s_add_u32 s60, s60, s48
        s_mul_i32 s61, s60, 6400
        v_min_u32 v30, 49, v0
        v_lshlrev_b32 v30, 7, v30
        buffer_load_dword v167, v30, {srd(sWO)}, s61 offen""")

    def gemm1(s, sJ):
        ACC = 64
        skip, fin = s.new("g1skip"), s.new("g1fin")
        s(f"s_cmp_eq_u32 s{sCT}, 15\ns_cbranch_scc1 {s.ln(skip)}")
        reads, mf = s.gemm_ops(24, 26)
        s(f"s_setprio {s.opt.get('gp1', 1)}")
        for l in reads(0,0,0) + reads(1,0,1): s(l)
        s("s_mov_b32 s54, 4")
        s.gemm_loop(reads, mf, 0, (24,25,26,27), (), 54, True)
        s.stamp(3)
        s(f"""s_setprio 3
        s_lshl_b32 s55, s{sN1}, 2
        s_lshl_b32 s57, s{sJ}, 11
        s_add_u32 s57, s57, {PI}
        v_lshlrev_b32 v29, 4, v0""")
        s.gpost()
        hold = s.opt.get('phold', 0)
        for n in range(1, 4):
            m = (0, 2, 1, 3)[n]
            p = 32 + 8*(n-1)
            s(f"""s_xor_b32 s54, s50, {m}
            s_add_u32 s54, s54, s55
            s_mul_i32 s54, s54, 24576
            s_add_u32 s54, s54, s57
            s_add_u32 s{57+n}, s54, {(n-1)*8192}""")
            for q in range(8): s(f"v_cvt_pk_bf16_f32 v{p+q}, v{ACC+16*n+2*q}, v{ACC+16*n+2*q+1}")
        if hold: s.lds_spin(164, 1, 165, off=(SY_QOK, SY_PA)[hold-1]-SYN, sleep=2)
        for n in range(1, 4):
            p = 32 + 8*(n-1)
            s(f"""buffer_store_dwordx4 {vr(p,4)}, v29, {srd(sWS)}, s{57+n} offen sc1
            buffer_store_dwordx4 {vr(p+4,4)}, v29, {srd(sWS)}, s{57+n} offen offset:1024 sc1""")
        s(f"""s_add_u32 s56, s55, s50
        s_mul_i32 s54, s56, {FSP}
        s_add_u32 s54, s54, {F_P}""")
        s.arrive(SY_CP, 4, "s54", 30, 31)
        s(f"""s_mul_i32 s54, s55, {FSP}
        s_add_u32 s54, s54, {F_P}
        v_and_b32 v30, 3, v0
        v_mul_u32_u24 v30, {FSP}, v30
        s_mul_i32 s56, s56, 24576
        s_add_u32 s56, s56, s57""")
        s.gpoll([(SY_CP, 4)], [(31,1,30,sWS,"s54",0)], SY_POK, 4)
        s.stamp(4)
        for n in range(3):
            p = 32 + 8*n
            s(f"""buffer_load_dwordx4 {vr(p,4)}, v29, {srd(sWS)}, s56 offen sc1
            buffer_load_dwordx4 {vr(p+4,4)}, v29, {srd(sWS)}, s56 offen offset:1024 sc1
            s_add_u32 s56, s56, 8192""")
        c0 = -2*math.sqrt(2/math.pi)*math.log2(math.e); c1 = c0*0.044715
        s(f"""s_mov_b32 s56, {fbits(c1)}
        s_mov_b32 s57, {fbits(c1)}
        v_mov_b32 v56, {fbits(c0)}
        v_mov_b32 v57, {fbits(c0)}
        s_mov_b32 s60, 1.0
        s_mov_b32 s61, 1.0""")
        T = ACC + 16
        for n in range(3):
            s(f"s_waitcnt vmcnt({4-2*n})")
            for q in range(8):
                s(f"v_lshlrev_b32 v{T+2*q}, 16, v{32+8*n+q}\nv_and_b32 v{T+2*q+1}, 0xffff0000, v{32+8*n+q}")
            for r in range(0, 16, 2): s(f"v_pk_add_f32 {vr(ACC+r,2)}, {vr(ACC+r,2)}, {vr(T+r,2)}")
        for r in range(0, 16, 2): s(f"v_pk_mul_f32 {vr(T+r,2)}, {vr(ACC+r,2)}, {vr(ACC+r,2)}")
        for r in range(0, 16, 2): s(f"v_pk_fma_f32 {vr(T+r,2)}, {vr(T+r,2)}, s[56:57], v[56:57]")
        for r in range(0, 16, 2): s(f"v_pk_mul_f32 {vr(T+r,2)}, {vr(T+r,2)}, {vr(ACC+r,2)}")
        for r in range(16): s(f"v_exp_f32 v{T+r}, v{T+r}")
        for r in range(0, 16, 2): s(f"v_pk_add_f32 {vr(T+r,2)}, {vr(T+r,2)}, s[60:61]")
        for r in range(16): s(f"v_rcp_f32 v{T+r}, v{T+r}")
        for r in range(0, 16, 2): s(f"v_pk_mul_f32 {vr(T+r,2)}, {vr(T+r,2)}, {vr(ACC+r,2)}")
        for q in range(8): s(f"v_cvt_pk_bf16_f32 v{40+q}, v{T+2*q}, v{T+2*q+1}")
        s(f"""s_mul_i32 s54, s51, {4*10240}
        s_lshl_b32 s57, s52, 9
        s_add_u32 s54, s54, s57
        s_add_u32 s54, s54, {UI}
        s_add_u32 s57, s54, 20480
        buffer_store_dwordx4 v[40:43], v28, {srd(sWS)}, s54 offen sc1
        buffer_store_dwordx4 v[44:47], v28, {srd(sWS)}, s57 offen sc1
        s_mul_i32 s54, s{sD1}, 12
        s_add_u32 s54, s54, s{sF1}
        s_lshl_b32 s54, s54, 2
        s_add_u32 s54, s54, s50
        s_mul_i32 s54, s54, {FSP}
        s_add_u32 s54, s54, {F_U}""")
        s.arrive(SY_CU, 4, "s54", 30, 31)
        s.gwait()
        s(f"s_branch {s.ln(fin)}")
        s.lab(skip)
        for _ in range(7): s("s_barrier")
        s("s_setprio 3")
        if s.opt.get('ldstamp'): s.end_wave()
        s.lds_spin(164, s.opt.get('skipw', 4), 165, off=SY_PA-SYN, sleep=8)
        s.lab(fin)
        s.pfwo()
        s.stamp(5)
        if s.opt.get('dbgx') or s.opt.get('ldstamp'): s.end_wave()

    def gemm2(s, sJ):
        ACC, UB, BB = 64, (24, 44), 144
        vW, vU, aT = 13, 14, 15
        sST, sDT, sOW, sOU, sTK = 62, 63, 64, 65, 66
        NS = 3
        def dW(t):
            L = []
            for n in range(4):
                pre = f"s_add_u32 m0, s49, {(t%NS)*4096}\ns_nop 0\n" if n == 0 else ""
                inc = 32768-1024 if n < 3 else 32768+3*1024
                L.append(pre + f"buffer_load_dwordx4 v{vW}, {srd(sW2)}, s{sOW} offen offset:{1024*n} lds\ns_add_u32 s{sOW}, s{sOW}, {inc}")
            return L
        def lU(t):
            L = [f"buffer_load_dwordx4 {vr(UB[t&1]+4*di,4)}, v{vU}, {srd(sWS)}, s{sOU} offen offset:{256*di} sc1" for di in range(5)]
            L[4] += f"\ns_add_u32 s{sOU}, s{sOU}, 40960"
            return L
        def rd(t, si):
            o = (t % NS)*4096
            return f"ds_read_b64_tr_b16 {vr(BB+4*si,2)}, v{aT+si} offset:{o}\nds_read_b64_tr_b16 {vr(BB+4*si+2,2)}, v{aT+si} offset:{o+1024}"
        def mf(t, si, di):
            d = vr(ACC+20*si+4*di,4)
            if s.opt.get('gnomf'): return "s_nop 3"
            return f"v_mfma_f32_16x16x32_bf16 {d}, {vr(UB[t&1]+4*di,4)}, {vr(BB+4*si,4)}, {d if t else 0}"
        def wo_dma(n0, n1):
            s(f"""s_mul_i32 s56, s{sJ}, {160*1280}
            s_mul_i32 s54, s{sDT}, 160
            s_add_u32 s56, s56, s54
            s_add_u32 s56, s56, {(n0//5)*32*1280}
            s_add_u32 m0, s49, {n0*1024}""")
            for n in range(n0, n1):
                s(f"s_nop 0\nbuffer_load_dwordx4 v{1+n%5}, {srd(sWO)}, s56 offen lds\ns_add_u32 m0, m0, 1024")
                if n % 5 == 4: s(f"s_add_u32 s56, s56, {32*1280}")
        s(f"s_setprio {s.opt.get('gp2', 0)}")
        for t in range(3):
            for l in dW(t): s(l)
        early = s.opt.get('woe', 1)
        if early: wo_dma(13, 25)
        s(f"""s_setprio 3
        s_mul_i32 s55, s{sDT}, 80
        s_lshr_b32 s54, s55, 7
        s_mul_i32 s54, s54, {48*FSP}
        s_add_u32 s54, s54, {F_U}
        s_add_u32 s55, s55, 79
        s_lshr_b32 s55, s55, 7
        s_mul_i32 s55, s55, {48*FSP}
        s_add_u32 s55, s55, {F_U}
        s_lshl_b32 s57, s{sST}, 5
        s_add_u32 s57, s57, {F_H}
        v_min_u32 v24, 47, v0
        v_mul_u32_u24 v24, {FSP}, v24
        v_and_b32 v25, 7, v0
        v_lshlrev_b32 v25, 2, v25""")
        s.gpoll([], [(26,1,24,sWS,"s54",0),(27,1,24,sWS,"s55",0),(28,1,25,sWS,"s57",0)], SY_UOK, 8)
        s(f"""s_lshl_b32 s54, s{sTK}, 2
        s_add_u32 s54, s54, {GI}
        v_and_b32 v22, 15, v0
        v_lshlrev_b32 v22, 2, v22
        s_setprio {s.opt.get('gp2', 0)}
        buffer_load_dword v22, v22, {srd(sWS)}, s54 offen sc1""")
        s.stamp(6)
        for t in range(2):
            for l in lU(t): s(l)
        s("s_waitcnt vmcnt(10)")
        for si in range(4): s(rd(0, si))
        NT = 12
        for t in range(NT):
            if t == s.opt.get('gp2t', 99): s(f"s_setprio {s.opt.get('gp2b', 0)}")
            pc0 = s.opt.get('pc0', 6)
            if pc0 and t > 0:
                s("s_setprio 3")
                s.lds_spin(164, min(17, pc0 + (t*s.opt.get('pcn', 12))//12), 165, off=SY_PA-SYN, sleep=4)
                s(f"s_setprio {s.opt.get('gp2', 0)}")
            if t == 0: s("s_waitcnt vmcnt(5)")
            else:
                younger = (4 if t+2 < NT else 0) + (5 if t+1 < NT else 0)
                s(f"s_waitcnt vmcnt({younger})")
            W = dW(t+3) if t+3 < NT and not s.opt.get('gnold') else [""]*4
            U = lU(t+2) if t+2 < NT and not s.opt.get('gnold') else [""]*5
            for si in range(4):
                s(f"s_waitcnt lgkmcnt({6 if t+1 < NT else 2*(3-si)})")
                for di in range(5):
                    s(mf(t, si, di))
                    if si == 3 and di < 4: s(W[di])
                if t+1 < NT: s(rd(t+1, si))
            for l in U: s(l)
        s.stamp(7)
        if s.opt.get('dbgy') == 1: s.end_wave()
        s("s_setprio 3")
        if s.opt.get('ehold', 18):
            s(f"v_and_b32 v48, 7, v0\nv_lshlrev_b32 v48, 2, v48\nv_add_u32 v48, {SY_PA}, v48")
            s.lds_spin(48, s.opt.get('ehold', 18), 165, sleep=8)
        s.xaddr(sJ, 48, 49)
        s(f"s_mul_i32 s54, s{sJ}, 3072\ns_add_u32 s54, s54, {LNS}\nv_lshlrev_b32 v56, 4, v0\nv_add_u32 v52, s54, v56")
        for n in range(1, 4):
            s(f"s_xor_b32 s54, s{sJ}, {n}\ns_mul_i32 s54, s54, 3072\ns_add_u32 s54, s54, {LNS + (n-1)*1024}\nv_add_u32 v{52+n}, s54, v56")
        pace = s.opt.get('pace2', 0)
        for n in range(1, 4):
            for q in range(5):
                if q < 4: s(f"ds_write_b128 v48, {vr(ACC+20*n+4*q,4)} offset:{(n-1)*4096+1024*q}")
                else: s(f"ds_write_b128 v52, {vr(ACC+20*n+4*q,4)} offset:{(n-1)*1024}")
                if pace: s(f"s_sleep {pace}")
        s.gpost(); s.gwait()
        for n in range(1, 4):
            for q in range(5):
                if q < 4: s(f"ds_read_b128 {vr(ACC+20*n+4*q,4)}, v{48+n} offset:{1024*q}")
                else: s(f"ds_read_b128 {vr(ACC+20*n+4*q,4)}, v{52+n}")
        s("v_sub_f32 v22, 1.0, v22\nv_mul_f32 v20, v20, v22\nv_mov_b32 v23, v22\nv_mov_b32 v21, v20")
        s.gpost()
        AC = 24
        s.gwait()
        wo_dma(0, 13 if early else 25)
        for r in range(0, 20, 2):
            s(f"v_pk_add_f32 {vr(ACC+r,2)}, {vr(ACC+r,2)}, {vr(ACC+20+r,2)}")
            s(f"v_pk_add_f32 {vr(ACC+40+r,2)}, {vr(ACC+40+r,2)}, {vr(ACC+60+r,2)}")
        for r in range(0, 20, 2): s(f"v_pk_add_f32 {vr(ACC+r,2)}, {vr(ACC+r,2)}, {vr(ACC+40+r,2)}")
        for r in range(0, 20, 2): s(f"v_pk_fma_f32 {vr(AC+r,2)}, {vr(ACC+r,2)}, v[22:23], v[20:21]")
        s(f"""s_lshl_b32 s56, s{sTK}, 4
        s_add_u32 s56, s56, {OI}
        s_waitcnt vmcnt(0)""")
        s.gpost(); s.gwait()
        OB = 64; WB = (44, 144)
        def rdo(t):
            b = WB[t & 1]; L = []
            for di in range(5):
                if t < 16:
                    a = 6 if t < 8 else 7; o = (t % 8)*6400 + 32*di
                    L.append(f"ds_read_b64_tr_b16 {vr(b+4*di,2)}, v{a} offset:{o}\nds_read_b64_tr_b16 {vr(b+4*di+2,2)}, v{a} offset:{o+1280}")
                else:
                    tp = t-16; a = 8 if tp < 2 else 10; o = (tp % 2)*25600 + 32*di
                    L.append(f"ds_read_b64_tr_b16 {vr(b+4*di,2)}, v{a} offset:{o}\nds_read_b64_tr_b16 {vr(b+4*di+2,2)}, v{a+1} offset:{o}")
            return L
        for l in rdo(0): s(l)
        if True:
            s(f"""s_lshr_b32 s54, s{sTK}, 8
            s_mul_i32 s54, s54, {32*FSP}
            s_add_u32 s54, s54, {F_O}
            v_and_b32 v1, 31, v0
            v_mul_u32_u24 v1, {FSP}, v1""")
            s.gpoll([(SY_CO, 8)], [(2,1,1,sWS,"s54",0)], SY_OOK, s.opt.get('psl', 4), lsl=2)
        s.stamp(8)
        if s.opt.get('dbgy') == 2: s.end_wave()
        def lO(t): return f"buffer_load_dwordx4 {vr(OB+4*t,4)}, v12, {srd(sWS)}, s56 offen sc1\ns_add_u32 s56, s56, 131072"
        PD = s.opt.get('opd', 8)
        for t in range(PD): s(lO(t))
        for t in range(20):
            R = rdo(t+1) if t+1 < 20 else [""]*5
            s(f"s_waitcnt vmcnt({min(PD-1, 19-t)}) lgkmcnt(0)")
            for di in range(5):
                d = vr(AC+4*di,4)
                s(f"v_mfma_f32_16x16x32_bf16 {d}, {vr(WB[t&1]+4*di,4)}, {vr(OB+4*t,4)}, {d}")
                s(R[di])
            if t+PD < 20: s(lO(t+PD))
        s(f"s_mul_i32 s54, s{sDT}, 160\ns_nop 7")
        for di in range(5):
            s(f"""v_cvt_pk_bf16_f32 v{2+2*di}, v{AC+4*di}, v{AC+4*di+1}
            v_cvt_pk_bf16_f32 v{3+2*di}, v{AC+4*di+2}, v{AC+4*di+3}
            buffer_store_dwordx2 {vr(2+2*di,2)}, v19, {srd(sOUT)}, s54 offen offset:{32*di}""")

    def text(s):
        s.prologue()
        head = f".globl {s.k}\n.p2align 8\n.type {s.k},@function\n{s.k}:\n"
        return head + "\n".join(s.L) + "\n"

def kd(k):
    return f""".amdhsa_kernel {k}
  .amdhsa_next_free_vgpr 168
  .amdhsa_next_free_sgpr 102
  .amdhsa_accum_offset 168
  .amdhsa_group_segment_fixed_size 0
  .amdhsa_kernarg_size 96
  .amdhsa_user_sgpr_count 2
  .amdhsa_user_sgpr_kernarg_segment_ptr 1
  .amdhsa_system_sgpr_workgroup_id_x 1
.end_amdhsa_kernel
"""

def build(mode="fused", stamps=False, opt=None):
    k = NAME + "_kernel"
    out = f"; @launch grid=(256,1,1) block=(768,1,1) lds={LDS_BYTES}\n"
    out += '.amdgcn_target "amdgcn-amd-amdhsa--gfx950"\n.text\ncode_begin:\n'
    out += Gen(k, stamps, opt).text()
    out += 'code_end:\n.section .rodata,"a"\n.p2align 6\n' + kd(k)
    return out

if __name__ == "__main__":
    mode = sys.argv[1] if len(sys.argv) > 1 else "fused"
    stamps = "stamp" in sys.argv[2]
    opt = {}
    for a in sys.argv[3:]:
        k, v = a.split("="); opt[k] = int(v)
    open(sys.argv[2], "w").write(build(mode, stamps, opt))
```

```python
import sys, math, struct

NAME = "gated_mix__mha_block__mixer_token_mlp__prompt"

QI = 0x000000
KI = 0x280000
VI = 0x500000
HI = 0x780000
UI = 0xA00000
OI = 0xC00000
GI = 0xE80000
FL = 0xE90000
FSP = int(__import__('os').environ.get('FSP', 64))
F_H = FL
F_Q = FL + 256*FSP
F_P = FL + 0x400
F_U = FL + 512*FSP
F_O = FL + 768*FSP
FL_BYTES = 1792*FSP
STAMP = 0xF00000
PI = 0x1000000
WS_BYTES = 0x1800000

GREG = 25600
KVB = 102400
KVS = 11520
LNS = 148480
SYN = 163584
SY_PA = SYN
SY_PG = SYN + 32
SY_QOK = SYN + 52
SY_POK = SYN + 56
SY_UOK = SYN + 60
SY_OOK = SYN + 64
SY_CQ = SYN + 68
SY_CU = SYN + 72
SY_CO = SYN + 76
SY_CP = SYN + 80
DUMMY = 163328
LDS_BYTES = 163840

SPIN_LIMIT = 200000

def fbits(x):
    return "0x%08x" % struct.unpack("<I", struct.pack("<f", x))[0]

sX, sWQ, sWO, sW1, sW2, sWS, sOUT, sDBG = 4, 8, 12, 16, 20, 24, 28, 32
sB1, sB2, sGW = 36, 38, 40
sW, sXC, sI = 42, 43, 44
sSPIN = 45
sRT, sCT = 46, 47
sN1, sD1, sF1 = 3, 100, 101
def srd(n): return f"s[{n}:{n+3}]"
def vr(a, n): return f"v[{a}:{a+n-1}]" if n > 1 else f"v{a}"

class Gen:
    def __init__(s, kname, stamps=False, opt=None):
        s.L = []
        s.k = kname
        s.stamps = stamps
        s.uid = 0
        s.cold = []
        s.opt = opt or {}
    def __call__(s, t):
        for l in t.split("\n"):
            l = l.strip()
            if l: s.L.append("    " + l)
    def lab(s, n):
        s.L.append(f"{s.k}_{n}:")
    def ln(s, n):
        return f"{s.k}_{n}"
    def new(s, base):
        s.uid += 1
        return f"{base}{s.uid}"
    def stamp(s, i):
        if s.stamps:
            s(f"s_memrealtime s[76:77]\ns_memtime s[78:79]\ns_waitcnt lgkmcnt(0)\ns_mov_b32 s{80+2*i}, s76\ns_mov_b32 s{81+2*i}, s78")
    def end_wave(s):
        if 'probe' in s.opt:
            k = s.opt['probe'] % 10; w = s.opt['probe'] // 10
            s.stamp(9)
            lp, nx = s.new("pr"), s.new("pr")
            s(f"""s_cmp_lg_u32 s2, {s.opt.get('pwg', 100)}
            s_cbranch_scc1 {s.ln(nx)}
            s_cmp_lg_u32 s{sW}, {w}
            s_cbranch_scc1 {s.ln(nx)}
            s_add_u32 s46, s{80+2*k}, 10000""")
            s.lab(lp)
            s(f"""s_memrealtime s[76:77]
            s_waitcnt lgkmcnt(0)
            s_sub_u32 s47, s76, s46
            s_cmp_lt_i32 s47, 0
            s_cbranch_scc1 {s.ln(lp)}""")
            s.lab(nx)
            s("s_endpgm")
            return
        if s.stamps:
            s.stamp(9)
            s(f"s_mul_i32 s46, s2, 12\ns_add_u32 s46, s46, s{sW}\ns_lshl_b32 s46, s46, 7\ns_add_u32 s46, s46, {STAMP}")
            s("s_mov_b64 exec, -1\nv_lshlrev_b32 v1, 2, v0\nv_mov_b32 v2, 0")
            for i in range(20): s(f"v_writelane_b32 v2, s{80+i}, {i}")
            s(f"s_mov_b32 exec_hi, 0\nbuffer_store_dword v2, v1, {srd(sWS)}, s46 offen")
        s("s_endpgm")

    def lds_spin(s, vaddr, need, vtmp, off=0, sleep=1):
        a, b = s.new("spin"), s.new("spind")
        s(f"s_mov_b32 s{sSPIN}, {SPIN_LIMIT*4}")
        s.lab(a)
        s(f"""ds_read_b32 v{vtmp}, v{vaddr} offset:{off}
        s_waitcnt lgkmcnt(0)
        v_cmp_gt_u32 vcc, {need}, v{vtmp}
        s_cbranch_vccz {s.ln(b)}
        s_sleep {sleep}
        s_sub_u32 s{sSPIN}, s{sSPIN}, 1
        s_cbranch_scc0 {s.ln(a)}""")
        s.lab(b)

    def spin_ool(s, vaddr, need, vtmp, off=0, sleep=0):
        out, back = s.new("ool"), s.new("back")
        s(f"s_cbranch_vccnz {s.ln(out)}")
        s.lab(back)
        keep = s.L; s.L = []
        s.lab(out)
        s.lds_spin(vaddr, need, vtmp, off=off, sleep=sleep)
        s(f"s_branch {s.ln(back)}")
        s.cold += s.L; s.L = keep
    def flush_cold(s):
        s.L += s.cold; s.cold = []

    def poll_issue(s, loads):
        regs = []
        for (vd, n, vo, r, so, imm) in loads:
            sfx = {1: "dword", 2: "dwordx2", 4: "dwordx4"}[n]
            s(f"buffer_load_{sfx} {vr(vd,n)}, v{vo}, {srd(r)}, {so} offen offset:{imm} sc1")
            regs += list(range(vd, vd+n))
        return regs
    def poll(s, loads, sleep=2, pre=None):
        a, b, c = s.new("poll"), s.new("polld"), s.new("pollc")
        s(f"s_mov_b32 s{sSPIN}, {SPIN_LIMIT}")
        if pre is not None: s(f"s_waitcnt vmcnt({pre})\ns_branch {s.ln(c)}")
        s.lab(a)
        regs = s.poll_issue(loads)
        s("s_waitcnt vmcnt(0)")
        s.lab(c)
        for q in regs[1:]:
            s(f"v_min_u32 v{regs[0]}, v{regs[0]}, v{q}")
        s(f"""v_cmp_eq_u32 vcc, 0, v{regs[0]}
        s_cbranch_vccz {s.ln(b)}
        s_sleep {sleep}
        s_sub_u32 s{sSPIN}, s{sSPIN}, 1
        s_cbranch_scc0 {s.ln(a)}""")
        s.lab(b)

    def set_flag(s, soff, va, vb):
        s(f"""s_mov_b64 exec, 1
        v_mov_b32 v{va}, 0
        v_mov_b32 v{vb}, 1
        buffer_store_dword v{vb}, v{va}, {srd(sWS)}, {soff} offen sc1
        s_mov_b64 exec, -1""")

    def arrive(s, cnt, n, soff, va, vb):
        nx = s.new("arr")
        s(f"""s_mov_b64 exec, 1
        v_mov_b32 v{va}, {cnt}
        v_mov_b32 v{vb}, 1
        s_waitcnt vmcnt(0)
        ds_add_rtn_u32 v{va}, v{va}, v{vb}
        s_waitcnt lgkmcnt(0)
        v_cmp_eq_u32 vcc, {n-1}, v{va}
        v_mov_b32 v{va}, 0
        s_cbranch_vccz {s.ln(nx)}
        buffer_store_dword v{vb}, v{va}, {srd(sWS)}, {soff} offen sc1""")
        s.lab(nx)
        s("s_mov_b64 exec, -1")

    def lds_set(s, addr, val, va, vb):
        s(f"""v_mov_b32 v{va}, {addr}
        v_mov_b32 v{vb}, {val}
        ds_write_b32 v{va}, v{vb}""")

    def kwait(s):
        s("s_waitcnt lgkmcnt(0)")
        if s.stamps: s("s_mov_b32 s80, s76\ns_mov_b32 s81, s78")

    def prologue(s):
        if s.stamps: s("s_memrealtime s[76:77]\ns_memtime s[78:79]")
        s(f"s_cmp_ge_u32 s2, 256\ns_cbranch_scc1 {s.ln('exit')}")
        for reg, off in ((sX,0),(sWS,88)):
            s(f"s_load_dwordx2 s[{reg}:{reg+1}], s[0:1], {off}")
        s(f"s_lshr_b32 s{sI}, s2, 3")
        if s.opt.get('cpf', 1): s.code_prefetch()
        for reg, off in ((sWQ,8),(sGW,64),(sDBG,80),(sW1,32),(sW2,48),(sWO,16),(sOUT,72),(sB1,40),(sB2,56)):
            s(f"s_load_dwordx2 s[{reg}:{reg+1}], s[0:1], {off}")
        s("v_lshrrev_b32 v1, 6, v0\nv_and_b32 v0, 63, v0")
        s(f"v_readfirstlane_b32 s{sW}, v1")
        s(f"s_mov_b32 s{sX+3}, 0x00020000")
        for reg, n in ((sX,2621440),(sWQ,2457600),(sWO,819200),(sW1,6291456),(sW2,f"s{sW1+2}"),(sWS,WS_BYTES),(sOUT,f"s{sX+2}"),(sDBG,256)):
            s(f"s_mov_b32 s{reg+2}, {n}")
            if reg != sX: s(f"s_mov_b32 s{reg+3}, s{sX+3}")
        s(f"s_and_b32 s{sXC}, s2, 7")
        if s.stamps:
            for i in range(1, 10): s(f"s_mov_b32 s{80+2*i}, 0")
        s(f"""s_and_b32 s{sRT}, s{sXC}, 3
        s_lshl_b32 s{sRT}, s{sRT}, 2
        s_and_b32 s48, s{sI}, 3
        s_add_u32 s{sRT}, s{sRT}, s48
        s_lshr_b32 s49, s{sXC}, 2
        s_lshl_b32 s{sCT}, s49, 3
        s_lshr_b32 s48, s{sI}, 2
        s_add_u32 s{sCT}, s{sCT}, s48
        s_lshl_b32 s{sN1}, s49, 5
        s_add_u32 s{sN1}, s{sN1}, s{sI}
        s_min_u32 s{sN1}, s{sN1}, 59
        s_mul_i32 s{sF1}, s{sN1}, 52
        s_lshr_b32 s{sF1}, s{sF1}, 8
        s_mul_i32 s48, s{sF1}, 5
        s_sub_u32 s{sD1}, s{sN1}, s48
        s_cmp_ge_u32 s{sW}, 8
        s_cbranch_scc1 {s.ln('grole')}
        s_cmp_eq_u32 s{sCT}, 15
        s_cbranch_scc1 {s.ln('idle')}
        s_cmp_lt_u32 s{sW}, 4
        s_cbranch_scc1 {s.ln('qkv_comp')}""")
        s.loader()
        s(f"s_branch {s.ln('att')}")
        s.lab("idle")
        s.kwait()
        nx = s.new("idle")
        s(f"""s_cmp_lg_u32 s{sW}, 0
        s_cbranch_scc1 {s.ln(nx)}
        v_lshlrev_b32 v1, 4, v0
        v_mov_b32 v4, 0
        v_mov_b32 v5, 0
        v_mov_b32 v6, 0
        v_mov_b32 v7, 0
        s_mul_i32 s52, s{sRT}, {FL_BYTES//16}
        s_add_u32 s52, s52, {FL}""")
        for n in range(FL_BYTES//16384):
            s(f"buffer_store_dwordx4 v[4:7], v1, {srd(sWS)}, s52 offen offset:{(n&3)*1024} sc1")
            if n & 3 == 3: s("s_add_u32 s52, s52, 4096")
        s(f"""s_lshl_b32 s52, s{sRT}, 2
        s_mov_b64 exec, 1
        s_waitcnt vmcnt(0)
        v_mov_b32 v5, 1
        buffer_store_dword v5, v4, {srd(sDBG)}, s52 offen sc1
        s_mov_b64 exec, -1""")
        s.lab(nx)
        s.att_vsetup()
        for _ in range(16): s("s_barrier")
        s(f"s_cmp_lt_u32 s{sW}, 4\ns_cbranch_scc1 {s.ln('att')}\ns_barrier\ns_branch {s.ln('att')}")
        s.lab("qkv_comp")
        s.qkv_compute()
        s.lab("att")
        s.attention()
        s.end_wave()
        s.flush_cold()
        s.att_slow()
        s.lab("grole2")
        s.grole()
        s.end_wave()
        s.lab("exit")
        s("s_endpgm")

    def code_prefetch(s):
        here, nx = s.new("pc"), s.new("pc")
        s("s_getpc_b64 s[50:51]")
        s.lab(here)
        s(f"""s_lshl_b32 s52, s{sI}, 3
        v_cmp_gt_u32 vcc, 64, v0
        v_add_u32 v1, s52, v0
        s_movk_i32 s54, 72
        v_cmp_gt_u32 s[52:53], s54, v0
        v_cndmask_b32 v1, v1, v0, vcc
        v_lshlrev_b32 v1, 7, v1
        v_min_u32 v1, code_end-{s.ln(here)}-4, v1
        s_mov_b64 exec, s[52:53]
        s_cbranch_execz {s.ln(nx)}
        global_load_dword v165, v1, s[50:51]""")
        s.lab(nx)
        s("s_mov_b64 exec, -1")

    def loader(s):
        if s.opt.get('lprio'): s(f"s_setprio {s.opt['lprio']}")
        s(f"""s_sub_u32 s48, s{sW}, 4
        v_lshrrev_b32 v32, 3, v0
        s_lshl_b32 s49, s48, 5
        v_add_u32 v32, s49, v32
        v_mul_u32_u24 v32, 1280, v32
        v_lshrrev_b32 v33, 4, v0
        v_and_b32 v34, 7, v0
        v_xor_b32 v34, v34, v33
        v_xor_b32 v35, 4, v34
        v_lshl_add_u32 v39, v34, 4, v32
        v_lshl_add_u32 v40, v35, 4, v32
        v_add_u32 v40, {10240-1024}, v40
        v_add_u32 v41, {2*(10240-1024)}, v39
        v_add_u32 v42, {2*(10240-1024)}, v40
        s_lshl_b32 s49, s48, 4
        v_add_u32 v32, s49, v33
        v_mul_u32_u24 v32, 3840, v32
        v_lshlrev_b32 v33, 2, v33
        v_and_b32 v34, 15, v0
        v_xor_b32 v34, v34, v33
        v_lshl_add_u32 v43, v34, 4, v32
        v_add_u32 v44, {15360-1024}, v43
        v_add_u32 v45, {2*(15360-1024)}, v43
        v_add_u32 v46, {3*(15360-1024)}, v43
        s_mul_i32 s50, s{sRT}, {128*1280}
        s_lshl_b32 s51, s{sCT}, 8
        s_lshl_b32 s52, s48, 12""")
        nt = " nt" if s.opt.get('qnt') else ""
        rot = s.opt.get('qrot', 2)
        if rot in (1, 2):
            s(f"""s_and_b32 s53, s{sI}, 3
            s_mul_i32 s53, s53, 5
            s_lshr_b32 s53, s53, 1
            s_lshr_b32 s54, s{sI}, 2
            s_add_u32 s53, s53, s54""")
            if rot == 2: s(f"s_and_b32 s54, s{sXC}, 3\ns_add_u32 s53, s53, s54")
            s("s_cmp_ge_u32 s53, 10\ns_cselect_b32 s54, 10, 0\ns_sub_u32 s53, s53, s54")
        elif rot == 0:
            s("s_mov_b32 s53, 0")
        else:
            T = {3: ["0412385679", "1250349678", "2306145789", "3012745689"],
                 4: ["0123456789", "1230567498", "2301674589", "3012745698"],
                 5: ["0213546879", "1032457698", "0132547689", "1023456798"],
                 6: ["0216354879", "1032745698", "0132485679", "1023549678"],
                 7: ["0123456789", "1032547698", "0123456789", "1032547698"],
                 8: ["0142356879", "1023547698", "0213465789", "1302457689"]}[rot]
            def enc(o):
                v = 0
                for j, ch in enumerate(o): v |= int(ch) << (4*j)
                return v
            s(f"""s_lshr_b32 s54, s{sI}, 2
            s_add_u32 s54, s54, s{sI}
            s_bitcmp1_b32 s54, 0
            s_cselect_b32 s56, {enc(T[1]) & 0xffffffff}, {0}
            s_cselect_b32 s57, {enc(T[1]) >> 32}, {0}
            s_cselect_b32 s58, {enc(T[3]) & 0xffffffff}, {0}
            s_cselect_b32 s59, {enc(T[3]) >> 32}, {0}
            s_cselect_b32 s60, 0, {enc(T[0]) & 0xffffffff}
            s_cselect_b32 s61, 0, {enc(T[0]) >> 32}
            s_cselect_b32 s62, 0, {enc(T[2]) & 0xffffffff}
            s_cselect_b32 s63, 0, {enc(T[2]) >> 32}
            s_or_b64 s[56:57], s[56:57], s[60:61]
            s_or_b64 s[58:59], s[58:59], s[62:63]
            s_bitcmp1_b32 s54, 1
            s_cselect_b64 s[56:57], s[58:59], s[56:57]
            s_and_b32 s53, s56, 15""")
        def issue(t):
            s(f"""s_lshl_b32 s54, s53, 7
            s_add_u32 m0, s52, {(t&3)*32768}
            s_add_u32 s54, s54, s50""")
            for n in range(4):
                s(f"buffer_load_dwordx4 v{39+n}, {srd(sX)}, s54 offen offset:{1024*n}{nt} lds")
            s(f"""s_mul_i32 s54, s53, {64*3840}
            s_add_u32 m0, s52, {(t&3)*32768+16384}
            s_add_u32 s54, s54, s51""")
            for n in range(4):
                s(f"buffer_load_dwordx4 v{43+n}, {srd(sWQ)}, s54 offen offset:{1024*n}{nt} lds")
            if rot < 3: s("s_add_u32 s53, s53, 1\ns_cmp_eq_u32 s53, 10\ns_cselect_b32 s53, 0, s53")
            else: s("s_lshr_b64 s[56:57], s[56:57], 4\ns_and_b32 s53, s56, 15")
        def issue1(t):
            s(f"""s_mul_i32 s54, s53, {64*1280}
            s_add_u32 m0, s52, {(t&3)*32768}
            s_add_u32 s54, s54, s50""")
            for n in range(4):
                s(f"buffer_load_dwordx4 v{47+n}, {srd(sWS)}, s54 offen offset:{1024*n} sc1 lds")
            s(f"""s_mul_i32 s54, s53, {64*3072}
            s_add_u32 m0, s52, {(t&3)*32768+16384}
            s_add_u32 s54, s54, s51""")
            for n in range(4):
                s(f"buffer_load_dwordx4 v{51+n}, {srd(sW1)}, s54 offen offset:{1024*n} lds")
            s("s_add_u32 s53, s53, 1\ns_and_b32 s53, s53, 7")
        pfq = s.opt.get('pfq', 1)
        tpf = s.opt.get('tpf', 1)
        stag = s.opt.get('stag', 2)
        pfts = [tpf + k for k in range({0: 1, 1: 4}.get(stag, s.opt.get('nsl', 6)))] if pfq else []
        th = s.opt.get('th', 7)
        ops = []
        s.kwait()
        if s.opt.get('b0st'): s.stamp(3)
        issue(0)
        if s.opt.get('b0st'): s.stamp(4)
        npre = s.opt.get('npre', 1)
        ops += [('s', 0)]
        if npre == 2: issue(1); ops += [('s', 1)]
        if s.opt.get('b0st'): s.stamp(5)
        s(f"""v_lshrrev_b32 v33, 4, v0
        v_add_u32 v33, s49, v33
        v_mul_u32_u24 v32, 3072, v33
        v_lshl_add_u32 v51, v34, 4, v32
        v_add_u32 v52, {12288-1024}, v51
        v_add_u32 v53, {2*(12288-1024)}, v51
        v_add_u32 v54, {3*(12288-1024)}, v51
        v_mul_u32_u24 v32, 1280, v33
        v_lshl_add_u32 v47, v34, 4, v32
        v_add_u32 v48, 4096, v47
        v_add_u32 v49, 8192, v47
        v_add_u32 v50, 12288, v47
        s_and_b32 s66, s{sXC}, 3
        s_lshl_b32 s55, s66, 8
        s_add_u32 s55, s55, {F_H}
        v_lshlrev_b32 v33, 2, v0
        s_lshr_b32 s67, s{sI}, 2
        s_add_u32 s67, s67, s{sI}
        s_and_b32 s67, s67, 3
        s_cmp_ge_u32 s{sXC}, 4
        s_cselect_b32 s60, 12, 14
        s_cselect_b32 s61, 5, 4
        s_mov_b32 s62, {-(-65536//14)}
        s_cmov_b32 s62, {-(-65536//12)}
        s_cselect_b32 s63, 1536, 0
        s_mul_i32 s64, s60, s61
        s_sub_u32 s64, s64, 1
        v_min_u32 v32, s64, v0
        v_mul_u32_u24 v35, s62, v32
        v_lshrrev_b32 v35, 16, v35
        v_mul_u32_u24 v36, s60, v35
        v_sub_u32 v32, v32, v36
        s_lshl_b32 s64, s{sI}, 2
        s_add_u32 s64, s64, s48
        s_mul_i32 s64, s64, s61
        v_add_u32 v35, s64, v35
        v_min_u32 v35, 511, v35
        v_mul_u32_u24 v35, 3072, v35
        v_lshl_add_u32 v32, v32, 7, v35
        s_mul_i32 s64, s66, {512*3072}
        s_add_u32 s64, s64, s63""")
        if stag == 2: s(f"s_mul_i32 s67, s{sI}, s61\ns_mul_i32 s67, s67, {s.opt.get('nsl', 6)}\ns_lshr_b32 s67, s67, 7")
        over = s.new("over")
        s(f"s_branch {s.ln(over)}")
        s.lab("grole")
        s.gfront()
        s(f"s_branch {s.ln('grole2')}")
        s.lab(over)
        s.att_vsetup()
        if npre == 1: issue(1); ops += [('s', 1)]
        if s.opt.get('b0st'): s.stamp(6)
        hl = [(34,1,33,sWS,"s55",0)]
        def younger(tag):
            k = ops.index(tag)
            return sum(8 if o[0] == 's' else 1 for o in ops[k+1:])
        for t in range(17):
            s(f"s_waitcnt vmcnt({younger(('s', t))})")
            if s.opt.get('ldstamp') and s.opt['ldstamp'] <= t < s.opt['ldstamp']+6: s.stamp(3 + t - s.opt['ldstamp'])
            if s.opt.get('b0st') and t == 0: s.stamp(7)
            s("s_barrier")
            if t == 0: s.stamp(1)
            if t == 8:
                if not s.opt.get('noln'): s.poll(hl, sleep=8, pre=younger(('h', th)))
                s(f"""s_mul_i32 s50, s66, {512*1280}
                s_lshl_b32 s54, s{sD1}, 8
                s_add_u32 s50, s50, s54
                s_add_u32 s50, s50, {HI}
                s_mul_i32 s51, s66, {512*3072}
                s_lshl_b32 s54, s{sF1}, 8
                s_add_u32 s51, s51, s54""")
                r1 = s.opt.get('g1rot', 0)
                if r1 == 0: s("s_mov_b32 s53, 0")
                if r1 == 1: s(f"s_and_b32 s53, s{sF1}, 7")
                if r1 == 2: s(f"s_lshl_b32 s53, s{sD1}, 1\ns_add_u32 s53, s53, s{sF1}\ns_and_b32 s53, s53, 7")
            if t == th:
                s.poll_issue(hl); ops.append(('h', t))
            if t+2 <= 9: issue(t+2); ops.append(('s', t+2))
            elif t+2 <= 17: issue1(t+2); ops.append(('s', t+2))
            if t in pfts:
                if stag: s(f"s_cmp_eq_u32 s67, {t - tpf}\ns_cselect_b32 s54, s64, 0x1000000")
                s(f"buffer_load_dword v165, v32, {srd(sW1)}, s{54 if stag else 64} offen{' nt' if s.opt.get('pfnt') else ''}")
                ops.append(('x', t))
                if s.opt.get('pfnt') == 2:
                    s(f"buffer_load_dword v166, v32, {srd(sW1)}, s{54 if stag else 64} offen sc1"); ops.append(('y', t))

    def gemm_ops(s, xaddr, aW):
        ACC, F = 64, (32, 48, 128, 144)
        def tr(b, a, o): return [f"ds_read_b64_tr_b16 {vr(b,2)}, v{a} offset:{o}", f"ds_read_b64_tr_b16 {vr(b+2,2)}, v{a} offset:{o+1024}"]
        def reads(buf, sl, ks):
            b = F[buf]; o = sl*32768
            L = []
            for i in range(2):
                if isinstance(xaddr, int): L += tr(b+4*i, xaddr+i, o+ks*4096)
                else:
                    a0, o0 = xaddr(i, ks); L.append(f"ds_read_b128 {vr(b+4*i,4)}, v{a0} offset:{o+o0}")
                L += tr(b+8+4*i, aW+i, o+ks*4096)
            return L
        def mf(buf, i, j, isv):
            b = F[buf]; xa = vr(b+4*i,4); wa = vr(b+8+4*j,4); d = vr(ACC+16*(2*i+j),16)
            return f"v_mfma_f32_32x32x16_bf16 {d}, {xa if isv else wa}, {wa if isv else xa}, {d}"
        return reads, mf
    def gemm_loop(s, reads, mf, isv, tog6, tog7, scnt, skip_last):
        lp = s.new("gl")
        s.lab(lp)
        for n in range(8):
            buf = n & 3
            R = reads((n+2) & 3, ((n+2) >> 2) & 1, (n+2) & 3)
            s(f"s_waitcnt lgkmcnt({len(R)})")
            c1, c2 = (2, 4) if len(R) == 6 else (3, 6)
            s(mf(buf,0,0,isv))
            if n == 6:
                for a in tog6: s(f"v_xor_b32 v{a}, 0x10000, v{a}")
            if n == 7:
                for a in tog7: s(f"v_xor_b32 v{a}, 0x10000, v{a}")
            if n == 6 and skip_last:
                nx = s.new("nb")
                s(f"s_cmp_eq_u32 s{scnt}, 1\ns_cbranch_scc1 {s.ln(nx)}\ns_barrier")
                s.lab(nx)
            elif buf == 2: s("s_barrier")
            s("\n".join(R[:c1]))
            s(mf(buf,1,0,isv))
            s("\n".join(R[c1:c2]))
            s(mf(buf,0,1,isv))
            s("\n".join(R[c2:]))
            s(mf(buf,1,1,isv))
        s(f"s_sub_u32 s{scnt}, s{scnt}, 1\ns_cmp_lg_u32 s{scnt}, 0\ns_cbranch_scc1 {s.ln(lp)}")

    def qkv_compute(s):
        ACC = 64
        s.kwait()
        if s.opt.get('b0st'): s.stamp(5)
        s(f"""s_and_b32 s48, s{sW}, 1
        s_lshr_b32 s49, s{sW}, 1
        v_and_b32 v8, 31, v0
        v_lshrrev_b32 v9, 5, v0
        s_lshl_b32 s50, s48, 13
        v_lshl_add_u32 v10, v8, 7, s50
        v_bfe_u32 v11, v0, 1, 3
        v_xor_b32 v11, v11, v9""")
        for ks in range(4):
            s(f"v_xor_b32 v12, {2*ks}, v11\nv_lshl_add_u32 v{2+ks}, v12, 4, v10")
        s(f"""v_bfe_u32 v11, v0, 2, 2
        v_lshl_add_u32 v12, v9, 3, v11
        v_lshlrev_b32 v12, 8, v12
        v_bfe_u32 v13, v0, 4, 1
        v_lshl_add_u32 v12, v13, 5, v12
        v_and_b32 v13, 3, v0
        v_lshl_add_u32 v12, v13, 3, v12
        v_add_u32 v12, 16384, v12
        s_lshl_b32 s50, s49, 1
        v_xor_b32 v11, s50, v11
        v_lshl_add_u32 v6, v11, 6, v12
        v_xor_b32 v7, 64, v6""")
        for r in range(64): s(f"v_mov_b32 v{ACC+r}, 0")
        reads, mf = s.gemm_ops(lambda i, ks: (2+ks, 4096*i), 6)
        s.att_vsetup()
        if s.opt.get('b0st'): s.stamp(7)
        s(f"s_setprio {s.opt.get('cprio', 2)}\ns_barrier")
        s.stamp(1)
        for l in reads(0,0,0) + reads(1,0,1): s(l)
        s(f"s_mov_b32 s51, 5\ns_cmp_ge_u32 s47, 10\ns_cbranch_scc1 {s.ln('qkv_v')}")
        for isv in (0, 1):
            if isv: s.lab("qkv_v")
            s.gemm_loop(reads, mf, isv, (2,6,7), (3,4,5), 51, False)
            s(f"s_setprio {s.opt.get('eprio', 3)}")
            nb = [10]
            def bar():
                nb[0] += 1; s("s_barrier")
            cuts = {0: (0,), 1: (0, 4), 2: (0, 3, 6), 3: (0, 2, 4, 6), 4: (4,), 5: (2, 6)}[s.opt.get('ecut', 4)]
            s.stamp(2)
            P = 32
            if not isv:
                s(f"""s_cmp_lt_u32 s47, 5
                s_cselect_b32 s52, {fbits(20**-0.5*math.log2(math.e))}, 1.0
                s_mov_b32 s53, s52
                v_lshlrev_b32 v2, 15, v9
                v_lshl_add_u32 v2, v8, 4, v2
                s_lshl_b32 s54, s47, 4
                s_lshl_b32 s55, s49, 3
                s_add_u32 s54, s54, s55
                s_lshl_b32 s54, s54, 15
                s_lshl_b32 s55, s46, 11
                s_add_u32 s54, s54, s55
                s_lshl_b32 s55, s48, 10
                s_add_u32 s54, s54, s55
                s_waitcnt lgkmcnt(0)""")
            else:
                s(f"""s_sub_u32 s54, s47, 10
                s_lshl_b32 s54, s54, 7
                s_lshl_b32 s55, s49, 6
                s_add_u32 s54, s54, s55
                v_add_u32 v4, s54, v8
                v_mul_u32_u24 v6, 320, v9""")
                for j in range(2):
                    s(f"""v_mul_u32_u24 v5, 3277, v4
                    v_lshrrev_b32 v5, 16, v5
                    v_mul_u32_u24 v{2+j}, {81920-320}, v5
                    v_lshl_add_u32 v{2+j}, v4, 4, v{2+j}
                    v_add_u32 v{2+j}, v{2+j}, v6
                    v_add_u32 v4, 32, v4""")
                s(f"""s_lshl_b32 s54, s46, 1
                s_add_u32 s54, s54, s48
                s_mul_i32 s54, s54, {8*320}
                s_add_u32 s54, s54, {VI}
                s_waitcnt lgkmcnt(0)""")
            n = 0
            for j in range(2):
                for gp in range(2):
                    for i in range(2):
                        a = ACC + 16*(2*i+j) + 8*gp
                        if n in cuts: bar()
                        p = P + 4*(n % 8); n += 1
                        if not isv:
                            for q in range(4):
                                s(f"v_pk_mul_f32 {vr(a+2*q,2)}, {vr(a+2*q,2)}, s[52:53]")
                        for q in range(4):
                            s(f"v_cvt_pk_bf16_f32 v{p+q}, v{a+2*q}, v{a+2*q+1}")
                        s(f"s_nop 1\nv_permlane32_swap_b32 v{p}, v{p+2}\nv_permlane32_swap_b32 v{p+1}, v{p+3}")
                        if s.opt.get('nost'): pass
                        elif not isv:
                            s(f"buffer_store_dwordx4 {vr(p,4)}, v2, {srd(sWS)}, s54 offen offset:{512*i} sc1")
                        else:
                            s(f"buffer_store_dwordx4 {vr(p,4)}, v{2+j}, {srd(sWS)}, s54 offen offset:{(4*i+2*gp)*320} sc1")
                    if not isv: s("s_add_u32 s54, s54, 65536")
            if not isv: s(f"s_branch {s.ln('qkv_pub')}")
        s.lab("qkv_pub")
        s(f"""s_lshl_b32 s54, s47, 4
        s_add_u32 s54, s54, s46
        s_mul_i32 s54, s54, {FSP}
        s_add_u32 s54, s54, {F_Q}""")
        while nb[0] < s.opt.get('barr', 12): bar()
        s("s_waitcnt vmcnt(0)")
        bar()
        nx = s.new("q")
        s(f"s_cmp_lg_u32 s{sW}, 0\ns_cbranch_scc1 {s.ln(nx)}")
        s.set_flag("s54", 4, 5)
        s.lab(nx)
        s.stamp(3)
        while nb[0] < 15: bar()

    def att_vsetup(s):
        aK1, aK2, aV, vK, vV, vIDX, aPW, aPR, vPC = 14, 15, 16, 17, 18, 19, 20, 21, 22
        w0, dn = s.new("vs"), s.new("vs")
        s(f"""s_and_b32 s68, s{sI}, 1
        s_lshr_b32 s69, s{sW}, 2
        v_and_b32 v23, 31, v0
        v_lshrrev_b32 v24, 5, v0
        v_and_b32 v30, 15, v0
        v_lshrrev_b32 v31, 4, v0
        s_mul_i32 s70, s68, 3
        v_add_u32 v{vK}, s70, v31
        v_cmp_gt_u32 vcc, 2, v31
        v_add_u32 v25, s70, v24
        s_lshl_b32 s71, s{sW}, 8
        v_cndmask_b32 v{vK}, 2, v{vK}, vcc
        v_lshlrev_b32 v{vK}, 15, v{vK}
        v_lshl_add_u32 v{vK}, v30, 4, v{vK}
        v_add_u32 v{vK}, s71, v{vK}
        v_cmp_lt_u32 vcc, 20, v0
        s_mul_i32 s71, s{sW}, 640
        v_subrev_u32 v{vV}, 1, v0
        v_cndmask_b32 v{vV}, v0, v{vV}, vcc
        v_lshlrev_b32 v{vV}, 4, v{vV}
        v_add_u32 v{vV}, s71, v{vV}
        v_and_b32 v29, 1, v31
        v_mul_u32_u24 v{aK2}, 768, v29
        v_lshl_add_u32 v{aK2}, v30, 4, v{aK2}
        s_mul_i32 s71, s69, 3072
        s_add_u32 s71, s71, {KVB}
        v_add_u32 v{aK2}, s71, v{aK2}
        v_lshl_add_u32 v{aK1}, v24, 8, v{aK2}
        v_lshl_add_u32 v{aK2}, v24, 3, v{aK2}
        v_add_u32 v{aK2}, 512, v{aK2}
        v_min_u32 v{aV}, 20, v23
        v_mul_u32_u24 v28, 336, v24
        v_mov_b32 v{vIDX}, 0xdddd
        v_lshl_add_u32 v{aV}, v{aV}, 4, v28
        s_mul_i32 s71, s69, 2688
        s_add_u32 s71, s71, {KVB+6144}
        v_add_u32 v{aV}, s71, v{aV}
        s_lshl_b32 s71, s{sW}, 2
        s_add_u32 s71, s71, {SY_PA}
        v_mov_b32 v{aPW}, s71
        v_and_b32 v{aPR}, 7, v0
        v_lshlrev_b32 v{aPR}, 2, v{aPR}
        v_add_u32 v{aPR}, {SY_PA}, v{aPR}
        v_mov_b32 v{vPC}, 1
        v_lshlrev_b32 v25, 15, v25
        v_lshl_add_u32 v25, v23, 4, v25
        v_lshlrev_b32 v26, 4, v23
        v_lshl_add_u32 v26, v24, 3, v26
        v_add_u32 v26, 0x10000, v26
        v_lshlrev_b32 v27, 2, v23""")
        s(f"""s_mov_b32 exec_lo, 0xfee00000
        s_mov_b32 exec_hi, 0xfee00000
        v_mov_b32 v{aV}, 0x30000
        s_sub_u32 exec_hi, s68, 1
        s_not_b32 exec_lo, exec_hi
        v_mov_b32 v{aK2}, 0x30000
        s_mov_b64 exec, -1
        s_cmp_eq_u32 s{sW}, 0
        s_cbranch_scc1 {s.ln(w0)}
        v_mul_u32_u24 v28, {KVS}, v31
        v_mul_u32_u24 v29, 336, v30
        v_add_u32 v28, v28, v29
        v_add_u32 v28, {KVB+6144+320}, v28
        s_branch {s.ln(dn)}""")
        s.lab(w0)
        s(f"""s_lshl_b32 s70, s{sXC}, 2
        s_and_b32 s71, s{sI}, 3
        s_add_u32 s70, s70, s71
        s_lshr_b32 s71, s70, 1
        s_mul_i32 s71, s71, 5
        s_lshl_b32 s68, s68, 1
        s_add_u32 s71, s71, s68
        s_mul_i32 s70, s70, 20
        v_mul_u32_u24 v28, 19, v29
        v_lshl_add_u32 v29, v29, 1, s71
        v_lshrrev_b32 v29, 4, v29
        v_add_u32 v28, s70, v28
        v_lshrrev_b32 v28, 7, v28
        v_add_u32 v28, 5, v28
        v_cmp_eq_u32 vcc, 0, v24
        s_lshr_b32 s70, s{sI}, 2
        s_lshl_b32 s70, s70, 1
        v_cndmask_b32 v28, v28, v29, vcc
        v_add_u32 v28, 5, v28
        v_lshl_add_u32 v28, v28, 4, v30
        v_mul_u32_u24 v28, {FSP}, v28
        v_and_b32 v31, 1, v0
        v_add_u32 v31, s70, v31
        v_lshl_add_u32 v29, v29, 4, v31
        v_mul_u32_u24 v29, {FSP}, v29""")
        s.lab(dn)

    def attention(s):
        Q1, Q2, K1, K2, V0, V1 = 8, 12, 152, 150, 156, 160
        S = (32, 48); O = 64
        aK1, aK2, aV, vK, vV, vIDX, aPW, aPR, vPC, vPR = 14, 15, 16, 17, 18, 19, 20, 21, 22, 30
        sH, sQB, sP, sODD, sKO, sVO, sMK, sMV, sN, sNEED, sTOK = 48, 49, 50, 51, 52, 53, 54, 55, 56, 3, 100
        EK, EV = "s[58:59]", "s[60:61]"
        sKB, sVB = 62, 63
        s(f"""s_setprio 3
        s_lshl_b32 s{sH}, s{sXC}, 2
        s_and_b32 s57, s{sI}, 3
        s_add_u32 s{sH}, s{sH}, s57
        s_lshr_b32 s{sQB}, s{sI}, 2
        s_lshr_b32 s{sP}, s{sH}, 1
        s_and_b32 s{sODD}, s{sH}, 1
        s_mov_b32 s58, -1
        s_mov_b32 s59, 0xffff
        s_mov_b32 s60, 0xffefffff
        s_mov_b32 s61, 0x1ff
        s_mul_i32 s{sKB}, s{sP}, {5*32768}
        s_add_u32 s{sKB}, s{sKB}, {KI}
        s_mul_i32 s{sVB}, s{sH}, 81920
        s_add_u32 s{sVB}, s{sVB}, {VI}
        s_mul_i32 s{sMK}, s{sW}, 768
        s_add_u32 s{sMK}, s{sMK}, {KVB}
        s_mul_i32 s{sMV}, s{sW}, 672
        s_add_u32 s{sMV}, s{sMV}, {KVB+6144}
        s_lshl_b32 s{sTOK}, s{sQB}, 8
        s_and_b32 s57, s{sW}, 3
        s_lshl_b32 s57, s57, 6
        s_add_u32 s{sTOK}, s{sTOK}, s57
        s_lshr_b32 s{sN}, s{sW}, 2
        s_lshl_b32 s57, s{sN}, 5
        s_add_u32 s{sTOK}, s{sTOK}, s57
        """)
        SS = ((32, 96), (48, 112)); OO = (O, 128); QQ = ((Q1, Q2), (144, 148))
        s(f"""
        s_lshl_b32 s70, s{sTOK}, 4
        s_add_u32 s70, s70, s{sKB}
        s_sub_u32 s70, s70, {KI-QI}
        s_lshl_b32 s71, s{sTOK}, 2
        s_add_u32 s71, s71, {GI}
        """)
        def dma(slot):
            return [f"s_add_u32 m0, s{sMK}, {slot*KVS}",
                    f"s_mov_b64 exec, {EK}",
                    f"buffer_load_dwordx4 v{vK}, {srd(sWS)}, s{sKO} offen sc1 lds",
                    f"s_add_u32 m0, s{sMV}, {slot*KVS}",
                    f"s_mov_b64 exec, {EV}",
                    f"buffer_load_dwordx4 v{vV}, {srd(sWS)}, s{sVO} offen sc1 lds",
                    f"s_mov_b64 exec, -1",
                    f"s_add_u32 s{sKO}, s{sKO}, 2048",
                    f"s_add_u32 s{sVO}, s{sVO}, 5120"]
        D0 = dma(0)
        s(f"s_mov_b32 s{sKO}, s{sKB}\ns_mov_b32 s{sVO}, s{sVB}")
        hi, w1, w23, nidle = s.new("a"), s.new("a"), s.new("a"), s.new("a")
        ql = [(88,1,28,sWS,"s64",0),(89,1,29,sWS,"s64",0),(90,1,27,sWS,"s65",0)][:2 if s.opt.get('noln') else 3]
        s(f"""s_cmp_ge_u32 s{sW}, 4
        s_cbranch_scc1 {s.ln(w23)}
        s_cmp_lg_u32 s{sW}, 0
        s_cbranch_scc1 {s.ln(w1)}
        s_barrier
        s_cmp_lg_u32 s{sCT}, 15
        s_cbranch_scc1 {s.ln(nidle)}
        s_mul_i32 s64, s{sRT}, {FSP}
        s_add_u32 s64, s64, {F_Q + 14*16*FSP}
        v_mov_b32 v86, 0""")
        s.poll([(88,1,86,sWS,"s64",0)], sleep=8)
        s.lab(nidle)
        s(f"""s_mov_b32 s64, {F_Q}
        s_lshl_b32 s65, s{sQB}, 7
        s_add_u32 s65, s65, {F_H}""")
        if s.opt.get('epoll', 1):
            s.poll_issue(ql)
            s("s_barrier")
            s.poll(ql, sleep=s.opt.get('psl', 4), pre=0)
        else:
            s("s_barrier")
            s.poll(ql, sleep=s.opt.get('psl', 4))
        s.lds_set(SY_QOK, 1, 84, 85)
        s(f"s_branch {s.ln(hi)}")
        s.lab(w1)
        s(f"""s_barrier
        s_barrier
        s_cmp_lg_u32 s{sW}, 1
        s_cbranch_scc1 {s.ln(hi)}
        v_mov_b32 v88, 0x3f803f80
        v_mov_b32 v89, 0x3f803f80
        v_mov_b32 v90, 0x3f803f80
        v_mov_b32 v91, 0x3f803f80
        ds_write_b128 v28, v[88:91]
        s_branch {s.ln(hi)}""")
        s.lab(w23)
        s("s_waitcnt vmcnt(0)")
        if s.opt.get('ldstamp') == 12: s.stamp(8)
        s("s_barrier")
        s.stamp(2)
        if s.opt.get('ldstamp'): s.end_wave()
        s.lab(hi)
        s(f"v_mov_b32 v86, {SY_QOK}")
        s.lds_spin(86, 1, 87)
        s.stamp(4)
        if s.opt.get('dbgx') == 2 or s.opt.get('ldstamp'): s.end_wave()
        s("\n".join(D0))
        s(f"""buffer_load_dwordx4 {vr(Q1,4)}, v25, {srd(sWS)}, s70 offen sc1
        buffer_load_dwordx2 {vr(Q2,2)}, v26, {srd(sWS)}, s70 offen sc1""")
        s(f"""s_xor_b32 s67, s70, 512
        buffer_load_dwordx4 {vr(QQ[1][0],4)}, v25, {srd(sWS)}, s67 offen sc1
        buffer_load_dwordx2 {vr(QQ[1][1],2)}, v26, {srd(sWS)}, s67 offen sc1""")
        for l in dma(1): s(l)
        ystag = s.opt.get('ystag', 1)
        lord = s.opt.get('lord', 1)
        def rest():
            for l in dma(2): s(l)
            if s.opt.get('nodma'):
                for l in dma(3): s(l)
                s("s_waitcnt vmcnt(0)")
            s(f"buffer_load_dword v31, v27, {srd(sWS)}, s71 offen sc1")
        if not lord: rest()
        for r in range(0, 16, 2): s(f"v_pk_mov_b32 {vr(O+r,2)}, 0, 0\nv_pk_mov_b32 {vr(128+r,2)}, 0, 0")
        for r in range(0, 8, 2): s(f"v_pk_mov_b32 {vr(SS[1][1]+8+r,2)}, 0, 0")
        for r in range(0, 4, 2): s(f"v_pk_mov_b32 {vr(V1+r,2)}, 0, 0")
        s(f"""v_cmp_eq_u32 vcc, s{sODD}, v24
        s_mov_b32 s{sNEED}, 2
        s_waitcnt vmcnt({2 if lord else 5}) lgkmcnt(0)
        ds_write_b32 v{aPW}, v{vPC}""")
        if lord: rest()
        s(f"""v_add_u32 v{vPC}, 1, v{vPC}
        v_cndmask_b32 v{Q2}, 0, v{Q2}, vcc
        v_cndmask_b32 v{Q2+1}, 0, v{Q2+1}, vcc
        v_cndmask_b32 v148, 0, v148, vcc
        v_cndmask_b32 v149, 0, v149, vcc""")
        s.lds_spin(aPR, 1, vPR, sleep=0)
        s.stamp(5)
        def off(T):
            T %= 8
            return (T >> 1)*KVS, T & 1
        def rK1(T):
            b, tt = off(T); return f"ds_read_b128 {vr(K1,4)}, v{aK1} offset:{b+tt*1536}"
        def rK2(T):
            b, tt = off(T); return f"ds_read_b64 {vr(K2,2)}, v{aK2} offset:{b+tt*1536}"
        def rV(T, a):
            b, tt = off(T); return f"ds_read_b128 {vr((V0,V1)[a],4)}, v{aV} offset:{b+(4*tt+2*a)*336}"
        def qk0(d, a): return f"v_mfma_f32_32x32x16_bf16 {vr(d,16)}, {vr(K1,4)}, {vr(QQ[a][0],4)}, 0"
        def qk1(d, a): return f"v_mfma_f32_32x32x8_bf16 {vr(d,16)}, {vr(K2,2)}, {vr(QQ[a][1],2)}, {vr(d,16)}"
        def pv(a, v, p): return f"v_smfmac_f32_32x32x32_bf16 {vr(OO[a],16)}, {vr(v,4)}, {vr(p,8)}, v{vIDX}"
        s(rK1(0)); s(rK2(0)); s(rV(0,0)); s("s_waitcnt lgkmcnt(1)")
        s(qk0(SS[0][0], 0)); s(qk1(SS[0][0], 0)); s(qk0(SS[1][0], 1)); s(rK1(1)); s(qk1(SS[1][0], 1)); s(rK2(1))
        s(f"""s_waitcnt vmcnt(3)
        ds_write_b32 v{aPW}, v{vPC}
        s_mov_b32 s69, 4
        v_add_u32 v{vPC}, 1, v{vPC}
        s_nop 3""")
        ap = s.opt.get('aprio', 1)
        nosync = s.opt.get('nosync'); nodma = s.opt.get('nodma')
        e0, e1, e2, e3 = 2, 6, 10, 14
        def loop(pat):
          lp = s.new("attl")
          s.L.append(".p2align 6")
          s.lab(lp)
          late = ystag and pat is not None
          for n in range(16):
              T, a = n >> 1, n & 1
              c, m = n >> 2, n & 3
              cur, nn = SS[a][T & 1], SS[a][(T+1) & 1]
              prev = SS[1][(T-1) & 1] if a == 0 else SS[0][T & 1]
              E = [f"v_exp_f32 v{cur+i}, v{cur+i}" for i in range(16)]
              D = dma((c + 3) & 3) if not nodma else [""]*9
              apm = s.opt.get('apm', 0)
              if pat is not None and apm:
                  per = s.opt.get('app', 1)
                  h, l = apm % 100, apm // 100
                  for pos, pr in ((h, ap+1), (l, ap)):
                      if pos // 16 == n % per: E[pos % 16] = f"s_setprio {pr}\n" + E[pos % 16]
              elif pat is not None and pat[n] != pat[n-1]: s(f"s_setprio {pat[n]}")
              for e in E[:e0]: s(e)
              if a == 0:
                  s(pv(1, V1, prev+8)); s(rV(T,1))
                  if n == 4:
                      s(f"""s_cmp_eq_u32 s69, 1
                      s_cselect_b32 s{sKO}, {WS_BYTES}, s{sKO}
                      s_cselect_b32 s{sVO}, {WS_BYTES}, s{sVO}
                      s_cselect_b32 s{sMK}, 0x30000, s{sMK}
                      s_cselect_b32 s{sMV}, 0x30000, s{sMV}""")
                  for e in E[e0:e1]: s(e)
                  s("s_waitcnt lgkmcnt(1)")
                  s(qk0(nn, 0))
                  for e in E[e1:e2]: s(e)
                  s(qk1(nn, 0))
                  if m == 0 and nosync != 2: s(f"ds_read_b32 v{vPR}, v{aPR}")
                  for e in E[e2:e3]: s(e)
                  s(pv(0, V0, cur))
              else:
                  s("s_waitcnt lgkmcnt(0)")
                  s(pv(0, V1, prev+8))
                  if m == 1 and not nosync:
                      s(f"v_cmp_gt_u32 vcc, s{sNEED}, v{vPR}")
                      s.spin_ool(aPR, f"s{sNEED}", vPR, sleep=1)
                  if m == 3:
                      if late: s("\n".join(D))
                      if nosync != 2: s(f"s_waitcnt vmcnt(2)\nds_write_b32 v{aPW}, v{vPC}")
                  for e in E[e0:e1]: s(e)
                  s(qk0(nn, 1)); s(rK1(T+2))
                  for e in E[e1:e2]: s(e)
                  s(qk1(nn, 1)); s(rK2(T+2))
                  if m == 1:
                      if not late: s("\n".join(D))
                      s(f"s_add_u32 s{sNEED}, s{sNEED}, 1")
                  if m == 3: s(f"v_add_u32 v{vPC}, 1, v{vPC}")
                  for e in E[e2:e3]: s(e)
                  s(pv(1, V0, cur)); s(rV(T+1,0))
              for e in E[e3:]: s(e)
          if s.opt.get('qst') and s.stamps:
              for k, c in ((1, 4), (2, 3), (3, 2)):
                  nx = s.new("st")
                  s(f"s_cmp_lg_u32 s69, {c}\ns_cbranch_scc1 {s.ln(nx)}")
                  s.stamp(k)
                  s.lab(nx)
          s(f"s_sub_u32 s69, s69, 1\ns_cmp_lg_u32 s69, 0\ns_cbranch_scc1 {s.ln(lp)}")
        ap = s.opt.get('aprio', 1)
        pm = s.opt.get('apat', 119)
        if pm:
            young, join = s.new("young"), s.new("join")
            s(f"s_cmp_ge_u32 s{sW}, 4\ns_cbranch_scc1 {s.ln(young)}\ns_setprio {ap}")
            loop(None)
            s(f"s_branch {s.ln(join)}")
            s.lab(young)
            pat = [(s.opt.get('ylo', ap), s.opt.get('yhi', ap+1))[(pm >> (T % 8)) & 1] for T in range(16)]
            s(f"s_setprio {pat[15]}")
            loop(pat)
            s.lab(join)
        else:
            s(f"s_setprio {ap}")
            loop(None)
        s("s_setprio 3")
        s(pv(1, V1, SS[1][1]+8))
        s(f"""s_lshl_b32 s64, s{sW}, 12
        s_add_u32 s64, s64, {KVB}
        v_lshlrev_b32 v84, 4, v0
        s_xor_b32 s65, s{sW}, 4
        v_add_u32 v85, s64, v84
        s_lshl_b32 s64, s65, 12
        s_add_u32 s64, s64, {KVB}
        v_add_u32 v84, s64, v84
        s_lshl_b32 s65, s65, 2
        s_add_u32 s65, s65, {SY_PA}
        v_mov_b32 v86, s65
        s_waitcnt vmcnt(0)""")
        for q in range(3): s(f"ds_write_b128 v85, {vr(128+4*q,4)} offset:{1024*q}")
        s(f"""ds_write_b32 v85, v140 offset:3072
        s_waitcnt lgkmcnt(0)
        ds_write_b32 v{aPW}, v{vPC}""")
        s.lds_spin(86, 19, 87, sleep=0)
        for q in range(3): s(f"ds_read_b128 {vr(128+4*q,4)}, v84 offset:{1024*q}")
        s(f"""ds_read_b32 v140, v84 offset:3072
        v_add_u32 v{vPC}, 1, v{vPC}""")
        s.stamp(6)
        s(f"""v_lshlrev_b32 v84, 4, v23
        v_lshl_add_u32 v86, v24, 15, v84
        s_lshl_b32 s64, s{sH}, 16
        s_lshl_b32 s65, s{sTOK}, 4
        s_add_u32 s65, s65, {OI}
        s_add_u32 s64, s64, s65
        s_add_u32 s57, s{sP}, 64
        s_lshl_b32 s57, s57, 15
        s_add_u32 s65, s65, s57
        s_xor_b32 s57, s{sP}, s{sH}
        s_and_b32 s57, s57, 1
        s_lshl_b32 s57, s57, 3
        s_add_u32 s65, s65, s57
        v_cmp_eq_u32 s[72:73], 0, v24
        s_waitcnt lgkmcnt(0)
        ds_write_b32 v{aPW}, v{vPC}""")
        for r in range(0, 12, 2): s(f"v_pk_add_f32 {vr(O+r,2)}, {vr(O+r,2)}, {vr(128+r,2)}")
        s(f"""v_add_f32 v{O+12}, v{O+12}, v140
        v_add_f32 v88, abs(v{O}), abs(v{O+1})
        v_add_f32 v89, abs(v{O+2}), abs(v{O+3})""")
        for r in range(4, 12, 2):
            s(f"v_add_f32 v88, v88, abs(v{O+r})\nv_add_f32 v89, v89, abs(v{O+r+1})")
        slow, norm = s.new("slow"), s.new("norm")
        s(f"""v_cndmask_b32 v87, v{O+8}, v{O+12}, s[72:73]
        v_add_f32 v88, v88, v89
        v_cmp_nle_f32 vcc, {fbits(2.0**-30)}, v87
        s_mov_b64 s[74:75], vcc
        v_cmp_nge_f32 vcc, {fbits(2.0**60)}, v87
        s_or_b64 s[74:75], s[74:75], vcc
        v_cmp_nge_f32 vcc, {fbits(2.0**126)}, v88
        s_or_b64 vcc, s[74:75], vcc
        s_cbranch_vccnz {s.ln(slow)}""")
        s.lab(norm)
        s(f"""v_rcp_f32 v88, v87
        s_nop 0
        v_mul_f32 v88, v88, v31""")
        s.slow_args = (slow, norm, Q1, Q2, K1, K2, V0, V1, S, O, vIDX, sKB, sVB)
        for r in range(12): s(f"v_mul_f32 v{O+r}, v{O+r}, v88")
        for q in range(6): s(f"v_cvt_pk_bf16_f32 v{32+q}, v{O+2*q}, v{O+2*q+1}")
        s(f"""buffer_store_dwordx4 v[32:35], v86, {srd(sWS)}, s64 offen sc1
        s_mov_b32 exec_hi, 0
        buffer_store_dwordx2 v[36:37], v84, {srd(sWS)}, s65 offen sc1
        s_mov_b32 exec_hi, -1""")
        s(f"""s_lshr_b32 s64, s{sTOK}, 6
        s_lshl_b32 s64, s64, 5
        s_add_u32 s64, s64, s{sH}
        s_mul_i32 s64, s64, {FSP}
        s_lshl_b32 s65, s{sN}, 2
        s_add_u32 s64, s64, s65
        s_add_u32 s64, s64, {F_O}
        s_mov_b64 exec, 1
        v_mov_b32 v84, 0
        v_mov_b32 v85, 1
        s_waitcnt vmcnt(0)
        buffer_store_dword v85, v84, {srd(sWS)}, s64 offen sc1""")
        s.stamp(7)

    def att_slow(s):
        slow, norm, Q1, Q2, K1, K2, V0, V1, S, O, vIDX, sKB, sVB = s.slow_args
        S0, C = S
        l1, l2 = s.new("slowa"), s.new("slowb")
        s.lab(slow)
        ldk = f"""buffer_load_dwordx4 {vr(K1,4)}, v25, {srd(sWS)}, s67 offen sc1
        buffer_load_dwordx2 {vr(K2,2)}, v26, {srd(sWS)}, s67 offen sc1"""
        s(f"""s_waitcnt vmcnt(0) lgkmcnt(0)
        v_mov_b32 v88, 0xff800000
        s_mov_b32 s67, s{sKB}
        s_mov_b32 s69, 64""")
        s.lab(l1)
        s(ldk)
        s(f"""s_waitcnt vmcnt(0)
        v_mfma_f32_32x32x16_bf16 {vr(S0,16)}, {vr(K1,4)}, {vr(Q1,4)}, 0
        v_mfma_f32_32x32x8_bf16 {vr(S0,16)}, {vr(K2,2)}, {vr(Q2,2)}, {vr(S0,16)}
        s_add_u32 s67, s67, 512
        s_nop 15""")
        for r in range(0, 16, 2): s(f"v_max3_f32 v88, v88, v{S0+r}, v{S0+r+1}")
        s(f"""s_sub_u32 s69, s69, 1
        s_cmp_lg_u32 s69, 0
        s_cbranch_scc1 {s.ln(l1)}
        v_mov_b32 v89, v88
        s_nop 1
        v_permlane32_swap_b32 v88, v89
        s_nop 1
        v_max_f32 v88, v88, v89
        v_mul_u32_u24 v89, 320, v24
        v_lshl_add_u32 v89, v23, 4, v89""")
        for r in range(16): s(f"v_sub_f32 v{C+r}, 0, v88\nv_mov_b32 v{O+r}, 0")
        for r in range(4): s(f"v_mov_b32 v{V0+r}, 0x3f803f80\nv_mov_b32 v{V1+r}, 0x3f803f80")
        s(f"""s_mov_b32 s67, s{sKB}
        s_mov_b32 s68, s{sVB}
        s_mov_b32 s69, 64
        s_mov_b32 s74, 0xfffff
        s_mov_b32 s75, 0xfffff""")
        s.lab(l2)
        s(ldk)
        s(f"""s_mov_b64 exec, s[74:75]
        buffer_load_dwordx4 {vr(V0,4)}, v89, {srd(sWS)}, s68 offen sc1
        buffer_load_dwordx4 {vr(V1,4)}, v89, {srd(sWS)}, s68 offen offset:640 sc1
        s_mov_b64 exec, -1
        s_waitcnt vmcnt(0)
        v_mfma_f32_32x32x16_bf16 {vr(S0,16)}, {vr(K1,4)}, {vr(Q1,4)}, {vr(C,16)}
        v_mfma_f32_32x32x8_bf16 {vr(S0,16)}, {vr(K2,2)}, {vr(Q2,2)}, {vr(S0,16)}
        s_add_u32 s67, s67, 512
        s_add_u32 s68, s68, 1280
        s_nop 15""")
        for r in range(16): s(f"v_exp_f32 v{S0+r}, v{S0+r}")
        s(f"""s_nop 1
        v_smfmac_f32_32x32x32_bf16 {vr(O,16)}, {vr(V0,4)}, {vr(S0,8)}, v{vIDX}
        v_smfmac_f32_32x32x32_bf16 {vr(O,16)}, {vr(V1,4)}, {vr(S0+8,8)}, v{vIDX}
        s_sub_u32 s69, s69, 1
        s_cmp_lg_u32 s69, 0
        s_nop 7
        s_cbranch_scc1 {s.ln(l2)}
        s_nop 15
        v_cndmask_b32 v87, v{O+8}, v{O+12}, s[72:73]
        s_branch {s.ln(norm)}""")

    def gfront(s):
        sJ = 48
        s(f"s_setprio 3\ns_sub_u32 s{sJ}, s{sW}, 8")
        s.ln_loads(sJ)
        s(f"""v_lshlrev_b32 v1, 2, v0
        v_add_u32 v1, {SYN}, v1
        v_mov_b32 v2, 0
        ds_write_b32 v1, v2""")
        if s.opt.get('noln'):
            s('s_barrier'); s.gtiles(sJ); s.nb = 1
        else: s.nb = s.layernorm(sJ)

    def grole(s):
        sJ = 48
        pre = s.gsetup(sJ)
        nb = s.nb
        assert nb <= s.opt.get('th', 7)
        s("s_setprio 0")
        lines = "\n".join(pre).split("\n")
        k = 11 - nb
        per = -(-len(lines) // k)
        for q in range(k):
            s("\n".join(lines[q*per:(q+1)*per])); s("s_barrier")
        s.stamp(2)
        s.gsync_n = 0
        s.gemm1(sJ)
        s.gemm2(sJ)

    def gtiles(s, sJ):
        s(f"""s_and_b32 s50, s{sXC}, 3
        s_lshl_b32 s51, s{sF1}, 2
        s_and_b32 s54, s{sJ}, 2
        s_add_u32 s51, s51, s54
        s_lshr_b32 s54, s50, 1
        s_add_u32 s51, s51, s54
        s_lshl_b32 s52, s{sD1}, 1
        s_and_b32 s54, s{sJ}, 1
        s_add_u32 s52, s52, s54
        s_lshl_b32 s52, s52, 1
        s_and_b32 s54, s50, 1
        s_add_u32 s52, s52, s54
        s_lshl_b32 s62, s{sXC}, 2
        s_and_b32 s54, s{sI}, 3
        s_add_u32 s62, s62, s54
        s_lshr_b32 s63, s{sI}, 2
        s_lshl_b32 s66, s62, 6
        s_lshl_b32 s54, s{sJ}, 4
        s_add_u32 s66, s66, s54
        s_lshl_b32 s54, s51, 6
        v_lshrrev_b32 v1, 5, v0
        v_lshl_add_u32 v1, v1, 3, s54
        v_and_b32 v2, 15, v0
        v_add_lshl_u32 v2, s66, v2, 1""")
        for q in range(4):
            s(f"global_load_dwordx2 {vr(54+2*q,2)}, v1, s[{sB1}:{sB1+1}] offset:{16*q}")
        s(f"global_load_ushort v62, v2, s[{sB2}:{sB2+1}]")

    def gsetup(s, sJ):
        B = []
        B.append(f"""s_mul_i32 s49, s{sJ}, {GREG}
        s_lshl_b32 s54, s{sJ}, 2
        s_add_u32 s54, s54, {SY_PG}
        v_mov_b32 v160, s54
        v_lshrrev_b32 v48, 4, v0
        v_and_b32 v49, 15, v0
        v_lshrrev_b32 v50, 5, v0
        v_and_b32 v51, 31, v0
        v_and_b32 v52, 3, v0
        v_bfe_u32 v53, v0, 2, 2
        v_lshlrev_b32 v161, 2, v52
        v_add_u32 v161, {SY_PG}, v161
        v_mov_b32 v164, {SYN}
        v_lshrrev_b32 v30, 3, v0
        v_and_b32 v31, 7, v0
        v_lshlrev_b32 v13, 1, v48
        v_xor_b32 v13, v13, v31
        v_lshlrev_b32 v30, 12, v30
        v_lshl_add_u32 v13, v13, 4, v30
        v_mul_u32_u24 v28, 10240, v50
        v_lshl_add_u32 v28, v51, 4, v28""")
        B.append(f"""v_lshl_add_u32 v26, v50, 3, v53
        v_lshlrev_b32 v26, 8, v26
        v_and_b32 v31, 1, v48
        v_lshl_add_u32 v26, v31, 5, v26
        v_lshl_add_u32 v26, v52, 3, v26
        v_add_u32 v24, 0x10000, v26
        v_add_u32 v26, {0x10000 + 16384}, v26
        s_and_b32 s54, s52, 3
        v_xor_b32 v30, s54, v53
        v_lshl_add_u32 v24, v30, 6, v24
        v_xor_b32 v25, 64, v24
        s_and_b32 s54, s51, 3
        v_xor_b32 v30, s54, v53
        v_lshl_add_u32 v26, v30, 6, v26
        v_xor_b32 v27, 64, v26
        """)
        B.append(f"""s_mul_i32 s64, s{sJ}, {384*4096}
        s_lshl_b32 s54, s62, 7
        s_add_u32 s64, s64, s54
        s_mul_i32 s65, s{sJ}, {48*10240}
        s_mul_i32 s54, s63, 1280
        s_add_u32 s65, s65, s54
        s_add_u32 s65, s65, {UI}
        v_mul_u32_u24 v14, 10240, v48
        v_lshl_add_u32 v14, v49, 4, v14
        v_bfe_u32 v30, v0, 2, 3
        v_lshl_add_u32 v31, v50, 4, v30
        v_lshlrev_b32 v31, 7, v31
        v_lshl_add_u32 v31, v52, 3, v31
        v_add_u32 v31, s49, v31
        v_lshrrev_b32 v32, 1, v30
        v_xor_b32 v32, s{sJ}, v32
        """ + "\n".join(f"v_xor_b32 v33, {si}, v32\nv_lshl_add_u32 v{15+si}, v33, 5, v31" for si in range(4)) + f"""
        v_lshlrev_b32 v12, 15, v48
        v_lshl_add_u32 v12, v49, 4, v12
        v_add_u32 v19, s66, v49
        v_mul_u32_u24 v19, 1280, v19
        v_lshl_add_u32 v19, v48, 3, v19""")
        B.append("\n".join(f"""v_add_u32 v31, {64*m}, v0
            v_mul_u32_u24 v32, 6554, v31
            v_lshrrev_b32 v32, 16, v32
            v_mul_u32_u24 v32, {1280-160}, v32
            v_lshl_add_u32 v{1+m}, v31, 4, v32""" for m in range(5)))
        B.append(f"""v_mul_u32_u24 v31, 20, v50
        v_add_u32 v31, v31, v30
        v_mul_u32_u24 v31, 160, v31
        v_lshl_add_u32 v6, v52, 3, v31
        v_add_u32 v7, 51200, v6
        v_mul_u32_u24 v31, 40, v48
        v_add_u32 v31, v31, v53
        v_add_u32 v31, 16, v31
        v_mul_u32_u24 v31, 160, v31
        v_lshl_add_u32 v31, v52, 3, v31
        v_and_b32 v32, 1, v48
        v_mul_u32_u24 v32, 3200, v32
        v_sub_u32 v9, v31, v32
        v_add_u32 v9, 3200, v9
        v_add_u32 v8, v31, v32
        v_add_u32 v10, 51200, v8
        v_add_u32 v11, 51200, v9""")
        B.append("\n".join(f"v_mov_b32 v{r}, 0" for r in range(80, 128)))
        B.append("s_waitcnt vmcnt(0)\n" + "\n".join(f"v_lshlrev_b32 v{64+2*q}, 16, v{54+q}\nv_and_b32 v{65+2*q}, 0xffff0000, v{54+q}" for q in range(8)) + "\nv_lshlrev_b32 v20, 16, v62")
        return B

    def xaddr(s, sJ, vw, vr0):
        s(f"v_lshlrev_b32 v{vw}, 4, v0")
        for n in range(1, 4):
            s(f"s_xor_b32 s54, s{sJ}, {n}\ns_mul_i32 s54, s54, {GREG}\ns_add_u32 s54, s54, {(n-1)*4096}\nv_add_u32 v{vr0+n-1}, s54, v{vw}")
        s(f"v_add_u32 v{vw}, s49, v{vw}")

    def gpost(s):
        s.gsync_n += 1
        s(f"s_waitcnt lgkmcnt(0)\nv_mov_b32 v162, {s.gsync_n}\nds_write_b32 v160, v162")
    def gwait(s, sleep=2):
        s.lds_spin(161, s.gsync_n, 163, sleep=sleep)

    def ln_loads(s, sJ):
        X = (8, 13); GWR = 18
        s(f"""s_and_b32 s67, s{sXC}, 3
        s_lshl_b32 s67, s67, 6
        s_lshr_b32 s68, s{sXC}, 2
        s_lshl_b32 s68, s68, 5
        s_add_u32 s67, s67, s68
        s_add_u32 s67, s67, s{sI}
        s_lshl_b32 s68, s67, 3
        s_lshl_b32 s69, s{sJ}, 1
        s_add_u32 s68, s68, s69
        s_mul_i32 s69, s68, 1280
        v_and_b32 v1, 31, v0
        v_lshrrev_b32 v3, 5, v0
        v_lshlrev_b32 v2, 3, v1
        v_lshlrev_b32 v1, 4, v1
        v_mul_u32_u24 v19, 1280, v3
        v_add_u32 v18, v19, v1
        v_add_u32 v19, v19, v2""")
        s.kwait()
        if s.opt.get('noln'): return
        s(f"""buffer_load_dwordx4 v[8:11], v18, {srd(sX)}, s69 offen
        buffer_load_dwordx4 v[12:15], v18, {srd(sX)}, s69 offen offset:512
        buffer_load_dwordx2 v[16:17], v19, {srd(sX)}, s69 offen offset:1024
        global_load_dwordx4 v[20:23], v1, s[{sGW}:{sGW+1}]
        global_load_dwordx4 v[24:27], v1, s[{sGW}:{sGW+1}] offset:512
        global_load_dwordx2 v[28:29], v2, s[{sGW}:{sGW+1}] offset:1024""")
        if s.opt.get('wpf', 0):
            s(f"""s_mul_i32 s70, s2, 9600
            s_mul_i32 s71, s{sJ}, {19*128}
            s_add_u32 s70, s70, s71
            v_min_u32 v166, 18, v0
            v_lshlrev_b32 v166, 7, v166
            buffer_load_dword v166, v166, {srd(sWQ)}, s70 offen""")

    def layernorm(s, sJ):
        X, GW, XV = 8, 20, 32
        nb = [0]
        def bar():
            nb[0] += 1; s("s_barrier")
        gl = [(31,1,30,sDBG,"0",0)]
        s(f"""s_mov_b32 s70, 0x3f803f80
        s_lshl_b32 s55, s68, 2
        s_add_u32 s55, s55, {GI}
        s_add_u32 s69, s69, {HI}
        v_lshlrev_b32 v3, 2, v3
        v_and_b32 v30, 15, v0
        v_lshlrev_b32 v30, 2, v30
        s_waitcnt vmcnt({1 if s.opt.get('wpf', 0) else 0})""")
        s.stamp(1)
        for i in range(10):
            s(f"v_dot2_f32_bf16 v4, v{X+i}, s70, {'v4' if i else 0}")
            s(f"v_dot2_f32_bf16 v5, v{X+i}, v{GW+i}, {'v5' if i else 0}")
        un = []
        for i in range(10):
            un += [f"v_lshlrev_b32 v{XV+2*i}, 16, v{X+i}", f"v_and_b32 v{XV+2*i+1}, 0xffff0000, v{X+i}"]
        def fill(n):
            for _ in range(n): s(un.pop(0) if un else "s_nop 0")
        fill(3)
        for k in (8, 4, 2, 1):
            for q in (4, 5): s(f"v_add_f32_dpp v{q}, v{q}, v{q} row_ror:{k} row_mask:0xf bank_mask:0xf")
            fill(1)
        s("v_mov_b32 v6, v4\nv_mov_b32 v7, v5"); fill(2)
        s("v_permlane16_swap_b32 v4, v6\nv_permlane16_swap_b32 v5, v7"); fill(2)
        s(f"""v_add_f32 v4, v4, v6
        v_add_f32 v5, v5, v7
        v_mul_f32 v4, {fbits(-1/640)}, v4
        v_mul_f32 v5, {fbits(-math.log2(math.e))}, v5
        v_exp_f32 v5, v5""")
        fill(len(un))
        s("v_add_f32 v5, 1.0, v5\nv_rcp_f32 v2, v5")
        for e in range(0, 20, 2): s(f"v_pk_add_f32 {vr(XV+e,2)}, {vr(XV+e,2)}, v[4:5] op_sel_hi:[1,0]")
        for e in range(0, 20, 2):
            a = (6, 52)[(e >> 1) & 1]
            if e < 4: s(f"v_pk_mul_f32 {vr(a,2)}, {vr(XV+e,2)}, {vr(XV+e,2)}")
            else: s(f"v_pk_fma_f32 {vr(a,2)}, {vr(XV+e,2)}, {vr(XV+e,2)}, {vr(a,2)}")
        s("v_pk_add_f32 v[6:7], v[6:7], v[52:53]\nv_add_f32 v6, v6, v7")
        for k in (8, 4, 2, 1):
            s(f"s_nop 1\nv_add_f32_dpp v6, v6, v6 row_ror:{k} row_mask:0xf bank_mask:0xf")
        s(f"""v_mov_b32 v7, v6
        v_mov_b32 v4, {fbits(1e-5)}
        s_nop 0
        v_permlane16_swap_b32 v6, v7
        s_nop 1
        v_add_f32 v6, v6, v7
        v_fmac_f32 v4, {fbits(1/640)}, v6
        v_rsq_f32 v4, v4
        s_nop 0""")
        for e in range(0, 20, 2):
            s(f"v_pk_mul_f32 {vr(XV+e,2)}, {vr(XV+e,2)}, v[4:5] op_sel_hi:[1,0]")
        for i in range(10): s(f"v_cvt_pk_bf16_f32 v{X+i}, v{XV+2*i}, v{XV+2*i+1}")
        nx, done = s.new("g"), s.new("g")
        s(f"""buffer_store_dwordx4 v[8:11], v18, {srd(sWS)}, s69 offen sc1
        buffer_store_dwordx4 v[12:15], v18, {srd(sWS)}, s69 offen offset:512 sc1
        buffer_store_dwordx2 v[16:17], v19, {srd(sWS)}, s69 offen offset:1024 sc1
        s_mov_b32 exec_lo, 1
        s_mov_b32 exec_hi, 1
        buffer_store_dword v2, v3, {srd(sWS)}, s55 offen sc1
        s_mov_b64 exec, -1
        s_cmp_lg_u32 s{sJ}, 0
        s_cbranch_scc1 {s.ln(nx)}""")
        s.poll_issue(gl)
        s.lab(nx)
        if s.opt.get('b0st'): s.stamp(7)
        s("s_waitcnt lgkmcnt(0)")
        for _ in range(s.opt.get('lnw', 2)): bar()
        s("s_waitcnt vmcnt(0)")
        bar()
        s(f"""s_lshl_b32 s54, s67, 2
        s_add_u32 s54, s54, {F_H}
        s_cmp_lg_u32 s{sJ}, 0
        s_cbranch_scc1 {s.ln(done)}""")
        s.poll(gl, sleep=4, pre=0)
        s.set_flag("s54", 4, 5)
        s.lab(done)
        s.gtiles(sJ)
        return nb[0]

    def gpoll(s, pre, loads, ok, sleep, lsl=4):
        nx = s.new("gp")
        s(f"s_cmp_lg_u32 s48, 0\ns_cbranch_scc1 {s.ln(nx)}")
        for addr, need in pre: s.lds_spin(164, need, 165, off=addr-SYN, sleep=lsl)
        s.poll(loads, sleep=sleep)
        s(f"v_mov_b32 v165, 1\nds_write_b32 v164, v165 offset:{ok-SYN}")
        s.lab(nx)
        s.lds_spin(164, 1, 165, off=ok-SYN, sleep=lsl)

    def g2_dW(s, t):
        L = []
        for n in range(4):
            pre = f"s_add_u32 m0, s49, {(t%3)*4096}\ns_nop 0\n" if n == 0 else ""
            inc = 32768-1024 if n < 3 else 32768+3*1024
            L.append(pre + f"buffer_load_dwordx4 v13, {srd(sW2)}, s64 offen offset:{1024*n} lds\ns_add_u32 s64, s64, {inc}")
        return L

    def pfwo(s):
        s(f"""s_lshl_b32 s60, s{sI}, 2
        s_add_u32 s60, s60, s48
        s_mul_i32 s61, s60, 6400
        v_min_u32 v30, 49, v0
        v_lshlrev_b32 v30, 7, v30
        buffer_load_dword v167, v30, {srd(sWO)}, s61 offen""")

    def gemm1(s, sJ):
        ACC = 64
        skip, fin = s.new("g1skip"), s.new("g1fin")
        s(f"s_cmp_eq_u32 s{sCT}, 15\ns_cbranch_scc1 {s.ln(skip)}")
        reads, mf = s.gemm_ops(24, 26)
        s(f"s_setprio {s.opt.get('gp1', 1)}")
        for l in reads(0,0,0) + reads(1,0,1): s(l)
        s("s_mov_b32 s54, 4")
        s.gemm_loop(reads, mf, 0, (24,25,26,27), (), 54, True)
        s.stamp(3)
        if s.opt.get('dbgx') == 3: s.end_wave()
        s(f"""s_setprio 3
        s_lshl_b32 s55, s{sN1}, 2
        s_lshl_b32 s57, s{sJ}, 11
        s_add_u32 s57, s57, {PI}
        v_lshlrev_b32 v29, 4, v0""")
        s.gpost()
        hold = s.opt.get('phold', 3)
        for n in range(1, 4):
            m = (0, 2, 1, 3)[n]
            p = 32 + 8*(n-1)
            s(f"""s_xor_b32 s54, s50, {m}
            s_add_u32 s54, s54, s55
            s_mul_i32 s54, s54, 24576
            s_add_u32 s54, s54, s57
            s_add_u32 s{57+n}, s54, {(n-1)*8192}""")
            for q in range(8): s(f"v_cvt_pk_bf16_f32 v{p+q}, v{ACC+16*n+2*q}, v{ACC+16*n+2*q+1}")
        if hold: s.lds_spin(164, max(1, hold-1), 165, off=(SY_QOK if hold == 1 else SY_PA)-SYN, sleep=(2 if hold < 3 else 6))
        for n in range(1, 4):
            p = 32 + 8*(n-1)
            s(f"""buffer_store_dwordx4 {vr(p,4)}, v29, {srd(sWS)}, s{57+n} offen sc1
            buffer_store_dwordx4 {vr(p+4,4)}, v29, {srd(sWS)}, s{57+n} offen offset:1024 sc1""")
        s(f"""s_add_u32 s56, s55, s50
        s_mul_i32 s54, s56, {FSP}
        s_add_u32 s54, s54, {F_P}""")
        s.arrive(SY_CP, 4, "s54", 30, 31)
        s.gwait()
        wsplit = s.opt.get('wsplit', 1)
        s(f"""s_mul_i32 s54, s55, {FSP}
        s_add_u32 s54, s54, {F_P}
        v_and_b32 v30, 3, v0
        v_mul_u32_u24 v30, {FSP}, v30
        s_mul_i32 s56, s56, 24576
        s_add_u32 s56, s56, s57""")
        s.gpoll([(SY_CP, 4)], [(31,1,30,sWS,"s54",0)], SY_POK, s.opt.get('ppsl', 4))
        s.stamp(4)
        for n in range(3):
            p = 32 + 8*n
            s(f"""buffer_load_dwordx4 {vr(p,4)}, v29, {srd(sWS)}, s56 offen sc1
            buffer_load_dwordx4 {vr(p+4,4)}, v29, {srd(sWS)}, s56 offen offset:1024 sc1
            s_add_u32 s56, s56, 8192""")
        c0 = -2*math.sqrt(2/math.pi)*math.log2(math.e); c1 = c0*0.044715
        s(f"""s_mov_b32 s56, {fbits(c1)}
        s_mov_b32 s57, {fbits(c1)}
        v_mov_b32 v56, {fbits(c0)}
        v_mov_b32 v57, {fbits(c0)}
        s_mov_b32 s60, 1.0
        s_mov_b32 s61, 1.0""")
        T = ACC + 16
        for n in range(3):
            s(f"s_waitcnt vmcnt({4-2*n})")
            if n == 2:
                for t in range(wsplit):
                    for l in s.g2_dW(t): s(l)
            for q in range(8):
                s(f"v_lshlrev_b32 v{T+2*q}, 16, v{32+8*n+q}\nv_and_b32 v{T+2*q+1}, 0xffff0000, v{32+8*n+q}")
            for r in range(0, 16, 2): s(f"v_pk_add_f32 {vr(ACC+r,2)}, {vr(ACC+r,2)}, {vr(T+r,2)}")
        for r in range(0, 16, 2): s(f"v_pk_mul_f32 {vr(T+r,2)}, {vr(ACC+r,2)}, {vr(ACC+r,2)}")
        for r in range(0, 16, 2): s(f"v_pk_fma_f32 {vr(T+r,2)}, {vr(T+r,2)}, s[56:57], v[56:57]")
        for r in range(0, 16, 2): s(f"v_pk_mul_f32 {vr(T+r,2)}, {vr(T+r,2)}, {vr(ACC+r,2)}")
        for r in range(16): s(f"v_exp_f32 v{T+r}, v{T+r}")
        for r in range(0, 16, 2): s(f"v_pk_add_f32 {vr(T+r,2)}, {vr(T+r,2)}, s[60:61]")
        for r in range(16): s(f"v_rcp_f32 v{T+r}, v{T+r}")
        for r in range(0, 16, 2): s(f"v_pk_mul_f32 {vr(T+r,2)}, {vr(T+r,2)}, {vr(ACC+r,2)}")
        for q in range(8): s(f"v_cvt_pk_bf16_f32 v{40+q}, v{T+2*q}, v{T+2*q+1}")
        s(f"""s_mul_i32 s54, s51, {4*10240}
        s_lshl_b32 s57, s52, 9
        s_add_u32 s54, s54, s57
        s_add_u32 s54, s54, {UI}
        s_add_u32 s57, s54, 20480
        buffer_store_dwordx4 v[40:43], v28, {srd(sWS)}, s54 offen sc1
        buffer_store_dwordx4 v[44:47], v28, {srd(sWS)}, s57 offen sc1
        s_mul_i32 s54, s{sD1}, 12
        s_add_u32 s54, s54, s{sF1}
        s_lshl_b32 s54, s54, 2
        s_add_u32 s54, s54, s50
        s_mul_i32 s54, s54, {FSP}
        s_add_u32 s54, s54, {F_U}""")
        s.arrive(SY_CU, 4, "s54", 30, 31)
        s(f"s_branch {s.ln(fin)}")
        s.lab(skip)
        for _ in range(7): s("s_barrier")
        s("s_setprio 3")
        if s.opt.get('ldstamp'): s.end_wave()
        s.lds_spin(164, s.opt.get('skipw', 4), 165, off=SY_PA-SYN, sleep=8)
        for t in range(wsplit):
            for l in s.g2_dW(t): s(l)
        s("s_waitcnt vmcnt(0)")
        s.lab(fin)
        s.pfwo()
        s.stamp(5)
        if s.opt.get('dbgx') or s.opt.get('ldstamp'): s.end_wave()

    def gemm2(s, sJ):
        ACC, UB, BB = 64, (24, 44), 144
        vW, vU, aT = 13, 14, 15
        sST, sDT, sOW, sOU, sTK = 62, 63, 64, 65, 66
        NS = 3
        dW = s.g2_dW
        def lU(t):
            L = [f"buffer_load_dwordx4 {vr(UB[t&1]+4*di,4)}, v{vU}, {srd(sWS)}, s{sOU} offen offset:{256*di} sc1" for di in range(5)]
            L[4] += f"\ns_add_u32 s{sOU}, s{sOU}, 40960"
            return L
        def rd(t, si):
            o = (t % NS)*4096
            return f"ds_read_b64_tr_b16 {vr(BB+4*si,2)}, v{aT+si} offset:{o}\nds_read_b64_tr_b16 {vr(BB+4*si+2,2)}, v{aT+si} offset:{o+1024}"
        def mf(t, si, di):
            d = vr(ACC+20*si+4*di,4)
            if s.opt.get('gnomf'): return "s_nop 3"
            return f"v_mfma_f32_16x16x32_bf16 {d}, {vr(UB[t&1]+4*di,4)}, {vr(BB+4*si,4)}, {d if t else 0}"
        s(f"s_setprio {s.opt.get('gp2', 0)}")
        for t in range(s.opt.get('wsplit', 1), 3):
            for l in dW(t): s(l)
            if (s.opt.get('wpre', 3) >> t) & 1: s("s_waitcnt vmcnt(0)")
        s(f"""s_setprio 3
        s_mul_i32 s55, s{sDT}, 80
        s_lshr_b32 s54, s55, 7
        s_mul_i32 s54, s54, {48*FSP}
        s_add_u32 s54, s54, {F_U}
        s_add_u32 s55, s55, 79
        s_lshr_b32 s55, s55, 7
        s_mul_i32 s55, s55, {48*FSP}
        s_add_u32 s55, s55, {F_U}
        s_lshl_b32 s57, s{sST}, 5
        s_add_u32 s57, s57, {F_H}
        v_min_u32 v24, 47, v0
        v_mul_u32_u24 v24, {FSP}, v24
        v_and_b32 v25, 7, v0
        v_lshlrev_b32 v25, 2, v25""")
        s.gpoll([(SY_PA, s.opt.get('utrg', 8))], [(26,1,24,sWS,"s54",0),(27,1,24,sWS,"s55",0),(28,1,25,sWS,"s57",0)], SY_UOK, s.opt.get('usl', 8), lsl=s.opt.get('ulsl', 4))
        s(f"""s_lshl_b32 s54, s{sTK}, 2
        s_add_u32 s54, s54, {GI}
        v_and_b32 v22, 15, v0
        v_lshlrev_b32 v22, 2, v22
        s_setprio {s.opt.get('gp2', 0)}
        buffer_load_dword v22, v22, {srd(sWS)}, s54 offen sc1""")
        s.stamp(6)
        if s.opt.get('dbgy') == 3: s.end_wave()
        for t in range(2):
            for l in lU(t): s(l)
        s("s_waitcnt vmcnt(10)")
        for si in range(4): s(rd(0, si))
        NT = 12
        s(f"""s_mul_i32 s56, s{sJ}, {160*1280}
        s_mul_i32 s54, s{sDT}, 160
        s_add_u32 s56, s56, s54""")
        def wo1(n):
            return f"s_add_u32 m0, s49, {n*1024}\ns_add_u32 s57, s56, {(n//5)*32*1280}\nbuffer_load_dwordx4 v{1+n%5}, {srd(sWO)}, s57 offen lds"
        cnt = []
        for t in range(NT):
            if t == s.opt.get('gp2t', 99): s(f"s_setprio {s.opt.get('gp2b', 0)}")
            nold = s.opt.get('gnold')
            U = lU(t+2) if t+2 < NT and not nold else []
            W = dW(t+3) if t+3 < NT else [wo1(4*(t-9) + q) for q in range(4)]
            if nold and t+3 < NT: W = []
            X = [wo1(18+t if t < 7 else 6+t)] + ([wo1(12)] if t == 10 else [])
            s(f"s_waitcnt vmcnt({cnt[-1] if t else 5})")
            cnt.append(len(U) + len(W) + len(X))
            if t == 9: s.gpost()
            for si in range(4):
                s(f"s_waitcnt lgkmcnt({6 if t+1 < NT else 2*(3-si)})")
                for di in range(5):
                    s(mf(t, si, di if si % 2 == 0 or not s.opt.get('serp', 1) else 4-di))
                    if si == 3 and di < len(W): s(W[di])
                    if si == 1 and di < len(X): s(X[di])
                if t+1 < NT: s(rd(t+1, si))
            for l in U: s(l)
        s.stamp(7)
        if s.opt.get('dbgy') == 1: s.end_wave()
        s("s_setprio 3")
        s.gwait(1)
        ORD = [3, 7, 11, 15] + [t for t in range(20) if t % 4 != 3 or t > 15]
        OB = 64; AC = 24
        NB = 9; FB = [44, 48, 52, 56, 60, 144, 148, 152, 156]
        def rdf(n):
            t, di = divmod(n, 5); b = FB[n % NB]; t = ORD[t]
            if t < 16:
                a = 6 if t < 8 else 7; o = (t % 8)*6400 + 32*di
                return f"ds_read_b64_tr_b16 {vr(b,2)}, v{a} offset:{o}\nds_read_b64_tr_b16 {vr(b+2,2)}, v{a} offset:{o+1280}"
            tp = t-16; a = 8 if tp < 2 else 10; o = (tp % 2)*25600 + 32*di
            return f"ds_read_b64_tr_b16 {vr(b,2)}, v{a} offset:{o}\nds_read_b64_tr_b16 {vr(b+2,2)}, v{a+1} offset:{o}"
        FD = s.opt.get('fd', 7)
        for n in range(FD): s(rdf(n))
        s(f"""v_lshlrev_b32 v13, 4, v0
        s_mul_i32 s54, s{sJ}, 15360
        s_add_u32 s54, s54, {KVB}
        v_add_u32 v1, s54, v13
        s_add_u32 s54, s54, 14336
        s_cmp_eq_u32 s{sJ}, 3
        s_cselect_b32 s54, 19200, s54
        v_add_u32 v2, s54, v13""")
        for n in range(1, 4):
            s(f"s_xor_b32 s54, s{sJ}, {n}\ns_mul_i32 s54, s54, 15360\ns_add_u32 s54, s54, {KVB + (n-1)*5120}\nv_add_u32 v{2+n}, s54, v13")
        s(f"""s_add_u32 s54, s54, 4096
        s_cmp_eq_u32 s{sJ}, 0
        s_cselect_b32 s54, 19200, s54
        v_add_u32 v13, s54, v13
        v_and_b32 v14, 7, v0
        v_lshlrev_b32 v14, 2, v14
        v_add_u32 v14, {SY_PA}, v14
        v_sub_f32 v22, 1.0, v22
        v_mul_f32 v20, v20, v22
        v_and_b32 v15, 31, v0
        v_mul_u32_u24 v15, {FSP}, v15
        v_lshrrev_b32 v16, 5, v0
        v_lshl_add_u32 v15, v16, 2, v15
        s_lshl_b32 s56, s{sTK}, 4
        s_add_u32 s56, s56, {OI}
        s_mul_i32 s54, s{sST}, {32*FSP}
        s_add_u32 s54, s54, {F_O}""")
        s.gpost()
        if s.opt.get('tst'): s.stamp(3)
        s.lds_spin(14, 18, 165, sleep=8)
        s.lds_spin(14, 20, 165, sleep=s.opt.get('esl', 1))
        if s.opt.get('tst'): s.stamp(4)
        for n in range(1, 4):
            for q in range(5):
                e = 5*(n-1) + q
                if e < 14: s(f"ds_write_b128 v1, {vr(ACC+20*n+4*q,4)} offset:{1024*e}")
                else:
                    s.gwait(0)
                    s(f"ds_write_b128 v2, {vr(ACC+20*n+4*q,4)}")
        s("s_waitcnt vmcnt(0)")
        s.gpost(); s.gwait(0)
        if s.opt.get('tst'): s.stamp(5)
        for n in range(1, 4):
            for q in range(5):
                if (n, q) != (3, 4): s(f"ds_read_b128 {vr(ACC+20*n+4*q,4)}, v{2+n} offset:{1024*q}")
                else: s(f"ds_read_b128 {vr(ACC+20*n+4*q,4)}, v13")
        for n in range(1, 4):
            s(f"s_waitcnt lgkmcnt({5*(3-n)})")
            for r in range(0, 20, 2): s(f"v_pk_add_f32 {vr(ACC+r,2)}, {vr(ACC+r,2)}, {vr(ACC+20*n+r,2)}")
        for r in range(0, 20, 2): s(f"v_pk_fma_f32 {vr(AC+r,2)}, {vr(ACC+r,2)}, v[22:23], v[20:21] op_sel_hi:[1,0,0]")
        if s.opt.get('tst'): s.stamp(6)
        s.gpoll([], [(16,1,15,sWS,"s54",0)], SY_OOK, s.opt.get('osl', 1), lsl=s.opt.get('olsl', 1))
        s.stamp(8)
        if s.opt.get('dbgy') == 2: s.end_wave()
        def lO(t): return f"s_add_u32 s57, s56, {ORD[t]*131072}\nbuffer_load_dwordx4 {vr(OB+4*t,4)}, v12, {srd(sWS)}, s57 offen sc1"
        PD = s.opt.get('opd', 8)
        for t in range(PD): s(lO(t))
        for n in range(100):
            t, di = divmod(n, 5)
            w = []
            if di == 0: w.append(f"vmcnt({min(PD-1, 19-t)})")
            wg = {0: (1,1,1,1,1), 1: (3,0,0,2,0), 2: (2,0,2,0,1), 3: (5,0,0,0,0)}[s.opt.get('wg', 1)][di]
            if wg and n+wg-1 >= FD: w.append(f"lgkmcnt({2*min(FD-wg, 99-(n+wg-1))})")
            if w: s("s_waitcnt " + " ".join(w))
            if s.opt.get('wst') and n in (0, 25, 50, 75, 99): s.stamp(3 + (n+1)//25)
            d = vr(AC+4*di,4)
            s(f"v_mfma_f32_16x16x32_bf16 {d}, {vr(FB[n % NB],4)}, {vr(OB+4*t,4)}, {d}")
            if n+FD < 100 and not s.opt.get('wnord'): s(rdf(n+FD))
            if di == 4 and t+PD < 20 and not s.opt.get('wnold'): s(lO(t+PD))
        s(f"s_mul_i32 s54, s{sDT}, 160\ns_nop 7")
        for di in range(5):
            s(f"""v_cvt_pk_bf16_f32 v{2+2*di}, v{AC+4*di}, v{AC+4*di+1}
            v_cvt_pk_bf16_f32 v{3+2*di}, v{AC+4*di+2}, v{AC+4*di+3}
            buffer_store_dwordx2 {vr(2+2*di,2)}, v19, {srd(sOUT)}, s54 offen offset:{32*di}""")

    def text(s):
        s.prologue()
        head = f".globl {s.k}\n.p2align 8\n.type {s.k},@function\n{s.k}:\n"
        return head + "\n".join(s.L) + "\n"

def kd(k):
    return f""".amdhsa_kernel {k}
  .amdhsa_next_free_vgpr 168
  .amdhsa_next_free_sgpr 102
  .amdhsa_accum_offset 168
  .amdhsa_group_segment_fixed_size 0
  .amdhsa_kernarg_size 96
  .amdhsa_user_sgpr_count 2
  .amdhsa_user_sgpr_kernarg_segment_ptr 1
  .amdhsa_system_sgpr_workgroup_id_x 1
.end_amdhsa_kernel
"""

def build(mode="fused", stamps=False, opt=None):
    k = NAME + "_kernel"
    out = f"; @launch grid=(256,1,1) block=(768,1,1) lds={LDS_BYTES}\n"
    out += '.amdgcn_target "amdgcn-amd-amdhsa--gfx950"\n.text\ncode_begin:\n'
    out += Gen(k, stamps, opt).text()
    out += 'code_end:\n.section .rodata,"a"\n.p2align 6\n' + kd(k)
    return out

if __name__ == "__main__":
    mode = sys.argv[1] if len(sys.argv) > 1 else "fused"
    stamps = "stamp" in sys.argv[2]
    opt = {}
    for a in sys.argv[3:]:
        k, v = a.split("="); opt[k] = int(v)
    open(sys.argv[2], "w").write(build(mode, stamps, opt))
```

```python
import sys, math, struct

NAME = "gated_mix__mha_block__mixer_token_mlp__prompt"

QI = 0x000000
KI = 0x280000
VI = 0x500000
HI = 0x780000
UI = 0xA00000
OI = 0xC00000
GI = 0xE80000
FL = 0xE90000
FSP = int(__import__('os').environ.get('FSP', 64))
F_H = FL
F_Q = FL + 256*FSP
F_P = FL + 0x400
F_U = FL + 512*FSP
F_O = FL + 768*FSP
FL_BYTES = 1024*FSP
STAMP = 0xF00000
PI = 0x1000000
WS_BYTES = 0x1800000

GREG = 25600
KVB = 102400
KVS = 11520
LNS = 148480
SYN = 163584
SY_PA = SYN
SY_PG = SYN + 32
SY_QOK = SYN + 52
SY_POK = SYN + 56
SY_UOK = SYN + 60
SY_OOK = SYN + 64
SY_CQ = SYN + 68
SY_CU = SYN + 72
SY_CO = SYN + 76
SY_CP = SYN + 80
DUMMY = 163328
LDS_BYTES = 163840

SPIN_LIMIT = 200000

def fbits(x):
    return "0x%08x" % struct.unpack("<I", struct.pack("<f", x))[0]

sX, sWQ, sWO, sW1, sW2, sWS, sOUT, sDBG = 4, 8, 12, 16, 20, 24, 28, 32
sB1, sB2, sGW = 36, 38, 40
sW, sXC, sI = 42, 43, 44
sSPIN = 45
sRT, sCT = 46, 47
sN1, sD1, sF1 = 3, 100, 101
def srd(n): return f"s[{n}:{n+3}]"
def vr(a, n): return f"v[{a}:{a+n-1}]" if n > 1 else f"v{a}"

class Gen:
    def __init__(s, kname, stamps=False, opt=None):
        s.L = []
        s.k = kname
        s.stamps = stamps
        s.uid = 0
        s.cold = []
        s.opt = opt or {}
    def __call__(s, t):
        for l in t.split("\n"):
            l = l.strip()
            if l: s.L.append("    " + l)
    def lab(s, n):
        s.L.append(f"{s.k}_{n}:")
    def ln(s, n):
        return f"{s.k}_{n}"
    def new(s, base):
        s.uid += 1
        return f"{base}{s.uid}"
    def stamp(s, i):
        if s.stamps:
            s(f"s_memrealtime s[76:77]\ns_memtime s[78:79]\ns_waitcnt lgkmcnt(0)\ns_mov_b32 s{80+2*i}, s76\ns_mov_b32 s{81+2*i}, s78")
    def end_wave(s):
        if 'probe' in s.opt:
            k = s.opt['probe'] % 10; w = s.opt['probe'] // 10
            s.stamp(9)
            lp, nx = s.new("pr"), s.new("pr")
            s(f"""s_cmp_lg_u32 s2, {s.opt.get('pwg', 100)}
            s_cbranch_scc1 {s.ln(nx)}
            s_cmp_lg_u32 s{sW}, {w}
            s_cbranch_scc1 {s.ln(nx)}
            s_add_u32 s46, s{80+2*k}, 10000""")
            s.lab(lp)
            s(f"""s_memrealtime s[76:77]
            s_waitcnt lgkmcnt(0)
            s_sub_u32 s47, s76, s46
            s_cmp_lt_i32 s47, 0
            s_cbranch_scc1 {s.ln(lp)}""")
            s.lab(nx)
            s("s_endpgm")
            return
        if s.stamps:
            s.stamp(9)
            s(f"s_mul_i32 s46, s2, 12\ns_add_u32 s46, s46, s{sW}\ns_lshl_b32 s46, s46, 7\ns_add_u32 s46, s46, {STAMP}")
            s("s_mov_b64 exec, -1\nv_lshlrev_b32 v1, 2, v0\nv_mov_b32 v2, 0")
            for i in range(20): s(f"v_writelane_b32 v2, s{80+i}, {i}")
            s(f"s_mov_b32 exec_hi, 0\nbuffer_store_dword v2, v1, {srd(sWS)}, s46 offen")
        s("s_endpgm")

    def lds_spin(s, vaddr, need, vtmp, off=0, sleep=1):
        a, b = s.new("spin"), s.new("spind")
        s(f"s_mov_b32 s{sSPIN}, {SPIN_LIMIT*4}")
        s.lab(a)
        s(f"""ds_read_b32 v{vtmp}, v{vaddr} offset:{off}
        s_waitcnt lgkmcnt(0)
        v_cmp_gt_u32 vcc, {need}, v{vtmp}
        s_cbranch_vccz {s.ln(b)}
        s_sleep {sleep}
        s_sub_u32 s{sSPIN}, s{sSPIN}, 1
        s_cbranch_scc0 {s.ln(a)}""")
        s.lab(b)

    def spin_ool(s, vaddr, need, vtmp, off=0, sleep=0):
        out, back = s.new("ool"), s.new("back")
        s(f"s_cbranch_vccnz {s.ln(out)}")
        s.lab(back)
        keep = s.L; s.L = []
        s.lab(out)
        s.lds_spin(vaddr, need, vtmp, off=off, sleep=sleep)
        s(f"s_branch {s.ln(back)}")
        s.cold += s.L; s.L = keep
    def flush_cold(s):
        s.L += s.cold; s.cold = []

    def poll_issue(s, loads):
        regs = []
        for (vd, n, vo, r, so, imm) in loads:
            sfx = {1: "dword", 2: "dwordx2", 4: "dwordx4"}[n]
            s(f"buffer_load_{sfx} {vr(vd,n)}, v{vo}, {srd(r)}, {so} offen offset:{imm} sc1")
            regs += list(range(vd, vd+n))
        return regs
    def poll(s, loads, sleep=2, pre=None):
        a, b, c = s.new("poll"), s.new("polld"), s.new("pollc")
        s(f"s_mov_b32 s{sSPIN}, {SPIN_LIMIT}")
        if pre is not None: s(f"s_waitcnt vmcnt({pre})\ns_branch {s.ln(c)}")
        s.lab(a)
        regs = s.poll_issue(loads)
        s("s_waitcnt vmcnt(0)")
        s.lab(c)
        for q in regs[1:]:
            s(f"v_min_u32 v{regs[0]}, v{regs[0]}, v{q}")
        s(f"""v_cmp_eq_u32 vcc, 0, v{regs[0]}
        s_cbranch_vccz {s.ln(b)}
        s_sleep {sleep}
        s_sub_u32 s{sSPIN}, s{sSPIN}, 1
        s_cbranch_scc0 {s.ln(a)}""")
        s.lab(b)

    def set_flag(s, soff, va, vb):
        s(f"""s_mov_b64 exec, 1
        v_mov_b32 v{va}, 0
        v_mov_b32 v{vb}, 1
        buffer_store_dword v{vb}, v{va}, {srd(sWS)}, {soff} offen sc1
        s_mov_b64 exec, -1""")

    def arrive(s, cnt, n, soff, va, vb):
        nx = s.new("arr")
        s(f"""s_mov_b64 exec, 1
        v_mov_b32 v{va}, {cnt}
        v_mov_b32 v{vb}, 1
        s_waitcnt vmcnt(0)
        ds_add_rtn_u32 v{va}, v{va}, v{vb}
        s_waitcnt lgkmcnt(0)
        v_cmp_eq_u32 vcc, {n-1}, v{va}
        v_mov_b32 v{va}, 0
        s_cbranch_vccz {s.ln(nx)}
        buffer_store_dword v{vb}, v{va}, {srd(sWS)}, {soff} offen sc1""")
        s.lab(nx)
        s("s_mov_b64 exec, -1")

    def lds_set(s, addr, val, va, vb):
        s(f"""v_mov_b32 v{va}, {addr}
        v_mov_b32 v{vb}, {val}
        ds_write_b32 v{va}, v{vb}""")

    def kwait(s):
        s("s_waitcnt lgkmcnt(0)")
        if s.stamps: s("s_mov_b32 s80, s76\ns_mov_b32 s81, s78")

    def prologue(s):
        if s.stamps: s("s_memrealtime s[76:77]\ns_memtime s[78:79]")
        s(f"s_cmp_ge_u32 s2, 256\ns_cbranch_scc1 {s.ln('exit')}")
        for reg, off in ((sX,0),(sWS,88)):
            s(f"s_load_dwordx2 s[{reg}:{reg+1}], s[0:1], {off}")
        s(f"s_lshr_b32 s{sI}, s2, 3")
        if s.opt.get('cpf', 1): s.code_prefetch()
        for reg, off in ((sWQ,8),(sGW,64),(sDBG,80),(sW1,32),(sW2,48),(sWO,16),(sOUT,72),(sB1,40),(sB2,56)):
            s(f"s_load_dwordx2 s[{reg}:{reg+1}], s[0:1], {off}")
        s("v_lshrrev_b32 v1, 6, v0\nv_and_b32 v0, 63, v0")
        s(f"v_readfirstlane_b32 s{sW}, v1")
        s(f"s_mov_b32 s{sX+3}, 0x00020000")
        for reg, n in ((sX,2621440),(sWQ,2457600),(sWO,819200),(sW1,6291456),(sW2,f"s{sW1+2}"),(sWS,WS_BYTES),(sOUT,f"s{sX+2}"),(sDBG,256)):
            s(f"s_mov_b32 s{reg+2}, {n}")
            if reg != sX: s(f"s_mov_b32 s{reg+3}, s{sX+3}")
        s(f"s_and_b32 s{sXC}, s2, 7")
        if s.stamps:
            for i in range(1, 10): s(f"s_mov_b32 s{80+2*i}, 0")
        s(f"""s_and_b32 s{sRT}, s{sXC}, 3
        s_lshl_b32 s{sRT}, s{sRT}, 2
        s_and_b32 s48, s{sI}, 3
        s_add_u32 s{sRT}, s{sRT}, s48
        s_lshr_b32 s49, s{sXC}, 2
        s_lshl_b32 s{sCT}, s49, 3
        s_lshr_b32 s48, s{sI}, 2
        s_add_u32 s{sCT}, s{sCT}, s48
        s_lshl_b32 s{sN1}, s49, 5
        s_add_u32 s{sN1}, s{sN1}, s{sI}
        s_min_u32 s{sN1}, s{sN1}, 59
        s_mul_i32 s{sF1}, s{sN1}, 52
        s_lshr_b32 s{sF1}, s{sF1}, 8
        s_mul_i32 s48, s{sF1}, 5
        s_sub_u32 s{sD1}, s{sN1}, s48
        s_cmp_ge_u32 s{sW}, 8
        s_cbranch_scc1 {s.ln('grole')}
        s_cmp_eq_u32 s{sCT}, 15
        s_cbranch_scc1 {s.ln('idle')}
        s_cmp_lt_u32 s{sW}, 4
        s_cbranch_scc1 {s.ln('qkv_comp')}""")
        s.loader()
        s(f"s_branch {s.ln('att')}")
        s.lab("idle")
        s.kwait()
        nx = s.new("idle")
        s(f"""s_cmp_lg_u32 s{sW}, 0
        s_cbranch_scc1 {s.ln(nx)}
        v_lshlrev_b32 v1, 4, v0
        v_mov_b32 v4, 0
        v_mov_b32 v5, 0
        v_mov_b32 v6, 0
        v_mov_b32 v7, 0
        s_mul_i32 s52, s{sRT}, {FL_BYTES//16}
        s_add_u32 s52, s52, {FL}""")
        for n in range(FL_BYTES//16384):
            s(f"buffer_store_dwordx4 v[4:7], v1, {srd(sWS)}, s52 offen offset:{(n&3)*1024} sc1")
            if n & 3 == 3: s("s_add_u32 s52, s52, 4096")
        s(f"""s_lshl_b32 s52, s{sRT}, 2
        s_mov_b64 exec, 1
        s_waitcnt vmcnt(0)
        v_mov_b32 v5, 1
        buffer_store_dword v5, v4, {srd(sDBG)}, s52 offen sc1
        s_mov_b64 exec, -1""")
        s.lab(nx)
        for _ in range(16): s("s_barrier")
        s(f"s_cmp_lt_u32 s{sW}, 4\ns_cbranch_scc1 {s.ln('att')}\ns_barrier\ns_barrier\ns_branch {s.ln('att')}")
        s.lab("qkv_comp")
        s.qkv_compute()
        s.lab("att")
        s.attention()
        s.end_wave()
        s.flush_cold()
        s.att_slow()
        s.lab("grole2")
        s.grole()
        s.end_wave()
        s.lab("exit")
        s("s_endpgm")

    def code_prefetch(s):
        here, nx = s.new("pc"), s.new("pc")
        s("s_getpc_b64 s[50:51]")
        s.lab(here)
        s(f"""s_lshl_b32 s52, s{sI}, 3
        v_cmp_gt_u32 vcc, 64, v0
        v_add_u32 v1, s52, v0
        s_movk_i32 s54, 72
        v_cmp_gt_u32 s[52:53], s54, v0
        v_cndmask_b32 v1, v1, v0, vcc
        v_lshlrev_b32 v1, 7, v1
        v_min_u32 v1, code_end-{s.ln(here)}-4, v1
        s_mov_b64 exec, s[52:53]
        s_cbranch_execz {s.ln(nx)}
        global_load_dword v165, v1, s[50:51]""")
        s.lab(nx)
        s("s_mov_b64 exec, -1")

    def loader(s):
        if s.opt.get('lprio'): s(f"s_setprio {s.opt['lprio']}")
        s(f"""s_sub_u32 s48, s{sW}, 4
        v_lshrrev_b32 v1, 3, v0
        s_lshl_b32 s49, s48, 5
        v_add_u32 v1, s49, v1
        v_mul_u32_u24 v1, 1280, v1
        v_lshrrev_b32 v2, 4, v0
        v_and_b32 v3, 7, v0
        v_xor_b32 v3, v3, v2
        v_xor_b32 v4, 4, v3
        v_lshl_add_u32 v8, v3, 4, v1
        v_lshl_add_u32 v9, v4, 4, v1
        v_add_u32 v9, {10240-1024}, v9
        v_add_u32 v10, {2*(10240-1024)}, v8
        v_add_u32 v11, {2*(10240-1024)}, v9
        s_lshl_b32 s49, s48, 4
        v_add_u32 v1, s49, v2
        v_mul_u32_u24 v1, 3840, v1
        v_lshlrev_b32 v2, 2, v2
        v_and_b32 v3, 15, v0
        v_xor_b32 v3, v3, v2
        v_lshl_add_u32 v12, v3, 4, v1
        v_add_u32 v13, {15360-1024}, v12
        v_add_u32 v14, {2*(15360-1024)}, v12
        v_add_u32 v15, {3*(15360-1024)}, v12
        s_mul_i32 s50, s{sRT}, {128*1280}
        s_lshl_b32 s51, s{sCT}, 8
        s_lshl_b32 s52, s48, 12""")
        nt = " nt" if s.opt.get('qnt') else ""
        rot = s.opt.get('qrot', 2)
        if rot in (1, 2):
            s(f"""s_and_b32 s53, s{sI}, 3
            s_mul_i32 s53, s53, 5
            s_lshr_b32 s53, s53, 1
            s_lshr_b32 s54, s{sI}, 2
            s_add_u32 s53, s53, s54""")
            if rot == 2: s(f"s_and_b32 s54, s{sXC}, 3\ns_add_u32 s53, s53, s54")
            s("s_cmp_ge_u32 s53, 10\ns_cselect_b32 s54, 10, 0\ns_sub_u32 s53, s53, s54")
        elif rot == 0:
            s("s_mov_b32 s53, 0")
        else:
            T = {3: ["0412385679", "1250349678", "2306145789", "3012745689"],
                 4: ["0123456789", "1230567498", "2301674589", "3012745698"],
                 5: ["0213546879", "1032457698", "0132547689", "1023456798"],
                 6: ["0216354879", "1032745698", "0132485679", "1023549678"],
                 7: ["0123456789", "1032547698", "0123456789", "1032547698"],
                 8: ["0142356879", "1023547698", "0213465789", "1302457689"]}[rot]
            def enc(o):
                v = 0
                for j, ch in enumerate(o): v |= int(ch) << (4*j)
                return v
            s(f"""s_lshr_b32 s54, s{sI}, 2
            s_add_u32 s54, s54, s{sI}
            s_bitcmp1_b32 s54, 0
            s_cselect_b32 s56, {enc(T[1]) & 0xffffffff}, {0}
            s_cselect_b32 s57, {enc(T[1]) >> 32}, {0}
            s_cselect_b32 s58, {enc(T[3]) & 0xffffffff}, {0}
            s_cselect_b32 s59, {enc(T[3]) >> 32}, {0}
            s_cselect_b32 s60, 0, {enc(T[0]) & 0xffffffff}
            s_cselect_b32 s61, 0, {enc(T[0]) >> 32}
            s_cselect_b32 s62, 0, {enc(T[2]) & 0xffffffff}
            s_cselect_b32 s63, 0, {enc(T[2]) >> 32}
            s_or_b64 s[56:57], s[56:57], s[60:61]
            s_or_b64 s[58:59], s[58:59], s[62:63]
            s_bitcmp1_b32 s54, 1
            s_cselect_b64 s[56:57], s[58:59], s[56:57]
            s_and_b32 s53, s56, 15""")
        def issue(t):
            s(f"""s_lshl_b32 s54, s53, 7
            s_add_u32 m0, s52, {(t&3)*32768}
            s_add_u32 s54, s54, s50""")
            for n in range(4):
                s(f"buffer_load_dwordx4 v{8+n}, {srd(sX)}, s54 offen offset:{1024*n}{nt} lds")
            s(f"""s_mul_i32 s54, s53, {64*3840}
            s_add_u32 m0, s52, {(t&3)*32768+16384}
            s_add_u32 s54, s54, s51""")
            for n in range(4):
                s(f"buffer_load_dwordx4 v{12+n}, {srd(sWQ)}, s54 offen offset:{1024*n}{nt} lds")
            if rot < 3: s("s_add_u32 s53, s53, 1\ns_cmp_eq_u32 s53, 10\ns_cselect_b32 s53, 0, s53")
            else: s("s_lshr_b64 s[56:57], s[56:57], 4\ns_and_b32 s53, s56, 15")
        def issue1(t):
            s(f"""s_mul_i32 s54, s53, {64*1280}
            s_add_u32 m0, s52, {(t&3)*32768}
            s_add_u32 s54, s54, s50""")
            for n in range(4):
                s(f"buffer_load_dwordx4 v{16+n}, {srd(sWS)}, s54 offen offset:{1024*n} sc1 lds")
            s(f"""s_mul_i32 s54, s53, {64*3072}
            s_add_u32 m0, s52, {(t&3)*32768+16384}
            s_add_u32 s54, s54, s51""")
            for n in range(4):
                s(f"buffer_load_dwordx4 v{20+n}, {srd(sW1)}, s54 offen offset:{1024*n} lds")
            s("s_add_u32 s53, s53, 1\ns_and_b32 s53, s53, 7")
        pfq = s.opt.get('pfq', 1)
        tpf = s.opt.get('tpf', 1)
        stag = s.opt.get('stag', 2)
        pfts = [tpf + k for k in range({0: 1, 1: 4}.get(stag, s.opt.get('nsl', 6)))] if pfq else []
        th = s.opt.get('th', 7)
        ops = []
        s.kwait()
        if s.opt.get('b0st'): s.stamp(3)
        issue(0)
        if s.opt.get('b0st'): s.stamp(4)
        npre = s.opt.get('npre', 1)
        ops += [('s', 0)]
        if npre == 2: issue(1); ops += [('s', 1)]
        if s.opt.get('b0st'): s.stamp(5)
        s(f"""v_lshrrev_b32 v2, 4, v0
        v_add_u32 v2, s49, v2
        v_mul_u32_u24 v1, 3072, v2
        v_lshl_add_u32 v20, v3, 4, v1
        v_add_u32 v21, {12288-1024}, v20
        v_add_u32 v22, {2*(12288-1024)}, v20
        v_add_u32 v23, {3*(12288-1024)}, v20
        v_mul_u32_u24 v1, 1280, v2
        v_lshl_add_u32 v16, v3, 4, v1
        v_add_u32 v17, 4096, v16
        v_add_u32 v18, 8192, v16
        v_add_u32 v19, 12288, v16
        s_and_b32 s66, s{sXC}, 3
        s_lshl_b32 s55, s66, 8
        s_add_u32 s55, s55, {F_H}
        v_lshlrev_b32 v2, 2, v0
        s_lshr_b32 s67, s{sI}, 2
        s_add_u32 s67, s67, s{sI}
        s_and_b32 s67, s67, 3
        s_cmp_ge_u32 s{sXC}, 4
        s_cselect_b32 s60, 12, 14
        s_cselect_b32 s61, 5, 4
        s_mov_b32 s62, {-(-65536//14)}
        s_cmov_b32 s62, {-(-65536//12)}
        s_cselect_b32 s63, 1536, 0
        s_mul_i32 s64, s60, s61
        s_sub_u32 s64, s64, 1
        v_min_u32 v1, s64, v0
        v_mul_u32_u24 v4, s62, v1
        v_lshrrev_b32 v4, 16, v4
        v_mul_u32_u24 v5, s60, v4
        v_sub_u32 v1, v1, v5
        s_lshl_b32 s64, s{sI}, 2
        s_add_u32 s64, s64, s48
        s_mul_i32 s64, s64, s61
        v_add_u32 v4, s64, v4
        v_min_u32 v4, 511, v4
        v_mul_u32_u24 v4, 3072, v4
        v_lshl_add_u32 v1, v1, 7, v4
        s_mul_i32 s64, s66, {512*3072}
        s_add_u32 s64, s64, s63""")
        if stag == 2: s(f"s_mul_i32 s67, s{sI}, s61\ns_mul_i32 s67, s67, {s.opt.get('nsl', 6)}\ns_lshr_b32 s67, s67, 7")
        if npre == 1: issue(1); ops += [('s', 1)]
        over = s.new("over")
        s(f"s_branch {s.ln(over)}")
        s.lab("grole")
        s.gfront()
        s(f"s_branch {s.ln('grole2')}")
        s.lab(over)
        if s.opt.get('b0st'): s.stamp(6)
        hl = [(3,1,2,sWS,"s55",0)]
        def younger(tag):
            k = ops.index(tag)
            return sum(8 if o[0] == 's' else 1 for o in ops[k+1:])
        for t in range(18):
            s(f"s_waitcnt vmcnt({younger(('s', t))})")
            if s.opt.get('ldstamp') and s.opt['ldstamp'] <= t < s.opt['ldstamp']+6: s.stamp(3 + t - s.opt['ldstamp'])
            if s.opt.get('b0st') and t == 0: s.stamp(7)
            s("s_barrier")
            if t == 0: s.stamp(1)
            if t == 8:
                if not s.opt.get('noln'): s.poll(hl, sleep=8, pre=younger(('h', th)))
                s(f"""s_mul_i32 s50, s66, {512*1280}
                s_lshl_b32 s54, s{sD1}, 8
                s_add_u32 s50, s50, s54
                s_add_u32 s50, s50, {HI}
                s_mul_i32 s51, s66, {512*3072}
                s_lshl_b32 s54, s{sF1}, 8
                s_add_u32 s51, s51, s54""")
                r1 = s.opt.get('g1rot', 0)
                if r1 == 0: s("s_mov_b32 s53, 0")
                if r1 == 1: s(f"s_and_b32 s53, s{sF1}, 7")
                if r1 == 2: s(f"s_lshl_b32 s53, s{sD1}, 1\ns_add_u32 s53, s53, s{sF1}\ns_and_b32 s53, s53, 7")
            if t == th:
                s.poll_issue(hl); ops.append(('h', t))
            if t+2 <= 9: issue(t+2); ops.append(('s', t+2))
            elif t+2 <= 17: issue1(t+2); ops.append(('s', t+2))
            if t in pfts:
                if stag: s(f"s_cmp_eq_u32 s67, {t - tpf}\ns_cselect_b32 s54, s64, 0x1000000")
                s(f"buffer_load_dword v165, v1, {srd(sW1)}, s{54 if stag else 64} offen{' nt' if s.opt.get('pfnt') else ''}")
                ops.append(('x', t))
                if s.opt.get('pfnt') == 2:
                    s(f"buffer_load_dword v166, v1, {srd(sW1)}, s{54 if stag else 64} offen sc1"); ops.append(('y', t))
        s.stamp(2)
        if s.opt.get('ldstamp'): s.end_wave()

    def gemm_ops(s, xaddr, aW):
        ACC, F = 64, (32, 48, 128, 144)
        def tr(b, a, o): return [f"ds_read_b64_tr_b16 {vr(b,2)}, v{a} offset:{o}", f"ds_read_b64_tr_b16 {vr(b+2,2)}, v{a} offset:{o+1024}"]
        def reads(buf, sl, ks):
            b = F[buf]; o = sl*32768
            L = []
            for i in range(2):
                if isinstance(xaddr, int): L += tr(b+4*i, xaddr+i, o+ks*4096)
                else:
                    a0, o0 = xaddr(i, ks); L.append(f"ds_read_b128 {vr(b+4*i,4)}, v{a0} offset:{o+o0}")
                L += tr(b+8+4*i, aW+i, o+ks*4096)
            return L
        def mf(buf, i, j, isv):
            b = F[buf]; xa = vr(b+4*i,4); wa = vr(b+8+4*j,4); d = vr(ACC+16*(2*i+j),16)
            return f"v_mfma_f32_32x32x16_bf16 {d}, {xa if isv else wa}, {wa if isv else xa}, {d}"
        return reads, mf
    def gemm_loop(s, reads, mf, isv, tog6, tog7, scnt, skip_last):
        lp = s.new("gl")
        s.lab(lp)
        for n in range(8):
            buf = n & 3
            R = reads((n+2) & 3, ((n+2) >> 2) & 1, (n+2) & 3)
            s(f"s_waitcnt lgkmcnt({len(R)})")
            c1, c2 = (2, 4) if len(R) == 6 else (3, 6)
            s(mf(buf,0,0,isv))
            if n == 6:
                for a in tog6: s(f"v_xor_b32 v{a}, 0x10000, v{a}")
            if n == 7:
                for a in tog7: s(f"v_xor_b32 v{a}, 0x10000, v{a}")
            if n == 6 and skip_last:
                nx = s.new("nb")
                s(f"s_cmp_eq_u32 s{scnt}, 1\ns_cbranch_scc1 {s.ln(nx)}\ns_barrier")
                s.lab(nx)
            elif buf == 2: s("s_barrier")
            s("\n".join(R[:c1]))
            s(mf(buf,1,0,isv))
            s("\n".join(R[c1:c2]))
            s(mf(buf,0,1,isv))
            s("\n".join(R[c2:]))
            s(mf(buf,1,1,isv))
        s(f"s_sub_u32 s{scnt}, s{scnt}, 1\ns_cmp_lg_u32 s{scnt}, 0\ns_cbranch_scc1 {s.ln(lp)}")

    def qkv_compute(s):
        ACC = 64
        s.kwait()
        if s.opt.get('b0st'): s.stamp(5)
        s(f"""s_and_b32 s48, s{sW}, 1
        s_lshr_b32 s49, s{sW}, 1
        v_and_b32 v8, 31, v0
        v_lshrrev_b32 v9, 5, v0
        s_lshl_b32 s50, s48, 13
        v_lshl_add_u32 v10, v8, 7, s50
        v_bfe_u32 v11, v0, 1, 3
        v_xor_b32 v11, v11, v9""")
        for ks in range(4):
            s(f"v_xor_b32 v12, {2*ks}, v11\nv_lshl_add_u32 v{2+ks}, v12, 4, v10")
        s(f"""v_bfe_u32 v11, v0, 2, 2
        v_lshl_add_u32 v12, v9, 3, v11
        v_lshlrev_b32 v12, 8, v12
        v_bfe_u32 v13, v0, 4, 1
        v_lshl_add_u32 v12, v13, 5, v12
        v_and_b32 v13, 3, v0
        v_lshl_add_u32 v12, v13, 3, v12
        v_add_u32 v12, 16384, v12
        s_lshl_b32 s50, s49, 1
        v_xor_b32 v11, s50, v11
        v_lshl_add_u32 v6, v11, 6, v12
        v_xor_b32 v7, 64, v6""")
        for r in range(64): s(f"v_mov_b32 v{ACC+r}, 0")
        reads, mf = s.gemm_ops(lambda i, ks: (2+ks, 4096*i), 6)
        if s.opt.get('b0st'): s.stamp(7)
        s(f"s_setprio {s.opt.get('cprio', 2)}\ns_barrier")
        s.stamp(1)
        for l in reads(0,0,0) + reads(1,0,1): s(l)
        s(f"s_mov_b32 s51, 5\ns_cmp_ge_u32 s47, 10\ns_cbranch_scc1 {s.ln('qkv_v')}")
        for isv in (0, 1):
            if isv: s.lab("qkv_v")
            s.gemm_loop(reads, mf, isv, (2,6,7), (3,4,5), 51, False)
            s(f"s_setprio {s.opt.get('eprio', 3)}")
            nb = [10]
            def bar():
                nb[0] += 1; s("s_barrier")
            cuts = {0: (0,), 1: (0, 4), 2: (0, 3, 6), 3: (0, 2, 4, 6), 4: (4,), 5: (2, 6)}[s.opt.get('ecut', 4)]
            s.stamp(2)
            P = 32
            if not isv:
                s(f"""s_cmp_lt_u32 s47, 5
                s_cselect_b32 s52, {fbits(20**-0.5*math.log2(math.e))}, 1.0
                s_mov_b32 s53, s52
                v_lshlrev_b32 v2, 15, v9
                v_lshl_add_u32 v2, v8, 4, v2
                s_lshl_b32 s54, s47, 4
                s_lshl_b32 s55, s49, 3
                s_add_u32 s54, s54, s55
                s_lshl_b32 s54, s54, 15
                s_lshl_b32 s55, s46, 11
                s_add_u32 s54, s54, s55
                s_lshl_b32 s55, s48, 10
                s_add_u32 s54, s54, s55
                s_waitcnt lgkmcnt(0)""")
            else:
                s(f"""s_sub_u32 s54, s47, 10
                s_lshl_b32 s54, s54, 7
                s_lshl_b32 s55, s49, 6
                s_add_u32 s54, s54, s55
                v_add_u32 v4, s54, v8
                v_mul_u32_u24 v6, 320, v9""")
                for j in range(2):
                    s(f"""v_mul_u32_u24 v5, 3277, v4
                    v_lshrrev_b32 v5, 16, v5
                    v_mul_u32_u24 v{2+j}, {81920-320}, v5
                    v_lshl_add_u32 v{2+j}, v4, 4, v{2+j}
                    v_add_u32 v{2+j}, v{2+j}, v6
                    v_add_u32 v4, 32, v4""")
                s(f"""s_lshl_b32 s54, s46, 1
                s_add_u32 s54, s54, s48
                s_mul_i32 s54, s54, {8*320}
                s_add_u32 s54, s54, {VI}
                s_waitcnt lgkmcnt(0)""")
            n = 0
            for j in range(2):
                for gp in range(2):
                    for i in range(2):
                        a = ACC + 16*(2*i+j) + 8*gp
                        if n in cuts: bar()
                        p = P + 4*(n % 8); n += 1
                        if not isv:
                            for q in range(4):
                                s(f"v_pk_mul_f32 {vr(a+2*q,2)}, {vr(a+2*q,2)}, s[52:53]")
                        for q in range(4):
                            s(f"v_cvt_pk_bf16_f32 v{p+q}, v{a+2*q}, v{a+2*q+1}")
                        s(f"s_nop 1\nv_permlane32_swap_b32 v{p}, v{p+2}\nv_permlane32_swap_b32 v{p+1}, v{p+3}")
                        if s.opt.get('nost'): pass
                        elif not isv:
                            s(f"buffer_store_dwordx4 {vr(p,4)}, v2, {srd(sWS)}, s54 offen offset:{512*i} sc1")
                        else:
                            s(f"buffer_store_dwordx4 {vr(p,4)}, v{2+j}, {srd(sWS)}, s54 offen offset:{(4*i+2*gp)*320} sc1")
                    if not isv: s("s_add_u32 s54, s54, 65536")
            if not isv: s(f"s_branch {s.ln('qkv_pub')}")
        s.lab("qkv_pub")
        s(f"""s_lshl_b32 s54, s47, 4
        s_add_u32 s54, s54, s46
        s_mul_i32 s54, s54, {FSP}
        s_add_u32 s54, s54, {F_Q}""")
        while nb[0] < s.opt.get('barr', 12): bar()
        s("s_waitcnt vmcnt(0)")
        bar()
        nx = s.new("q")
        s(f"s_cmp_lg_u32 s{sW}, 0\ns_cbranch_scc1 {s.ln(nx)}")
        s.set_flag("s54", 4, 5)
        s.lab(nx)
        s.stamp(3)
        while nb[0] < 15: bar()

    def attention(s):
        Q1, Q2, K1, K2, V0, V1 = 8, 12, 16, 14, 20, 24
        S = (32, 48); O = 64
        aK1, aK2, aV, vK, vV, vIDX, aPW, vPR, aPR, vPC = 2, 3, 4, 5, 6, 7, 28, 29, 30, 31
        sH, sQB, sP, sODD, sKO, sVO, sMK, sMV, sN, sNEED, sTOK = 48, 49, 50, 51, 52, 53, 54, 55, 56, 3, 100
        EK, EV = "s[58:59]", "s[60:61]"
        sKB, sVB = 62, 63
        s(f"""s_setprio 3
        s_lshl_b32 s{sH}, s{sXC}, 2
        s_and_b32 s57, s{sI}, 3
        s_add_u32 s{sH}, s{sH}, s57
        s_lshr_b32 s{sQB}, s{sI}, 2
        s_lshr_b32 s{sP}, s{sH}, 1
        s_and_b32 s{sODD}, s{sH}, 1
        s_mov_b32 s58, -1
        s_mov_b32 s59, 0xffff
        s_mov_b32 s60, 0xffefffff
        s_mov_b32 s61, 0x1ff
        s_mul_i32 s{sKB}, s{sP}, {5*32768}
        s_add_u32 s{sKB}, s{sKB}, {KI}
        s_mul_i32 s{sVB}, s{sH}, 81920
        s_add_u32 s{sVB}, s{sVB}, {VI}
        s_mul_i32 s{sMK}, s{sW}, 768
        s_add_u32 s{sMK}, s{sMK}, {KVB}
        s_mul_i32 s{sMV}, s{sW}, 672
        s_add_u32 s{sMV}, s{sMV}, {KVB+6144}
        s_lshl_b32 s{sTOK}, s{sQB}, 8
        s_lshl_b32 s57, s{sW}, 5
        s_add_u32 s{sTOK}, s{sTOK}, s57
        v_and_b32 v80, 31, v0
        v_lshrrev_b32 v81, 5, v0
        v_and_b32 v82, 15, v0
        v_lshrrev_b32 v83, 4, v0""")
        s(f"""s_mul_i32 s57, s{sODD}, 3
        v_add_u32 v84, s57, v83
        v_cmp_gt_u32 vcc, 2, v83
        s_lshl_b32 s64, s{sW}, 8
        s_nop 0
        v_cndmask_b32 v84, 2, v84, vcc
        v_lshlrev_b32 v84, 15, v84
        v_lshl_add_u32 v84, v82, 4, v84
        v_add_u32 v{vK}, s64, v84""")
        s(f"""v_cmp_lt_u32 vcc, 20, v0
        s_mul_i32 s64, s{sW}, 640
        v_subrev_u32 v84, 1, v0
        v_cndmask_b32 v84, v0, v84, vcc
        v_lshlrev_b32 v84, 4, v84
        v_add_u32 v{vV}, s64, v84""")
        s(f"""v_bfe_u32 v84, v0, 4, 1
        v_mul_u32_u24 v84, 768, v84
        v_lshl_add_u32 v84, v82, 4, v84
        v_add_u32 v84, {KVB}, v84
        v_lshl_add_u32 v{aK1}, v81, 8, v84
        v_lshl_add_u32 v{aK2}, v81, 3, v84
        v_add_u32 v{aK2}, 512, v{aK2}
        v_min_u32 v84, 20, v80
        v_subrev_u32 v85, 12, v80
        v_cmp_lt_u32 vcc, 27, v80
        v_mul_u32_u24 v86, 336, v81
        v_mov_b32 v{vIDX}, 0xdddd
        v_cndmask_b32 v84, v84, v85, vcc
        v_lshl_add_u32 v84, v84, 4, v86
        v_add_u32 v{aV}, {KVB+6144}, v84
        s_lshl_b32 s64, s{sW}, 2
        s_add_u32 s64, s64, {SY_PA}
        v_mov_b32 v{aPW}, s64
        v_and_b32 v84, 7, v0
        v_lshlrev_b32 v84, 2, v84
        v_add_u32 v{aPR}, {SY_PA}, v84
        v_mov_b32 v{vPC}, 1""")
        zr = s.opt.get('zr', 3)
        if zr & 1:
            s(f"""s_mov_b32 exec_lo, 0xfee00000
            s_mov_b32 exec_hi, 0xfee00000
            v_mov_b32 v{aV}, 0x30000
            s_mov_b64 exec, -1""")
        if zr & 2:
            s(f"""s_sub_u32 exec_hi, s{sODD}, 1
            s_not_b32 exec_lo, exec_hi
            v_mov_b32 v{aK2}, 0x30000
            s_mov_b64 exec, -1""")
        for r in range(16): s(f"v_mov_b32 v{O+r}, 0")
        for r in range(8): s(f"v_mov_b32 v{S[1]+8+r}, 0")
        for r in range(4): s(f"v_mov_b32 v{V1+r}, 0")
        s(f"""s_mul_i32 s57, s{sODD}, 3
        v_add_u32 v93, s57, v81
        v_lshlrev_b32 v93, 15, v93
        v_lshl_add_u32 v93, v80, 4, v93
        v_lshlrev_b32 v94, 4, v80
        v_lshl_add_u32 v94, v81, 3, v94
        v_add_u32 v94, 0x10000, v94
        v_lshlrev_b32 v95, 2, v80
        s_lshl_b32 s70, s{sTOK}, 4
        s_add_u32 s70, s70, s{sKB}
        s_sub_u32 s70, s70, {KI-QI}
        s_lshl_b32 s71, s{sTOK}, 2
        s_add_u32 s71, s71, {GI}
        """)
        def dma(slot):
            return [f"s_add_u32 m0, s{sMK}, {slot*KVS}",
                    f"s_mov_b64 exec, {EK}",
                    f"buffer_load_dwordx4 v{vK}, {srd(sWS)}, s{sKO} offen sc1 lds",
                    f"s_add_u32 m0, s{sMV}, {slot*KVS}",
                    f"s_mov_b64 exec, {EV}",
                    f"buffer_load_dwordx4 v{vV}, {srd(sWS)}, s{sVO} offen sc1 lds",
                    f"s_mov_b64 exec, -1",
                    f"s_add_u32 s{sKO}, s{sKO}, 2048",
                    f"s_add_u32 s{sVO}, s{sVO}, 5120"]
        D0 = dma(0)
        s(f"s_mov_b32 s{sKO}, s{sKB}\ns_mov_b32 s{sVO}, s{sVB}")
        hi, w1, w23, nidle = s.new("a"), s.new("a"), s.new("a"), s.new("a")
        ql = [(88,1,85,sWS,"s64",0),(89,1,84,sWS,"s64",0),(90,1,95,sWS,"s65",0)][:2 if s.opt.get('noln') else 3]
        s(f"""s_cmp_ge_u32 s{sW}, 4
        s_cbranch_scc1 {s.ln(hi)}
        s_cmp_lg_u32 s{sW}, 0
        s_cbranch_scc1 {s.ln(w1)}
        s_mul_i32 s64, s{sP}, 5
        s_lshl_b32 s65, s{sODD}, 1
        s_add_u32 s64, s64, s65
        v_bfe_u32 v86, v0, 4, 1
        v_lshl_add_u32 v84, v86, 1, s64
        v_lshrrev_b32 v84, 4, v84
        s_mul_i32 s64, s{sH}, 20
        v_mul_u32_u24 v85, 19, v86
        v_add_u32 v85, s64, v85
        v_lshrrev_b32 v85, 7, v85
        v_add_u32 v85, 5, v85
        v_cmp_eq_u32 vcc, 0, v81
        s_lshl_b32 s64, s{sQB}, 1
        v_and_b32 v87, 1, v0
        v_cndmask_b32 v85, v85, v84, vcc
        v_add_u32 v85, 5, v85
        v_lshl_add_u32 v85, v85, 4, v82
        v_mul_u32_u24 v85, {FSP}, v85
        v_add_u32 v87, s64, v87
        v_lshl_add_u32 v84, v84, 4, v87
        v_mul_u32_u24 v84, {FSP}, v84
        s_barrier
        s_cmp_lg_u32 s{sCT}, 15
        s_cbranch_scc1 {s.ln(nidle)}
        s_mul_i32 s64, s{sRT}, {FSP}
        s_add_u32 s64, s64, {F_Q + 14*16*FSP}
        v_mov_b32 v86, 0""")
        s.poll([(88,1,86,sWS,"s64",0)], sleep=8)
        s.lab(nidle)
        s(f"""s_mov_b32 s64, {F_Q}
        s_lshl_b32 s65, s{sQB}, 7
        s_add_u32 s65, s65, {F_H}""")
        if s.opt.get('epoll', 1):
            s.poll_issue(ql)
            s("s_barrier")
            s.poll(ql, sleep=s.opt.get('psl', 4), pre=0)
        else:
            s("s_barrier")
            s.poll(ql, sleep=s.opt.get('psl', 4))
        s.lds_set(SY_QOK, 1, 84, 85)
        s(f"s_branch {s.ln(hi)}")
        s.lab(w1)
        s(f"""s_barrier
        s_barrier
        s_cmp_lg_u32 s{sW}, 1
        s_cbranch_scc1 {s.ln(hi)}
        v_mul_u32_u24 v84, {KVS}, v83
        v_mul_u32_u24 v85, 336, v82
        v_add_u32 v84, v84, v85
        v_add_u32 v84, {KVB+6144+320}, v84
        v_mov_b32 v88, 0x3f803f80
        v_mov_b32 v89, 0x3f803f80
        v_mov_b32 v90, 0x3f803f80
        v_mov_b32 v91, 0x3f803f80
        ds_write_b128 v84, v[88:91]""")
        s.lab(hi)
        s(f"v_mov_b32 v86, {SY_QOK}")
        s.lds_spin(86, 1, 87)
        s.stamp(4)
        if s.opt.get('dbgx') == 2 or s.opt.get('ldstamp'): s.end_wave()
        s("\n".join(D0))
        s(f"""buffer_load_dwordx4 {vr(Q1,4)}, v93, {srd(sWS)}, s70 offen sc1
        buffer_load_dwordx2 {vr(Q2,2)}, v94, {srd(sWS)}, s70 offen sc1""")
        for l in dma(1): s(l)
        ystag = s.opt.get('ystag', 1)
        if ystag:
            nx = s.new("ys")
            s(f"s_cmp_ge_u32 s{sW}, 4\ns_cbranch_scc1 {s.ln(nx)}")
        for l in dma(2): s(l)
        if ystag:
            nx2 = s.new("ys")
            s(f"s_branch {s.ln(nx2)}")
            s.lab(nx)
            s("s_waitcnt vmcnt(2)")
            s.lab(nx2)
        if s.opt.get('nodma'):
            for l in dma(3): s(l)
            s("s_waitcnt vmcnt(0)")
        s(f"buffer_load_dword v92, v95, {srd(sWS)}, s71 offen sc1")
        s(f"""s_waitcnt vmcnt(5) lgkmcnt(0)
        ds_write_b32 v{aPW}, v{vPC}
        v_cmp_eq_u32 vcc, s{sODD}, v81
        v_add_u32 v{vPC}, 1, v{vPC}
        s_mov_b32 s{sNEED}, 2
        v_cndmask_b32 v{Q2}, 0, v{Q2}, vcc
        v_cndmask_b32 v{Q2+1}, 0, v{Q2+1}, vcc""")
        s.lds_spin(aPR, 1, vPR)
        s.stamp(5)
        def off(T):
            T %= 16
            return (T >> 2)*KVS, T & 3
        def rK1(T):
            b, tt = off(T); return f"ds_read_b128 {vr(K1,4)}, v{aK1} offset:{b+tt*1536}"
        def rK2(T):
            b, tt = off(T); return f"ds_read_b64 {vr(K2,2)}, v{aK2} offset:{b+tt*1536}"
        def rV(T, a):
            b, tt = off(T); return f"ds_read_b128 {vr((V0,V1)[a],4)}, v{aV} offset:{b+(4*tt+2*a)*336}"
        def qk0(d): return f"v_mfma_f32_32x32x16_bf16 {vr(d,16)}, {vr(K1,4)}, {vr(Q1,4)}, 0"
        def qk1(d): return f"v_mfma_f32_32x32x8_bf16 {vr(d,16)}, {vr(K2,2)}, {vr(Q2,2)}, {vr(d,16)}"
        def pv(v, p): return f"v_smfmac_f32_32x32x32_bf16 {vr(O,16)}, {vr(v,4)}, {vr(p,8)}, v{vIDX}"
        s(rK1(0)); s(rK2(0)); s("s_waitcnt lgkmcnt(0)")
        s(qk0(S[0])); s(qk1(S[0]))
        s(rK1(1)); s(rK2(1)); s(rV(0,0))
        s("s_mov_b32 s69, 4\ns_nop 7")
        ap = s.opt.get('aprio', 1)
        def loop(pat):
          lp = s.new("attl")
          s.L.append(".p2align 6")
          s.lab(lp)
          for T in range(16):
              cur, nxt = S[T & 1], S[(T & 1) ^ 1]
              E = [f"v_exp_f32 v{cur+i}, v{cur+i}" for i in range(16)]
              tt = T & 3
              if pat is not None and pat[T] != pat[T-1]: s(f"s_setprio {pat[T]}")
              if tt == 2:
                  ok = s.new("ok")
                  s(E[0]); s(E[1])
                  s("s_waitcnt lgkmcnt(0)")
                  s(pv(V1, nxt+8))
                  nosync = s.opt.get('nosync'); nodma = s.opt.get('nodma')
                  if not nosync: s(f"v_cmp_gt_u32 vcc, s{sNEED}, v{vPR}")
                  s(rV(T,1))
                  if not nosync: s.spin_ool(aPR, f"s{sNEED}", vPR, sleep=1)
                  D = dma(((T >> 2) + 3) & 3)
                  late = ystag and pat is not None
                  if nodma or late: D = ["s_nop 0"] + [""]*8
                  s(E[2])
                  if T == 6:
                      s(f"s_cmp_eq_u32 s69, 1\ns_cselect_b32 s{sKO}, {WS_BYTES}, s{sKO}\ns_cselect_b32 s{sVO}, {WS_BYTES}, s{sVO}")
                  s(E[3]); s(E[4])
                  s(qk0(nxt)); s(rK1(T+2))
                  s(E[5]); s(E[6]); s(E[7])
                  s(qk1(nxt)); s(rK2(T+2))
                  if s.opt.get('adma', 0): s("s_setprio 3")
                  s("\n".join(D[0:7]))
                  if s.opt.get('adma', 0): s(f"s_setprio {pat[T] if pat else ap}")
                  s(E[8]); s("\n".join(D[7:9])); s(f"s_add_u32 s{sNEED}, s{sNEED}, 1")
                  s(E[9]); s(E[10]); s(E[11])
                  s(pv(V0, cur)); s(rV(T+1,0))
                  for e in E[12:]: s(e)
              else:
                  s(E[0]); s(E[1])
                  s("s_waitcnt lgkmcnt(2)")
                  s(pv(V1, nxt+8)); s(rV(T,1))
                  if tt == 0 and ystag and pat is not None and not s.opt.get('nodma'):
                      s("\n".join(dma(((T >> 2) + 2) & 3)))
                  if tt == 0:
                      s(f"s_waitcnt vmcnt(2)\nds_write_b32 v{aPW}, v{vPC}" if s.opt.get('nosync') != 2 else f"ds_read_b32 v{vPR}, v{aPR}")
                  s(E[2]); s(E[3]); s(E[4])
                  s(qk0(nxt)); s(rK1(T+2))
                  s(E[5]); s(E[6]); s(E[7])
                  s(f"s_waitcnt lgkmcnt({3 if tt == 0 else 2})")
                  s(qk1(nxt)); s(rK2(T+2))
                  s(E[8]); s(E[9]); s(E[10]); s(E[11])
                  if tt == 0: s(f"v_add_u32 v{vPC}, 1, v{vPC}")
                  s(pv(V0, cur)); s(rV(T+1,0))
                  if tt == 1: s(f"ds_read_b32 v{vPR}, v{aPR}")
                  for e in E[12:]: s(e)
                  if tt == 3: s("s_nop 0")
          if s.opt.get('qst') and s.stamps:
              for k, c in ((1, 4), (2, 3), (3, 2)):
                  nx = s.new("st")
                  s(f"s_cmp_lg_u32 s69, {c}\ns_cbranch_scc1 {s.ln(nx)}")
                  s.stamp(k)
                  s.lab(nx)
          s(f"s_sub_u32 s69, s69, 1\ns_cmp_lg_u32 s69, 0\ns_cbranch_scc1 {s.ln(lp)}")
        ap = s.opt.get('aprio', 1)
        pm = s.opt.get('apat', 109)
        if pm:
            young, join = s.new("young"), s.new("join")
            s(f"s_cmp_ge_u32 s{sW}, 4\ns_cbranch_scc1 {s.ln(young)}\ns_setprio {ap}")
            loop(None)
            s(f"s_branch {s.ln(join)}")
            s.lab(young)
            pat = [(s.opt.get('ylo', ap), s.opt.get('yhi', ap+1))[(pm >> (T % 8)) & 1] for T in range(16)]
            s(f"s_setprio {pat[15]}")
            loop(pat)
            s.lab(join)
        else:
            s(f"s_setprio {ap}")
            loop(None)
        s("s_setprio 3")
        s(f"s_waitcnt vmcnt(0) lgkmcnt(0)\nds_write_b32 v{aPW}, v{vPC}")
        s(pv(V1, S[1]+8))
        s.stamp(6)
        s(f"""v_lshlrev_b32 v84, 4, v80
        v_lshl_add_u32 v86, v81, 15, v84
        s_lshl_b32 s64, s{sH}, 16
        s_lshl_b32 s65, s{sTOK}, 4
        s_add_u32 s65, s65, {OI}
        s_add_u32 s64, s64, s65
        s_add_u32 s57, s{sP}, 64
        s_lshl_b32 s57, s57, 15
        s_add_u32 s65, s65, s57
        s_xor_b32 s57, s{sP}, s{sH}
        s_and_b32 s57, s57, 1
        s_lshl_b32 s57, s57, 3
        s_add_u32 s65, s65, s57
        v_cmp_eq_u32 s[72:73], 0, v81
        v_add_f32 v88, abs(v{O}), abs(v{O+1})
        v_add_f32 v89, abs(v{O+2}), abs(v{O+3})""")
        for r in range(4, 12, 2):
            s(f"v_add_f32 v88, v88, abs(v{O+r})\nv_add_f32 v89, v89, abs(v{O+r+1})")
        slow, norm = s.new("slow"), s.new("norm")
        s(f"""v_cndmask_b32 v87, v{O+8}, v{O+12}, s[72:73]
        v_add_f32 v88, v88, v89
        v_cmp_nle_f32 vcc, {fbits(2.0**-30)}, v87
        s_mov_b64 s[74:75], vcc
        v_cmp_nge_f32 vcc, {fbits(2.0**60)}, v87
        s_or_b64 s[74:75], s[74:75], vcc
        v_cmp_nge_f32 vcc, {fbits(2.0**126)}, v88
        s_or_b64 vcc, s[74:75], vcc
        s_cbranch_vccnz {s.ln(slow)}""")
        s.lab(norm)
        s(f"""v_rcp_f32 v88, v87
        s_nop 0
        v_mul_f32 v88, v88, v92""")
        s.slow_args = (slow, norm, Q1, Q2, K1, K2, V0, V1, S, O, vIDX, sKB, sVB)
        for r in range(12): s(f"v_mul_f32 v{O+r}, v{O+r}, v88")
        for q in range(6): s(f"v_cvt_pk_bf16_f32 v{32+q}, v{O+2*q}, v{O+2*q+1}")
        s(f"""buffer_store_dwordx4 v[32:35], v86, {srd(sWS)}, s64 offen sc1
        s_mov_b32 exec_hi, 0
        buffer_store_dwordx2 v[36:37], v84, {srd(sWS)}, s65 offen sc1
        s_mov_b32 exec_hi, -1""")
        if True:
            s(f"""s_lshl_b32 s64, s{sQB}, 5
            s_add_u32 s64, s64, s{sH}
            s_mul_i32 s64, s64, {FSP}
            s_add_u32 s64, s64, {F_O}""")
            s.arrive(SY_CO, 8, "s64", 84, 85)
        s.stamp(7)

    def att_slow(s):
        slow, norm, Q1, Q2, K1, K2, V0, V1, S, O, vIDX, sKB, sVB = s.slow_args
        S0, C = S
        l1, l2 = s.new("slowa"), s.new("slowb")
        s.lab(slow)
        ldk = f"""buffer_load_dwordx4 {vr(K1,4)}, v93, {srd(sWS)}, s67 offen sc1
        buffer_load_dwordx2 {vr(K2,2)}, v94, {srd(sWS)}, s67 offen sc1"""
        s(f"""s_waitcnt vmcnt(0) lgkmcnt(0)
        v_mov_b32 v88, 0xff800000
        s_mov_b32 s67, s{sKB}
        s_mov_b32 s69, 64""")
        s.lab(l1)
        s(ldk)
        s(f"""s_waitcnt vmcnt(0)
        v_mfma_f32_32x32x16_bf16 {vr(S0,16)}, {vr(K1,4)}, {vr(Q1,4)}, 0
        v_mfma_f32_32x32x8_bf16 {vr(S0,16)}, {vr(K2,2)}, {vr(Q2,2)}, {vr(S0,16)}
        s_add_u32 s67, s67, 512
        s_nop 15""")
        for r in range(0, 16, 2): s(f"v_max3_f32 v88, v88, v{S0+r}, v{S0+r+1}")
        s(f"""s_sub_u32 s69, s69, 1
        s_cmp_lg_u32 s69, 0
        s_cbranch_scc1 {s.ln(l1)}
        v_mov_b32 v89, v88
        s_nop 1
        v_permlane32_swap_b32 v88, v89
        s_nop 1
        v_max_f32 v88, v88, v89
        v_mul_u32_u24 v89, 320, v81
        v_lshl_add_u32 v89, v80, 4, v89""")
        for r in range(16): s(f"v_sub_f32 v{C+r}, 0, v88\nv_mov_b32 v{O+r}, 0")
        for r in range(4): s(f"v_mov_b32 v{V0+r}, 0x3f803f80\nv_mov_b32 v{V1+r}, 0x3f803f80")
        s(f"""s_mov_b32 s67, s{sKB}
        s_mov_b32 s68, s{sVB}
        s_mov_b32 s69, 64
        s_mov_b32 s74, 0xfffff
        s_mov_b32 s75, 0xfffff""")
        s.lab(l2)
        s(ldk)
        s(f"""s_mov_b64 exec, s[74:75]
        buffer_load_dwordx4 {vr(V0,4)}, v89, {srd(sWS)}, s68 offen sc1
        buffer_load_dwordx4 {vr(V1,4)}, v89, {srd(sWS)}, s68 offen offset:640 sc1
        s_mov_b64 exec, -1
        s_waitcnt vmcnt(0)
        v_mfma_f32_32x32x16_bf16 {vr(S0,16)}, {vr(K1,4)}, {vr(Q1,4)}, {vr(C,16)}
        v_mfma_f32_32x32x8_bf16 {vr(S0,16)}, {vr(K2,2)}, {vr(Q2,2)}, {vr(S0,16)}
        s_add_u32 s67, s67, 512
        s_add_u32 s68, s68, 1280
        s_nop 15""")
        for r in range(16): s(f"v_exp_f32 v{S0+r}, v{S0+r}")
        s(f"""s_nop 1
        v_smfmac_f32_32x32x32_bf16 {vr(O,16)}, {vr(V0,4)}, {vr(S0,8)}, v{vIDX}
        v_smfmac_f32_32x32x32_bf16 {vr(O,16)}, {vr(V1,4)}, {vr(S0+8,8)}, v{vIDX}
        s_sub_u32 s69, s69, 1
        s_cmp_lg_u32 s69, 0
        s_nop 7
        s_cbranch_scc1 {s.ln(l2)}
        s_nop 15
        v_cndmask_b32 v87, v{O+8}, v{O+12}, s[72:73]
        s_branch {s.ln(norm)}""")

    def gfront(s):
        sJ = 48
        s(f"s_setprio 3\ns_sub_u32 s{sJ}, s{sW}, 8")
        s.ln_loads(sJ)
        s(f"""v_lshlrev_b32 v1, 2, v0
        v_add_u32 v1, {SYN}, v1
        v_mov_b32 v2, 0
        ds_write_b32 v1, v2""")
        if s.opt.get('noln'):
            s('s_barrier'); s.gtiles(sJ); s.nb = 1
        else: s.nb = s.layernorm(sJ)

    def grole(s):
        sJ = 48
        pre = s.gsetup(sJ)
        nb = s.nb
        assert nb <= s.opt.get('th', 7)
        s("s_setprio 0")
        lines = "\n".join(pre).split("\n")
        k = 11 - nb
        per = -(-len(lines) // k)
        for q in range(k):
            s("\n".join(lines[q*per:(q+1)*per])); s("s_barrier")
        s.stamp(2)
        s.gsync_n = 0
        s.gemm1(sJ)
        s.gemm2(sJ)

    def gtiles(s, sJ):
        s(f"""s_and_b32 s50, s{sXC}, 3
        s_lshl_b32 s51, s{sF1}, 2
        s_and_b32 s54, s{sJ}, 2
        s_add_u32 s51, s51, s54
        s_lshr_b32 s54, s50, 1
        s_add_u32 s51, s51, s54
        s_lshl_b32 s52, s{sD1}, 1
        s_and_b32 s54, s{sJ}, 1
        s_add_u32 s52, s52, s54
        s_lshl_b32 s52, s52, 1
        s_and_b32 s54, s50, 1
        s_add_u32 s52, s52, s54
        s_lshl_b32 s62, s{sXC}, 2
        s_and_b32 s54, s{sI}, 3
        s_add_u32 s62, s62, s54
        s_lshr_b32 s63, s{sI}, 2
        s_lshl_b32 s66, s62, 6
        s_lshl_b32 s54, s{sJ}, 4
        s_add_u32 s66, s66, s54
        s_lshl_b32 s54, s51, 6
        v_lshrrev_b32 v1, 5, v0
        v_lshl_add_u32 v1, v1, 3, s54
        v_and_b32 v2, 15, v0
        v_add_lshl_u32 v2, s66, v2, 1""")
        for q in range(4):
            s(f"global_load_dwordx2 {vr(54+2*q,2)}, v1, s[{sB1}:{sB1+1}] offset:{16*q}")
        s(f"global_load_ushort v62, v2, s[{sB2}:{sB2+1}]")

    def gsetup(s, sJ):
        B = []
        B.append(f"""s_mul_i32 s49, s{sJ}, {GREG}
        s_lshl_b32 s54, s{sJ}, 2
        s_add_u32 s54, s54, {SY_PG}
        v_mov_b32 v160, s54
        v_lshrrev_b32 v48, 4, v0
        v_and_b32 v49, 15, v0
        v_lshrrev_b32 v50, 5, v0
        v_and_b32 v51, 31, v0
        v_and_b32 v52, 3, v0
        v_bfe_u32 v53, v0, 2, 2
        v_lshlrev_b32 v161, 2, v52
        v_add_u32 v161, {SY_PG}, v161
        v_mov_b32 v164, {SYN}
        v_lshrrev_b32 v30, 3, v0
        v_and_b32 v31, 7, v0
        v_lshlrev_b32 v13, 1, v48
        v_xor_b32 v13, v13, v31
        v_lshlrev_b32 v30, 12, v30
        v_lshl_add_u32 v13, v13, 4, v30
        v_mul_u32_u24 v28, 10240, v50
        v_lshl_add_u32 v28, v51, 4, v28""")
        B.append(f"""v_lshl_add_u32 v26, v50, 3, v53
        v_lshlrev_b32 v26, 8, v26
        v_and_b32 v31, 1, v48
        v_lshl_add_u32 v26, v31, 5, v26
        v_lshl_add_u32 v26, v52, 3, v26
        v_add_u32 v24, 0x10000, v26
        v_add_u32 v26, {0x10000 + 16384}, v26
        s_and_b32 s54, s52, 3
        v_xor_b32 v30, s54, v53
        v_lshl_add_u32 v24, v30, 6, v24
        v_xor_b32 v25, 64, v24
        s_and_b32 s54, s51, 3
        v_xor_b32 v30, s54, v53
        v_lshl_add_u32 v26, v30, 6, v26
        v_xor_b32 v27, 64, v26
        """)
        B.append(f"""s_mul_i32 s64, s{sJ}, {384*4096}
        s_lshl_b32 s54, s62, 7
        s_add_u32 s64, s64, s54
        s_mul_i32 s65, s{sJ}, {48*10240}
        s_mul_i32 s54, s63, 1280
        s_add_u32 s65, s65, s54
        s_add_u32 s65, s65, {UI}
        v_mul_u32_u24 v14, 10240, v48
        v_lshl_add_u32 v14, v49, 4, v14
        v_bfe_u32 v30, v0, 2, 3
        v_lshl_add_u32 v31, v50, 4, v30
        v_lshlrev_b32 v31, 7, v31
        v_lshl_add_u32 v31, v52, 3, v31
        v_add_u32 v31, s49, v31
        v_lshrrev_b32 v32, 1, v30
        v_xor_b32 v32, s{sJ}, v32
        """ + "\n".join(f"v_xor_b32 v33, {si}, v32\nv_lshl_add_u32 v{15+si}, v33, 5, v31" for si in range(4)) + f"""
        v_lshlrev_b32 v12, 15, v48
        v_lshl_add_u32 v12, v49, 4, v12
        v_add_u32 v19, s66, v49
        v_mul_u32_u24 v19, 1280, v19
        v_lshl_add_u32 v19, v48, 3, v19""")
        B.append("\n".join(f"""v_add_u32 v31, {64*m}, v0
            v_mul_u32_u24 v32, 6554, v31
            v_lshrrev_b32 v32, 16, v32
            v_mul_u32_u24 v32, {1280-160}, v32
            v_lshl_add_u32 v{1+m}, v31, 4, v32""" for m in range(5)))
        B.append(f"""v_mul_u32_u24 v31, 20, v50
        v_add_u32 v31, v31, v30
        v_mul_u32_u24 v31, 160, v31
        v_lshl_add_u32 v6, v52, 3, v31
        v_add_u32 v7, 51200, v6
        v_mul_u32_u24 v31, 40, v48
        v_add_u32 v31, v31, v53
        v_add_u32 v31, 16, v31
        v_mul_u32_u24 v31, 160, v31
        v_lshl_add_u32 v31, v52, 3, v31
        v_and_b32 v32, 1, v48
        v_mul_u32_u24 v32, 3200, v32
        v_sub_u32 v9, v31, v32
        v_add_u32 v9, 3200, v9
        v_add_u32 v8, v31, v32
        v_add_u32 v10, 51200, v8
        v_add_u32 v11, 51200, v9""")
        B.append("\n".join(f"v_mov_b32 v{r}, 0" for r in range(80, 128)))
        B.append("s_waitcnt vmcnt(0)\n" + "\n".join(f"v_lshlrev_b32 v{64+2*q}, 16, v{54+q}\nv_and_b32 v{65+2*q}, 0xffff0000, v{54+q}" for q in range(8)) + "\nv_lshlrev_b32 v20, 16, v62")
        return B

    def xaddr(s, sJ, vw, vr0):
        s(f"v_lshlrev_b32 v{vw}, 4, v0")
        for n in range(1, 4):
            s(f"s_xor_b32 s54, s{sJ}, {n}\ns_mul_i32 s54, s54, {GREG}\ns_add_u32 s54, s54, {(n-1)*4096}\nv_add_u32 v{vr0+n-1}, s54, v{vw}")
        s(f"v_add_u32 v{vw}, s49, v{vw}")

    def gpost(s):
        s.gsync_n += 1
        s(f"s_waitcnt lgkmcnt(0)\nv_mov_b32 v162, {s.gsync_n}\nds_write_b32 v160, v162")
    def gwait(s, sleep=2):
        s.lds_spin(161, s.gsync_n, 163, sleep=sleep)

    def ln_loads(s, sJ):
        X = (8, 13); GWR = 18
        s(f"""s_and_b32 s67, s{sXC}, 3
        s_lshl_b32 s67, s67, 6
        s_lshr_b32 s68, s{sXC}, 2
        s_lshl_b32 s68, s68, 5
        s_add_u32 s67, s67, s68
        s_add_u32 s67, s67, s{sI}
        s_lshl_b32 s68, s67, 3
        s_lshl_b32 s69, s{sJ}, 1
        s_add_u32 s68, s68, s69
        s_mul_i32 s69, s68, 1280
        v_and_b32 v1, 31, v0
        v_lshrrev_b32 v3, 5, v0
        v_lshlrev_b32 v2, 3, v1
        v_lshlrev_b32 v1, 4, v1
        v_mul_u32_u24 v19, 1280, v3
        v_add_u32 v18, v19, v1
        v_add_u32 v19, v19, v2""")
        s.kwait()
        if s.opt.get('noln'): return
        s(f"""buffer_load_dwordx4 v[8:11], v18, {srd(sX)}, s69 offen
        buffer_load_dwordx4 v[12:15], v18, {srd(sX)}, s69 offen offset:512
        buffer_load_dwordx2 v[16:17], v19, {srd(sX)}, s69 offen offset:1024
        global_load_dwordx4 v[20:23], v1, s[{sGW}:{sGW+1}]
        global_load_dwordx4 v[24:27], v1, s[{sGW}:{sGW+1}] offset:512
        global_load_dwordx2 v[28:29], v2, s[{sGW}:{sGW+1}] offset:1024""")
        if s.opt.get('wpf', 0):
            s(f"""s_mul_i32 s70, s2, 9600
            s_mul_i32 s71, s{sJ}, {19*128}
            s_add_u32 s70, s70, s71
            v_min_u32 v166, 18, v0
            v_lshlrev_b32 v166, 7, v166
            buffer_load_dword v166, v166, {srd(sWQ)}, s70 offen""")

    def layernorm(s, sJ):
        X, GW, XV = 8, 20, 32
        nb = [0]
        def bar():
            nb[0] += 1; s("s_barrier")
        gl = [(31,1,30,sDBG,"0",0)]
        s(f"""s_mov_b32 s70, 0x3f803f80
        s_lshl_b32 s55, s68, 2
        s_add_u32 s55, s55, {GI}
        s_add_u32 s69, s69, {HI}
        v_lshlrev_b32 v3, 2, v3
        v_and_b32 v30, 15, v0
        v_lshlrev_b32 v30, 2, v30
        s_waitcnt vmcnt({1 if s.opt.get('wpf', 0) else 0})""")
        s.stamp(1)
        for i in range(10):
            s(f"v_dot2_f32_bf16 v4, v{X+i}, s70, {'v4' if i else 0}")
            s(f"v_dot2_f32_bf16 v5, v{X+i}, v{GW+i}, {'v5' if i else 0}")
        un = []
        for i in range(10):
            un += [f"v_lshlrev_b32 v{XV+2*i}, 16, v{X+i}", f"v_and_b32 v{XV+2*i+1}, 0xffff0000, v{X+i}"]
        def fill(n):
            for _ in range(n): s(un.pop(0) if un else "s_nop 0")
        fill(3)
        for k in (8, 4, 2, 1):
            for q in (4, 5): s(f"v_add_f32_dpp v{q}, v{q}, v{q} row_ror:{k} row_mask:0xf bank_mask:0xf")
            fill(1)
        s("v_mov_b32 v6, v4\nv_mov_b32 v7, v5"); fill(2)
        s("v_permlane16_swap_b32 v4, v6\nv_permlane16_swap_b32 v5, v7"); fill(2)
        s(f"""v_add_f32 v4, v4, v6
        v_add_f32 v5, v5, v7
        v_mul_f32 v4, {fbits(-1/640)}, v4
        v_mul_f32 v5, {fbits(-math.log2(math.e))}, v5
        v_exp_f32 v5, v5""")
        fill(len(un))
        s("v_add_f32 v5, 1.0, v5\nv_rcp_f32 v2, v5")
        for e in range(0, 20, 2): s(f"v_pk_add_f32 {vr(XV+e,2)}, {vr(XV+e,2)}, v[4:5] op_sel_hi:[1,0]")
        for e in range(0, 20, 2):
            a = (6, 52)[(e >> 1) & 1]
            if e < 4: s(f"v_pk_mul_f32 {vr(a,2)}, {vr(XV+e,2)}, {vr(XV+e,2)}")
            else: s(f"v_pk_fma_f32 {vr(a,2)}, {vr(XV+e,2)}, {vr(XV+e,2)}, {vr(a,2)}")
        s("v_pk_add_f32 v[6:7], v[6:7], v[52:53]\nv_add_f32 v6, v6, v7")
        for k in (8, 4, 2, 1):
            s(f"s_nop 1\nv_add_f32_dpp v6, v6, v6 row_ror:{k} row_mask:0xf bank_mask:0xf")
        s(f"""v_mov_b32 v7, v6
        v_mov_b32 v4, {fbits(1e-5)}
        s_nop 0
        v_permlane16_swap_b32 v6, v7
        s_nop 1
        v_add_f32 v6, v6, v7
        v_fmac_f32 v4, {fbits(1/640)}, v6
        v_rsq_f32 v4, v4
        s_nop 0""")
        for e in range(0, 20, 2):
            s(f"v_pk_mul_f32 {vr(XV+e,2)}, {vr(XV+e,2)}, v[4:5] op_sel_hi:[1,0]")
        for i in range(10): s(f"v_cvt_pk_bf16_f32 v{X+i}, v{XV+2*i}, v{XV+2*i+1}")
        nx, done = s.new("g"), s.new("g")
        s(f"""buffer_store_dwordx4 v[8:11], v18, {srd(sWS)}, s69 offen sc1
        buffer_store_dwordx4 v[12:15], v18, {srd(sWS)}, s69 offen offset:512 sc1
        buffer_store_dwordx2 v[16:17], v19, {srd(sWS)}, s69 offen offset:1024 sc1
        s_mov_b32 exec_lo, 1
        s_mov_b32 exec_hi, 1
        buffer_store_dword v2, v3, {srd(sWS)}, s55 offen sc1
        s_mov_b64 exec, -1
        s_cmp_lg_u32 s{sJ}, 0
        s_cbranch_scc1 {s.ln(nx)}""")
        s.poll_issue(gl)
        s.lab(nx)
        if s.opt.get('b0st'): s.stamp(7)
        s("s_waitcnt lgkmcnt(0)")
        for _ in range(s.opt.get('lnw', 2)): bar()
        s("s_waitcnt vmcnt(0)")
        bar()
        s(f"""s_lshl_b32 s54, s67, 2
        s_add_u32 s54, s54, {F_H}
        s_cmp_lg_u32 s{sJ}, 0
        s_cbranch_scc1 {s.ln(done)}""")
        s.poll(gl, sleep=4, pre=0)
        s.set_flag("s54", 4, 5)
        s.lab(done)
        s.gtiles(sJ)
        return nb[0]

    def gpoll(s, pre, loads, ok, sleep, lsl=4):
        nx = s.new("gp")
        s(f"s_cmp_lg_u32 s48, 0\ns_cbranch_scc1 {s.ln(nx)}")
        for addr, need in pre: s.lds_spin(164, need, 165, off=addr-SYN, sleep=lsl)
        s.poll(loads, sleep=sleep)
        s(f"v_mov_b32 v165, 1\nds_write_b32 v164, v165 offset:{ok-SYN}")
        s.lab(nx)
        s.lds_spin(164, 1, 165, off=ok-SYN, sleep=lsl)

    def g2_dW(s, t):
        L = []
        for n in range(4):
            pre = f"s_add_u32 m0, s49, {(t%3)*4096}\ns_nop 0\n" if n == 0 else ""
            inc = 32768-1024 if n < 3 else 32768+3*1024
            L.append(pre + f"buffer_load_dwordx4 v13, {srd(sW2)}, s64 offen offset:{1024*n} lds\ns_add_u32 s64, s64, {inc}")
        return L

    def pfwo(s):
        s(f"""s_lshl_b32 s60, s{sI}, 2
        s_add_u32 s60, s60, s48
        s_mul_i32 s61, s60, 6400
        v_min_u32 v30, 49, v0
        v_lshlrev_b32 v30, 7, v30
        buffer_load_dword v167, v30, {srd(sWO)}, s61 offen""")

    def gemm1(s, sJ):
        ACC = 64
        skip, fin = s.new("g1skip"), s.new("g1fin")
        s(f"s_cmp_eq_u32 s{sCT}, 15\ns_cbranch_scc1 {s.ln(skip)}")
        reads, mf = s.gemm_ops(24, 26)
        s(f"s_setprio {s.opt.get('gp1', 1)}")
        for l in reads(0,0,0) + reads(1,0,1): s(l)
        s("s_mov_b32 s54, 4")
        s.gemm_loop(reads, mf, 0, (24,25,26,27), (), 54, True)
        s.stamp(3)
        if s.opt.get('dbgx') == 3: s.end_wave()
        s(f"""s_setprio 3
        s_lshl_b32 s55, s{sN1}, 2
        s_lshl_b32 s57, s{sJ}, 11
        s_add_u32 s57, s57, {PI}
        v_lshlrev_b32 v29, 4, v0""")
        s.gpost()
        hold = s.opt.get('phold', 1)
        for n in range(1, 4):
            m = (0, 2, 1, 3)[n]
            p = 32 + 8*(n-1)
            s(f"""s_xor_b32 s54, s50, {m}
            s_add_u32 s54, s54, s55
            s_mul_i32 s54, s54, 24576
            s_add_u32 s54, s54, s57
            s_add_u32 s{57+n}, s54, {(n-1)*8192}""")
            for q in range(8): s(f"v_cvt_pk_bf16_f32 v{p+q}, v{ACC+16*n+2*q}, v{ACC+16*n+2*q+1}")
        if hold: s.lds_spin(164, max(1, hold-1), 165, off=(SY_QOK if hold == 1 else SY_PA)-SYN, sleep=(2 if hold < 3 else 6))
        for n in range(1, 4):
            p = 32 + 8*(n-1)
            s(f"""buffer_store_dwordx4 {vr(p,4)}, v29, {srd(sWS)}, s{57+n} offen sc1
            buffer_store_dwordx4 {vr(p+4,4)}, v29, {srd(sWS)}, s{57+n} offen offset:1024 sc1""")
        s(f"""s_add_u32 s56, s55, s50
        s_mul_i32 s54, s56, {FSP}
        s_add_u32 s54, s54, {F_P}""")
        s.arrive(SY_CP, 4, "s54", 30, 31)
        s.gwait()
        wsplit = s.opt.get('wsplit', 0)
        for t in range(wsplit):
            for l in s.g2_dW(t): s(l)
        s(f"""s_mul_i32 s54, s55, {FSP}
        s_add_u32 s54, s54, {F_P}
        v_and_b32 v30, 3, v0
        v_mul_u32_u24 v30, {FSP}, v30
        s_mul_i32 s56, s56, 24576
        s_add_u32 s56, s56, s57""")
        s.gpoll([(SY_CP, 4)], [(31,1,30,sWS,"s54",0)], SY_POK, s.opt.get('ppsl', 4))
        s.stamp(4)
        for n in range(3):
            p = 32 + 8*n
            s(f"""buffer_load_dwordx4 {vr(p,4)}, v29, {srd(sWS)}, s56 offen sc1
            buffer_load_dwordx4 {vr(p+4,4)}, v29, {srd(sWS)}, s56 offen offset:1024 sc1
            s_add_u32 s56, s56, 8192""")
        c0 = -2*math.sqrt(2/math.pi)*math.log2(math.e); c1 = c0*0.044715
        s(f"""s_mov_b32 s56, {fbits(c1)}
        s_mov_b32 s57, {fbits(c1)}
        v_mov_b32 v56, {fbits(c0)}
        v_mov_b32 v57, {fbits(c0)}
        s_mov_b32 s60, 1.0
        s_mov_b32 s61, 1.0""")
        T = ACC + 16
        for n in range(3):
            s(f"s_waitcnt vmcnt({4-2*n})")
            for q in range(8):
                s(f"v_lshlrev_b32 v{T+2*q}, 16, v{32+8*n+q}\nv_and_b32 v{T+2*q+1}, 0xffff0000, v{32+8*n+q}")
            for r in range(0, 16, 2): s(f"v_pk_add_f32 {vr(ACC+r,2)}, {vr(ACC+r,2)}, {vr(T+r,2)}")
        for r in range(0, 16, 2): s(f"v_pk_mul_f32 {vr(T+r,2)}, {vr(ACC+r,2)}, {vr(ACC+r,2)}")
        for r in range(0, 16, 2): s(f"v_pk_fma_f32 {vr(T+r,2)}, {vr(T+r,2)}, s[56:57], v[56:57]")
        for r in range(0, 16, 2): s(f"v_pk_mul_f32 {vr(T+r,2)}, {vr(T+r,2)}, {vr(ACC+r,2)}")
        for r in range(16): s(f"v_exp_f32 v{T+r}, v{T+r}")
        for r in range(0, 16, 2): s(f"v_pk_add_f32 {vr(T+r,2)}, {vr(T+r,2)}, s[60:61]")
        for r in range(16): s(f"v_rcp_f32 v{T+r}, v{T+r}")
        for r in range(0, 16, 2): s(f"v_pk_mul_f32 {vr(T+r,2)}, {vr(T+r,2)}, {vr(ACC+r,2)}")
        for q in range(8): s(f"v_cvt_pk_bf16_f32 v{40+q}, v{T+2*q}, v{T+2*q+1}")
        s(f"""s_mul_i32 s54, s51, {4*10240}
        s_lshl_b32 s57, s52, 9
        s_add_u32 s54, s54, s57
        s_add_u32 s54, s54, {UI}
        s_add_u32 s57, s54, 20480
        buffer_store_dwordx4 v[40:43], v28, {srd(sWS)}, s54 offen sc1
        buffer_store_dwordx4 v[44:47], v28, {srd(sWS)}, s57 offen sc1
        s_mul_i32 s54, s{sD1}, 12
        s_add_u32 s54, s54, s{sF1}
        s_lshl_b32 s54, s54, 2
        s_add_u32 s54, s54, s50
        s_mul_i32 s54, s54, {FSP}
        s_add_u32 s54, s54, {F_U}""")
        s.arrive(SY_CU, 4, "s54", 30, 31)
        s(f"s_branch {s.ln(fin)}")
        s.lab(skip)
        for _ in range(7): s("s_barrier")
        s("s_setprio 3")
        if s.opt.get('ldstamp'): s.end_wave()
        s.lds_spin(164, s.opt.get('skipw', 4), 165, off=SY_PA-SYN, sleep=8)
        for t in range(wsplit):
            for l in s.g2_dW(t): s(l)
        s("s_waitcnt vmcnt(0)")
        s.lab(fin)
        s.pfwo()
        s.stamp(5)
        if s.opt.get('dbgx') or s.opt.get('ldstamp'): s.end_wave()

    def gemm2(s, sJ):
        ACC, UB, BB = 64, (24, 44), 144
        vW, vU, aT = 13, 14, 15
        sST, sDT, sOW, sOU, sTK = 62, 63, 64, 65, 66
        NS = 3
        dW = s.g2_dW
        def lU(t):
            L = [f"buffer_load_dwordx4 {vr(UB[t&1]+4*di,4)}, v{vU}, {srd(sWS)}, s{sOU} offen offset:{256*di} sc1" for di in range(5)]
            L[4] += f"\ns_add_u32 s{sOU}, s{sOU}, 40960"
            return L
        def rd(t, si):
            o = (t % NS)*4096
            return f"ds_read_b64_tr_b16 {vr(BB+4*si,2)}, v{aT+si} offset:{o}\nds_read_b64_tr_b16 {vr(BB+4*si+2,2)}, v{aT+si} offset:{o+1024}"
        def mf(t, si, di):
            d = vr(ACC+20*si+4*di,4)
            if s.opt.get('gnomf'): return "s_nop 3"
            return f"v_mfma_f32_16x16x32_bf16 {d}, {vr(UB[t&1]+4*di,4)}, {vr(BB+4*si,4)}, {d if t else 0}"
        def wo_dma(n0, n1, pace=0):
            s(f"""s_mul_i32 s56, s{sJ}, {160*1280}
            s_mul_i32 s54, s{sDT}, 160
            s_add_u32 s56, s56, s54
            s_add_u32 s56, s56, {(n0//5)*32*1280}
            s_add_u32 m0, s49, {n0*1024}""")
            for n in range(n0, n1):
                s(f"s_nop 0\nbuffer_load_dwordx4 v{1+n%5}, {srd(sWO)}, s56 offen lds\ns_add_u32 m0, m0, 1024")
                if n % 5 == 4: s(f"s_add_u32 s56, s56, {32*1280}")
                if pace: s(f"s_sleep {pace}")
        s(f"s_setprio {s.opt.get('gp2', 0)}")
        early = s.opt.get('woe', 2)
        for t in range(s.opt.get('wsplit', 0), 3):
            for l in dW(t): s(l)
            if s.opt.get('wpre', 1) and t < 2: s("s_waitcnt vmcnt(0)")
        if early == 1: wo_dma(13, 25, s.opt.get('wpace0', 0))
        s(f"""s_setprio 3
        s_mul_i32 s55, s{sDT}, 80
        s_lshr_b32 s54, s55, 7
        s_mul_i32 s54, s54, {48*FSP}
        s_add_u32 s54, s54, {F_U}
        s_add_u32 s55, s55, 79
        s_lshr_b32 s55, s55, 7
        s_mul_i32 s55, s55, {48*FSP}
        s_add_u32 s55, s55, {F_U}
        s_lshl_b32 s57, s{sST}, 5
        s_add_u32 s57, s57, {F_H}
        v_min_u32 v24, 47, v0
        v_mul_u32_u24 v24, {FSP}, v24
        v_and_b32 v25, 7, v0
        v_lshlrev_b32 v25, 2, v25""")
        s.gpoll([], [(26,1,24,sWS,"s54",0),(27,1,24,sWS,"s55",0),(28,1,25,sWS,"s57",0)], SY_UOK, s.opt.get('usl', 8), lsl=s.opt.get('ulsl', 4))
        s(f"""s_lshl_b32 s54, s{sTK}, 2
        s_add_u32 s54, s54, {GI}
        v_and_b32 v22, 15, v0
        v_lshlrev_b32 v22, 2, v22
        v_min_u32 v21, 11, v0
        v_lshlrev_b32 v21, 12, v21
        s_mul_i32 s57, s{sDT}, {12*4096}
        s_add_u32 s57, s57, s{sOW}
        s_setprio {s.opt.get('gp2', 0)}
        buffer_load_dword v22, v22, {srd(sWS)}, s54 offen sc1""")
        s.stamp(6)
        if s.opt.get('dbgy') == 3: s.end_wave()
        for t in range(2):
            for l in lU(t): s(l)
        s("s_waitcnt vmcnt(10)")
        for si in range(4): s(rd(0, si))
        NT = 12
        ex = 1 if early == 2 else 0
        if ex: s(f"""s_mul_i32 s56, s{sJ}, {160*1280}
        s_mul_i32 s54, s{sDT}, 160
        s_add_u32 s56, s56, s54
        s_add_u32 s56, s56, {2*32*1280}""")
        def wo1(t):
            n = 13 + t
            return f"s_add_u32 m0, s49, {n*1024}\ns_nop 0\nbuffer_load_dwordx4 v{1+n%5}, {srd(sWO)}, s56 offen lds" + (f"\ns_add_u32 s56, s56, {32*1280}" if n % 5 == 4 else "")
        for t in range(NT):
            if t == s.opt.get('gp2t', 99): s(f"s_setprio {s.opt.get('gp2b', 0)}")
            pc0 = s.opt.get('pc0', 0)
            if pc0 and t > 0:
                s("s_setprio 3")
                s.lds_spin(164, min(17, pc0 + (t*s.opt.get('pcn', 12))//12), 165, off=SY_PA-SYN, sleep=4)
                s(f"s_setprio {s.opt.get('gp2', 0)}")
            wsp = s.opt.get('wsp', 0)
            nold = s.opt.get('gnold')
            U = lU(t+2) if t+2 < NT and not nold else [""]*5
            pfe = s.opt.get('pfe', 0)
            if not wsp:
                if t == 0: s("s_waitcnt vmcnt(5)")
                else:
                    younger = (4 if t+2 < NT else 0) + (5 if t+1 < NT else 0) + ex
                    s(f"s_waitcnt vmcnt({younger})")
                W = dW(t+3) if t+3 < NT and not nold else [""]*4
            else:
                s(f"s_waitcnt vmcnt({(5 if t+1 < NT else 0) + (ex if t else 0) + (1 if pfe and t and (t-1) % 3 == 0 and t-1 < 9 else 0)})")
                W = dW(t+2) if 0 < t and t+2 < NT and not nold else [""]*4
            for si in range(4):
                s(f"s_waitcnt lgkmcnt({6 if t+1 < NT else 2*(3-si)})")
                for di in range(5):
                    s(mf(t, si, di))
                    if not wsp and si == 3 and di < 4: s(W[di])
                    if wsp and si < 2 and di in (0, 3): s(W[2*si + di//3])
                    if wsp and pfe and si == 2 and di == 0 and t % 3 == 0 and t < 9:
                        s(f"buffer_load_dword v166, v21, {srd(sW2)}, s57 offen\ns_add_u32 s57, s57, {96*4096}")
                    if ex and si == 2 and di == 2: s(wo1(t))
                if t+1 < NT: s(rd(t+1, si))
            for l in U: s(l)
        s.stamp(7)
        if s.opt.get('dbgy') == 1: s.end_wave()
        wo_dma(0, 13 if early else 25, s.opt.get('wpace', 1))
        s("s_setprio 3\ns_waitcnt vmcnt(0)")
        s.gpost(); s.gwait()
        OB = 64; AC = 24
        NB = 9; FB = [44, 48, 52, 56, 60, 144, 148, 152, 156]
        def rdf(n):
            t, di = divmod(n, 5); b = FB[n % NB]
            if t < 16:
                a = 6 if t < 8 else 7; o = (t % 8)*6400 + 32*di
                return f"ds_read_b64_tr_b16 {vr(b,2)}, v{a} offset:{o}\nds_read_b64_tr_b16 {vr(b+2,2)}, v{a} offset:{o+1280}"
            tp = t-16; a = 8 if tp < 2 else 10; o = (tp % 2)*25600 + 32*di
            return f"ds_read_b64_tr_b16 {vr(b,2)}, v{a} offset:{o}\nds_read_b64_tr_b16 {vr(b+2,2)}, v{a+1} offset:{o}"
        FD = s.opt.get('fd', 7)
        for n in range(FD): s(rdf(n))
        s.gpost()
        s(f"""v_lshlrev_b32 v13, 4, v0
        s_mul_i32 s54, s{sJ}, 15360
        s_add_u32 s54, s54, {KVB}
        v_add_u32 v1, s54, v13
        s_add_u32 s54, s54, 14336
        s_cmp_eq_u32 s{sJ}, 3
        s_cselect_b32 s54, 0, s54
        v_add_u32 v2, s54, v13""")
        for n in range(1, 4):
            s(f"s_xor_b32 s54, s{sJ}, {n}\ns_mul_i32 s54, s54, 15360\ns_add_u32 s54, s54, {KVB + (n-1)*5120}\nv_add_u32 v{2+n}, s54, v13")
        s(f"""s_add_u32 s54, s54, 4096
        s_cmp_eq_u32 s{sJ}, 0
        s_cselect_b32 s54, 0, s54
        v_add_u32 v13, s54, v13
        v_and_b32 v14, 7, v0
        v_lshlrev_b32 v14, 2, v14
        v_add_u32 v14, {SY_PA}, v14
        v_sub_f32 v22, 1.0, v22
        v_mul_f32 v20, v20, v22
        v_and_b32 v15, 31, v0
        v_mul_u32_u24 v15, {FSP}, v15
        s_lshl_b32 s56, s{sTK}, 4
        s_add_u32 s56, s56, {OI}
        s_lshr_b32 s54, s{sTK}, 8
        s_mul_i32 s54, s54, {32*FSP}
        s_add_u32 s54, s54, {F_O}""")
        s.gwait()
        if s.opt.get('tst'): s.stamp(3)
        s.lds_spin(14, 17, 165, sleep=8)
        s.lds_spin(14, 18, 165, sleep=s.opt.get('esl', 2))
        if s.opt.get('tst'): s.stamp(4)
        for n in range(1, 4):
            for q in range(5):
                e = 5*(n-1) + q
                if e < 14: s(f"ds_write_b128 v1, {vr(ACC+20*n+4*q,4)} offset:{1024*e}")
                else: s(f"ds_write_b128 v2, {vr(ACC+20*n+4*q,4)}")
        s.gpost(); s.gwait(1)
        if s.opt.get('tst'): s.stamp(5)
        for n in range(1, 4):
            for q in range(5):
                if (n, q) != (3, 4): s(f"ds_read_b128 {vr(ACC+20*n+4*q,4)}, v{2+n} offset:{1024*q}")
                else: s(f"ds_read_b128 {vr(ACC+20*n+4*q,4)}, v13")
        for n in range(1, 4):
            s(f"s_waitcnt lgkmcnt({5*(3-n)})")
            for r in range(0, 20, 2): s(f"v_pk_add_f32 {vr(ACC+r,2)}, {vr(ACC+r,2)}, {vr(ACC+20*n+r,2)}")
        for r in range(0, 20, 2): s(f"v_pk_fma_f32 {vr(AC+r,2)}, {vr(ACC+r,2)}, v[22:23], v[20:21] op_sel_hi:[1,0,0]")
        if s.opt.get('tst'): s.stamp(6)
        s.gpoll([(SY_CO, 8)], [(16,1,15,sWS,"s54",0)], SY_OOK, s.opt.get('psl', 4), lsl=1)
        s.stamp(8)
        if s.opt.get('dbgy') == 2: s.end_wave()
        def lO(t): return f"buffer_load_dwordx4 {vr(OB+4*t,4)}, v12, {srd(sWS)}, s56 offen sc1\ns_add_u32 s56, s56, 131072"
        PD = s.opt.get('opd', 8)
        for t in range(PD): s(lO(t))
        for n in range(100):
            t, di = divmod(n, 5)
            w = []
            if di == 0: w.append(f"vmcnt({min(PD-1, 19-t)})")
            if n >= FD: w.append(f"lgkmcnt({2*min(FD-1, 99-n)})")
            if w: s("s_waitcnt " + " ".join(w))
            d = vr(AC+4*di,4)
            s(f"v_mfma_f32_16x16x32_bf16 {d}, {vr(FB[n % NB],4)}, {vr(OB+4*t,4)}, {d}")
            if n+FD < 100: s(rdf(n+FD))
            if di == 4 and t+PD < 20: s(lO(t+PD))
        s(f"s_mul_i32 s54, s{sDT}, 160\ns_nop 7")
        for di in range(5):
            s(f"""v_cvt_pk_bf16_f32 v{2+2*di}, v{AC+4*di}, v{AC+4*di+1}
            v_cvt_pk_bf16_f32 v{3+2*di}, v{AC+4*di+2}, v{AC+4*di+3}
            buffer_store_dwordx2 {vr(2+2*di,2)}, v19, {srd(sOUT)}, s54 offen offset:{32*di}""")

    def text(s):
        s.prologue()
        head = f".globl {s.k}\n.p2align 8\n.type {s.k},@function\n{s.k}:\n"
        return head + "\n".join(s.L) + "\n"

def kd(k):
    return f""".amdhsa_kernel {k}
  .amdhsa_next_free_vgpr 168
  .amdhsa_next_free_sgpr 102
  .amdhsa_accum_offset 168
  .amdhsa_group_segment_fixed_size 0
  .amdhsa_kernarg_size 96
  .amdhsa_user_sgpr_count 2
  .amdhsa_user_sgpr_kernarg_segment_ptr 1
  .amdhsa_system_sgpr_workgroup_id_x 1
.end_amdhsa_kernel
"""

def build(mode="fused", stamps=False, opt=None):
    k = NAME + "_kernel"
    out = f"; @launch grid=(256,1,1) block=(768,1,1) lds={LDS_BYTES}\n"
    out += '.amdgcn_target "amdgcn-amd-amdhsa--gfx950"\n.text\ncode_begin:\n'
    out += Gen(k, stamps, opt).text()
    out += 'code_end:\n.section .rodata,"a"\n.p2align 6\n' + kd(k)
    return out

if __name__ == "__main__":
    mode = sys.argv[1] if len(sys.argv) > 1 else "fused"
    stamps = "stamp" in sys.argv[2]
    opt = {}
    for a in sys.argv[3:]:
        k, v = a.split("="); opt[k] = int(v)
    open(sys.argv[2], "w").write(build(mode, stamps, opt))
```

```python
import sys, math, struct

NAME = "gated_mix__mha_block__mixer_token_mlp__prompt"

QI = 0x000000
KI = 0x280000
VI = 0x500000
HI = 0x780000
UI = 0xA00000
OI = 0xC00000
GI = 0xE80000
FL = 0xE90000
FSP = int(__import__('os').environ.get('FSP', 64))
F_H = FL
F_Q = FL + 256*FSP
F_P = FL + 0x400
F_U = FL + 512*FSP
F_O = FL + 768*FSP
FL_BYTES = 1792*FSP
STAMP = 0xF00000
PI = 0x1000000
WS_BYTES = 0x1800000

GREG = 25600
KVB = 102400
KVS = 11520
LNS = 148480
SYN = 163584
SY_PA = SYN
SY_PG = SYN + 32
SY_QOK = SYN + 52
SY_POK = SYN + 56
SY_UOK = SYN + 60
SY_OOK = SYN + 64
SY_CQ = SYN + 68
SY_CU = SYN + 72
SY_CO = SYN + 76
SY_CP = SYN + 80
DUMMY = 163328
LDS_BYTES = 163840

SPIN_LIMIT = 200000

def fbits(x):
    return "0x%08x" % struct.unpack("<I", struct.pack("<f", x))[0]

sX, sWQ, sWO, sW1, sW2, sWS, sOUT, sDBG = 4, 8, 12, 16, 20, 24, 28, 32
sB1, sB2, sGW = 36, 38, 40
sW, sXC, sI = 42, 43, 44
sSPIN = 45
sRT, sCT = 46, 47
sN1, sD1, sF1 = 3, 100, 101
def srd(n): return f"s[{n}:{n+3}]"
def vr(a, n): return f"v[{a}:{a+n-1}]" if n > 1 else f"v{a}"

class Gen:
    def __init__(s, kname, stamps=False, opt=None):
        s.L = []
        s.k = kname
        s.stamps = stamps
        s.uid = 0
        s.cold = []
        s.opt = opt or {}
    def __call__(s, t):
        for l in t.split("\n"):
            l = l.strip()
            if l: s.L.append("    " + l)
    def lab(s, n):
        s.L.append(f"{s.k}_{n}:")
    def ln(s, n):
        return f"{s.k}_{n}"
    def new(s, base):
        s.uid += 1
        return f"{base}{s.uid}"
    def stamp(s, i):
        if s.stamps:
            s(f"s_memrealtime s[76:77]\ns_memtime s[78:79]\ns_waitcnt lgkmcnt(0)\ns_mov_b32 s{80+2*i}, s76\ns_mov_b32 s{81+2*i}, s78")
    def end_wave(s):
        if 'probe' in s.opt:
            k = s.opt['probe'] % 10; w = s.opt['probe'] // 10
            s.stamp(9)
            lp, nx = s.new("pr"), s.new("pr")
            s(f"""s_cmp_lg_u32 s2, {s.opt.get('pwg', 100)}
            s_cbranch_scc1 {s.ln(nx)}
            s_cmp_lg_u32 s{sW}, {w}
            s_cbranch_scc1 {s.ln(nx)}
            s_add_u32 s46, s{80+2*k}, 10000""")
            s.lab(lp)
            s(f"""s_memrealtime s[76:77]
            s_waitcnt lgkmcnt(0)
            s_sub_u32 s47, s76, s46
            s_cmp_lt_i32 s47, 0
            s_cbranch_scc1 {s.ln(lp)}""")
            s.lab(nx)
            s("s_endpgm")
            return
        if s.stamps:
            s.stamp(9)
            s(f"s_mul_i32 s46, s2, 12\ns_add_u32 s46, s46, s{sW}\ns_lshl_b32 s46, s46, 7\ns_add_u32 s46, s46, {STAMP}")
            s("s_mov_b64 exec, -1\nv_lshlrev_b32 v1, 2, v0\nv_mov_b32 v2, 0")
            for i in range(20): s(f"v_writelane_b32 v2, s{80+i}, {i}")
            s(f"s_mov_b32 exec_hi, 0\nbuffer_store_dword v2, v1, {srd(sWS)}, s46 offen")
        s("s_endpgm")

    def lds_spin(s, vaddr, need, vtmp, off=0, sleep=1):
        a, b = s.new("spin"), s.new("spind")
        s(f"s_mov_b32 s{sSPIN}, {SPIN_LIMIT*4}")
        s.lab(a)
        s(f"""ds_read_b32 v{vtmp}, v{vaddr} offset:{off}
        s_waitcnt lgkmcnt(0)
        v_cmp_gt_u32 vcc, {need}, v{vtmp}
        s_cbranch_vccz {s.ln(b)}
        s_sleep {sleep}
        s_sub_u32 s{sSPIN}, s{sSPIN}, 1
        s_cbranch_scc0 {s.ln(a)}""")
        s.lab(b)

    def spin_ool(s, vaddr, need, vtmp, off=0, sleep=0):
        out, back = s.new("ool"), s.new("back")
        s(f"s_cbranch_vccnz {s.ln(out)}")
        s.lab(back)
        keep = s.L; s.L = []
        s.lab(out)
        s.lds_spin(vaddr, need, vtmp, off=off, sleep=sleep)
        s(f"s_branch {s.ln(back)}")
        s.cold += s.L; s.L = keep
    def flush_cold(s):
        s.L += s.cold; s.cold = []

    def poll_issue(s, loads):
        regs = []
        for (vd, n, vo, r, so, imm) in loads:
            sfx = {1: "dword", 2: "dwordx2", 4: "dwordx4"}[n]
            s(f"buffer_load_{sfx} {vr(vd,n)}, v{vo}, {srd(r)}, {so} offen offset:{imm} sc1")
            regs += list(range(vd, vd+n))
        return regs
    def poll(s, loads, sleep=2, pre=None):
        a, b, c = s.new("poll"), s.new("polld"), s.new("pollc")
        s(f"s_mov_b32 s{sSPIN}, {SPIN_LIMIT}")
        if pre is not None: s(f"s_waitcnt vmcnt({pre})\ns_branch {s.ln(c)}")
        s.lab(a)
        regs = s.poll_issue(loads)
        s("s_waitcnt vmcnt(0)")
        s.lab(c)
        for q in regs[1:]:
            s(f"v_min_u32 v{regs[0]}, v{regs[0]}, v{q}")
        s(f"""v_cmp_eq_u32 vcc, 0, v{regs[0]}
        s_cbranch_vccz {s.ln(b)}
        s_sleep {sleep}
        s_sub_u32 s{sSPIN}, s{sSPIN}, 1
        s_cbranch_scc0 {s.ln(a)}""")
        s.lab(b)

    def set_flag(s, soff, va, vb):
        s(f"""s_mov_b64 exec, 1
        v_mov_b32 v{va}, 0
        v_mov_b32 v{vb}, 1
        buffer_store_dword v{vb}, v{va}, {srd(sWS)}, {soff} offen sc1
        s_mov_b64 exec, -1""")

    def arrive(s, cnt, n, soff, va, vb):
        nx = s.new("arr")
        s(f"""s_mov_b64 exec, 1
        v_mov_b32 v{va}, {cnt}
        v_mov_b32 v{vb}, 1
        s_waitcnt vmcnt(0)
        ds_add_rtn_u32 v{va}, v{va}, v{vb}
        s_waitcnt lgkmcnt(0)
        v_cmp_eq_u32 vcc, {n-1}, v{va}
        v_mov_b32 v{va}, 0
        s_cbranch_vccz {s.ln(nx)}
        buffer_store_dword v{vb}, v{va}, {srd(sWS)}, {soff} offen sc1""")
        s.lab(nx)
        s("s_mov_b64 exec, -1")

    def lds_set(s, addr, val, va, vb):
        s(f"""v_mov_b32 v{va}, {addr}
        v_mov_b32 v{vb}, {val}
        ds_write_b32 v{va}, v{vb}""")

    def kwait(s):
        s("s_waitcnt lgkmcnt(0)")
        if s.stamps: s("s_mov_b32 s80, s76\ns_mov_b32 s81, s78")

    def prologue(s):
        if s.stamps: s("s_memrealtime s[76:77]\ns_memtime s[78:79]")
        s(f"s_cmp_ge_u32 s2, 256\ns_cbranch_scc1 {s.ln('exit')}")
        for reg, off in ((sX,0),(sWS,88)):
            s(f"s_load_dwordx2 s[{reg}:{reg+1}], s[0:1], {off}")
        s(f"s_lshr_b32 s{sI}, s2, 3")
        if s.opt.get('cpf', 1): s.code_prefetch()
        for reg, off in ((sWQ,8),(sGW,64),(sDBG,80),(sW1,32),(sW2,48),(sWO,16),(sOUT,72),(sB1,40),(sB2,56)):
            s(f"s_load_dwordx2 s[{reg}:{reg+1}], s[0:1], {off}")
        s("v_lshrrev_b32 v1, 6, v0\nv_and_b32 v0, 63, v0")
        s(f"v_readfirstlane_b32 s{sW}, v1")
        s(f"s_mov_b32 s{sX+3}, 0x00020000")
        for reg, n in ((sX,2621440),(sWQ,2457600),(sWO,819200),(sW1,6291456),(sW2,f"s{sW1+2}"),(sWS,WS_BYTES),(sOUT,f"s{sX+2}"),(sDBG,256)):
            s(f"s_mov_b32 s{reg+2}, {n}")
            if reg != sX: s(f"s_mov_b32 s{reg+3}, s{sX+3}")
        s(f"s_and_b32 s{sXC}, s2, 7")
        if s.stamps:
            for i in range(1, 10): s(f"s_mov_b32 s{80+2*i}, 0")
        s(f"""s_and_b32 s{sRT}, s{sXC}, 3
        s_lshl_b32 s{sRT}, s{sRT}, 2
        s_and_b32 s48, s{sI}, 3
        s_add_u32 s{sRT}, s{sRT}, s48
        s_lshr_b32 s49, s{sXC}, 2
        s_lshl_b32 s{sCT}, s49, 3
        s_lshr_b32 s48, s{sI}, 2
        s_add_u32 s{sCT}, s{sCT}, s48
        s_lshl_b32 s{sN1}, s49, 5
        s_add_u32 s{sN1}, s{sN1}, s{sI}
        s_min_u32 s{sN1}, s{sN1}, 59
        s_mul_i32 s{sF1}, s{sN1}, 52
        s_lshr_b32 s{sF1}, s{sF1}, 8
        s_mul_i32 s48, s{sF1}, 5
        s_sub_u32 s{sD1}, s{sN1}, s48
        s_cmp_ge_u32 s{sW}, 8
        s_cbranch_scc1 {s.ln('grole')}
        s_cmp_eq_u32 s{sCT}, 15
        s_cbranch_scc1 {s.ln('idle')}
        s_cmp_lt_u32 s{sW}, 4
        s_cbranch_scc1 {s.ln('qkv_comp')}""")
        s.loader()
        s(f"s_branch {s.ln('att')}")
        s.lab("idle")
        s.kwait()
        nx = s.new("idle")
        s(f"""s_cmp_lg_u32 s{sW}, 0
        s_cbranch_scc1 {s.ln(nx)}
        v_lshlrev_b32 v1, 4, v0
        v_mov_b32 v4, 0
        v_mov_b32 v5, 0
        v_mov_b32 v6, 0
        v_mov_b32 v7, 0
        s_mul_i32 s52, s{sRT}, {FL_BYTES//16}
        s_add_u32 s52, s52, {FL}""")
        for n in range(FL_BYTES//16384):
            s(f"buffer_store_dwordx4 v[4:7], v1, {srd(sWS)}, s52 offen offset:{(n&3)*1024} sc1")
            if n & 3 == 3: s("s_add_u32 s52, s52, 4096")
        s(f"""s_lshl_b32 s52, s{sRT}, 2
        s_mov_b64 exec, 1
        s_waitcnt vmcnt(0)
        v_mov_b32 v5, 1
        buffer_store_dword v5, v4, {srd(sDBG)}, s52 offen sc1
        s_mov_b64 exec, -1""")
        s.lab(nx)
        s.att_vsetup()
        for _ in range(16): s("s_barrier")
        s(f"s_cmp_lt_u32 s{sW}, 4\ns_cbranch_scc1 {s.ln('att')}\ns_barrier\ns_branch {s.ln('att')}")
        s.lab("qkv_comp")
        s.qkv_compute()
        s.lab("att")
        s.attention()
        s.end_wave()
        s.flush_cold()
        s.att_slow()
        s.lab("grole2")
        s.grole()
        s.end_wave()
        s.lab("exit")
        s("s_endpgm")

    def code_prefetch(s):
        here, nx = s.new("pc"), s.new("pc")
        s("s_getpc_b64 s[50:51]")
        s.lab(here)
        s(f"""s_lshl_b32 s52, s{sI}, 3
        v_cmp_gt_u32 vcc, 64, v0
        v_add_u32 v1, s52, v0
        s_movk_i32 s54, 72
        v_cmp_gt_u32 s[52:53], s54, v0
        v_cndmask_b32 v1, v1, v0, vcc
        v_lshlrev_b32 v1, 7, v1
        v_min_u32 v1, code_end-{s.ln(here)}-4, v1
        s_mov_b64 exec, s[52:53]
        s_cbranch_execz {s.ln(nx)}
        global_load_dword v165, v1, s[50:51]""")
        s.lab(nx)
        s("s_mov_b64 exec, -1")

    def loader(s):
        if s.opt.get('lprio'): s(f"s_setprio {s.opt['lprio']}")
        s(f"""s_sub_u32 s48, s{sW}, 4
        v_lshrrev_b32 v32, 3, v0
        s_lshl_b32 s49, s48, 5
        v_add_u32 v32, s49, v32
        v_mul_u32_u24 v32, 1280, v32
        v_lshrrev_b32 v33, 4, v0
        v_and_b32 v34, 7, v0
        v_xor_b32 v34, v34, v33
        v_xor_b32 v35, 4, v34
        v_lshl_add_u32 v39, v34, 4, v32
        v_lshl_add_u32 v40, v35, 4, v32
        v_add_u32 v40, {10240-1024}, v40
        v_add_u32 v41, {2*(10240-1024)}, v39
        v_add_u32 v42, {2*(10240-1024)}, v40
        s_lshl_b32 s49, s48, 4
        v_add_u32 v32, s49, v33
        v_mul_u32_u24 v32, 3840, v32
        v_lshlrev_b32 v33, 2, v33
        v_and_b32 v34, 15, v0
        v_xor_b32 v34, v34, v33
        v_lshl_add_u32 v43, v34, 4, v32
        v_add_u32 v44, {15360-1024}, v43
        v_add_u32 v45, {2*(15360-1024)}, v43
        v_add_u32 v46, {3*(15360-1024)}, v43
        s_mul_i32 s50, s{sRT}, {128*1280}
        s_lshl_b32 s51, s{sCT}, 8
        s_lshl_b32 s52, s48, 12""")
        nt = " nt" if s.opt.get('qnt') else ""
        rot = s.opt.get('qrot', 2)
        if rot in (1, 2):
            s(f"""s_and_b32 s53, s{sI}, 3
            s_mul_i32 s53, s53, 5
            s_lshr_b32 s53, s53, 1
            s_lshr_b32 s54, s{sI}, 2
            s_add_u32 s53, s53, s54""")
            if rot == 2: s(f"s_and_b32 s54, s{sXC}, 3\ns_add_u32 s53, s53, s54")
            s("s_cmp_ge_u32 s53, 10\ns_cselect_b32 s54, 10, 0\ns_sub_u32 s53, s53, s54")
        elif rot == 0:
            s("s_mov_b32 s53, 0")
        else:
            T = {3: ["0412385679", "1250349678", "2306145789", "3012745689"],
                 4: ["0123456789", "1230567498", "2301674589", "3012745698"],
                 5: ["0213546879", "1032457698", "0132547689", "1023456798"],
                 6: ["0216354879", "1032745698", "0132485679", "1023549678"],
                 7: ["0123456789", "1032547698", "0123456789", "1032547698"],
                 8: ["0142356879", "1023547698", "0213465789", "1302457689"]}[rot]
            def enc(o):
                v = 0
                for j, ch in enumerate(o): v |= int(ch) << (4*j)
                return v
            s(f"""s_lshr_b32 s54, s{sI}, 2
            s_add_u32 s54, s54, s{sI}
            s_bitcmp1_b32 s54, 0
            s_cselect_b32 s56, {enc(T[1]) & 0xffffffff}, {0}
            s_cselect_b32 s57, {enc(T[1]) >> 32}, {0}
            s_cselect_b32 s58, {enc(T[3]) & 0xffffffff}, {0}
            s_cselect_b32 s59, {enc(T[3]) >> 32}, {0}
            s_cselect_b32 s60, 0, {enc(T[0]) & 0xffffffff}
            s_cselect_b32 s61, 0, {enc(T[0]) >> 32}
            s_cselect_b32 s62, 0, {enc(T[2]) & 0xffffffff}
            s_cselect_b32 s63, 0, {enc(T[2]) >> 32}
            s_or_b64 s[56:57], s[56:57], s[60:61]
            s_or_b64 s[58:59], s[58:59], s[62:63]
            s_bitcmp1_b32 s54, 1
            s_cselect_b64 s[56:57], s[58:59], s[56:57]
            s_and_b32 s53, s56, 15""")
        def issue(t):
            s(f"""s_lshl_b32 s54, s53, 7
            s_add_u32 m0, s52, {(t&3)*32768}
            s_add_u32 s54, s54, s50""")
            for n in range(4):
                s(f"buffer_load_dwordx4 v{39+n}, {srd(sX)}, s54 offen offset:{1024*n}{nt} lds")
            s(f"""s_mul_i32 s54, s53, {64*3840}
            s_add_u32 m0, s52, {(t&3)*32768+16384}
            s_add_u32 s54, s54, s51""")
            for n in range(4):
                s(f"buffer_load_dwordx4 v{43+n}, {srd(sWQ)}, s54 offen offset:{1024*n}{nt} lds")
            if rot < 3: s("s_add_u32 s53, s53, 1\ns_cmp_eq_u32 s53, 10\ns_cselect_b32 s53, 0, s53")
            else: s("s_lshr_b64 s[56:57], s[56:57], 4\ns_and_b32 s53, s56, 15")
        def issue1(t):
            s(f"""s_mul_i32 s54, s53, {64*1280}
            s_add_u32 m0, s52, {(t&3)*32768}
            s_add_u32 s54, s54, s50""")
            for n in range(4):
                s(f"buffer_load_dwordx4 v{47+n}, {srd(sWS)}, s54 offen offset:{1024*n} sc1 lds")
            s(f"""s_mul_i32 s54, s53, {64*3072}
            s_add_u32 m0, s52, {(t&3)*32768+16384}
            s_add_u32 s54, s54, s51""")
            for n in range(4):
                s(f"buffer_load_dwordx4 v{51+n}, {srd(sW1)}, s54 offen offset:{1024*n} lds")
            s("s_add_u32 s53, s53, 1\ns_and_b32 s53, s53, 7")
        pfq = s.opt.get('pfq', 1)
        tpf = s.opt.get('tpf', 1)
        stag = s.opt.get('stag', 2)
        pfts = [tpf + k for k in range({0: 1, 1: 4}.get(stag, s.opt.get('nsl', 6)))] if pfq else []
        th = s.opt.get('th', 7)
        ops = []
        s.kwait()
        if s.opt.get('b0st'): s.stamp(3)
        issue(0)
        if s.opt.get('b0st'): s.stamp(4)
        npre = s.opt.get('npre', 1)
        ops += [('s', 0)]
        if npre == 2: issue(1); ops += [('s', 1)]
        if s.opt.get('b0st'): s.stamp(5)
        s(f"""v_lshrrev_b32 v33, 4, v0
        v_add_u32 v33, s49, v33
        v_mul_u32_u24 v32, 3072, v33
        v_lshl_add_u32 v51, v34, 4, v32
        v_add_u32 v52, {12288-1024}, v51
        v_add_u32 v53, {2*(12288-1024)}, v51
        v_add_u32 v54, {3*(12288-1024)}, v51
        v_mul_u32_u24 v32, 1280, v33
        v_lshl_add_u32 v47, v34, 4, v32
        v_add_u32 v48, 4096, v47
        v_add_u32 v49, 8192, v47
        v_add_u32 v50, 12288, v47
        s_and_b32 s66, s{sXC}, 3
        s_lshl_b32 s55, s66, 8
        s_add_u32 s55, s55, {F_H}
        v_lshlrev_b32 v33, 2, v0
        s_lshr_b32 s67, s{sI}, 2
        s_add_u32 s67, s67, s{sI}
        s_and_b32 s67, s67, 3
        s_cmp_ge_u32 s{sXC}, 4
        s_cselect_b32 s60, 12, 14
        s_cselect_b32 s61, 5, 4
        s_mov_b32 s62, {-(-65536//14)}
        s_cmov_b32 s62, {-(-65536//12)}
        s_cselect_b32 s63, 1536, 0
        s_mul_i32 s64, s60, s61
        s_sub_u32 s64, s64, 1
        v_min_u32 v32, s64, v0
        v_mul_u32_u24 v35, s62, v32
        v_lshrrev_b32 v35, 16, v35
        v_mul_u32_u24 v36, s60, v35
        v_sub_u32 v32, v32, v36
        s_lshl_b32 s64, s{sI}, 2
        s_add_u32 s64, s64, s48
        s_mul_i32 s64, s64, s61
        v_add_u32 v35, s64, v35
        v_min_u32 v35, 511, v35
        v_mul_u32_u24 v35, 3072, v35
        v_lshl_add_u32 v32, v32, 7, v35
        s_mul_i32 s64, s66, {512*3072}
        s_add_u32 s64, s64, s63""")
        if stag == 2: s(f"s_mul_i32 s67, s{sI}, s61\ns_mul_i32 s67, s67, {s.opt.get('nsl', 6)}\ns_lshr_b32 s67, s67, 7")
        over = s.new("over")
        s(f"s_branch {s.ln(over)}")
        s.lab("grole")
        s.gfront()
        s(f"s_branch {s.ln('grole2')}")
        s.lab(over)
        s.att_vsetup()
        if npre == 1: issue(1); ops += [('s', 1)]
        if s.opt.get('b0st'): s.stamp(6)
        hl = [(34,1,33,sWS,"s55",0)]
        def younger(tag):
            k = ops.index(tag)
            return sum(8 if o[0] == 's' else 1 for o in ops[k+1:])
        for t in range(17):
            s(f"s_waitcnt vmcnt({younger(('s', t))})")
            if s.opt.get('ldstamp') and s.opt['ldstamp'] <= t < s.opt['ldstamp']+6: s.stamp(3 + t - s.opt['ldstamp'])
            if s.opt.get('b0st') and t == 0: s.stamp(7)
            s("s_barrier")
            if t == 0: s.stamp(1)
            if t == 8:
                if not s.opt.get('noln'): s.poll(hl, sleep=8, pre=younger(('h', th)))
                s(f"""s_mul_i32 s50, s66, {512*1280}
                s_lshl_b32 s54, s{sD1}, 8
                s_add_u32 s50, s50, s54
                s_add_u32 s50, s50, {HI}
                s_mul_i32 s51, s66, {512*3072}
                s_lshl_b32 s54, s{sF1}, 8
                s_add_u32 s51, s51, s54""")
                r1 = s.opt.get('g1rot', 0)
                if r1 == 0: s("s_mov_b32 s53, 0")
                if r1 == 1: s(f"s_and_b32 s53, s{sF1}, 7")
                if r1 == 2: s(f"s_lshl_b32 s53, s{sD1}, 1\ns_add_u32 s53, s53, s{sF1}\ns_and_b32 s53, s53, 7")
            if t == th:
                s.poll_issue(hl); ops.append(('h', t))
            if t+2 <= 9: issue(t+2); ops.append(('s', t+2))
            elif t+2 <= 17: issue1(t+2); ops.append(('s', t+2))
            if t in pfts:
                if stag: s(f"s_cmp_eq_u32 s67, {t - tpf}\ns_cselect_b32 s54, s64, 0x1000000")
                s(f"buffer_load_dword v165, v32, {srd(sW1)}, s{54 if stag else 64} offen{' nt' if s.opt.get('pfnt') else ''}")
                ops.append(('x', t))
                if s.opt.get('pfnt') == 2:
                    s(f"buffer_load_dword v166, v32, {srd(sW1)}, s{54 if stag else 64} offen sc1"); ops.append(('y', t))

    def gemm_ops(s, xaddr, aW):
        ACC, F = 64, (32, 48, 128, 144)
        def tr(b, a, o): return [f"ds_read_b64_tr_b16 {vr(b,2)}, v{a} offset:{o}", f"ds_read_b64_tr_b16 {vr(b+2,2)}, v{a} offset:{o+1024}"]
        def reads(buf, sl, ks):
            b = F[buf]; o = sl*32768
            L = []
            for i in range(2):
                if isinstance(xaddr, int): L += tr(b+4*i, xaddr+i, o+ks*4096)
                else:
                    a0, o0 = xaddr(i, ks); L.append(f"ds_read_b128 {vr(b+4*i,4)}, v{a0} offset:{o+o0}")
                L += tr(b+8+4*i, aW+i, o+ks*4096)
            return L
        def mf(buf, i, j, isv):
            b = F[buf]; xa = vr(b+4*i,4); wa = vr(b+8+4*j,4); d = vr(ACC+16*(2*i+j),16)
            return f"v_mfma_f32_32x32x16_bf16 {d}, {xa if isv else wa}, {wa if isv else xa}, {d}"
        return reads, mf
    def gemm_loop(s, reads, mf, isv, tog6, tog7, scnt, skip_last):
        lp = s.new("gl")
        s.lab(lp)
        for n in range(8):
            buf = n & 3
            R = reads((n+2) & 3, ((n+2) >> 2) & 1, (n+2) & 3)
            s(f"s_waitcnt lgkmcnt({len(R)})")
            c1, c2 = (2, 4) if len(R) == 6 else (3, 6)
            s(mf(buf,0,0,isv))
            if n == 6:
                for a in tog6: s(f"v_xor_b32 v{a}, 0x10000, v{a}")
            if n == 7:
                for a in tog7: s(f"v_xor_b32 v{a}, 0x10000, v{a}")
            if n == 6 and skip_last:
                nx = s.new("nb")
                s(f"s_cmp_eq_u32 s{scnt}, 1\ns_cbranch_scc1 {s.ln(nx)}\ns_barrier")
                s.lab(nx)
            elif buf == 2: s("s_barrier")
            s("\n".join(R[:c1]))
            s(mf(buf,1,0,isv))
            s("\n".join(R[c1:c2]))
            s(mf(buf,0,1,isv))
            s("\n".join(R[c2:]))
            s(mf(buf,1,1,isv))
        s(f"s_sub_u32 s{scnt}, s{scnt}, 1\ns_cmp_lg_u32 s{scnt}, 0\ns_cbranch_scc1 {s.ln(lp)}")

    def qkv_compute(s):
        ACC = 64
        s.kwait()
        if s.opt.get('b0st'): s.stamp(5)
        s(f"""s_and_b32 s48, s{sW}, 1
        s_lshr_b32 s49, s{sW}, 1
        v_and_b32 v8, 31, v0
        v_lshrrev_b32 v9, 5, v0
        s_lshl_b32 s50, s48, 13
        v_lshl_add_u32 v10, v8, 7, s50
        v_bfe_u32 v11, v0, 1, 3
        v_xor_b32 v11, v11, v9""")
        for ks in range(4):
            s(f"v_xor_b32 v12, {2*ks}, v11\nv_lshl_add_u32 v{2+ks}, v12, 4, v10")
        s(f"""v_bfe_u32 v11, v0, 2, 2
        v_lshl_add_u32 v12, v9, 3, v11
        v_lshlrev_b32 v12, 8, v12
        v_bfe_u32 v13, v0, 4, 1
        v_lshl_add_u32 v12, v13, 5, v12
        v_and_b32 v13, 3, v0
        v_lshl_add_u32 v12, v13, 3, v12
        v_add_u32 v12, 16384, v12
        s_lshl_b32 s50, s49, 1
        v_xor_b32 v11, s50, v11
        v_lshl_add_u32 v6, v11, 6, v12
        v_xor_b32 v7, 64, v6""")
        for r in range(64): s(f"v_mov_b32 v{ACC+r}, 0")
        reads, mf = s.gemm_ops(lambda i, ks: (2+ks, 4096*i), 6)
        s.att_vsetup()
        if s.opt.get('b0st'): s.stamp(7)
        s(f"s_setprio {s.opt.get('cprio', 2)}\ns_barrier")
        s.stamp(1)
        for l in reads(0,0,0) + reads(1,0,1): s(l)
        s(f"s_mov_b32 s51, 5\ns_cmp_ge_u32 s47, 10\ns_cbranch_scc1 {s.ln('qkv_v')}")
        for isv in (0, 1):
            if isv: s.lab("qkv_v")
            s.gemm_loop(reads, mf, isv, (2,6,7), (3,4,5), 51, False)
            s(f"s_setprio {s.opt.get('eprio', 3)}")
            nb = [10]
            def bar():
                nb[0] += 1; s("s_barrier")
            cuts = {0: (0,), 1: (0, 4), 2: (0, 3, 6), 3: (0, 2, 4, 6), 4: (4,), 5: (2, 6)}[s.opt.get('ecut', 4)]
            s.stamp(2)
            P = 32
            if not isv:
                s(f"""s_cmp_lt_u32 s47, 5
                s_cselect_b32 s52, {fbits(20**-0.5*math.log2(math.e))}, 1.0
                s_mov_b32 s53, s52
                v_lshlrev_b32 v2, 15, v9
                v_lshl_add_u32 v2, v8, 4, v2
                s_lshl_b32 s54, s47, 4
                s_lshl_b32 s55, s49, 3
                s_add_u32 s54, s54, s55
                s_lshl_b32 s54, s54, 15
                s_lshl_b32 s55, s46, 11
                s_add_u32 s54, s54, s55
                s_lshl_b32 s55, s48, 10
                s_add_u32 s54, s54, s55
                s_waitcnt lgkmcnt(0)""")
            else:
                s(f"""s_sub_u32 s54, s47, 10
                s_lshl_b32 s54, s54, 7
                s_lshl_b32 s55, s49, 6
                s_add_u32 s54, s54, s55
                v_add_u32 v4, s54, v8
                v_mul_u32_u24 v6, 320, v9""")
                for j in range(2):
                    s(f"""v_mul_u32_u24 v5, 3277, v4
                    v_lshrrev_b32 v5, 16, v5
                    v_mul_u32_u24 v{2+j}, {81920-320}, v5
                    v_lshl_add_u32 v{2+j}, v4, 4, v{2+j}
                    v_add_u32 v{2+j}, v{2+j}, v6
                    v_add_u32 v4, 32, v4""")
                s(f"""s_lshl_b32 s54, s46, 1
                s_add_u32 s54, s54, s48
                s_mul_i32 s54, s54, {8*320}
                s_add_u32 s54, s54, {VI}
                s_waitcnt lgkmcnt(0)""")
            n = 0
            for j in range(2):
                for gp in range(2):
                    for i in range(2):
                        a = ACC + 16*(2*i+j) + 8*gp
                        if n in cuts: bar()
                        p = P + 4*(n % 8); n += 1
                        if not isv:
                            for q in range(4):
                                s(f"v_pk_mul_f32 {vr(a+2*q,2)}, {vr(a+2*q,2)}, s[52:53]")
                        for q in range(4):
                            s(f"v_cvt_pk_bf16_f32 v{p+q}, v{a+2*q}, v{a+2*q+1}")
                        s(f"s_nop 1\nv_permlane32_swap_b32 v{p}, v{p+2}\nv_permlane32_swap_b32 v{p+1}, v{p+3}")
                        if s.opt.get('nost'): pass
                        elif not isv:
                            s(f"buffer_store_dwordx4 {vr(p,4)}, v2, {srd(sWS)}, s54 offen offset:{512*i} sc1")
                        else:
                            s(f"buffer_store_dwordx4 {vr(p,4)}, v{2+j}, {srd(sWS)}, s54 offen offset:{(4*i+2*gp)*320} sc1")
                    if not isv: s("s_add_u32 s54, s54, 65536")
            if not isv: s(f"s_branch {s.ln('qkv_pub')}")
        s.lab("qkv_pub")
        s(f"""s_lshl_b32 s54, s47, 4
        s_add_u32 s54, s54, s46
        s_mul_i32 s54, s54, {FSP}
        s_add_u32 s54, s54, {F_Q}""")
        while nb[0] < s.opt.get('barr', 12): bar()
        s("s_waitcnt vmcnt(0)")
        bar()
        nx = s.new("q")
        s(f"s_cmp_lg_u32 s{sW}, 0\ns_cbranch_scc1 {s.ln(nx)}")
        s.set_flag("s54", 4, 5)
        s.lab(nx)
        s.stamp(3)
        while nb[0] < 15: bar()

    def att_vsetup(s):
        aK1, aK2, aV, vK, vV, vIDX, aPW, aPR, vPC = 14, 15, 16, 17, 18, 19, 20, 21, 22
        w0, dn = s.new("vs"), s.new("vs")
        s(f"""s_and_b32 s68, s{sI}, 1
        s_lshr_b32 s69, s{sW}, 2
        v_and_b32 v23, 31, v0
        v_lshrrev_b32 v24, 5, v0
        v_and_b32 v30, 15, v0
        v_lshrrev_b32 v31, 4, v0
        s_mul_i32 s70, s68, 3
        v_add_u32 v{vK}, s70, v31
        v_cmp_gt_u32 vcc, 2, v31
        v_add_u32 v25, s70, v24
        s_lshl_b32 s71, s{sW}, 8
        v_cndmask_b32 v{vK}, 2, v{vK}, vcc
        v_lshlrev_b32 v{vK}, 15, v{vK}
        v_lshl_add_u32 v{vK}, v30, 4, v{vK}
        v_add_u32 v{vK}, s71, v{vK}
        v_cmp_lt_u32 vcc, 20, v0
        s_mul_i32 s71, s{sW}, 640
        v_subrev_u32 v{vV}, 1, v0
        v_cndmask_b32 v{vV}, v0, v{vV}, vcc
        v_lshlrev_b32 v{vV}, 4, v{vV}
        v_add_u32 v{vV}, s71, v{vV}
        v_and_b32 v29, 1, v31
        v_mul_u32_u24 v{aK2}, 768, v29
        v_lshl_add_u32 v{aK2}, v30, 4, v{aK2}
        s_mul_i32 s71, s69, 3072
        s_add_u32 s71, s71, {KVB}
        v_add_u32 v{aK2}, s71, v{aK2}
        v_lshl_add_u32 v{aK1}, v24, 8, v{aK2}
        v_lshl_add_u32 v{aK2}, v24, 3, v{aK2}
        v_add_u32 v{aK2}, 512, v{aK2}
        v_min_u32 v{aV}, 20, v23
        v_mul_u32_u24 v28, 336, v24
        v_mov_b32 v{vIDX}, 0xdddd
        v_lshl_add_u32 v{aV}, v{aV}, 4, v28
        s_mul_i32 s71, s69, 2688
        s_add_u32 s71, s71, {KVB+6144}
        v_add_u32 v{aV}, s71, v{aV}
        s_lshl_b32 s71, s{sW}, 2
        s_add_u32 s71, s71, {SY_PA}
        v_mov_b32 v{aPW}, s71
        v_and_b32 v{aPR}, 7, v0
        v_lshlrev_b32 v{aPR}, 2, v{aPR}
        v_add_u32 v{aPR}, {SY_PA}, v{aPR}
        v_mov_b32 v{vPC}, 1
        v_lshlrev_b32 v25, 15, v25
        v_lshl_add_u32 v25, v23, 4, v25
        v_lshlrev_b32 v26, 4, v23
        v_lshl_add_u32 v26, v24, 3, v26
        v_add_u32 v26, 0x10000, v26
        v_lshlrev_b32 v27, 2, v23""")
        s(f"""s_mov_b32 exec_lo, 0xfee00000
        s_mov_b32 exec_hi, 0xfee00000
        v_mov_b32 v{aV}, 0x30000
        s_sub_u32 exec_hi, s68, 1
        s_not_b32 exec_lo, exec_hi
        v_mov_b32 v{aK2}, 0x30000
        s_mov_b64 exec, -1
        s_cmp_eq_u32 s{sW}, 0
        s_cbranch_scc1 {s.ln(w0)}
        v_mul_u32_u24 v28, {KVS}, v31
        v_mul_u32_u24 v29, 336, v30
        v_add_u32 v28, v28, v29
        v_add_u32 v28, {KVB+6144+320}, v28
        s_branch {s.ln(dn)}""")
        s.lab(w0)
        s(f"""s_lshl_b32 s70, s{sXC}, 2
        s_and_b32 s71, s{sI}, 3
        s_add_u32 s70, s70, s71
        s_lshr_b32 s71, s70, 1
        s_mul_i32 s71, s71, 5
        s_lshl_b32 s68, s68, 1
        s_add_u32 s71, s71, s68
        s_mul_i32 s70, s70, 20
        v_mul_u32_u24 v28, 19, v29
        v_lshl_add_u32 v29, v29, 1, s71
        v_lshrrev_b32 v29, 4, v29
        v_add_u32 v28, s70, v28
        v_lshrrev_b32 v28, 7, v28
        v_add_u32 v28, 5, v28
        v_cmp_eq_u32 vcc, 0, v24
        s_lshr_b32 s70, s{sI}, 2
        s_lshl_b32 s70, s70, 1
        v_cndmask_b32 v28, v28, v29, vcc
        v_add_u32 v28, 5, v28
        v_lshl_add_u32 v28, v28, 4, v30
        v_mul_u32_u24 v28, {FSP}, v28
        v_and_b32 v31, 1, v0
        v_add_u32 v31, s70, v31
        v_lshl_add_u32 v29, v29, 4, v31
        v_mul_u32_u24 v29, {FSP}, v29""")
        s.lab(dn)

    def attention(s):
        Q1, Q2, K1, K2, V0, V1 = 8, 12, 152, 150, 156, 160
        S = (32, 48); O = 64
        aK1, aK2, aV, vK, vV, vIDX, aPW, aPR, vPC, vPR = 14, 15, 16, 17, 18, 19, 20, 21, 22, 30
        sH, sQB, sP, sODD, sKO, sVO, sMK, sMV, sN, sNEED, sTOK = 48, 49, 50, 51, 52, 53, 54, 55, 56, 3, 100
        EK, EV = "s[58:59]", "s[60:61]"
        sKB, sVB = 62, 63
        s(f"""s_setprio 3
        s_lshl_b32 s{sH}, s{sXC}, 2
        s_and_b32 s57, s{sI}, 3
        s_add_u32 s{sH}, s{sH}, s57
        s_lshr_b32 s{sQB}, s{sI}, 2
        s_lshr_b32 s{sP}, s{sH}, 1
        s_and_b32 s{sODD}, s{sH}, 1
        s_mov_b32 s58, -1
        s_mov_b32 s59, 0xffff
        s_mov_b32 s60, 0xffefffff
        s_mov_b32 s61, 0x1ff
        s_mul_i32 s{sKB}, s{sP}, {5*32768}
        s_add_u32 s{sKB}, s{sKB}, {KI}
        s_mul_i32 s{sVB}, s{sH}, 81920
        s_add_u32 s{sVB}, s{sVB}, {VI}
        s_mul_i32 s{sMK}, s{sW}, 768
        s_add_u32 s{sMK}, s{sMK}, {KVB}
        s_mul_i32 s{sMV}, s{sW}, 672
        s_add_u32 s{sMV}, s{sMV}, {KVB+6144}
        s_lshl_b32 s{sTOK}, s{sQB}, 8
        s_and_b32 s57, s{sW}, 3
        s_lshl_b32 s57, s57, 6
        s_add_u32 s{sTOK}, s{sTOK}, s57
        s_lshr_b32 s{sN}, s{sW}, 2
        s_lshl_b32 s57, s{sN}, 5
        s_add_u32 s{sTOK}, s{sTOK}, s57
        """)
        SS = ((32, 96), (48, 112)); OO = (O, 128); QQ = ((Q1, Q2), (144, 148))
        s(f"""
        s_lshl_b32 s70, s{sTOK}, 4
        s_add_u32 s70, s70, s{sKB}
        s_sub_u32 s70, s70, {KI-QI}
        s_lshl_b32 s71, s{sTOK}, 2
        s_add_u32 s71, s71, {GI}
        """)
        def dma(slot):
            return [f"s_add_u32 m0, s{sMK}, {slot*KVS}",
                    f"s_mov_b64 exec, {EK}",
                    f"buffer_load_dwordx4 v{vK}, {srd(sWS)}, s{sKO} offen sc1 lds",
                    f"s_add_u32 m0, s{sMV}, {slot*KVS}",
                    f"s_mov_b64 exec, {EV}",
                    f"buffer_load_dwordx4 v{vV}, {srd(sWS)}, s{sVO} offen sc1 lds",
                    f"s_mov_b64 exec, -1",
                    f"s_add_u32 s{sKO}, s{sKO}, 2048",
                    f"s_add_u32 s{sVO}, s{sVO}, 5120"]
        D0 = dma(0)
        s(f"s_mov_b32 s{sKO}, s{sKB}\ns_mov_b32 s{sVO}, s{sVB}")
        hi, w1, w23, nidle = s.new("a"), s.new("a"), s.new("a"), s.new("a")
        ql = [(88,1,28,sWS,"s64",0),(89,1,29,sWS,"s64",0),(90,1,27,sWS,"s65",0)][:2 if s.opt.get('noln') else 3]
        s(f"""s_cmp_ge_u32 s{sW}, 4
        s_cbranch_scc1 {s.ln(w23)}
        s_cmp_lg_u32 s{sW}, 0
        s_cbranch_scc1 {s.ln(w1)}
        s_barrier
        s_cmp_lg_u32 s{sCT}, 15
        s_cbranch_scc1 {s.ln(nidle)}
        s_mul_i32 s64, s{sRT}, {FSP}
        s_add_u32 s64, s64, {F_Q + 14*16*FSP}
        v_mov_b32 v86, 0""")
        s.poll([(88,1,86,sWS,"s64",0)], sleep=8)
        s.lab(nidle)
        s(f"""s_mov_b32 s64, {F_Q}
        s_lshl_b32 s65, s{sQB}, 7
        s_add_u32 s65, s65, {F_H}""")
        if s.opt.get('epoll', 1):
            s.poll_issue(ql)
            s("s_barrier")
            s.poll(ql, sleep=s.opt.get('psl', 4), pre=0)
        else:
            s("s_barrier")
            s.poll(ql, sleep=s.opt.get('psl', 4))
        s.lds_set(SY_QOK, 1, 84, 85)
        s(f"s_branch {s.ln(hi)}")
        s.lab(w1)
        s(f"""s_barrier
        s_barrier
        s_cmp_lg_u32 s{sW}, 1
        s_cbranch_scc1 {s.ln(hi)}
        v_mov_b32 v88, 0x3f803f80
        v_mov_b32 v89, 0x3f803f80
        v_mov_b32 v90, 0x3f803f80
        v_mov_b32 v91, 0x3f803f80
        ds_write_b128 v28, v[88:91]
        s_branch {s.ln(hi)}""")
        s.lab(w23)
        s("s_waitcnt vmcnt(0)")
        if s.opt.get('ldstamp') == 12: s.stamp(8)
        s("s_barrier")
        s.stamp(2)
        if s.opt.get('ldstamp'): s.end_wave()
        s.lab(hi)
        s(f"v_mov_b32 v86, {SY_QOK}")
        s.lds_spin(86, 1, 87)
        s.stamp(4)
        if s.opt.get('dbgx') == 2 or s.opt.get('ldstamp'): s.end_wave()
        s("\n".join(D0))
        s(f"""buffer_load_dwordx4 {vr(Q1,4)}, v25, {srd(sWS)}, s70 offen sc1
        buffer_load_dwordx2 {vr(Q2,2)}, v26, {srd(sWS)}, s70 offen sc1""")
        s(f"""s_xor_b32 s67, s70, 512
        buffer_load_dwordx4 {vr(QQ[1][0],4)}, v25, {srd(sWS)}, s67 offen sc1
        buffer_load_dwordx2 {vr(QQ[1][1],2)}, v26, {srd(sWS)}, s67 offen sc1""")
        for l in dma(1): s(l)
        ystag = s.opt.get('ystag', 1)
        lord = s.opt.get('lord', 1)
        def rest():
            for l in dma(2): s(l)
            if s.opt.get('nodma'):
                for l in dma(3): s(l)
                s("s_waitcnt vmcnt(0)")
            s(f"buffer_load_dword v31, v27, {srd(sWS)}, s71 offen sc1")
        if not lord: rest()
        for r in range(0, 16, 2): s(f"v_pk_mov_b32 {vr(O+r,2)}, 0, 0\nv_pk_mov_b32 {vr(128+r,2)}, 0, 0")
        for r in range(0, 8, 2): s(f"v_pk_mov_b32 {vr(SS[1][1]+8+r,2)}, 0, 0")
        for r in range(0, 4, 2): s(f"v_pk_mov_b32 {vr(V1+r,2)}, 0, 0")
        s(f"""v_cmp_eq_u32 vcc, s{sODD}, v24
        s_mov_b32 s{sNEED}, 2
        s_waitcnt vmcnt({2 if lord else 5}) lgkmcnt(0)
        ds_write_b32 v{aPW}, v{vPC}""")
        if lord: rest()
        s(f"""v_add_u32 v{vPC}, 1, v{vPC}
        v_cndmask_b32 v{Q2}, 0, v{Q2}, vcc
        v_cndmask_b32 v{Q2+1}, 0, v{Q2+1}, vcc
        v_cndmask_b32 v148, 0, v148, vcc
        v_cndmask_b32 v149, 0, v149, vcc""")
        s.lds_spin(aPR, 1, vPR, sleep=0)
        s.stamp(5)
        def off(T):
            T %= 8
            return (T >> 1)*KVS, T & 1
        def rK1(T):
            b, tt = off(T); return f"ds_read_b128 {vr(K1,4)}, v{aK1} offset:{b+tt*1536}"
        def rK2(T):
            b, tt = off(T); return f"ds_read_b64 {vr(K2,2)}, v{aK2} offset:{b+tt*1536}"
        def rV(T, a):
            b, tt = off(T); return f"ds_read_b128 {vr((V0,V1)[a],4)}, v{aV} offset:{b+(4*tt+2*a)*336}"
        def qk0(d, a): return f"v_mfma_f32_32x32x16_bf16 {vr(d,16)}, {vr(K1,4)}, {vr(QQ[a][0],4)}, 0"
        def qk1(d, a): return f"v_mfma_f32_32x32x8_bf16 {vr(d,16)}, {vr(K2,2)}, {vr(QQ[a][1],2)}, {vr(d,16)}"
        def pv(a, v, p): return f"v_smfmac_f32_32x32x32_bf16 {vr(OO[a],16)}, {vr(v,4)}, {vr(p,8)}, v{vIDX}"
        s(rK1(0)); s(rK2(0)); s(rV(0,0)); s("s_waitcnt lgkmcnt(1)")
        s(qk0(SS[0][0], 0)); s(qk1(SS[0][0], 0)); s(qk0(SS[1][0], 1)); s(rK1(1)); s(qk1(SS[1][0], 1)); s(rK2(1))
        s(f"""s_waitcnt vmcnt(3)
        ds_write_b32 v{aPW}, v{vPC}
        s_mov_b32 s69, 4
        v_add_u32 v{vPC}, 1, v{vPC}
        s_nop 3""")
        ap = s.opt.get('aprio', 1)
        nosync = s.opt.get('nosync'); nodma = s.opt.get('nodma')
        e0, e1, e2, e3 = 2, 6, 10, 14
        def loop(pat):
          lp = s.new("attl")
          s.L.append(".p2align 6")
          s.lab(lp)
          late = ystag and pat is not None
          for n in range(16):
              T, a = n >> 1, n & 1
              c, m = n >> 2, n & 3
              cur, nn = SS[a][T & 1], SS[a][(T+1) & 1]
              prev = SS[1][(T-1) & 1] if a == 0 else SS[0][T & 1]
              E = [f"v_exp_f32 v{cur+i}, v{cur+i}" for i in range(16)]
              D = dma((c + 3) & 3) if not nodma else [""]*9
              apm = s.opt.get('apm', 0)
              if pat is not None and apm:
                  per = s.opt.get('app', 1)
                  h, l = apm % 100, apm // 100
                  for pos, pr in ((h, ap+1), (l, ap)):
                      if pos // 16 == n % per: E[pos % 16] = f"s_setprio {pr}\n" + E[pos % 16]
              elif pat is not None and pat[n] != pat[n-1]: s(f"s_setprio {pat[n]}")
              for e in E[:e0]: s(e)
              if a == 0:
                  s(pv(1, V1, prev+8)); s(rV(T,1))
                  if n == 4:
                      s(f"""s_cmp_eq_u32 s69, 1
                      s_cselect_b32 s{sKO}, {WS_BYTES}, s{sKO}
                      s_cselect_b32 s{sVO}, {WS_BYTES}, s{sVO}
                      s_cselect_b32 s{sMK}, 0x30000, s{sMK}
                      s_cselect_b32 s{sMV}, 0x30000, s{sMV}""")
                  for e in E[e0:e1]: s(e)
                  s("s_waitcnt lgkmcnt(1)")
                  s(qk0(nn, 0))
                  for e in E[e1:e2]: s(e)
                  s(qk1(nn, 0))
                  if m == 0 and nosync != 2: s(f"ds_read_b32 v{vPR}, v{aPR}")
                  for e in E[e2:e3]: s(e)
                  s(pv(0, V0, cur))
              else:
                  s("s_waitcnt lgkmcnt(0)")
                  s(pv(0, V1, prev+8))
                  if m == 1 and not nosync:
                      s(f"v_cmp_gt_u32 vcc, s{sNEED}, v{vPR}")
                      s.spin_ool(aPR, f"s{sNEED}", vPR, sleep=1)
                  if m == 3:
                      if late: s("\n".join(D))
                      if nosync != 2: s(f"s_waitcnt vmcnt(2)\nds_write_b32 v{aPW}, v{vPC}")
                  for e in E[e0:e1]: s(e)
                  s(qk0(nn, 1)); s(rK1(T+2))
                  for e in E[e1:e2]: s(e)
                  s(qk1(nn, 1)); s(rK2(T+2))
                  if m == 1:
                      if not late: s("\n".join(D))
                      s(f"s_add_u32 s{sNEED}, s{sNEED}, 1")
                  if m == 3: s(f"v_add_u32 v{vPC}, 1, v{vPC}")
                  for e in E[e2:e3]: s(e)
                  s(pv(1, V0, cur)); s(rV(T+1,0))
              for e in E[e3:]: s(e)
          if s.opt.get('qst') and s.stamps:
              for k, c in ((1, 4), (2, 3), (3, 2)):
                  nx = s.new("st")
                  s(f"s_cmp_lg_u32 s69, {c}\ns_cbranch_scc1 {s.ln(nx)}")
                  s.stamp(k)
                  s.lab(nx)
          s(f"s_sub_u32 s69, s69, 1\ns_cmp_lg_u32 s69, 0\ns_cbranch_scc1 {s.ln(lp)}")
        ap = s.opt.get('aprio', 1)
        pm = s.opt.get('apat', 119)
        if pm:
            young, join = s.new("young"), s.new("join")
            s(f"s_cmp_ge_u32 s{sW}, 4\ns_cbranch_scc1 {s.ln(young)}\ns_setprio {ap}")
            loop(None)
            s(f"s_branch {s.ln(join)}")
            s.lab(young)
            pat = [(s.opt.get('ylo', ap), s.opt.get('yhi', ap+1))[(pm >> (T % 8)) & 1] for T in range(16)]
            s(f"s_setprio {pat[15]}")
            loop(pat)
            s.lab(join)
        else:
            s(f"s_setprio {ap}")
            loop(None)
        s("s_setprio 3")
        s(pv(1, V1, SS[1][1]+8))
        s(f"""s_lshl_b32 s64, s{sW}, 12
        s_add_u32 s64, s64, {KVB}
        v_lshlrev_b32 v84, 4, v0
        s_xor_b32 s65, s{sW}, 4
        v_add_u32 v85, s64, v84
        s_lshl_b32 s64, s65, 12
        s_add_u32 s64, s64, {KVB}
        v_add_u32 v84, s64, v84
        s_lshl_b32 s65, s65, 2
        s_add_u32 s65, s65, {SY_PA}
        v_mov_b32 v86, s65
        s_waitcnt vmcnt(0)""")
        for q in range(3): s(f"ds_write_b128 v85, {vr(128+4*q,4)} offset:{1024*q}")
        s(f"""ds_write_b32 v85, v140 offset:3072
        s_waitcnt lgkmcnt(0)
        ds_write_b32 v{aPW}, v{vPC}""")
        s.lds_spin(86, 19, 87, sleep=0)
        for q in range(3): s(f"ds_read_b128 {vr(128+4*q,4)}, v84 offset:{1024*q}")
        s(f"""ds_read_b32 v140, v84 offset:3072
        v_add_u32 v{vPC}, 1, v{vPC}""")
        s.stamp(6)
        s(f"""v_lshlrev_b32 v84, 4, v23
        v_lshl_add_u32 v86, v24, 15, v84
        s_lshl_b32 s64, s{sH}, 16
        s_lshl_b32 s65, s{sTOK}, 4
        s_add_u32 s65, s65, {OI}
        s_add_u32 s64, s64, s65
        s_add_u32 s57, s{sP}, 64
        s_lshl_b32 s57, s57, 15
        s_add_u32 s65, s65, s57
        s_xor_b32 s57, s{sP}, s{sH}
        s_and_b32 s57, s57, 1
        s_lshl_b32 s57, s57, 3
        s_add_u32 s65, s65, s57
        v_cmp_eq_u32 s[72:73], 0, v24
        s_waitcnt lgkmcnt(0)
        ds_write_b32 v{aPW}, v{vPC}""")
        for r in range(0, 12, 2): s(f"v_pk_add_f32 {vr(O+r,2)}, {vr(O+r,2)}, {vr(128+r,2)}")
        s(f"""v_add_f32 v{O+12}, v{O+12}, v140
        v_add_f32 v88, abs(v{O}), abs(v{O+1})
        v_add_f32 v89, abs(v{O+2}), abs(v{O+3})""")
        for r in range(4, 12, 2):
            s(f"v_add_f32 v88, v88, abs(v{O+r})\nv_add_f32 v89, v89, abs(v{O+r+1})")
        slow, norm = s.new("slow"), s.new("norm")
        s(f"""v_cndmask_b32 v87, v{O+8}, v{O+12}, s[72:73]
        v_add_f32 v88, v88, v89
        v_cmp_nle_f32 vcc, {fbits(2.0**-30)}, v87
        s_mov_b64 s[74:75], vcc
        v_cmp_nge_f32 vcc, {fbits(2.0**60)}, v87
        s_or_b64 s[74:75], s[74:75], vcc
        v_cmp_nge_f32 vcc, {fbits(2.0**126)}, v88
        s_or_b64 vcc, s[74:75], vcc
        s_cbranch_vccnz {s.ln(slow)}""")
        s.lab(norm)
        s(f"""v_rcp_f32 v88, v87
        s_nop 0
        v_mul_f32 v88, v88, v31""")
        s.slow_args = (slow, norm, Q1, Q2, K1, K2, V0, V1, S, O, vIDX, sKB, sVB)
        for r in range(12): s(f"v_mul_f32 v{O+r}, v{O+r}, v88")
        for q in range(6): s(f"v_cvt_pk_bf16_f32 v{32+q}, v{O+2*q}, v{O+2*q+1}")
        s(f"""buffer_store_dwordx4 v[32:35], v86, {srd(sWS)}, s64 offen sc1
        s_mov_b32 exec_hi, 0
        buffer_store_dwordx2 v[36:37], v84, {srd(sWS)}, s65 offen sc1
        s_mov_b32 exec_hi, -1""")
        s(f"""s_lshr_b32 s64, s{sTOK}, 6
        s_lshl_b32 s64, s64, 5
        s_add_u32 s64, s64, s{sH}
        s_mul_i32 s64, s64, {FSP}
        s_lshl_b32 s65, s{sN}, 2
        s_add_u32 s64, s64, s65
        s_add_u32 s64, s64, {F_O}
        s_mov_b64 exec, 1
        v_mov_b32 v84, 0
        v_mov_b32 v85, 1
        s_waitcnt vmcnt(0)
        buffer_store_dword v85, v84, {srd(sWS)}, s64 offen sc1""")
        s.stamp(7)

    def att_slow(s):
        slow, norm, Q1, Q2, K1, K2, V0, V1, S, O, vIDX, sKB, sVB = s.slow_args
        S0, C = S
        l1, l2 = s.new("slowa"), s.new("slowb")
        s.lab(slow)
        ldk = f"""buffer_load_dwordx4 {vr(K1,4)}, v25, {srd(sWS)}, s67 offen sc1
        buffer_load_dwordx2 {vr(K2,2)}, v26, {srd(sWS)}, s67 offen sc1"""
        s(f"""s_waitcnt vmcnt(0) lgkmcnt(0)
        v_mov_b32 v88, 0xff800000
        s_mov_b32 s67, s{sKB}
        s_mov_b32 s69, 64""")
        s.lab(l1)
        s(ldk)
        s(f"""s_waitcnt vmcnt(0)
        v_mfma_f32_32x32x16_bf16 {vr(S0,16)}, {vr(K1,4)}, {vr(Q1,4)}, 0
        v_mfma_f32_32x32x8_bf16 {vr(S0,16)}, {vr(K2,2)}, {vr(Q2,2)}, {vr(S0,16)}
        s_add_u32 s67, s67, 512
        s_nop 15""")
        for r in range(0, 16, 2): s(f"v_max3_f32 v88, v88, v{S0+r}, v{S0+r+1}")
        s(f"""s_sub_u32 s69, s69, 1
        s_cmp_lg_u32 s69, 0
        s_cbranch_scc1 {s.ln(l1)}
        v_mov_b32 v89, v88
        s_nop 1
        v_permlane32_swap_b32 v88, v89
        s_nop 1
        v_max_f32 v88, v88, v89
        v_mul_u32_u24 v89, 320, v24
        v_lshl_add_u32 v89, v23, 4, v89""")
        for r in range(16): s(f"v_sub_f32 v{C+r}, 0, v88\nv_mov_b32 v{O+r}, 0")
        for r in range(4): s(f"v_mov_b32 v{V0+r}, 0x3f803f80\nv_mov_b32 v{V1+r}, 0x3f803f80")
        s(f"""s_mov_b32 s67, s{sKB}
        s_mov_b32 s68, s{sVB}
        s_mov_b32 s69, 64
        s_mov_b32 s74, 0xfffff
        s_mov_b32 s75, 0xfffff""")
        s.lab(l2)
        s(ldk)
        s(f"""s_mov_b64 exec, s[74:75]
        buffer_load_dwordx4 {vr(V0,4)}, v89, {srd(sWS)}, s68 offen sc1
        buffer_load_dwordx4 {vr(V1,4)}, v89, {srd(sWS)}, s68 offen offset:640 sc1
        s_mov_b64 exec, -1
        s_waitcnt vmcnt(0)
        v_mfma_f32_32x32x16_bf16 {vr(S0,16)}, {vr(K1,4)}, {vr(Q1,4)}, {vr(C,16)}
        v_mfma_f32_32x32x8_bf16 {vr(S0,16)}, {vr(K2,2)}, {vr(Q2,2)}, {vr(S0,16)}
        s_add_u32 s67, s67, 512
        s_add_u32 s68, s68, 1280
        s_nop 15""")
        for r in range(16): s(f"v_exp_f32 v{S0+r}, v{S0+r}")
        s(f"""s_nop 1
        v_smfmac_f32_32x32x32_bf16 {vr(O,16)}, {vr(V0,4)}, {vr(S0,8)}, v{vIDX}
        v_smfmac_f32_32x32x32_bf16 {vr(O,16)}, {vr(V1,4)}, {vr(S0+8,8)}, v{vIDX}
        s_sub_u32 s69, s69, 1
        s_cmp_lg_u32 s69, 0
        s_nop 7
        s_cbranch_scc1 {s.ln(l2)}
        s_nop 15
        v_cndmask_b32 v87, v{O+8}, v{O+12}, s[72:73]
        s_branch {s.ln(norm)}""")

    def gfront(s):
        sJ = 48
        s(f"s_setprio 3\ns_sub_u32 s{sJ}, s{sW}, 8")
        s.ln_loads(sJ)
        s(f"""v_lshlrev_b32 v1, 2, v0
        v_add_u32 v1, {SYN}, v1
        v_mov_b32 v2, 0
        ds_write_b32 v1, v2""")
        if s.opt.get('noln'):
            s('s_barrier'); s.gtiles(sJ); s.nb = 1
        else: s.nb = s.layernorm(sJ)

    def grole(s):
        sJ = 48
        pre = s.gsetup(sJ)
        nb = s.nb
        assert nb <= s.opt.get('th', 7)
        s("s_setprio 0")
        lines = "\n".join(pre).split("\n")
        k = 11 - nb
        per = -(-len(lines) // k)
        for q in range(k):
            s("\n".join(lines[q*per:(q+1)*per])); s("s_barrier")
        s.stamp(2)
        s.gsync_n = 0
        s.gemm1(sJ)
        s.gemm2(sJ)

    def gtiles(s, sJ):
        s(f"""s_and_b32 s50, s{sXC}, 3
        s_lshl_b32 s51, s{sF1}, 2
        s_and_b32 s54, s{sJ}, 2
        s_add_u32 s51, s51, s54
        s_lshr_b32 s54, s50, 1
        s_add_u32 s51, s51, s54
        s_lshl_b32 s52, s{sD1}, 1
        s_and_b32 s54, s{sJ}, 1
        s_add_u32 s52, s52, s54
        s_lshl_b32 s52, s52, 1
        s_and_b32 s54, s50, 1
        s_add_u32 s52, s52, s54
        s_lshl_b32 s62, s{sXC}, 2
        s_and_b32 s54, s{sI}, 3
        s_add_u32 s62, s62, s54
        s_lshr_b32 s63, s{sI}, 2
        s_lshl_b32 s66, s62, 6
        s_lshl_b32 s54, s{sJ}, 4
        s_add_u32 s66, s66, s54
        s_lshl_b32 s54, s51, 6
        v_lshrrev_b32 v1, 5, v0
        v_lshl_add_u32 v1, v1, 3, s54
        v_and_b32 v2, 15, v0
        v_add_lshl_u32 v2, s66, v2, 1""")
        for q in range(4):
            s(f"global_load_dwordx2 {vr(54+2*q,2)}, v1, s[{sB1}:{sB1+1}] offset:{16*q}")
        s(f"global_load_ushort v62, v2, s[{sB2}:{sB2+1}]")

    def gsetup(s, sJ):
        B = []
        B.append(f"""s_mul_i32 s49, s{sJ}, {GREG}
        s_lshl_b32 s54, s{sJ}, 2
        s_add_u32 s54, s54, {SY_PG}
        v_mov_b32 v160, s54
        v_lshrrev_b32 v48, 4, v0
        v_and_b32 v49, 15, v0
        v_lshrrev_b32 v50, 5, v0
        v_and_b32 v51, 31, v0
        v_and_b32 v52, 3, v0
        v_bfe_u32 v53, v0, 2, 2
        v_lshlrev_b32 v161, 2, v52
        v_add_u32 v161, {SY_PG}, v161
        v_mov_b32 v164, {SYN}
        v_lshrrev_b32 v30, 3, v0
        v_and_b32 v31, 7, v0
        v_lshlrev_b32 v13, 1, v48
        v_xor_b32 v13, v13, v31
        v_lshlrev_b32 v30, 12, v30
        v_lshl_add_u32 v13, v13, 4, v30
        v_mul_u32_u24 v28, 10240, v50
        v_lshl_add_u32 v28, v51, 4, v28""")
        B.append(f"""v_lshl_add_u32 v26, v50, 3, v53
        v_lshlrev_b32 v26, 8, v26
        v_and_b32 v31, 1, v48
        v_lshl_add_u32 v26, v31, 5, v26
        v_lshl_add_u32 v26, v52, 3, v26
        v_add_u32 v24, 0x10000, v26
        v_add_u32 v26, {0x10000 + 16384}, v26
        s_and_b32 s54, s52, 3
        v_xor_b32 v30, s54, v53
        v_lshl_add_u32 v24, v30, 6, v24
        v_xor_b32 v25, 64, v24
        s_and_b32 s54, s51, 3
        v_xor_b32 v30, s54, v53
        v_lshl_add_u32 v26, v30, 6, v26
        v_xor_b32 v27, 64, v26
        """)
        B.append(f"""s_mul_i32 s64, s{sJ}, {384*4096}
        s_lshl_b32 s54, s62, 7
        s_add_u32 s64, s64, s54
        s_mul_i32 s65, s{sJ}, {48*10240}
        s_mul_i32 s54, s63, 1280
        s_add_u32 s65, s65, s54
        s_add_u32 s65, s65, {UI}
        v_mul_u32_u24 v14, 10240, v48
        v_lshl_add_u32 v14, v49, 4, v14
        v_bfe_u32 v30, v0, 2, 3
        v_lshl_add_u32 v31, v50, 4, v30
        v_lshlrev_b32 v31, 7, v31
        v_lshl_add_u32 v31, v52, 3, v31
        v_add_u32 v31, s49, v31
        v_lshrrev_b32 v32, 1, v30
        v_xor_b32 v32, s{sJ}, v32
        """ + "\n".join(f"v_xor_b32 v33, {si}, v32\nv_lshl_add_u32 v{15+si}, v33, 5, v31" for si in range(4)) + f"""
        v_lshlrev_b32 v12, 15, v48
        v_lshl_add_u32 v12, v49, 4, v12
        v_add_u32 v19, s66, v49
        v_mul_u32_u24 v19, 1280, v19
        v_lshl_add_u32 v19, v48, 3, v19""")
        B.append("\n".join(f"""v_add_u32 v31, {64*m}, v0
            v_mul_u32_u24 v32, 6554, v31
            v_lshrrev_b32 v32, 16, v32
            v_mul_u32_u24 v32, {1280-160}, v32
            v_lshl_add_u32 v{1+m}, v31, 4, v32""" for m in range(5)))
        B.append(f"""v_mul_u32_u24 v31, 20, v50
        v_add_u32 v31, v31, v30
        v_mul_u32_u24 v31, 160, v31
        v_lshl_add_u32 v6, v52, 3, v31
        v_add_u32 v7, 51200, v6
        v_mul_u32_u24 v31, 40, v48
        v_add_u32 v31, v31, v53
        v_add_u32 v31, 16, v31
        v_mul_u32_u24 v31, 160, v31
        v_lshl_add_u32 v31, v52, 3, v31
        v_and_b32 v32, 1, v48
        v_mul_u32_u24 v32, 3200, v32
        v_sub_u32 v9, v31, v32
        v_add_u32 v9, 3200, v9
        v_add_u32 v8, v31, v32
        v_add_u32 v10, 51200, v8
        v_add_u32 v11, 51200, v9""")
        B.append("\n".join(f"v_mov_b32 v{r}, 0" for r in range(80, 128)))
        B.append("s_waitcnt vmcnt(0)\n" + "\n".join(f"v_lshlrev_b32 v{64+2*q}, 16, v{54+q}\nv_and_b32 v{65+2*q}, 0xffff0000, v{54+q}" for q in range(8)) + "\nv_lshlrev_b32 v20, 16, v62")
        return B

    def xaddr(s, sJ, vw, vr0):
        s(f"v_lshlrev_b32 v{vw}, 4, v0")
        for n in range(1, 4):
            s(f"s_xor_b32 s54, s{sJ}, {n}\ns_mul_i32 s54, s54, {GREG}\ns_add_u32 s54, s54, {(n-1)*4096}\nv_add_u32 v{vr0+n-1}, s54, v{vw}")
        s(f"v_add_u32 v{vw}, s49, v{vw}")

    def gpost(s):
        s.gsync_n += 1
        s(f"s_waitcnt lgkmcnt(0)\nv_mov_b32 v162, {s.gsync_n}\nds_write_b32 v160, v162")
    def gwait(s, sleep=2):
        s.lds_spin(161, s.gsync_n, 163, sleep=sleep)

    def ln_loads(s, sJ):
        X = (8, 13); GWR = 18
        s(f"""s_and_b32 s67, s{sXC}, 3
        s_lshl_b32 s67, s67, 6
        s_lshr_b32 s68, s{sXC}, 2
        s_lshl_b32 s68, s68, 5
        s_add_u32 s67, s67, s68
        s_add_u32 s67, s67, s{sI}
        s_lshl_b32 s68, s67, 3
        s_lshl_b32 s69, s{sJ}, 1
        s_add_u32 s68, s68, s69
        s_mul_i32 s69, s68, 1280
        v_and_b32 v1, 31, v0
        v_lshrrev_b32 v3, 5, v0
        v_lshlrev_b32 v2, 3, v1
        v_lshlrev_b32 v1, 4, v1
        v_mul_u32_u24 v19, 1280, v3
        v_add_u32 v18, v19, v1
        v_add_u32 v19, v19, v2""")
        s.kwait()
        if s.opt.get('noln'): return
        s(f"""buffer_load_dwordx4 v[8:11], v18, {srd(sX)}, s69 offen
        buffer_load_dwordx4 v[12:15], v18, {srd(sX)}, s69 offen offset:512
        buffer_load_dwordx2 v[16:17], v19, {srd(sX)}, s69 offen offset:1024
        global_load_dwordx4 v[20:23], v1, s[{sGW}:{sGW+1}]
        global_load_dwordx4 v[24:27], v1, s[{sGW}:{sGW+1}] offset:512
        global_load_dwordx2 v[28:29], v2, s[{sGW}:{sGW+1}] offset:1024""")
        if s.opt.get('wpf', 0):
            s(f"""s_mul_i32 s70, s2, 9600
            s_mul_i32 s71, s{sJ}, {19*128}
            s_add_u32 s70, s70, s71
            v_min_u32 v166, 18, v0
            v_lshlrev_b32 v166, 7, v166
            buffer_load_dword v166, v166, {srd(sWQ)}, s70 offen""")

    def layernorm(s, sJ):
        X, GW, XV = 8, 20, 32
        nb = [0]
        def bar():
            nb[0] += 1; s("s_barrier")
        gl = [(31,1,30,sDBG,"0",0)]
        s(f"""s_mov_b32 s70, 0x3f803f80
        s_lshl_b32 s55, s68, 2
        s_add_u32 s55, s55, {GI}
        s_add_u32 s69, s69, {HI}
        v_lshlrev_b32 v3, 2, v3
        v_and_b32 v30, 15, v0
        v_lshlrev_b32 v30, 2, v30
        s_waitcnt vmcnt({1 if s.opt.get('wpf', 0) else 0})""")
        s.stamp(1)
        for i in range(10):
            s(f"v_dot2_f32_bf16 v4, v{X+i}, s70, {'v4' if i else 0}")
            s(f"v_dot2_f32_bf16 v5, v{X+i}, v{GW+i}, {'v5' if i else 0}")
        un = []
        for i in range(10):
            un += [f"v_lshlrev_b32 v{XV+2*i}, 16, v{X+i}", f"v_and_b32 v{XV+2*i+1}, 0xffff0000, v{X+i}"]
        def fill(n):
            for _ in range(n): s(un.pop(0) if un else "s_nop 0")
        fill(3)
        for k in (8, 4, 2, 1):
            for q in (4, 5): s(f"v_add_f32_dpp v{q}, v{q}, v{q} row_ror:{k} row_mask:0xf bank_mask:0xf")
            fill(1)
        s("v_mov_b32 v6, v4\nv_mov_b32 v7, v5"); fill(2)
        s("v_permlane16_swap_b32 v4, v6\nv_permlane16_swap_b32 v5, v7"); fill(2)
        s(f"""v_add_f32 v4, v4, v6
        v_add_f32 v5, v5, v7
        v_mul_f32 v4, {fbits(-1/640)}, v4
        v_mul_f32 v5, {fbits(-math.log2(math.e))}, v5
        v_exp_f32 v5, v5""")
        fill(len(un))
        s("v_add_f32 v5, 1.0, v5\nv_rcp_f32 v2, v5")
        for e in range(0, 20, 2): s(f"v_pk_add_f32 {vr(XV+e,2)}, {vr(XV+e,2)}, v[4:5] op_sel_hi:[1,0]")
        for e in range(0, 20, 2):
            a = (6, 52)[(e >> 1) & 1]
            if e < 4: s(f"v_pk_mul_f32 {vr(a,2)}, {vr(XV+e,2)}, {vr(XV+e,2)}")
            else: s(f"v_pk_fma_f32 {vr(a,2)}, {vr(XV+e,2)}, {vr(XV+e,2)}, {vr(a,2)}")
        s("v_pk_add_f32 v[6:7], v[6:7], v[52:53]\nv_add_f32 v6, v6, v7")
        for k in (8, 4, 2, 1):
            s(f"s_nop 1\nv_add_f32_dpp v6, v6, v6 row_ror:{k} row_mask:0xf bank_mask:0xf")
        s(f"""v_mov_b32 v7, v6
        v_mov_b32 v4, {fbits(1e-5)}
        s_nop 0
        v_permlane16_swap_b32 v6, v7
        s_nop 1
        v_add_f32 v6, v6, v7
        v_fmac_f32 v4, {fbits(1/640)}, v6
        v_rsq_f32 v4, v4
        s_nop 0""")
        for e in range(0, 20, 2):
            s(f"v_pk_mul_f32 {vr(XV+e,2)}, {vr(XV+e,2)}, v[4:5] op_sel_hi:[1,0]")
        for i in range(10): s(f"v_cvt_pk_bf16_f32 v{X+i}, v{XV+2*i}, v{XV+2*i+1}")
        nx, done = s.new("g"), s.new("g")
        s(f"""buffer_store_dwordx4 v[8:11], v18, {srd(sWS)}, s69 offen sc1
        buffer_store_dwordx4 v[12:15], v18, {srd(sWS)}, s69 offen offset:512 sc1
        buffer_store_dwordx2 v[16:17], v19, {srd(sWS)}, s69 offen offset:1024 sc1
        s_mov_b32 exec_lo, 1
        s_mov_b32 exec_hi, 1
        buffer_store_dword v2, v3, {srd(sWS)}, s55 offen sc1
        s_mov_b64 exec, -1
        s_cmp_lg_u32 s{sJ}, 0
        s_cbranch_scc1 {s.ln(nx)}""")
        s.poll_issue(gl)
        s.lab(nx)
        if s.opt.get('b0st'): s.stamp(7)
        s("s_waitcnt lgkmcnt(0)")
        for _ in range(s.opt.get('lnw', 2)): bar()
        s("s_waitcnt vmcnt(0)")
        bar()
        s(f"""s_lshl_b32 s54, s67, 2
        s_add_u32 s54, s54, {F_H}
        s_cmp_lg_u32 s{sJ}, 0
        s_cbranch_scc1 {s.ln(done)}""")
        s.poll(gl, sleep=4, pre=0)
        s.set_flag("s54", 4, 5)
        s.lab(done)
        s.gtiles(sJ)
        return nb[0]

    def gpoll(s, pre, loads, ok, sleep, lsl=4):
        nx = s.new("gp")
        s(f"s_cmp_lg_u32 s48, 0\ns_cbranch_scc1 {s.ln(nx)}")
        for addr, need in pre: s.lds_spin(164, need, 165, off=addr-SYN, sleep=lsl)
        s.poll(loads, sleep=sleep)
        s(f"v_mov_b32 v165, 1\nds_write_b32 v164, v165 offset:{ok-SYN}")
        s.lab(nx)
        s.lds_spin(164, 1, 165, off=ok-SYN, sleep=lsl)

    def g2_dW(s, t):
        L = []
        for n in range(4):
            pre = f"s_add_u32 m0, s49, {(t%3)*4096}\ns_nop 0\n" if n == 0 else ""
            inc = 32768-1024 if n < 3 else 32768+3*1024
            L.append(pre + f"buffer_load_dwordx4 v13, {srd(sW2)}, s64 offen offset:{1024*n} lds\ns_add_u32 s64, s64, {inc}")
        return L

    def pfwo(s):
        s(f"""s_lshl_b32 s60, s{sI}, 2
        s_add_u32 s60, s60, s48
        s_mul_i32 s61, s60, 6400
        v_min_u32 v30, 49, v0
        v_lshlrev_b32 v30, 7, v30
        buffer_load_dword v167, v30, {srd(sWO)}, s61 offen""")

    def gemm1(s, sJ):
        ACC = 64
        skip, fin = s.new("g1skip"), s.new("g1fin")
        s(f"s_cmp_eq_u32 s{sCT}, 15\ns_cbranch_scc1 {s.ln(skip)}")
        reads, mf = s.gemm_ops(24, 26)
        s(f"s_setprio {s.opt.get('gp1', 1)}")
        for l in reads(0,0,0) + reads(1,0,1): s(l)
        s("s_mov_b32 s54, 4")
        s.gemm_loop(reads, mf, 0, (24,25,26,27), (), 54, True)
        s.stamp(3)
        if s.opt.get('dbgx') == 3: s.end_wave()
        s(f"""s_setprio 3
        s_lshl_b32 s55, s{sN1}, 2
        s_lshl_b32 s57, s{sJ}, 11
        s_add_u32 s57, s57, {PI}
        v_lshlrev_b32 v29, 4, v0""")
        s.gpost()
        hold = s.opt.get('phold', 1)
        for n in range(1, 4):
            m = (0, 2, 1, 3)[n]
            p = 32 + 8*(n-1)
            s(f"""s_xor_b32 s54, s50, {m}
            s_add_u32 s54, s54, s55
            s_mul_i32 s54, s54, 24576
            s_add_u32 s54, s54, s57
            s_add_u32 s{57+n}, s54, {(n-1)*8192}""")
            for q in range(8): s(f"v_cvt_pk_bf16_f32 v{p+q}, v{ACC+16*n+2*q}, v{ACC+16*n+2*q+1}")
        if hold: s.lds_spin(164, max(1, hold-1), 165, off=(SY_QOK if hold == 1 else SY_PA)-SYN, sleep=(2 if hold < 3 else 6))
        for n in range(1, 4):
            p = 32 + 8*(n-1)
            s(f"""buffer_store_dwordx4 {vr(p,4)}, v29, {srd(sWS)}, s{57+n} offen sc1
            buffer_store_dwordx4 {vr(p+4,4)}, v29, {srd(sWS)}, s{57+n} offen offset:1024 sc1""")
        s(f"""s_add_u32 s56, s55, s50
        s_mul_i32 s54, s56, {FSP}
        s_add_u32 s54, s54, {F_P}""")
        s.arrive(SY_CP, 4, "s54", 30, 31)
        s.gwait()
        wsplit = s.opt.get('wsplit', 0)
        s(f"""s_mul_i32 s54, s55, {FSP}
        s_add_u32 s54, s54, {F_P}
        v_and_b32 v30, 3, v0
        v_mul_u32_u24 v30, {FSP}, v30
        s_mul_i32 s56, s56, 24576
        s_add_u32 s56, s56, s57""")
        s.gpoll([(SY_CP, 4)], [(31,1,30,sWS,"s54",0)], SY_POK, s.opt.get('ppsl', 4))
        s.stamp(4)
        for n in range(3):
            p = 32 + 8*n
            s(f"""buffer_load_dwordx4 {vr(p,4)}, v29, {srd(sWS)}, s56 offen sc1
            buffer_load_dwordx4 {vr(p+4,4)}, v29, {srd(sWS)}, s56 offen offset:1024 sc1
            s_add_u32 s56, s56, 8192""")
        c0 = -2*math.sqrt(2/math.pi)*math.log2(math.e); c1 = c0*0.044715
        s(f"""s_mov_b32 s56, {fbits(c1)}
        s_mov_b32 s57, {fbits(c1)}
        v_mov_b32 v56, {fbits(c0)}
        v_mov_b32 v57, {fbits(c0)}
        s_mov_b32 s60, 1.0
        s_mov_b32 s61, 1.0""")
        T = ACC + 16
        for n in range(3):
            s(f"s_waitcnt vmcnt({4-2*n})")
            if n == 2:
                for t in range(wsplit):
                    for l in s.g2_dW(t): s(l)
            for q in range(8):
                s(f"v_lshlrev_b32 v{T+2*q}, 16, v{32+8*n+q}\nv_and_b32 v{T+2*q+1}, 0xffff0000, v{32+8*n+q}")
            for r in range(0, 16, 2): s(f"v_pk_add_f32 {vr(ACC+r,2)}, {vr(ACC+r,2)}, {vr(T+r,2)}")
        for r in range(0, 16, 2): s(f"v_pk_mul_f32 {vr(T+r,2)}, {vr(ACC+r,2)}, {vr(ACC+r,2)}")
        for r in range(0, 16, 2): s(f"v_pk_fma_f32 {vr(T+r,2)}, {vr(T+r,2)}, s[56:57], v[56:57]")
        for r in range(0, 16, 2): s(f"v_pk_mul_f32 {vr(T+r,2)}, {vr(T+r,2)}, {vr(ACC+r,2)}")
        for r in range(16): s(f"v_exp_f32 v{T+r}, v{T+r}")
        for r in range(0, 16, 2): s(f"v_pk_add_f32 {vr(T+r,2)}, {vr(T+r,2)}, s[60:61]")
        for r in range(16): s(f"v_rcp_f32 v{T+r}, v{T+r}")
        for r in range(0, 16, 2): s(f"v_pk_mul_f32 {vr(T+r,2)}, {vr(T+r,2)}, {vr(ACC+r,2)}")
        for q in range(8): s(f"v_cvt_pk_bf16_f32 v{40+q}, v{T+2*q}, v{T+2*q+1}")
        s(f"""s_mul_i32 s54, s51, {4*10240}
        s_lshl_b32 s57, s52, 9
        s_add_u32 s54, s54, s57
        s_add_u32 s54, s54, {UI}
        s_add_u32 s57, s54, 20480
        buffer_store_dwordx4 v[40:43], v28, {srd(sWS)}, s54 offen sc1
        buffer_store_dwordx4 v[44:47], v28, {srd(sWS)}, s57 offen sc1
        s_mul_i32 s54, s{sD1}, 12
        s_add_u32 s54, s54, s{sF1}
        s_lshl_b32 s54, s54, 2
        s_add_u32 s54, s54, s50
        s_mul_i32 s54, s54, {FSP}
        s_add_u32 s54, s54, {F_U}""")
        s.arrive(SY_CU, 4, "s54", 30, 31)
        s(f"s_branch {s.ln(fin)}")
        s.lab(skip)
        for _ in range(7): s("s_barrier")
        s("s_setprio 3")
        if s.opt.get('ldstamp'): s.end_wave()
        s.lds_spin(164, s.opt.get('skipw', 4), 165, off=SY_PA-SYN, sleep=8)
        for t in range(wsplit):
            for l in s.g2_dW(t): s(l)
        s("s_waitcnt vmcnt(0)")
        s.lab(fin)
        s.pfwo()
        s.stamp(5)
        if s.opt.get('dbgx') or s.opt.get('ldstamp'): s.end_wave()

    def gemm2(s, sJ):
        ACC, UB, BB = 64, (24, 44), 144
        vW, vU, aT = 13, 14, 15
        sST, sDT, sOW, sOU, sTK = 62, 63, 64, 65, 66
        NS = 3
        dW = s.g2_dW
        def lU(t):
            L = [f"buffer_load_dwordx4 {vr(UB[t&1]+4*di,4)}, v{vU}, {srd(sWS)}, s{sOU} offen offset:{256*di} sc1" for di in range(5)]
            L[4] += f"\ns_add_u32 s{sOU}, s{sOU}, 40960"
            return L
        def rd(t, si):
            o = (t % NS)*4096
            return f"ds_read_b64_tr_b16 {vr(BB+4*si,2)}, v{aT+si} offset:{o}\nds_read_b64_tr_b16 {vr(BB+4*si+2,2)}, v{aT+si} offset:{o+1024}"
        def mf(t, si, di):
            d = vr(ACC+20*si+4*di,4)
            if s.opt.get('gnomf'): return "s_nop 3"
            return f"v_mfma_f32_16x16x32_bf16 {d}, {vr(UB[t&1]+4*di,4)}, {vr(BB+4*si,4)}, {d if t else 0}"
        s(f"s_setprio {s.opt.get('gp2', 0)}")
        for t in range(s.opt.get('wsplit', 0), 3):
            for l in dW(t): s(l)
            if (s.opt.get('wpre', 3) >> t) & 1: s("s_waitcnt vmcnt(0)")
        s(f"""s_setprio 3
        s_mul_i32 s55, s{sDT}, 80
        s_lshr_b32 s54, s55, 7
        s_mul_i32 s54, s54, {48*FSP}
        s_add_u32 s54, s54, {F_U}
        s_add_u32 s55, s55, 79
        s_lshr_b32 s55, s55, 7
        s_mul_i32 s55, s55, {48*FSP}
        s_add_u32 s55, s55, {F_U}
        s_lshl_b32 s57, s{sST}, 5
        s_add_u32 s57, s57, {F_H}
        v_min_u32 v24, 47, v0
        v_mul_u32_u24 v24, {FSP}, v24
        v_and_b32 v25, 7, v0
        v_lshlrev_b32 v25, 2, v25""")
        s.gpoll([(SY_PA, s.opt.get('utrg', 0))], [(26,1,24,sWS,"s54",0),(27,1,24,sWS,"s55",0),(28,1,25,sWS,"s57",0)], SY_UOK, s.opt.get('usl', 8), lsl=s.opt.get('ulsl', 4))
        s(f"""s_lshl_b32 s54, s{sTK}, 2
        s_add_u32 s54, s54, {GI}
        v_and_b32 v22, 15, v0
        v_lshlrev_b32 v22, 2, v22
        s_setprio {s.opt.get('gp2', 0)}
        buffer_load_dword v22, v22, {srd(sWS)}, s54 offen sc1""")
        s.stamp(6)
        if s.opt.get('dbgy') == 3: s.end_wave()
        for t in range(2):
            for l in lU(t): s(l)
        s("s_waitcnt vmcnt(10)")
        for si in range(4): s(rd(0, si))
        NT = 12
        s(f"""s_mul_i32 s56, s{sJ}, {160*1280}
        s_mul_i32 s54, s{sDT}, 160
        s_add_u32 s56, s56, s54""")
        def wo1(n):
            return f"s_add_u32 m0, s49, {n*1024}\ns_add_u32 s57, s56, {(n//5)*32*1280}\nbuffer_load_dwordx4 v{1+n%5}, {srd(sWO)}, s57 offen lds"
        cnt = []
        for t in range(NT):
            if t == s.opt.get('gp2t', 99): s(f"s_setprio {s.opt.get('gp2b', 0)}")
            nold = s.opt.get('gnold')
            U = lU(t+2) if t+2 < NT and not nold else []
            W = dW(t+3) if t+3 < NT else [wo1(4*(t-9) + q) for q in range(4)]
            if nold and t+3 < NT: W = []
            X = [wo1(18+t if t < 7 else 6+t)] + ([wo1(12)] if t == 10 else [])
            s(f"s_waitcnt vmcnt({cnt[-1] if t else 5})")
            cnt.append(len(U) + len(W) + len(X))
            if t == 9: s.gpost()
            for si in range(4):
                s(f"s_waitcnt lgkmcnt({6 if t+1 < NT else 2*(3-si)})")
                for di in range(5):
                    s(mf(t, si, di if si % 2 == 0 or not s.opt.get('serp', 1) else 4-di))
                    if si == 3 and di < len(W): s(W[di])
                    if si == 1 and di < len(X): s(X[di])
                if t+1 < NT: s(rd(t+1, si))
            for l in U: s(l)
        s.stamp(7)
        if s.opt.get('dbgy') == 1: s.end_wave()
        s("s_setprio 3")
        s.gwait(1)
        ORD = [3, 7, 11, 15] + [t for t in range(20) if t % 4 != 3 or t > 15]
        OB = 64; AC = 24
        NB = 9; FB = [44, 48, 52, 56, 60, 144, 148, 152, 156]
        def rdf(n):
            t, di = divmod(n, 5); b = FB[n % NB]; t = ORD[t]
            if t < 16:
                a = 6 if t < 8 else 7; o = (t % 8)*6400 + 32*di
                return f"ds_read_b64_tr_b16 {vr(b,2)}, v{a} offset:{o}\nds_read_b64_tr_b16 {vr(b+2,2)}, v{a} offset:{o+1280}"
            tp = t-16; a = 8 if tp < 2 else 10; o = (tp % 2)*25600 + 32*di
            return f"ds_read_b64_tr_b16 {vr(b,2)}, v{a} offset:{o}\nds_read_b64_tr_b16 {vr(b+2,2)}, v{a+1} offset:{o}"
        FD = s.opt.get('fd', 7)
        for n in range(FD): s(rdf(n))
        s(f"""v_lshlrev_b32 v13, 4, v0
        s_mul_i32 s54, s{sJ}, 15360
        s_add_u32 s54, s54, {KVB}
        v_add_u32 v1, s54, v13
        s_add_u32 s54, s54, 14336
        s_cmp_eq_u32 s{sJ}, 3
        s_cselect_b32 s54, 19200, s54
        v_add_u32 v2, s54, v13""")
        for n in range(1, 4):
            s(f"s_xor_b32 s54, s{sJ}, {n}\ns_mul_i32 s54, s54, 15360\ns_add_u32 s54, s54, {KVB + (n-1)*5120}\nv_add_u32 v{2+n}, s54, v13")
        s(f"""s_add_u32 s54, s54, 4096
        s_cmp_eq_u32 s{sJ}, 0
        s_cselect_b32 s54, 19200, s54
        v_add_u32 v13, s54, v13
        v_and_b32 v14, 7, v0
        v_lshlrev_b32 v14, 2, v14
        v_add_u32 v14, {SY_PA}, v14
        v_sub_f32 v22, 1.0, v22
        v_mul_f32 v20, v20, v22
        v_and_b32 v15, 31, v0
        v_mul_u32_u24 v15, {FSP}, v15
        v_lshrrev_b32 v16, 5, v0
        v_lshl_add_u32 v15, v16, 2, v15
        s_lshl_b32 s56, s{sTK}, 4
        s_add_u32 s56, s56, {OI}
        s_mul_i32 s54, s{sST}, {32*FSP}
        s_add_u32 s54, s54, {F_O}""")
        s.gpost()
        if s.opt.get('tst'): s.stamp(3)
        s.lds_spin(14, 18, 165, sleep=8)
        s.lds_spin(14, 20, 165, sleep=s.opt.get('esl', 1))
        if s.opt.get('tst'): s.stamp(4)
        for n in range(1, 4):
            for q in range(5):
                e = 5*(n-1) + q
                if e < 14: s(f"ds_write_b128 v1, {vr(ACC+20*n+4*q,4)} offset:{1024*e}")
                else:
                    s.gwait(0)
                    s(f"ds_write_b128 v2, {vr(ACC+20*n+4*q,4)}")
        s("s_waitcnt vmcnt(0)")
        s.gpost(); s.gwait(0)
        if s.opt.get('tst'): s.stamp(5)
        for n in range(1, 4):
            for q in range(5):
                if (n, q) != (3, 4): s(f"ds_read_b128 {vr(ACC+20*n+4*q,4)}, v{2+n} offset:{1024*q}")
                else: s(f"ds_read_b128 {vr(ACC+20*n+4*q,4)}, v13")
        for n in range(1, 4):
            s(f"s_waitcnt lgkmcnt({5*(3-n)})")
            for r in range(0, 20, 2): s(f"v_pk_add_f32 {vr(ACC+r,2)}, {vr(ACC+r,2)}, {vr(ACC+20*n+r,2)}")
        for r in range(0, 20, 2): s(f"v_pk_fma_f32 {vr(AC+r,2)}, {vr(ACC+r,2)}, v[22:23], v[20:21] op_sel_hi:[1,0,0]")
        if s.opt.get('tst'): s.stamp(6)
        s.gpoll([], [(16,1,15,sWS,"s54",0)], SY_OOK, s.opt.get('osl', 1), lsl=s.opt.get('olsl', 1))
        s.stamp(8)
        if s.opt.get('dbgy') == 2: s.end_wave()
        def lO(t): return f"s_add_u32 s57, s56, {ORD[t]*131072}\nbuffer_load_dwordx4 {vr(OB+4*t,4)}, v12, {srd(sWS)}, s57 offen sc1"
        PD = s.opt.get('opd', 8)
        for t in range(PD): s(lO(t))
        for n in range(100):
            t, di = divmod(n, 5)
            w = []
            if di == 0: w.append(f"vmcnt({min(PD-1, 19-t)})")
            wg = {0: (1,1,1,1,1), 1: (3,0,0,2,0), 2: (2,0,2,0,1), 3: (5,0,0,0,0)}[s.opt.get('wg', 1)][di]
            if wg and n+wg-1 >= FD: w.append(f"lgkmcnt({2*min(FD-wg, 99-(n+wg-1))})")
            if w: s("s_waitcnt " + " ".join(w))
            if s.opt.get('wst') and n in (0, 25, 50, 75, 99): s.stamp(3 + (n+1)//25)
            d = vr(AC+4*di,4)
            s(f"v_mfma_f32_16x16x32_bf16 {d}, {vr(FB[n % NB],4)}, {vr(OB+4*t,4)}, {d}")
            if n+FD < 100 and not s.opt.get('wnord'): s(rdf(n+FD))
            if di == 4 and t+PD < 20 and not s.opt.get('wnold'): s(lO(t+PD))
        s(f"s_mul_i32 s54, s{sDT}, 160\ns_nop 7")
        for di in range(5):
            s(f"""v_cvt_pk_bf16_f32 v{2+2*di}, v{AC+4*di}, v{AC+4*di+1}
            v_cvt_pk_bf16_f32 v{3+2*di}, v{AC+4*di+2}, v{AC+4*di+3}
            buffer_store_dwordx2 {vr(2+2*di,2)}, v19, {srd(sOUT)}, s54 offen offset:{32*di}{("", " sc1", " nt", " sc0 sc1", " sc1 nt")[s.opt.get('osc', 0)]}""")

    def text(s):
        s.prologue()
        head = f".globl {s.k}\n.p2align 8\n.type {s.k},@function\n{s.k}:\n"
        return head + "\n".join(s.L) + "\n"

def kd(k):
    return f""".amdhsa_kernel {k}
  .amdhsa_next_free_vgpr 168
  .amdhsa_next_free_sgpr 102
  .amdhsa_accum_offset 168
  .amdhsa_group_segment_fixed_size 0
  .amdhsa_kernarg_size 96
  .amdhsa_user_sgpr_count 2
  .amdhsa_user_sgpr_kernarg_segment_ptr 1
  .amdhsa_system_sgpr_workgroup_id_x 1
.end_amdhsa_kernel
"""

def build(mode="fused", stamps=False, opt=None):
    k = NAME + "_kernel"
    out = f"; @launch grid=(256,1,1) block=(768,1,1) lds={LDS_BYTES}\n"
    out += '.amdgcn_target "amdgcn-amd-amdhsa--gfx950"\n.text\ncode_begin:\n'
    out += Gen(k, stamps, opt).text()
    out += 'code_end:\n.section .rodata,"a"\n.p2align 6\n' + kd(k)
    return out

if __name__ == "__main__":
    mode = sys.argv[1] if len(sys.argv) > 1 else "fused"
    stamps = "stamp" in sys.argv[2]
    opt = {}
    for a in sys.argv[3:]:
        k, v = a.split("="); opt[k] = int(v)
    open(sys.argv[2], "w").write(build(mode, stamps, opt))
```

```python
import sys, math, struct

NAME = "gated_mix__mha_block__mixer_token_mlp__prompt"

QI = 0x000000
KI = 0x280000
VI = 0x500000
HI = 0x780000
UI = 0xA00000
OI = 0xC00000
GI = 0xE80000
FL = 0xE90000
FSP = int(__import__('os').environ.get('FSP', 64))
F_H = FL + 1792*FSP
F_Q = FL + 256*FSP
F_P = FL
F_U = FL + 512*FSP
F_O = FL + 768*FSP
FL_BYTES = 2048*FSP
HSP = 4
STAMP = 0xF00000
PI = 0x1000000
WS_BYTES = 0x1800000

GREG = 25600
KVB = 102400
KVS = 11520
LNS = 148480
SYN = 163584
SY_PA = SYN
SY_PG = SYN + 32
SY_QOK = SYN + 52
SY_POK = SYN + 56
SY_UOK = SYN + 60
SY_OOK = SYN + 64
SY_CQ = SYN + 68
SY_CU = SYN + 72
SY_CO = SYN + 76
SY_CP = SYN + 80
DUMMY = 163328
LDS_BYTES = 163840

SPIN_LIMIT = 200000

def fbits(x):
    return "0x%08x" % struct.unpack("<I", struct.pack("<f", x))[0]

sX, sWQ, sWO, sW1, sW2, sWS, sOUT, sDBG = 4, 8, 12, 16, 20, 24, 28, 32
sB1, sB2, sGW = 36, 38, 40
sW, sXC, sI = 42, 43, 44
sSPIN = 45
sRT, sCT = 46, 47
sN1, sD1, sF1 = 3, 100, 101
def srd(n): return f"s[{n}:{n+3}]"
def vr(a, n): return f"v[{a}:{a+n-1}]" if n > 1 else f"v{a}"

class Gen:
    def __init__(s, kname, stamps=False, opt=None):
        s.L = []
        s.k = kname
        s.stamps = stamps
        s.uid = 0
        s.cold = []
        s.opt = opt or {}
        s.hsp = s.opt.get('hsp', HSP)
    def __call__(s, t):
        for l in t.split("\n"):
            l = l.strip()
            if l: s.L.append("    " + l)
    def al8(s):
        if s.opt.get('al8', 1): s.L.append(".p2align 3")
    def lab(s, n):
        s.L.append(f"{s.k}_{n}:")
    def ln(s, n):
        return f"{s.k}_{n}"
    def new(s, base):
        s.uid += 1
        return f"{base}{s.uid}"
    def stamp(s, i):
        if s.stamps:
            s(f"s_memrealtime s[76:77]\ns_memtime s[78:79]\ns_waitcnt lgkmcnt(0)\ns_mov_b32 s{80+2*i}, s76\ns_mov_b32 s{81+2*i}, s78")
    def end_wave(s):
        if 'probe' in s.opt:
            k = s.opt['probe'] % 10; w = s.opt['probe'] // 10
            s.stamp(9)
            lp, nx = s.new("pr"), s.new("pr")
            s(f"""s_cmp_lg_u32 s2, {s.opt.get('pwg', 100)}
            s_cbranch_scc1 {s.ln(nx)}
            s_cmp_lg_u32 s{sW}, {w}
            s_cbranch_scc1 {s.ln(nx)}
            s_add_u32 s46, s{80+2*k}, 10000""")
            s.lab(lp)
            s(f"""s_memrealtime s[76:77]
            s_waitcnt lgkmcnt(0)
            s_sub_u32 s47, s76, s46
            s_cmp_lt_i32 s47, 0
            s_cbranch_scc1 {s.ln(lp)}""")
            s.lab(nx)
            s("s_endpgm")
            return
        if s.stamps:
            s.stamp(9)
            s(f"s_mul_i32 s46, s2, 12\ns_add_u32 s46, s46, s{sW}\ns_lshl_b32 s46, s46, 7\ns_add_u32 s46, s46, {STAMP}")
            s("s_mov_b64 exec, -1\nv_lshlrev_b32 v1, 2, v0\nv_mov_b32 v2, 0")
            for i in range(20): s(f"v_writelane_b32 v2, s{80+i}, {i}")
            s(f"s_mov_b32 exec_hi, 0\nbuffer_store_dword v2, v1, {srd(sWS)}, s46 offen")
        s("s_endpgm")

    def lds_spin(s, vaddr, need, vtmp, off=0, sleep=1):
        a, b = s.new("spin"), s.new("spind")
        s(f"s_mov_b32 s{sSPIN}, {SPIN_LIMIT*4}")
        s.lab(a)
        s(f"""ds_read_b32 v{vtmp}, v{vaddr} offset:{off}
        s_waitcnt lgkmcnt(0)
        v_cmp_gt_u32 vcc, {need}, v{vtmp}
        s_cbranch_vccz {s.ln(b)}
        s_sleep {sleep}
        s_sub_u32 s{sSPIN}, s{sSPIN}, 1
        s_cbranch_scc0 {s.ln(a)}""")
        s.lab(b)

    def spin_ool(s, vaddr, need, vtmp, off=0, sleep=0):
        out, back = s.new("ool"), s.new("back")
        s(f"s_cbranch_vccnz {s.ln(out)}")
        s.lab(back)
        keep = s.L; s.L = []
        s.lab(out)
        s.lds_spin(vaddr, need, vtmp, off=off, sleep=sleep)
        s(f"s_branch {s.ln(back)}")
        s.cold += s.L; s.L = keep
    def flush_cold(s):
        s.L += s.cold; s.cold = []

    def poll_issue(s, loads):
        regs = []
        for (vd, n, vo, r, so, imm) in loads:
            sfx = {1: "dword", 2: "dwordx2", 4: "dwordx4"}[n]
            s(f"buffer_load_{sfx} {vr(vd,n)}, v{vo}, {srd(r)}, {so} offen offset:{imm} sc1")
            regs += list(range(vd, vd+n))
        return regs
    def poll(s, loads, sleep=2, pre=None):
        a, b, c = s.new("poll"), s.new("polld"), s.new("pollc")
        s(f"s_mov_b32 s{sSPIN}, {SPIN_LIMIT}")
        if pre is not None: s(f"s_waitcnt vmcnt({pre})\ns_branch {s.ln(c)}")
        s.lab(a)
        regs = s.poll_issue(loads)
        s("s_waitcnt vmcnt(0)")
        s.lab(c)
        for q in regs[1:]:
            s(f"v_min_u32 v{regs[0]}, v{regs[0]}, v{q}")
        s(f"""v_cmp_eq_u32 vcc, 0, v{regs[0]}
        s_cbranch_vccz {s.ln(b)}
        s_sleep {sleep}
        s_sub_u32 s{sSPIN}, s{sSPIN}, 1
        s_cbranch_scc0 {s.ln(a)}""")
        s.lab(b)

    def set_flag(s, soff, va, vb):
        s(f"""s_mov_b64 exec, 1
        v_mov_b32 v{va}, 0
        v_mov_b32 v{vb}, 1
        buffer_store_dword v{vb}, v{va}, {srd(sWS)}, {soff} offen sc1
        s_mov_b64 exec, -1""")

    def arrive(s, cnt, n, soff, va, vb, younger=0):
        nx = s.new("arr")
        s(f"""s_mov_b64 exec, 1
        v_mov_b32 v{va}, {cnt}
        v_mov_b32 v{vb}, 1
        s_waitcnt vmcnt({younger})
        ds_add_rtn_u32 v{va}, v{va}, v{vb}
        s_waitcnt lgkmcnt(0)
        v_cmp_eq_u32 vcc, {n-1}, v{va}
        v_mov_b32 v{va}, 0
        s_cbranch_vccz {s.ln(nx)}
        buffer_store_dword v{vb}, v{va}, {srd(sWS)}, {soff} offen sc1""")
        s.lab(nx)
        s("s_mov_b64 exec, -1")

    def arrive_add(s, cnt, n, soff, voff, mask, va, vb, younger=0):
        nx = s.new("arr")
        s(f"""v_mov_b32 v{vb}, 1
        s_mov_b64 exec, 1
        v_mov_b32 v{va}, {cnt}
        s_waitcnt vmcnt({younger})
        ds_add_rtn_u32 v{va}, v{va}, v{vb}
        s_waitcnt lgkmcnt(0)
        v_cmp_eq_u32 vcc, {n-1}, v{va}
        s_cbranch_vccz {s.ln(nx)}
        s_mov_b64 exec, {mask}
        buffer_atomic_add v{vb}, v{voff}, {srd(sWS)}, {soff} offen sc1""")
        s.lab(nx)
        s("s_mov_b64 exec, -1")

    def apoll_issue(s, soff, va, vb):
        s(f"""s_mov_b64 exec, 1
        v_mov_b32 v{va}, 0
        v_mov_b32 v{vb}, 0
        buffer_atomic_add v{vb}, v{va}, {srd(sWS)}, {soff} offen sc0 sc1""")
    def apoll(s, soff, need, va, vb, sleep, pre=False):
        a, b, c = s.new("apoll"), s.new("apolld"), s.new("apollc")
        s(f"s_mov_b32 s{sSPIN}, {SPIN_LIMIT}")
        if pre: s(f"s_mov_b64 exec, 1\ns_branch {s.ln(c)}")
        s.lab(a)
        s.apoll_issue(soff, va, vb)
        s.lab(c)
        s(f"""s_waitcnt vmcnt(0)
        v_cmp_gt_u32 vcc, {need}, v{vb}
        s_cbranch_vccz {s.ln(b)}
        s_sleep {sleep}
        s_sub_u32 s{sSPIN}, s{sSPIN}, 1
        s_cbranch_scc0 {s.ln(a)}""")
        s.lab(b)
        s("s_mov_b64 exec, -1")

    def lds_set(s, addr, val, va, vb):
        s(f"""v_mov_b32 v{va}, {addr}
        v_mov_b32 v{vb}, {val}
        ds_write_b32 v{va}, v{vb}""")

    def kwait(s):
        s("s_waitcnt lgkmcnt(0)")
        if s.stamps: s("s_mov_b32 s80, s76\ns_mov_b32 s81, s78")

    def prologue(s):
        if s.stamps: s("s_memrealtime s[76:77]\ns_memtime s[78:79]")
        s(f"s_cmp_ge_u32 s2, 256\ns_cbranch_scc1 {s.ln('exit')}")
        for reg, off in ((sX,0),(sWS,88)):
            s(f"s_load_dwordx2 s[{reg}:{reg+1}], s[0:1], {off}")
        s(f"s_lshr_b32 s{sI}, s2, 3")
        if s.opt.get('cpf', 1): s.code_prefetch()
        for reg, off in ((sWQ,8),(sGW,64),(sDBG,80),(sW1,32),(sW2,48),(sWO,16),(sOUT,72),(sB1,40),(sB2,56)):
            s(f"s_load_dwordx2 s[{reg}:{reg+1}], s[0:1], {off}")
        s("v_lshrrev_b32 v1, 6, v0\nv_and_b32 v0, 63, v0")
        s(f"v_readfirstlane_b32 s{sW}, v1")
        s(f"s_mov_b32 s{sX+3}, 0x00020000")
        for reg, n in ((sX,2621440),(sWQ,2457600),(sWO,819200),(sW1,6291456),(sW2,f"s{sW1+2}"),(sWS,WS_BYTES),(sOUT,f"s{sX+2}"),(sDBG,256)):
            s(f"s_mov_b32 s{reg+2}, {n}")
            if reg != sX: s(f"s_mov_b32 s{reg+3}, s{sX+3}")
        s(f"s_and_b32 s{sXC}, s2, 7")
        if s.stamps:
            for i in range(1, 10): s(f"s_mov_b32 s{80+2*i}, 0")
        s(f"""s_and_b32 s{sRT}, s{sXC}, 3
        s_lshl_b32 s{sRT}, s{sRT}, 2
        s_and_b32 s48, s{sI}, 3
        s_add_u32 s{sRT}, s{sRT}, s48
        s_lshr_b32 s49, s{sXC}, 2
        s_lshl_b32 s{sCT}, s49, 3
        s_lshr_b32 s48, s{sI}, 2
        s_add_u32 s{sCT}, s{sCT}, s48
        s_lshl_b32 s{sN1}, s49, 5
        s_add_u32 s{sN1}, s{sN1}, s{sI}
        s_min_u32 s{sN1}, s{sN1}, 59
        s_mul_i32 s{sF1}, s{sN1}, 52
        s_lshr_b32 s{sF1}, s{sF1}, 8
        s_mul_i32 s48, s{sF1}, 5
        s_sub_u32 s{sD1}, s{sN1}, s48
        s_cmp_ge_u32 s{sW}, 8
        s_cbranch_scc1 {s.ln('grole')}
        s_cmp_eq_u32 s{sCT}, 15
        s_cbranch_scc1 {s.ln('idle')}
        s_cmp_lt_u32 s{sW}, 4
        s_cbranch_scc1 {s.ln('qkv_comp')}""")
        s.loader()
        s(f"s_branch {s.ln('att')}")
        s.lab("idle")
        s.kwait()
        nx = s.new("idle")
        s(f"""s_cmp_lg_u32 s{sW}, 0
        s_cbranch_scc1 {s.ln(nx)}
        v_lshlrev_b32 v1, 4, v0
        v_mov_b32 v4, 0
        v_mov_b32 v5, 0
        v_mov_b32 v6, 0
        v_mov_b32 v7, 0
        s_mul_i32 s52, s{sRT}, {FL_BYTES//16}
        s_add_u32 s52, s52, {FL}""")
        for n in range(FL_BYTES//16384):
            s(f"buffer_store_dwordx4 v[4:7], v1, {srd(sWS)}, s52 offen offset:{(n&3)*1024} sc1")
            if n & 3 == 3: s("s_add_u32 s52, s52, 4096")
        s(f"""s_lshl_b32 s52, s{sRT}, 2
        s_mov_b64 exec, 1
        s_waitcnt vmcnt(0)
        v_mov_b32 v5, 1
        buffer_store_dword v5, v4, {srd(sDBG)}, s52 offen sc1
        s_mov_b64 exec, -1""")
        s.lab(nx)
        s.att_vsetup()
        for _ in range(16): s("s_barrier")
        s(f"s_cmp_lt_u32 s{sW}, 4\ns_cbranch_scc1 {s.ln('att')}\ns_barrier\ns_branch {s.ln('att')}")
        s.lab("qkv_comp")
        s.qkv_compute()
        s.lab("att")
        s.attention()
        s.end_wave()
        s.flush_cold()
        s.att_slow()
        s.lab("grole2")
        s.grole()
        s.end_wave()
        s.lab("exit")
        s("s_endpgm")

    def code_prefetch(s):
        here, nx = s.new("pc"), s.new("pc")
        s("s_getpc_b64 s[50:51]")
        s.lab(here)
        s(f"""s_lshl_b32 s52, s{sI}, 3
        v_cmp_gt_u32 vcc, 64, v0
        v_add_u32 v1, s52, v0
        s_movk_i32 s54, 72
        v_cmp_gt_u32 s[52:53], s54, v0
        v_cndmask_b32 v1, v1, v0, vcc
        v_lshlrev_b32 v1, 7, v1
        v_min_u32 v1, code_end-{s.ln(here)}-4, v1
        s_mov_b64 exec, s[52:53]
        s_cbranch_execz {s.ln(nx)}
        global_load_dword v165, v1, s[50:51]""")
        s.lab(nx)
        s("s_mov_b64 exec, -1")

    def loader(s):
        if s.opt.get('lprio'): s(f"s_setprio {s.opt['lprio']}")
        s(f"""s_sub_u32 s48, s{sW}, 4
        v_lshrrev_b32 v32, 3, v0
        s_lshl_b32 s49, s48, 5
        v_add_u32 v32, s49, v32
        v_mul_u32_u24 v32, 1280, v32
        v_lshrrev_b32 v33, 4, v0
        v_and_b32 v34, 7, v0
        v_xor_b32 v34, v34, v33
        v_xor_b32 v35, 4, v34
        v_lshl_add_u32 v39, v34, 4, v32
        v_lshl_add_u32 v40, v35, 4, v32
        v_add_u32 v40, {10240-1024}, v40
        v_add_u32 v41, {2*(10240-1024)}, v39
        v_add_u32 v42, {2*(10240-1024)}, v40
        s_lshl_b32 s49, s48, 4
        v_add_u32 v32, s49, v33
        v_mul_u32_u24 v32, 3840, v32
        v_lshlrev_b32 v33, 2, v33
        v_and_b32 v34, 15, v0
        v_xor_b32 v34, v34, v33
        v_lshl_add_u32 v43, v34, 4, v32
        v_add_u32 v44, {15360-1024}, v43
        v_add_u32 v45, {2*(15360-1024)}, v43
        v_add_u32 v46, {3*(15360-1024)}, v43
        s_mul_i32 s50, s{sRT}, {128*1280}
        s_lshl_b32 s51, s{sCT}, 8
        s_lshl_b32 s52, s48, 12""")
        nt = " nt" if s.opt.get('qnt') else ""
        rot = s.opt.get('qrot', 2)
        if rot in (1, 2):
            s(f"""s_and_b32 s53, s{sI}, 3
            s_mul_i32 s53, s53, 5
            s_lshr_b32 s53, s53, 1
            s_lshr_b32 s54, s{sI}, 2
            s_add_u32 s53, s53, s54""")
            if rot == 2: s(f"s_and_b32 s54, s{sXC}, 3\ns_add_u32 s53, s53, s54")
            s("s_cmp_ge_u32 s53, 10\ns_cselect_b32 s54, 10, 0\ns_sub_u32 s53, s53, s54")
        elif rot == 0:
            s("s_mov_b32 s53, 0")
        else:
            T = {3: ["0412385679", "1250349678", "2306145789", "3012745689"],
                 4: ["0123456789", "1230567498", "2301674589", "3012745698"],
                 5: ["0213546879", "1032457698", "0132547689", "1023456798"],
                 6: ["0216354879", "1032745698", "0132485679", "1023549678"],
                 7: ["0123456789", "1032547698", "0123456789", "1032547698"],
                 8: ["0142356879", "1023547698", "0213465789", "1302457689"]}[rot]
            def enc(o):
                v = 0
                for j, ch in enumerate(o): v |= int(ch) << (4*j)
                return v
            s(f"""s_lshr_b32 s54, s{sI}, 2
            s_add_u32 s54, s54, s{sI}
            s_bitcmp1_b32 s54, 0
            s_cselect_b32 s56, {enc(T[1]) & 0xffffffff}, {0}
            s_cselect_b32 s57, {enc(T[1]) >> 32}, {0}
            s_cselect_b32 s58, {enc(T[3]) & 0xffffffff}, {0}
            s_cselect_b32 s59, {enc(T[3]) >> 32}, {0}
            s_cselect_b32 s60, 0, {enc(T[0]) & 0xffffffff}
            s_cselect_b32 s61, 0, {enc(T[0]) >> 32}
            s_cselect_b32 s62, 0, {enc(T[2]) & 0xffffffff}
            s_cselect_b32 s63, 0, {enc(T[2]) >> 32}
            s_or_b64 s[56:57], s[56:57], s[60:61]
            s_or_b64 s[58:59], s[58:59], s[62:63]
            s_bitcmp1_b32 s54, 1
            s_cselect_b64 s[56:57], s[58:59], s[56:57]
            s_and_b32 s53, s56, 15""")
        def issue(t):
            s(f"""s_lshl_b32 s54, s53, 7
            s_add_u32 m0, s52, {(t&3)*32768}
            s_add_u32 s54, s54, s50""")
            for n in range(4):
                s(f"buffer_load_dwordx4 v{39+n}, {srd(sX)}, s54 offen offset:{1024*n}{nt} lds")
            s(f"""s_mul_i32 s54, s53, {64*3840}
            s_add_u32 m0, s52, {(t&3)*32768+16384}
            s_add_u32 s54, s54, s51""")
            for n in range(4):
                s(f"buffer_load_dwordx4 v{43+n}, {srd(sWQ)}, s54 offen offset:{1024*n}{nt} lds")
            if rot < 3: s("s_add_u32 s53, s53, 1\ns_cmp_eq_u32 s53, 10\ns_cselect_b32 s53, 0, s53")
            else: s("s_lshr_b64 s[56:57], s[56:57], 4\ns_and_b32 s53, s56, 15")
        def issue1(t):
            s(f"""s_mul_i32 s54, s53, {64*1280}
            s_add_u32 m0, s52, {(t&3)*32768}
            s_add_u32 s54, s54, s50""")
            for n in range(4):
                s(f"buffer_load_dwordx4 v{47+n}, {srd(sWS)}, s54 offen offset:{1024*n} sc1 lds")
            s(f"""s_mul_i32 s54, s53, {64*3072}
            s_add_u32 m0, s52, {(t&3)*32768+16384}
            s_add_u32 s54, s54, s51""")
            for n in range(4):
                s(f"buffer_load_dwordx4 v{51+n}, {srd(sW1)}, s54 offen offset:{1024*n} lds")
            s("s_add_u32 s53, s53, 1\ns_and_b32 s53, s53, 7")
        pfq = s.opt.get('pfq', 1)
        tpf = s.opt.get('tpf', 1)
        stag = s.opt.get('stag', 2)
        pfts = [tpf + k for k in range({0: 1, 1: 4}.get(stag, s.opt.get('nsl', 6)))] if pfq else []
        th = s.opt.get('th', 7)
        ops = []
        s.kwait()
        if s.opt.get('b0st'): s.stamp(3)
        issue(0)
        if s.opt.get('b0st'): s.stamp(4)
        npre = s.opt.get('npre', 1)
        ops += [('s', 0)]
        if npre == 2: issue(1); ops += [('s', 1)]
        if s.opt.get('b0st'): s.stamp(5)
        s(f"""v_lshrrev_b32 v33, 4, v0
        v_add_u32 v33, s49, v33
        v_mul_u32_u24 v32, 3072, v33
        v_lshl_add_u32 v51, v34, 4, v32
        v_add_u32 v52, {12288-1024}, v51
        v_add_u32 v53, {2*(12288-1024)}, v51
        v_add_u32 v54, {3*(12288-1024)}, v51
        v_mul_u32_u24 v32, 1280, v33
        v_lshl_add_u32 v47, v34, 4, v32
        v_add_u32 v48, 4096, v47
        v_add_u32 v49, 8192, v47
        v_add_u32 v50, 12288, v47
        s_and_b32 s66, s{sXC}, 3
        s_mul_i32 s55, s66, {64*s.hsp}
        s_add_u32 s55, s55, {F_H}
        v_mul_u32_u24 v33, {s.hsp}, v0
        s_lshr_b32 s67, s{sI}, 2
        s_add_u32 s67, s67, s{sI}
        s_and_b32 s67, s67, 3
        s_cmp_ge_u32 s{sXC}, 4
        s_cselect_b32 s60, 12, 14
        s_cselect_b32 s61, 5, 4
        s_mov_b32 s62, {-(-65536//14)}
        s_cmov_b32 s62, {-(-65536//12)}
        s_cselect_b32 s63, 1536, 0
        s_mul_i32 s64, s60, s61
        s_sub_u32 s64, s64, 1
        v_min_u32 v32, s64, v0
        v_mul_u32_u24 v35, s62, v32
        v_lshrrev_b32 v35, 16, v35
        v_mul_u32_u24 v36, s60, v35
        v_sub_u32 v32, v32, v36
        s_lshl_b32 s64, s{sI}, 2
        s_add_u32 s64, s64, s48
        s_mul_i32 s64, s64, s61
        v_add_u32 v35, s64, v35
        v_min_u32 v35, 511, v35
        v_mul_u32_u24 v35, 3072, v35
        v_lshl_add_u32 v32, v32, 7, v35
        s_mul_i32 s64, s66, {512*3072}
        s_add_u32 s64, s64, s63""")
        if stag == 2: s(f"s_mul_i32 s67, s{sI}, s61\ns_mul_i32 s67, s67, {s.opt.get('nsl', 6)}\ns_lshr_b32 s67, s67, 7")
        over = s.new("over")
        s(f"s_branch {s.ln(over)}")
        s.lab("grole")
        s.gfront()
        s(f"s_branch {s.ln('grole2')}")
        s.lab(over)
        s.att_vsetup()
        if npre == 1: issue(1); ops += [('s', 1)]
        if s.opt.get('b0st'): s.stamp(6)
        hl = [(34,1,33,sWS,"s55",0)]
        def younger(tag):
            k = ops.index(tag)
            return sum(8 if o[0] == 's' else 1 for o in ops[k+1:])
        for t in range(17):
            s(f"s_waitcnt vmcnt({younger(('s', t))})")
            if s.opt.get('ldstamp') and s.opt['ldstamp'] <= t < s.opt['ldstamp']+6: s.stamp(3 + t - s.opt['ldstamp'])
            if s.opt.get('b0st') and t == 0: s.stamp(7)
            s("s_barrier")
            if t == 0: s.stamp(1)
            if t == 8:
                if not s.opt.get('noln'): s.poll(hl, sleep=s.opt.get('hsl', 8), pre=younger(('h', th)))
                s(f"""s_mul_i32 s50, s66, {512*1280}
                s_lshl_b32 s54, s{sD1}, 8
                s_add_u32 s50, s50, s54
                s_add_u32 s50, s50, {HI}
                s_mul_i32 s51, s66, {512*3072}
                s_lshl_b32 s54, s{sF1}, 8
                s_add_u32 s51, s51, s54""")
                r1 = s.opt.get('g1rot', 0)
                if r1 == 0: s("s_mov_b32 s53, 0")
                if r1 == 1: s(f"s_and_b32 s53, s{sF1}, 7")
                if r1 == 2: s(f"s_lshl_b32 s53, s{sD1}, 1\ns_add_u32 s53, s53, s{sF1}\ns_and_b32 s53, s53, 7")
            if t == th:
                s.poll_issue(hl); ops.append(('h', t))
            if t+2 <= 9: issue(t+2); ops.append(('s', t+2))
            elif t+2 <= 17: issue1(t+2); ops.append(('s', t+2))
            if t in pfts:
                if stag: s(f"s_cmp_eq_u32 s67, {t - tpf}\ns_cselect_b32 s54, s64, 0x1000000")
                s(f"buffer_load_dword v165, v32, {srd(sW1)}, s{54 if stag else 64} offen{' nt' if s.opt.get('pfnt') else ''}")
                ops.append(('x', t))
                if s.opt.get('pfnt') == 2:
                    s(f"buffer_load_dword v166, v32, {srd(sW1)}, s{54 if stag else 64} offen sc1"); ops.append(('y', t))

    def gemm_ops(s, xaddr, aW):
        ACC, F = 64, (32, 48, 128, 144)
        def tr(b, a, o): return [f"ds_read_b64_tr_b16 {vr(b,2)}, v{a} offset:{o}", f"ds_read_b64_tr_b16 {vr(b+2,2)}, v{a} offset:{o+1024}"]
        def reads(buf, sl, ks):
            b = F[buf]; o = sl*32768
            L = []
            for i in range(2):
                if isinstance(xaddr, int): L += tr(b+4*i, xaddr+i, o+ks*4096)
                else:
                    a0, o0 = xaddr(i, ks); L.append(f"ds_read_b128 {vr(b+4*i,4)}, v{a0} offset:{o+o0}")
                L += tr(b+8+4*i, aW+i, o+ks*4096)
            return L
        def mf(buf, i, j, isv):
            b = F[buf]; xa = vr(b+4*i,4); wa = vr(b+8+4*j,4); d = vr(ACC+16*(2*i+j),16)
            return f"v_mfma_f32_32x32x16_bf16 {d}, {xa if isv else wa}, {wa if isv else xa}, {d}"
        return reads, mf
    def gemm_loop(s, reads, mf, isv, tog6, tog7, scnt, skip_last):
        lp = s.new("gl")
        if s.opt.get('gal', 0):
            s.L.append(".p2align 6")
            for _ in range(s.opt['gal']-1): s("s_nop 0")
        s.lab(lp)
        for n in range(8):
            buf = n & 3
            R = reads((n+2) & 3, ((n+2) >> 2) & 1, (n+2) & 3)
            s(f"s_waitcnt lgkmcnt({len(R)})")
            c1, c2 = (2, 4) if len(R) == 6 else (3, 6)
            s(mf(buf,0,0,isv))
            if n == 6:
                for a in tog6: s(f"v_xor_b32 v{a}, 0x10000, v{a}")
            if n == 7:
                for a in tog7: s(f"v_xor_b32 v{a}, 0x10000, v{a}")
            if n == 6 and skip_last:
                nx = s.new("nb")
                s(f"s_cmp_eq_u32 s{scnt}, 1\ns_cbranch_scc1 {s.ln(nx)}\ns_barrier")
                s.lab(nx)
            elif buf == 2: s("s_barrier")
            s("\n".join(R[:c1]))
            s(mf(buf,1,0,isv))
            s("\n".join(R[c1:c2]))
            s(mf(buf,0,1,isv))
            s("\n".join(R[c2:]))
            s(mf(buf,1,1,isv))
        s(f"s_sub_u32 s{scnt}, s{scnt}, 1\ns_cmp_lg_u32 s{scnt}, 0\ns_cbranch_scc1 {s.ln(lp)}")

    def qkv_compute(s):
        ACC = 64
        s.kwait()
        if s.opt.get('b0st'): s.stamp(5)
        s(f"""s_and_b32 s48, s{sW}, 1
        s_lshr_b32 s49, s{sW}, 1
        v_and_b32 v8, 31, v0
        v_lshrrev_b32 v9, 5, v0
        s_lshl_b32 s50, s48, 13
        v_lshl_add_u32 v10, v8, 7, s50
        v_bfe_u32 v11, v0, 1, 3
        v_xor_b32 v11, v11, v9""")
        for ks in range(4):
            s(f"v_xor_b32 v12, {2*ks}, v11\nv_lshl_add_u32 v{2+ks}, v12, 4, v10")
        s(f"""v_bfe_u32 v11, v0, 2, 2
        v_lshl_add_u32 v12, v9, 3, v11
        v_lshlrev_b32 v12, 8, v12
        v_bfe_u32 v13, v0, 4, 1
        v_lshl_add_u32 v12, v13, 5, v12
        v_and_b32 v13, 3, v0
        v_lshl_add_u32 v12, v13, 3, v12
        v_add_u32 v12, 16384, v12
        s_lshl_b32 s50, s49, 1
        v_xor_b32 v11, s50, v11
        v_lshl_add_u32 v6, v11, 6, v12
        v_xor_b32 v7, 64, v6""")
        for r in range(64): s(f"v_mov_b32 v{ACC+r}, 0")
        reads, mf = s.gemm_ops(lambda i, ks: (2+ks, 4096*i), 6)
        s.att_vsetup()
        if s.opt.get('b0st'): s.stamp(7)
        s(f"s_setprio {s.opt.get('cprio', 2)}\ns_barrier")
        s.stamp(1)
        for l in reads(0,0,0) + reads(1,0,1): s(l)
        s(f"s_mov_b32 s51, 5\ns_cmp_ge_u32 s47, 10\ns_cbranch_scc1 {s.ln('qkv_v')}")
        for isv in (0, 1):
            if isv: s.lab("qkv_v")
            s.gemm_loop(reads, mf, isv, (2,6,7), (3,4,5), 51, False)
            s(f"s_setprio {s.opt.get('eprio', 3)}")
            nb = [10]
            def bar():
                nb[0] += 1; s("s_barrier")
            cuts = {0: (0,), 1: (0, 4), 2: (0, 3, 6), 3: (0, 2, 4, 6), 4: (4,), 5: (2, 6)}[s.opt.get('ecut', 4)]
            s.stamp(2)
            P = 32
            if not isv:
                s(f"""s_cmp_lt_u32 s47, 5
                s_cselect_b32 s52, {fbits(20**-0.5*math.log2(math.e))}, 1.0
                s_mov_b32 s53, s52
                v_lshlrev_b32 v2, 15, v9
                v_lshl_add_u32 v2, v8, 4, v2
                s_lshl_b32 s54, s47, 4
                s_lshl_b32 s55, s49, 3
                s_add_u32 s54, s54, s55
                s_lshl_b32 s54, s54, 15
                s_lshl_b32 s55, s46, 11
                s_add_u32 s54, s54, s55
                s_lshl_b32 s55, s48, 10
                s_add_u32 s54, s54, s55
                s_waitcnt lgkmcnt(0)""")
            else:
                s(f"""s_sub_u32 s54, s47, 10
                s_lshl_b32 s54, s54, 7
                s_lshl_b32 s55, s49, 6
                s_add_u32 s54, s54, s55
                v_add_u32 v4, s54, v8
                v_mul_u32_u24 v6, 320, v9""")
                for j in range(2):
                    s(f"""v_mul_u32_u24 v5, 3277, v4
                    v_lshrrev_b32 v5, 16, v5
                    v_mul_u32_u24 v{2+j}, {81920-320}, v5
                    v_lshl_add_u32 v{2+j}, v4, 4, v{2+j}
                    v_add_u32 v{2+j}, v{2+j}, v6
                    v_add_u32 v4, 32, v4""")
                s(f"""s_lshl_b32 s54, s46, 1
                s_add_u32 s54, s54, s48
                s_mul_i32 s54, s54, {8*320}
                s_add_u32 s54, s54, {VI}
                s_waitcnt lgkmcnt(0)""")
            n = 0
            for j in range(2):
                for gp in range(2):
                    for i in range(2):
                        a = ACC + 16*(2*i+j) + 8*gp
                        if n in cuts: bar()
                        s.al8()
                        p = P + 4*(n % 8); n += 1
                        if not isv:
                            for q in range(4):
                                s(f"v_pk_mul_f32 {vr(a+2*q,2)}, {vr(a+2*q,2)}, s[52:53]")
                        for q in range(4):
                            s(f"v_cvt_pk_bf16_f32 v{p+q}, v{a+2*q}, v{a+2*q+1}")
                        s(f"s_nop 1\nv_permlane32_swap_b32 v{p}, v{p+2}\nv_permlane32_swap_b32 v{p+1}, v{p+3}")
                        if s.opt.get('nost'): pass
                        elif not isv:
                            s(f"buffer_store_dwordx4 {vr(p,4)}, v2, {srd(sWS)}, s54 offen offset:{512*i} sc1")
                        else:
                            s(f"buffer_store_dwordx4 {vr(p,4)}, v{2+j}, {srd(sWS)}, s54 offen offset:{(4*i+2*gp)*320} sc1")
                    if not isv: s("s_add_u32 s54, s54, 65536")
            if not isv: s(f"s_branch {s.ln('qkv_pub')}")
        s.lab("qkv_pub")
        s(f"""s_lshl_b32 s54, s47, 4
        s_add_u32 s54, s54, s46
        s_mul_i32 s54, s54, {FSP}
        s_add_u32 s54, s54, {F_Q}""")
        while nb[0] < s.opt.get('barr', 12): bar()
        s("s_waitcnt vmcnt(0)")
        bar()
        nx = s.new("q")
        s(f"s_cmp_lg_u32 s{sW}, 0\ns_cbranch_scc1 {s.ln(nx)}")
        qa = s.opt.get('qa', 1)
        if qa:
            M = []
            for c in range(5):
                m = 0
                for h in range(32):
                    p0 = 5*(h >> 1) + 2*(h & 1)
                    if c in (p0 >> 4, (p0+2) >> 4): m |= 1 << h
                M.append(m)
            s(f"""s_mul_i32 s54, s{sCT}, 13
            s_lshr_b32 s54, s54, 6
            s_mul_i32 s54, s54, 5
            s_sub_u32 s54, s{sCT}, s54
            s_mov_b32 s52, {M[0]}""")
            for c in range(1, 5): s(f"s_cmp_eq_u32 s54, {c}\ns_cmov_b32 s52, {M[c]}")
            s(f"""s_mov_b32 s53, {'s52' if qa == 2 else 0}
            s_mov_b32 s54, {F_Q}
            v_lshlrev_b32 v4, 8, v0
            v_mov_b32 v5, 1
            s_mov_b64 exec, s[52:53]
            buffer_atomic_add v5, v4, {srd(sWS)}, s54 offen sc1
            s_mov_b64 exec, -1""")
        else: s.set_flag("s54", 4, 5)
        s.lab(nx)
        s.stamp(3)
        while nb[0] < 15: bar()

    def att_vsetup(s):
        aK1, aK2, aV, vK, vV, vIDX, aPW, aPR, vPC = 14, 15, 16, 17, 18, 19, 20, 21, 22
        w0, dn = s.new("vs"), s.new("vs")
        s(f"""s_and_b32 s68, s{sI}, 1
        s_lshr_b32 s69, s{sW}, 2
        v_and_b32 v23, 31, v0
        v_lshrrev_b32 v24, 5, v0
        v_and_b32 v30, 15, v0
        v_lshrrev_b32 v31, 4, v0
        s_mul_i32 s70, s68, 3
        v_add_u32 v{vK}, s70, v31
        v_cmp_gt_u32 vcc, 2, v31
        v_add_u32 v25, s70, v24
        s_lshl_b32 s71, s{sW}, 8
        v_cndmask_b32 v{vK}, 2, v{vK}, vcc
        v_lshlrev_b32 v{vK}, 15, v{vK}
        v_lshl_add_u32 v{vK}, v30, 4, v{vK}
        v_add_u32 v{vK}, s71, v{vK}
        v_cmp_lt_u32 vcc, 20, v0
        s_mul_i32 s71, s{sW}, 640
        v_subrev_u32 v{vV}, 1, v0
        v_cndmask_b32 v{vV}, v0, v{vV}, vcc
        v_lshlrev_b32 v{vV}, 4, v{vV}
        v_add_u32 v{vV}, s71, v{vV}
        v_and_b32 v29, 1, v31
        v_mul_u32_u24 v{aK2}, 768, v29
        v_lshl_add_u32 v{aK2}, v30, 4, v{aK2}
        s_mul_i32 s71, s69, 3072
        s_add_u32 s71, s71, {KVB}
        v_add_u32 v{aK2}, s71, v{aK2}
        v_lshl_add_u32 v{aK1}, v24, 8, v{aK2}
        s_lshl_b32 s70, s68, 3
        s_add_u32 s71, s70, 512
        v_add_u32 v{aK2}, s71, v{aK2}
        v_min_u32 v{aV}, 20, v23
        v_mul_u32_u24 v28, 336, v24
        v_mov_b32 v{vIDX}, 0xdddd
        v_lshl_add_u32 v{aV}, v{aV}, 4, v28
        s_mul_i32 s71, s69, 2688
        s_add_u32 s71, s71, {KVB+6144}
        v_add_u32 v{aV}, s71, v{aV}
        s_lshl_b32 s71, s{sW}, 2
        s_add_u32 s71, s71, {SY_PA}
        v_mov_b32 v{aPW}, s71
        v_and_b32 v{aPR}, 7, v0
        v_lshlrev_b32 v{aPR}, 2, v{aPR}
        v_add_u32 v{aPR}, {SY_PA}, v{aPR}
        v_mov_b32 v{vPC}, 1
        v_lshlrev_b32 v25, 15, v25
        v_lshl_add_u32 v25, v23, 4, v25
        v_lshlrev_b32 v26, 4, v23
        s_add_u32 s70, s70, 0x10000
        v_add_u32 v26, s70, v26
        v_lshlrev_b32 v27, 2, v23""")
        s(f"""s_mov_b32 exec_lo, 0xfee00000
        s_mov_b32 exec_hi, 0xfee00000
        v_mov_b32 v{aV}, 0x30000
        s_mov_b32 exec_lo, 0
        s_mov_b32 exec_hi, -1
        v_mov_b32 v{aK2}, 0x30000
        s_mov_b64 exec, -1
        s_cmp_eq_u32 s{sW}, 0
        s_cbranch_scc1 {s.ln(w0)}
        v_mul_u32_u24 v28, {KVS}, v31
        v_mul_u32_u24 v29, 336, v30
        v_add_u32 v28, v28, v29
        v_add_u32 v28, {KVB+6144+320}, v28
        s_branch {s.ln(dn)}""")
        s.lab(w0)
        s(f"""s_lshl_b32 s70, s{sXC}, 2
        s_and_b32 s71, s{sI}, 3
        s_add_u32 s70, s70, s71
        s_lshr_b32 s71, s70, 1
        s_mul_i32 s71, s71, 5
        s_lshl_b32 s68, s68, 1
        s_add_u32 s71, s71, s68
        s_mul_i32 s70, s70, 20
        v_mul_u32_u24 v28, 19, v29
        v_lshl_add_u32 v29, v29, 1, s71
        v_lshrrev_b32 v29, 4, v29
        v_add_u32 v28, s70, v28
        v_lshrrev_b32 v28, 7, v28
        v_add_u32 v28, 5, v28
        v_cmp_eq_u32 vcc, 0, v24
        s_lshr_b32 s70, s{sI}, 2
        s_lshl_b32 s70, s70, 1
        v_cndmask_b32 v28, v28, v29, vcc
        v_add_u32 v28, 5, v28
        v_lshl_add_u32 v28, v28, 4, v30
        v_mul_u32_u24 v28, {FSP}, v28
        v_and_b32 v31, 1, v0
        v_add_u32 v31, s70, v31
        v_lshl_add_u32 v29, v29, 4, v31
        v_mul_u32_u24 v29, {FSP}, v29""")
        s.lab(dn)

    def attention(s):
        Q1, Q2, K1, K2, V0, V1 = 8, 12, 152, 150, 156, 160
        S = (32, 48); O = 64
        aK1, aK2, aV, vK, vV, vIDX, aPW, aPR, vPC, vPR = 14, 15, 16, 17, 18, 19, 20, 21, 22, 30
        sH, sQB, sP, sODD, sKO, sVO, sMK, sMV, sN, sNEED, sTOK = 48, 49, 50, 51, 52, 53, 54, 55, 56, 3, 100
        EK, EV = "s[58:59]", "s[60:61]"
        sKB, sVB = 62, 63
        s(f"""s_setprio 3
        s_lshl_b32 s{sH}, s{sXC}, 2
        s_and_b32 s57, s{sI}, 3
        s_add_u32 s{sH}, s{sH}, s57
        s_lshr_b32 s{sQB}, s{sI}, 2
        s_lshr_b32 s{sP}, s{sH}, 1
        s_and_b32 s{sODD}, s{sH}, 1
        s_mov_b32 s58, -1
        s_mov_b32 s59, 0xffff
        s_mov_b32 s60, 0xffefffff
        s_mov_b32 s61, 0x1ff
        s_mul_i32 s{sKB}, s{sP}, {5*32768}
        s_add_u32 s{sKB}, s{sKB}, {KI}
        s_mul_i32 s{sVB}, s{sH}, 81920
        s_add_u32 s{sVB}, s{sVB}, {VI}
        s_mul_i32 s{sMK}, s{sW}, 768
        s_add_u32 s{sMK}, s{sMK}, {KVB}
        s_mul_i32 s{sMV}, s{sW}, 672
        s_add_u32 s{sMV}, s{sMV}, {KVB+6144}
        s_lshl_b32 s{sTOK}, s{sQB}, 8
        s_and_b32 s57, s{sW}, 3
        s_lshl_b32 s57, s57, 6
        s_add_u32 s{sTOK}, s{sTOK}, s57
        s_lshr_b32 s{sN}, s{sW}, 2
        s_lshl_b32 s57, s{sN}, 5
        s_add_u32 s{sTOK}, s{sTOK}, s57
        """)
        SS = ((32, 96), (48, 112)); OO = (128, O); QQ = ((144, 148), (Q1, Q2))
        s(f"""
        s_lshl_b32 s70, s{sTOK}, 4
        s_add_u32 s70, s70, s{sKB}
        s_sub_u32 s70, s70, {KI-QI}
        s_lshl_b32 s71, s{sTOK}, 2
        s_add_u32 s71, s71, {GI}
        """)
        def dma(slot):
            return [f"s_add_u32 m0, s{sMK}, {slot*KVS}",
                    f"s_mov_b64 exec, {EK}",
                    f"buffer_load_dwordx4 v{vK}, {srd(sWS)}, s{sKO} offen sc1 lds",
                    f"s_add_u32 m0, s{sMV}, {slot*KVS}",
                    f"s_mov_b64 exec, {EV}",
                    f"buffer_load_dwordx4 v{vV}, {srd(sWS)}, s{sVO} offen sc1 lds",
                    f"s_mov_b64 exec, -1",
                    f"s_add_u32 s{sKO}, s{sKO}, 2048",
                    f"s_add_u32 s{sVO}, s{sVO}, 5120"]
        D0 = dma(0)
        s(f"s_mov_b32 s{sKO}, s{sKB}\ns_mov_b32 s{sVO}, s{sVB}")
        hi, w1, w23, nidle = s.new("a"), s.new("a"), s.new("a"), s.new("a")
        ql = [(88,1,28,sWS,"s64",0),(89,1,29,sWS,"s64",0),(90,1,87,sWS,"s65",0)][:2 if s.opt.get('noln') else 3]
        s(f"""s_cmp_ge_u32 s{sW}, 4
        s_cbranch_scc1 {s.ln(w23)}
        s_cmp_lg_u32 s{sW}, 0
        s_cbranch_scc1 {s.ln(w1)}
        """)
        qa = s.opt.get('qa', 1)
        if qa:
            hl = [(90,1,87,sWS,"s65",0)]
            s(f"""s_mul_i32 s65, s{sQB}, {32*s.hsp}
            s_add_u32 s65, s65, {F_H}
            v_mul_u32_u24 v87, {s.hsp}, v23
            s_mul_i32 s66, s{sP}, 5
            s_lshl_b32 s57, s{sODD}, 1
            s_add_u32 s66, s66, s57
            s_and_b32 s66, s66, 15
            s_cmp_ge_u32 s66, 14
            s_cselect_b32 s66, 0x60, 48
            s_lshl_b32 s64, s{sH}, 8
            s_add_u32 s64, s64, {F_Q}""")
            if qa == 2: s(f"s_and_b32 s57, s{sQB}, 1\ns_lshl_b32 s57, s57, 13\ns_add_u32 s64, s64, s57")
            s(f"s_barrier\ns_cmp_lg_u32 s{sCT}, 15\ns_cbranch_scc1 {s.ln(nidle)}")
            s.apoll("s64", 1, 88, 89, 16)
            s.lab(nidle)
            s.poll_issue(hl)
            s.apoll_issue("s64", 88, 89)
            s("s_mov_b64 exec, -1\ns_barrier")
            s.poll(hl, sleep=4, pre=1)
            s.apoll("s64", "s66", 88, 89, s.opt.get('psl', 2), pre=True)
        else:
            s(f"""
            s_barrier
            s_cmp_lg_u32 s{sCT}, 15
            s_cbranch_scc1 {s.ln(nidle)}
            s_mul_i32 s64, s{sRT}, {FSP}
            s_add_u32 s64, s64, {F_Q + 14*16*FSP}
            v_mov_b32 v86, 0""")
            s.poll([(88,1,86,sWS,"s64",0)], sleep=8)
            s.lab(nidle)
            s(f"""s_mov_b32 s64, {F_Q}
            s_mul_i32 s65, s{sQB}, {32*s.hsp}
            s_add_u32 s65, s65, {F_H}
            v_mul_u32_u24 v87, {s.hsp}, v23""")
            if s.opt.get('epoll', 1):
                s.poll_issue(ql)
                s("s_barrier")
                s.poll(ql, sleep=s.opt.get('psl', 4), pre=0)
            else:
                s("s_barrier")
                s.poll(ql, sleep=s.opt.get('psl', 4))
        s.lds_set(SY_QOK, 1, 84, 85)
        s(f"s_branch {s.ln(hi)}")
        s.lab(w1)
        s(f"""s_barrier
        s_barrier
        s_cmp_lg_u32 s{sW}, 1
        s_cbranch_scc1 {s.ln(hi)}
        v_mov_b32 v88, 0x3f803f80
        v_mov_b32 v89, 0x3f803f80
        v_mov_b32 v90, 0x3f803f80
        v_mov_b32 v91, 0x3f803f80
        ds_write_b128 v28, v[88:91]
        s_branch {s.ln(hi)}""")
        s.lab(w23)
        s("s_waitcnt vmcnt(0)")
        if s.opt.get('ldstamp') == 12: s.stamp(8)
        s("s_barrier")
        s.stamp(2)
        if s.opt.get('ldstamp'): s.end_wave()
        s.lab(hi)
        s(f"""v_mov_b32 v86, {SY_QOK}
        v_xor_b32 v84, s{sN}, v24
        v_lshl_add_u32 v84, v84, 9, v26
        s_xor_b32 s67, s70, 512
        s_andn2_b32 s68, s70, 512""")
        s.lds_spin(86, 1, 87, sleep=s.opt.get('qsl', 0))
        s.stamp(4)
        if s.opt.get('dbgx') == 2 or s.opt.get('ldstamp'): s.end_wave()
        s("\n".join(D0))
        s(f"""buffer_load_dwordx4 {vr(Q1,4)}, v25, {srd(sWS)}, s70 offen sc1
        buffer_load_dwordx2 {vr(Q2,2)}, v84, {srd(sWS)}, s68 offen sc1
        buffer_load_dwordx4 {vr(QQ[0][0],4)}, v25, {srd(sWS)}, s67 offen sc1""")
        ystag = s.opt.get('ystag', 1)
        lord = s.opt.get('lord', 1)
        s(f"s_setprio {s.opt.get('sp2', 2)}")
        if lord == 3:
            for l in dma(1): s(l)
        for r in range(0, 16, 2): s(f"v_pk_mov_b32 {vr(O+r,2)}, 0, 0\nv_pk_mov_b32 {vr(128+r,2)}, 0, 0")
        for r in range(0, 8, 2): s(f"v_pk_mov_b32 {vr(SS[1][1]+8+r,2)}, 0, 0")
        for r in range(0, 4, 2): s(f"v_pk_mov_b32 {vr(V1+r,2)}, 0, 0")
        s(f"""v_pk_mov_b32 v[148:149], 0, 0
        s_lshl_b32 s64, s{sW}, 12
        s_add_u32 s64, s64, {KVB}
        v_lshlrev_b32 v81, 4, v0
        s_xor_b32 s65, s{sW}, 4
        v_add_u32 v80, s64, v81
        s_lshl_b32 s64, s65, 12
        s_add_u32 s64, s64, {KVB}
        v_add_u32 v81, s64, v81
        s_lshl_b32 s65, s65, 2
        s_add_u32 s65, s65, {SY_PA}
        v_mov_b32 v82, s65
        v_lshlrev_b32 v92, 4, v23
        v_lshl_add_u32 v83, v24, 15, v92
        v_cmp_eq_u32 s[72:73], 0, v24
        v_mov_b32 v93, {fbits(2.0**60)}
        v_mov_b32 v94, 0
        v_mov_b32 v95, 1
        s_lshl_b32 s64, s{sH}, 16
        s_lshl_b32 s65, s{sTOK}, 4
        s_add_u32 s65, s65, {OI}
        s_add_u32 s64, s64, s65
        s_add_u32 s57, s{sP}, 64
        s_lshl_b32 s57, s57, 15
        s_add_u32 s65, s65, s57
        s_xor_b32 s57, s{sP}, s{sH}
        s_and_b32 s57, s57, 1
        s_lshl_b32 s57, s57, 3
        s_add_u32 s65, s65, s57
        s_lshr_b32 s66, s{sTOK}, 6
        s_lshl_b32 s66, s66, 5
        s_add_u32 s66, s66, s{sH}
        s_mul_i32 s66, s66, {FSP}
        s_lshl_b32 s57, s{sN}, 2
        s_add_u32 s66, s66, s57
        s_add_u32 s66, s66, {F_O}
        s_mov_b32 s70, {fbits(2.0**-30)}""")
        oa = s.opt.get('oa', 1)
        od = s.opt.get('od', 1)
        if oa: s(f"""s_lshr_b32 s66, s{sTOK}, {5 if od else 6}
        s_lshl_b32 s66, s66, {10 if od else 11}
        s_add_u32 s66, s66, {F_O}
        v_lshlrev_b32 v94, 8, v0""")
        if lord == 1:
            for l in dma(1): s(l)
        if s.opt.get('sst'): s.stamp(1)
        s(f"""s_mov_b32 s{sNEED}, 2
        s_waitcnt vmcnt({5 if lord != 2 else 3}) lgkmcnt(0)
        ds_write_b32 v{aPW}, v{vPC}""")
        if s.opt.get('sst'): s.stamp(2)
        if lord == 2:
            for l in dma(1): s(l)
        for l in dma(2): s(l)
        if s.opt.get('nodma'):
            for l in dma(3): s(l)
            s("s_waitcnt vmcnt(0)")
        s(f"buffer_load_dword v31, v27, {srd(sWS)}, s71 offen sc1")
        if s.opt.get('sst'): s.stamp(3)
        s(f"""v_add_u32 v{vPC}, 1, v{vPC}
        s_waitcnt vmcnt(5)
        v_permlane32_swap_b32 v{Q2}, v148
        v_permlane32_swap_b32 v{Q2+1}, v149""")
        s.lds_spin(aPR, 1, vPR, sleep=0)
        s.stamp(5)
        def off(T):
            T %= 8
            return (T >> 1)*KVS, T & 1
        def rK1(T):
            b, tt = off(T); return f"ds_read_b128 {vr(K1,4)}, v{aK1} offset:{b+tt*1536}"
        def rK2(T):
            b, tt = off(T); return f"ds_read_b64 {vr(K2,2)}, v{aK2} offset:{b+tt*1536}"
        def rV(T, a):
            b, tt = off(T); return f"ds_read_b128 {vr((V0,V1)[a],4)}, v{aV} offset:{b+(4*tt+2*a)*336}"
        def qk0(d, a): return f"v_mfma_f32_32x32x16_bf16 {vr(d,16)}, {vr(K1,4)}, {vr(QQ[a][0],4)}, 0"
        def qk1(d, a): return f"v_mfma_f32_32x32x8_bf16 {vr(d,16)}, {vr(K2,2)}, {vr(QQ[a][1],2)}, {vr(d,16)}"
        def pv(a, v, p): return f"v_smfmac_f32_32x32x32_bf16 {vr(OO[a],16)}, {vr(v,4)}, {vr(p,8)}, v{vIDX}"
        s(rK1(0)); s(rK2(0)); s(rV(0,0)); s("s_waitcnt lgkmcnt(1)")
        s(qk0(SS[0][0], 0)); s(qk1(SS[0][0], 0)); s(qk0(SS[1][0], 1)); s(rK1(1)); s(qk1(SS[1][0], 1)); s(rK2(1))
        s(f"""s_waitcnt vmcnt(3)
        ds_write_b32 v{aPW}, v{vPC}
        s_mov_b32 s69, 4
        v_add_u32 v{vPC}, 1, v{vPC}
        s_nop 3""")
        if s.opt.get('sst'): s.stamp(8)
        ap = s.opt.get('aprio', 1)
        nosync = s.opt.get('nosync'); nodma = s.opt.get('nodma')
        e0, e1, e2, e3 = {0: (2,6,10,14), 1: (2,5,9,13), 2: (3,7,11,15), 3: (2,6,9,13), 4: (2,7,10,14), 5: (4,8,12,16), 6: (2,5,10,13)}[s.opt.get('esp', 0)]
        def loop(pat):
          lp = s.new("attl")
          s.L.append(".p2align 6")
          for _ in range(s.opt.get('al', 0)): s("s_nop 0")
          s.lab(lp)
          late = ystag and pat is not None
          for n in range(16):
              if n == 14: s(f"s_sub_u32 s69, s69, 1\ns_cmp_eq_u32 s69, 0\ns_cbranch_scc1 {s.ln(join)}")
              T, a = n >> 1, n & 1
              c, m = n >> 2, n & 3
              cur, nn = SS[a][T & 1], SS[a][(T+1) & 1]
              prev = SS[1][(T-1) & 1] if a == 0 else SS[0][T & 1]
              E = [f"v_exp_f32{'_e64' if s.opt.get('e64') else ''} v{cur+i}, v{cur+i}" for i in range(16)]
              D = dma((c + 3) & 3) if not nodma else [""]*9
              apm = s.opt.get('apm', 0)
              if pat is not None and apm:
                  per = s.opt.get('app', 1)
                  h, l = apm % 100, apm // 100
                  for pos, pr in ((h, ap+1), (l, ap)):
                      if pos // 16 == n % per: E[pos % 16] = f"s_setprio {pr}\n" + E[pos % 16]
              elif pat is not None and pat[n] != pat[n-1]: s(f"s_setprio {pat[n]}")
              for e in E[:e0]: s(e)
              if a == 0:
                  s(pv(1, V1, prev+8)); s(rV(T,1))
                  if n == 4:
                      s(f"""s_cmp_eq_u32 s69, 1
                      s_cselect_b32 s{sKO}, {WS_BYTES}, s{sKO}
                      s_cselect_b32 s{sVO}, {WS_BYTES}, s{sVO}
                      s_cselect_b32 s{sMK}, 0x30000, s{sMK}
                      s_cselect_b32 s{sMV}, 0x30000, s{sMV}""")
                  for e in E[e0:e1]: s(e)
                  s("s_waitcnt lgkmcnt(1)")
                  s(qk0(nn, 0))
                  for e in E[e1:e2]: s(e)
                  s(qk1(nn, 0))
                  if m == 0 and nosync != 2: s(f"ds_read_b32 v{vPR}, v{aPR}")
                  for e in E[e2:e3]: s(e)
                  s(pv(0, V0, cur))
              else:
                  s("s_waitcnt lgkmcnt(0)")
                  s(pv(0, V1, prev+8))
                  if m == 1 and not nosync:
                      s(f"v_cmp_gt_u32 vcc, s{sNEED}, v{vPR}")
                      s.spin_ool(aPR, f"s{sNEED}", vPR, sleep=1)
                  if m == 3:
                      if late: s("\n".join(D))
                      if nosync != 2: s(f"s_waitcnt vmcnt(2)\nds_write_b32 v{aPW}, v{vPC}")
                  for e in E[e0:e1]: s(e)
                  s(qk0(nn, 1)); s(rK1(T+2))
                  for e in E[e1:e2]: s(e)
                  s(qk1(nn, 1)); s(rK2(T+2))
                  if m == 1:
                      if not late: s("\n".join(D))
                      s(f"s_add_u32 s{sNEED}, s{sNEED}, 1")
                  if m == 3: s(f"v_add_u32 v{vPC}, 1, v{vPC}")
                  for e in E[e2:e3]: s(e)
                  s(pv(1, V0, cur)); s(rV(T+1,0))
              for e in E[e3:]: s(e)
          if s.opt.get('qst') and s.stamps:
              for k, c in ((1, 3), (2, 2), (3, 1)):
                  nx = s.new("st")
                  s(f"s_cmp_lg_u32 s69, {c}\ns_cbranch_scc1 {s.ln(nx)}")
                  s.stamp(k)
                  s.lab(nx)
          s(f"s_branch {s.ln(lp)}")
        pm = s.opt.get('apat', 119)
        young, join = s.new("young"), s.new("join")
        s(f"s_cmp_ge_u32 s{sW}, 4\ns_cbranch_scc1 {s.ln(young)}\ns_setprio {ap}")
        loop(None)
        s.lab(young)
        pat = [(s.opt.get('ylo', ap), s.opt.get('yhi', ap+1))[(pm >> (T % 8)) & 1] for T in range(16)]
        s(f"s_setprio {pat[15]}")
        loop(pat)
        s.lab(join)
        c0, c1 = SS[0][1], SS[1][1]
        E = [f"v_exp_f32 v{c0+i}, v{c0+i}" for i in range(16)]
        s(f"s_setprio {s.opt.get('tp0', 2)}")
        s(E[0]); s(E[1]); s(pv(1, V1, SS[1][0]+8)); s(rV(7,1))
        for e in E[2:10]: s(e)
        s("s_waitcnt lgkmcnt(1)"); s(pv(0, V0, c0))
        for e in E[10:]: s(e)
        E = [f"v_exp_f32 v{c1+i}, v{c1+i}" for i in range(16)]
        s(E[0]); s(E[1]); s("s_waitcnt lgkmcnt(0)"); s(pv(0, V1, c0+8))
        s(f"s_setprio {s.opt.get('tp1', 1)}")
        for e in E[2:10]: s(e)
        s(pv(1, V0, c1)); s(f"v_add_u32 v{vPC}, 1, v{vPC}"); s(E[10])
        for q in range(3): s(f"ds_write_b128 v80, {vr(128+4*q,4)} offset:{1024*q}")
        s("ds_write_b32 v80, v140 offset:3072")
        for e in E[11:]: s(e)
        s(f"""s_waitcnt vmcnt(0) lgkmcnt(0)
        ds_write_b32 v{aPW}, v{vPC}""")
        s(pv(1, V1, c1+8))
        s.lds_spin(82, 19, 87, sleep=0)
        s("s_setprio 3")
        for q in range(3): s(f"ds_read_b128 {vr(128+4*q,4)}, v81 offset:{1024*q}")
        s(f"""ds_read_b32 v140, v81 offset:3072
        v_add_u32 v{vPC}, 1, v{vPC}""")
        s.stamp(6)
        s(f"""s_waitcnt lgkmcnt(0)
        ds_write_b32 v{aPW}, v{vPC}
        v_add_f32 v{O+12}, v{O+12}, v140""")
        s.al8()
        for r in range(0, 12, 2): s(f"v_pk_add_f32 {vr(O+r,2)}, {vr(O+r,2)}, {vr(128+r,2)}")
        slow, norm = s.new("slow"), s.new("norm")
        s(f"v_cndmask_b32 v87, v{O+8}, v{O+12}, s[72:73]\nv_pk_mul_f32 v[88:89], {vr(O,2)}, 0")
        for r in range(2, 12, 2): s(f"v_pk_fma_f32 v[88:89], {vr(O+r,2)}, 0, v[88:89]")
        s(f"""v_add_f32 v88, v88, v89
        v_add_f32 v88, v88, v87
        v_med3_f32 v89, v88, s70, v93
        v_cmp_neq_f32 vcc, v89, v88
        s_cbranch_vccnz {s.ln(slow)}""")
        s.lab(norm)
        s(f"""v_rcp_f32 v88, v87
        s_nop 0
        v_mul_f32 v88, v88, v31""")
        s.al8()
        s.slow_args = (slow, norm, Q1, Q2, K1, K2, V0, V1, S, O, vIDX, sKB, sVB)
        for r in range(0, 12, 2): s(f"v_pk_mul_f32 {vr(O+r,2)}, {vr(O+r,2)}, v[88:89] op_sel_hi:[1,0]")
        for q in range(6): s(f"v_cvt_pk_bf16_f32 v{32+q}, v{O+2*q}, v{O+2*q+1}")
        s(f"""buffer_store_dwordx4 v[32:35], v83, {srd(sWS)}, s64 offen sc1
        s_mov_b32 exec_hi, 0
        buffer_store_dwordx2 v[36:37], v92, {srd(sWS)}, s65 offen sc1
        s_mov_b64 exec, {(1 << max(oa, 1)) - 1}
        s_waitcnt vmcnt(0)
        buffer_{'atomic_add' if oa else 'store_dword'} v95, v94, {srd(sWS)}, s66 offen sc1""")
        s.stamp(7)

    def att_slow(s):
        slow, norm, Q1, Q2, K1, K2, V0, V1, S, O, vIDX, sKB, sVB = s.slow_args
        S0, C = S
        l1, l2 = s.new("slowa"), s.new("slowb")
        s.lab(slow)
        ldk = f"""buffer_load_dwordx4 {vr(K1,4)}, v25, {srd(sWS)}, s67 offen sc1
        buffer_load_dwordx2 {vr(K2,2)}, v26, {srd(sWS)}, s67 offen sc1"""
        s(f"""s_waitcnt vmcnt(0) lgkmcnt(0)
        v_mov_b32 v88, 0xff800000
        s_mov_b32 s67, s{sKB}
        s_mov_b32 s69, 64""")
        s.lab(l1)
        s(ldk)
        s(f"""s_waitcnt vmcnt(0)
        v_mfma_f32_32x32x16_bf16 {vr(S0,16)}, {vr(K1,4)}, {vr(Q1,4)}, 0
        v_mfma_f32_32x32x8_bf16 {vr(S0,16)}, {vr(K2,2)}, {vr(Q2,2)}, {vr(S0,16)}
        s_add_u32 s67, s67, 512
        s_nop 15""")
        for r in range(0, 16, 2): s(f"v_max3_f32 v88, v88, v{S0+r}, v{S0+r+1}")
        s(f"""s_sub_u32 s69, s69, 1
        s_cmp_lg_u32 s69, 0
        s_cbranch_scc1 {s.ln(l1)}
        v_mov_b32 v89, v88
        s_nop 1
        v_permlane32_swap_b32 v88, v89
        s_nop 1
        v_max_f32 v88, v88, v89
        v_mul_u32_u24 v89, 320, v24
        v_lshl_add_u32 v89, v23, 4, v89""")
        for r in range(16): s(f"v_sub_f32 v{C+r}, 0, v88\nv_mov_b32 v{O+r}, 0")
        for r in range(4): s(f"v_mov_b32 v{V0+r}, 0x3f803f80\nv_mov_b32 v{V1+r}, 0x3f803f80")
        s(f"""s_mov_b32 s67, s{sKB}
        s_mov_b32 s68, s{sVB}
        s_mov_b32 s69, 64
        s_mov_b32 s74, 0xfffff
        s_mov_b32 s75, 0xfffff""")
        s.lab(l2)
        s(ldk)
        s(f"""s_mov_b64 exec, s[74:75]
        buffer_load_dwordx4 {vr(V0,4)}, v89, {srd(sWS)}, s68 offen sc1
        buffer_load_dwordx4 {vr(V1,4)}, v89, {srd(sWS)}, s68 offen offset:640 sc1
        s_mov_b64 exec, -1
        s_waitcnt vmcnt(0)
        v_mfma_f32_32x32x16_bf16 {vr(S0,16)}, {vr(K1,4)}, {vr(Q1,4)}, {vr(C,16)}
        v_mfma_f32_32x32x8_bf16 {vr(S0,16)}, {vr(K2,2)}, {vr(Q2,2)}, {vr(S0,16)}
        s_add_u32 s67, s67, 512
        s_add_u32 s68, s68, 1280
        s_nop 15""")
        for r in range(16): s(f"v_exp_f32 v{S0+r}, v{S0+r}")
        s(f"""s_nop 1
        v_smfmac_f32_32x32x32_bf16 {vr(O,16)}, {vr(V0,4)}, {vr(S0,8)}, v{vIDX}
        v_smfmac_f32_32x32x32_bf16 {vr(O,16)}, {vr(V1,4)}, {vr(S0+8,8)}, v{vIDX}
        s_sub_u32 s69, s69, 1
        s_cmp_lg_u32 s69, 0
        s_nop 7
        s_cbranch_scc1 {s.ln(l2)}
        s_nop 15
        v_cndmask_b32 v87, v{O+8}, v{O+12}, s[72:73]
        s_branch {s.ln(norm)}""")

    def gfront(s):
        sJ = 48
        s(f"s_setprio 3\ns_sub_u32 s{sJ}, s{sW}, 8")
        s.ln_loads(sJ)
        s(f"""v_lshlrev_b32 v1, 2, v0
        v_add_u32 v1, {SYN}, v1
        v_mov_b32 v2, 0
        ds_write_b32 v1, v2""")
        if s.opt.get('noln'):
            s('s_barrier'); s.gtiles(sJ); s.nb = 1
        else: s.nb = s.layernorm(sJ)

    def grole(s):
        sJ = 48
        pre = s.gsetup(sJ)
        nb = s.nb
        assert nb <= s.opt.get('th', 7)
        s("s_setprio 0")
        lines = "\n".join(pre).split("\n")
        k = 11 - nb
        per = -(-len(lines) // k)
        for q in range(k):
            s("\n".join(lines[q*per:(q+1)*per])); s("s_barrier")
        s.stamp(2)
        s.gsync_n = 0
        s.gemm1(sJ)
        s.gemm2(sJ)

    def gtiles(s, sJ):
        s(f"""s_and_b32 s50, s{sXC}, 3
        s_lshl_b32 s51, s{sF1}, 2
        s_and_b32 s54, s{sJ}, 2
        s_add_u32 s51, s51, s54
        s_lshr_b32 s54, s50, 1
        s_add_u32 s51, s51, s54
        s_lshl_b32 s52, s{sD1}, 1
        s_and_b32 s54, s{sJ}, 1
        s_add_u32 s52, s52, s54
        s_lshl_b32 s52, s52, 1
        s_and_b32 s54, s50, 1
        s_add_u32 s52, s52, s54
        s_lshl_b32 s62, s{sXC}, 2
        s_and_b32 s54, s{sI}, 3
        s_add_u32 s62, s62, s54
        s_lshr_b32 s63, s{sI}, 2
        s_lshl_b32 s66, s62, 6
        s_lshl_b32 s54, s{sJ}, 4
        s_add_u32 s66, s66, s54
        s_lshl_b32 s54, s51, 6
        v_lshrrev_b32 v1, 5, v0
        v_lshl_add_u32 v1, v1, 3, s54
        v_and_b32 v2, 15, v0
        v_add_lshl_u32 v2, s66, v2, 1""")
        for q in range(4):
            s(f"global_load_dwordx2 {vr(54+2*q,2)}, v1, s[{sB1}:{sB1+1}] offset:{16*q}")
        s(f"global_load_ushort v62, v2, s[{sB2}:{sB2+1}]")

    def gsetup(s, sJ):
        B = []
        B.append(f"""s_mul_i32 s49, s{sJ}, {GREG}
        s_lshl_b32 s54, s{sJ}, 2
        s_add_u32 s54, s54, {SY_PG}
        v_mov_b32 v160, s54
        v_lshrrev_b32 v48, 4, v0
        v_and_b32 v49, 15, v0
        v_lshrrev_b32 v50, 5, v0
        v_and_b32 v51, 31, v0
        v_and_b32 v52, 3, v0
        v_bfe_u32 v53, v0, 2, 2
        v_lshlrev_b32 v161, 2, v52
        v_add_u32 v161, {SY_PG}, v161
        v_mov_b32 v164, {SYN}
        v_lshrrev_b32 v30, 3, v0
        v_and_b32 v31, 7, v0
        v_lshlrev_b32 v13, 1, v48
        v_xor_b32 v13, v13, v31
        v_lshlrev_b32 v30, 12, v30
        v_lshl_add_u32 v13, v13, 4, v30
        v_mul_u32_u24 v28, 10240, v50
        v_lshl_add_u32 v28, v51, 4, v28""")
        B.append(f"""v_lshl_add_u32 v26, v50, 3, v53
        v_lshlrev_b32 v26, 8, v26
        v_and_b32 v31, 1, v48
        v_lshl_add_u32 v26, v31, 5, v26
        v_lshl_add_u32 v26, v52, 3, v26
        v_add_u32 v24, 0x10000, v26
        v_add_u32 v26, {0x10000 + 16384}, v26
        s_and_b32 s54, s52, 3
        v_xor_b32 v30, s54, v53
        v_lshl_add_u32 v24, v30, 6, v24
        v_xor_b32 v25, 64, v24
        s_and_b32 s54, s51, 3
        v_xor_b32 v30, s54, v53
        v_lshl_add_u32 v26, v30, 6, v26
        v_xor_b32 v27, 64, v26
        """)
        B.append(f"""s_mul_i32 s64, s{sJ}, {384*4096}
        s_lshl_b32 s54, s62, 7
        s_add_u32 s64, s64, s54
        s_mul_i32 s65, s{sJ}, {48*10240}
        s_mul_i32 s54, s63, 1280
        s_add_u32 s65, s65, s54
        s_add_u32 s65, s65, {UI}
        v_mul_u32_u24 v14, 10240, v48
        v_lshl_add_u32 v14, v49, 4, v14
        v_bfe_u32 v30, v0, 2, 3
        v_lshl_add_u32 v31, v50, 4, v30
        v_lshlrev_b32 v31, 7, v31
        v_lshl_add_u32 v31, v52, 3, v31
        v_add_u32 v31, s49, v31
        v_lshrrev_b32 v32, 1, v30
        v_xor_b32 v32, s{sJ}, v32
        """ + "\n".join(f"v_xor_b32 v33, {si}, v32\nv_lshl_add_u32 v{15+si}, v33, 5, v31" for si in range(4)) + f"""
        v_lshlrev_b32 v12, 15, v48
        v_lshl_add_u32 v12, v49, 4, v12
        v_add_u32 v19, s66, v49
        v_mul_u32_u24 v19, 1280, v19
        v_lshl_add_u32 v19, v48, 3, v19""")
        B.append("\n".join(f"""v_add_u32 v31, {64*m}, v0
            v_mul_u32_u24 v32, 6554, v31
            v_lshrrev_b32 v32, 16, v32
            v_mul_u32_u24 v32, {1280-160}, v32
            v_lshl_add_u32 v{1+m}, v31, 4, v32""" for m in range(5)))
        B.append(f"""v_mul_u32_u24 v31, 20, v50
        v_add_u32 v31, v31, v30
        v_mul_u32_u24 v31, 160, v31
        v_lshl_add_u32 v6, v52, 3, v31
        v_add_u32 v7, 51200, v6
        v_mul_u32_u24 v31, 40, v48
        v_add_u32 v31, v31, v53
        v_add_u32 v31, 16, v31
        v_mul_u32_u24 v31, 160, v31
        v_lshl_add_u32 v31, v52, 3, v31
        v_and_b32 v32, 1, v48
        v_mul_u32_u24 v32, 3200, v32
        v_sub_u32 v9, v31, v32
        v_add_u32 v9, 3200, v9
        v_add_u32 v8, v31, v32
        v_add_u32 v10, 51200, v8
        v_add_u32 v11, 51200, v9""")
        B.append("\n".join(f"v_mov_b32 v{r}, 0" for r in range(80, 128)))
        B.append("s_waitcnt vmcnt(0)\n" + "\n".join(f"v_lshlrev_b32 v{64+2*q}, 16, v{54+q}\nv_and_b32 v{65+2*q}, 0xffff0000, v{54+q}" for q in range(8)) + "\nv_lshlrev_b32 v20, 16, v62")
        return B

    def xaddr(s, sJ, vw, vr0):
        s(f"v_lshlrev_b32 v{vw}, 4, v0")
        for n in range(1, 4):
            s(f"s_xor_b32 s54, s{sJ}, {n}\ns_mul_i32 s54, s54, {GREG}\ns_add_u32 s54, s54, {(n-1)*4096}\nv_add_u32 v{vr0+n-1}, s54, v{vw}")
        s(f"v_add_u32 v{vw}, s49, v{vw}")

    def gpost(s):
        s.gsync_n += 1
        s(f"s_waitcnt lgkmcnt(0)\nv_mov_b32 v162, {s.gsync_n}\nds_write_b32 v160, v162")
    def gwait(s, sleep=2):
        s.lds_spin(161, s.gsync_n, 163, sleep=sleep)

    def ln_loads(s, sJ):
        X = (8, 13); GWR = 18
        s(f"""s_and_b32 s67, s{sXC}, 3
        s_lshl_b32 s67, s67, 6
        s_lshr_b32 s68, s{sXC}, 2
        s_lshl_b32 s68, s68, 5
        s_add_u32 s67, s67, s68
        s_add_u32 s67, s67, s{sI}
        s_lshl_b32 s68, s67, 3
        s_lshl_b32 s69, s{sJ}, 1
        s_add_u32 s68, s68, s69
        s_mul_i32 s69, s68, 1280
        v_and_b32 v1, 31, v0
        v_lshrrev_b32 v3, 5, v0
        v_lshlrev_b32 v2, 3, v1
        v_lshlrev_b32 v1, 4, v1
        v_mul_u32_u24 v19, 1280, v3
        v_add_u32 v18, v19, v1
        v_add_u32 v19, v19, v2""")
        s.kwait()
        if s.opt.get('noln'): return
        s(f"""buffer_load_dwordx4 v[8:11], v18, {srd(sX)}, s69 offen
        buffer_load_dwordx4 v[12:15], v18, {srd(sX)}, s69 offen offset:512
        buffer_load_dwordx2 v[16:17], v19, {srd(sX)}, s69 offen offset:1024
        global_load_dwordx4 v[20:23], v1, s[{sGW}:{sGW+1}]
        global_load_dwordx4 v[24:27], v1, s[{sGW}:{sGW+1}] offset:512
        global_load_dwordx2 v[28:29], v2, s[{sGW}:{sGW+1}] offset:1024""")
        if s.opt.get('wpf', 0):
            s(f"""s_mul_i32 s70, s2, 9600
            s_mul_i32 s71, s{sJ}, {19*128}
            s_add_u32 s70, s70, s71
            v_min_u32 v166, 18, v0
            v_lshlrev_b32 v166, 7, v166
            buffer_load_dword v166, v166, {srd(sWQ)}, s70 offen""")

    def layernorm(s, sJ):
        X, GW, XV = 8, 20, 32
        nb = [0]
        def bar():
            nb[0] += 1; s("s_barrier")
        gl = [(31,1,30,sDBG,"0",0)]
        s(f"""s_mov_b32 s70, 0x3f803f80
        s_lshl_b32 s55, s68, 2
        s_add_u32 s55, s55, {GI}
        s_add_u32 s69, s69, {HI}
        v_lshlrev_b32 v3, 2, v3
        v_and_b32 v30, 15, v0
        v_lshlrev_b32 v30, 2, v30
        s_waitcnt vmcnt({1 if s.opt.get('wpf', 0) else 0})""")
        s.stamp(1)
        for i in range(10):
            s(f"v_dot2_f32_bf16 v4, v{X+i}, s70, {'v4' if i else 0}")
            s(f"v_dot2_f32_bf16 v5, v{X+i}, v{GW+i}, {'v5' if i else 0}")
        un = []
        for i in range(10):
            un += [f"v_lshlrev_b32 v{XV+2*i}, 16, v{X+i}", f"v_and_b32 v{XV+2*i+1}, 0xffff0000, v{X+i}"]
        def fill(n):
            for _ in range(n): s(un.pop(0) if un else "s_nop 0")
        fill(3)
        for k in (8, 4, 2, 1):
            for q in (4, 5): s(f"v_add_f32_dpp v{q}, v{q}, v{q} row_ror:{k} row_mask:0xf bank_mask:0xf")
            fill(1)
        s("v_mov_b32 v6, v4\nv_mov_b32 v7, v5"); fill(2)
        s("v_permlane16_swap_b32 v4, v6\nv_permlane16_swap_b32 v5, v7"); fill(2)
        s(f"""v_add_f32 v4, v4, v6
        v_add_f32 v5, v5, v7
        v_mul_f32 v4, {fbits(-1/640)}, v4
        v_mul_f32 v5, {fbits(-math.log2(math.e))}, v5
        v_exp_f32 v5, v5""")
        fill(len(un))
        s("v_add_f32 v5, 1.0, v5\nv_rcp_f32 v2, v5")
        for e in range(0, 20, 2): s(f"v_pk_add_f32 {vr(XV+e,2)}, {vr(XV+e,2)}, v[4:5] op_sel_hi:[1,0]")
        for e in range(0, 20, 2):
            a = (6, 52)[(e >> 1) & 1]
            if e < 4: s(f"v_pk_mul_f32 {vr(a,2)}, {vr(XV+e,2)}, {vr(XV+e,2)}")
            else: s(f"v_pk_fma_f32 {vr(a,2)}, {vr(XV+e,2)}, {vr(XV+e,2)}, {vr(a,2)}")
        s("v_pk_add_f32 v[6:7], v[6:7], v[52:53]\nv_add_f32 v6, v6, v7")
        for k in (8, 4, 2, 1):
            s(f"s_nop 1\nv_add_f32_dpp v6, v6, v6 row_ror:{k} row_mask:0xf bank_mask:0xf")
        s(f"""v_mov_b32 v7, v6
        v_mov_b32 v4, {fbits(1e-5)}
        s_nop 0
        v_permlane16_swap_b32 v6, v7
        s_nop 1
        v_add_f32 v6, v6, v7
        v_fmac_f32 v4, {fbits(1/640)}, v6
        v_rsq_f32 v4, v4
        s_nop 0""")
        for e in range(0, 20, 2):
            s(f"v_pk_mul_f32 {vr(XV+e,2)}, {vr(XV+e,2)}, v[4:5] op_sel_hi:[1,0]")
        for i in range(10): s(f"v_cvt_pk_bf16_f32 v{X+i}, v{XV+2*i}, v{XV+2*i+1}")
        nx, done = s.new("g"), s.new("g")
        s(f"""buffer_store_dwordx4 v[8:11], v18, {srd(sWS)}, s69 offen sc1
        buffer_store_dwordx4 v[12:15], v18, {srd(sWS)}, s69 offen offset:512 sc1
        buffer_store_dwordx2 v[16:17], v19, {srd(sWS)}, s69 offen offset:1024 sc1
        s_mov_b32 exec_lo, 1
        s_mov_b32 exec_hi, 1
        buffer_store_dword v2, v3, {srd(sWS)}, s55 offen sc1
        s_mov_b64 exec, -1
        s_cmp_lg_u32 s{sJ}, 0
        s_cbranch_scc1 {s.ln(nx)}""")
        s.poll_issue(gl)
        s.lab(nx)
        if s.opt.get('b0st'): s.stamp(7)
        s("s_waitcnt lgkmcnt(0)")
        for _ in range(s.opt.get('lnw', 2)): bar()
        s("s_waitcnt vmcnt(0)")
        bar()
        s(f"""s_mul_i32 s54, s67, {s.hsp}
        s_add_u32 s54, s54, {F_H}
        s_cmp_lg_u32 s{sJ}, 0
        s_cbranch_scc1 {s.ln(done)}""")
        s.poll(gl, sleep=4, pre=0)
        s.set_flag("s54", 4, 5)
        s.lab(done)
        s.gtiles(sJ)
        return nb[0]

    def gpoll(s, pre, loads, ok, sleep, lsl=4, atom=None):
        nx = s.new("gp")
        s(f"s_cmp_lg_u32 s48, 0\ns_cbranch_scc1 {s.ln(nx)}")
        for addr, need in pre: s.lds_spin(164, need, 165, off=addr-SYN, sleep=lsl)
        if loads: s.poll(loads, sleep=sleep)
        if atom: s.apoll(*atom, sleep)
        s(f"v_mov_b32 v165, 1\nds_write_b32 v164, v165 offset:{ok-SYN}")
        s.lab(nx)
        s.lds_spin(164, 1, 165, off=ok-SYN, sleep=lsl)

    def g2_dW(s, t):
        L = []
        for n in range(4):
            pre = f"s_add_u32 m0, s49, {(t%3)*4096}\ns_nop 0\n" if n == 0 else ""
            inc = 32768-1024 if n < 3 else 32768+3*1024
            L.append(pre + f"buffer_load_dwordx4 v13, {srd(sW2)}, s64 offen offset:{1024*n} lds\ns_add_u32 s64, s64, {inc}")
        return L

    def pfwo(s):
        s(f"""s_lshl_b32 s60, s{sI}, 2
        s_add_u32 s60, s60, s48
        s_mul_i32 s61, s60, 6400
        v_min_u32 v30, 49, v0
        v_lshlrev_b32 v30, 7, v30
        buffer_load_dword v167, v30, {srd(sWO)}, s61 offen""")

    def gemm1(s, sJ):
        ACC = 64
        skip, fin = s.new("g1skip"), s.new("g1fin")
        s(f"s_cmp_eq_u32 s{sCT}, 15\ns_cbranch_scc1 {s.ln(skip)}")
        reads, mf = s.gemm_ops(24, 26)
        s(f"s_setprio {s.opt.get('gp1', 1)}")
        for l in reads(0,0,0) + reads(1,0,1): s(l)
        s("s_mov_b32 s54, 4")
        s.gemm_loop(reads, mf, 0, (24,25,26,27), (), 54, True)
        s.stamp(3)
        if s.opt.get('dbgx') == 3: s.end_wave()
        s(f"""s_setprio 3
        s_lshl_b32 s55, s{sN1}, 2
        s_lshl_b32 s57, s{sJ}, 11
        s_add_u32 s57, s57, {PI}
        v_lshlrev_b32 v29, 4, v0""")
        s.gpost()
        hold = s.opt.get('phold', 2)
        for n in range(1, 4):
            m = (0, 2, 1, 3)[n]
            p = 32 + 8*(n-1)
            s(f"""s_xor_b32 s54, s50, {m}
            s_add_u32 s54, s54, s55
            s_mul_i32 s54, s54, 24576
            s_add_u32 s54, s54, s57
            s_add_u32 s{57+n}, s54, {(n-1)*8192}""")
            s.al8()
            for q in range(8): s(f"v_cvt_pk_bf16_f32 v{p+q}, v{ACC+16*n+2*q}, v{ACC+16*n+2*q+1}")
        if hold: s.lds_spin(164, max(1, hold-1), 165, off=(SY_QOK if hold == 1 else SY_PA)-SYN, sleep=(2 if hold < 3 else 6))
        wa, wb = s.opt.get('wa', 0), s.opt.get('wb', 1)
        s.gwait()
        s(f"s_setprio {s.opt.get('psp', 0)}")
        for n in range(1, 4):
            p = 32 + 8*(n-1)
            s(f"""buffer_store_dwordx4 {vr(p,4)}, v29, {srd(sWS)}, s{57+n} offen sc1
            buffer_store_dwordx4 {vr(p+4,4)}, v29, {srd(sWS)}, s{57+n} offen offset:1024 sc1""")
        for t in range(wa):
            for l in s.g2_dW(t): s(l)
        s(f"""s_setprio 3
        s_add_u32 s54, s55, s{sJ}
        s_mul_i32 s54, s54, {FSP}
        s_add_u32 s54, s54, {F_P}
        s_add_u32 s56, s55, s50
        s_mul_i32 s56, s56, 24576
        s_add_u32 s56, s56, s57
        s_mov_b64 exec, 1
        v_mov_b32 v30, 0
        v_mov_b32 v31, 1
        s_waitcnt vmcnt({4*wa})
        buffer_atomic_add v31, v30, {srd(sWS)}, s54 offen sc0 sc1
        s_waitcnt vmcnt(0)
        v_add_u32 v31, 1, v31""")
        s.apoll("s54", 4, 30, 31, s.opt.get('ppsl', 4), pre=True)
        s.stamp(4)
        for n in range(3):
            p = 32 + 8*n
            s(f"""buffer_load_dwordx4 {vr(p,4)}, v29, {srd(sWS)}, s56 offen sc1
            buffer_load_dwordx4 {vr(p+4,4)}, v29, {srd(sWS)}, s56 offen offset:1024 sc1
            s_add_u32 s56, s56, 8192""")
        c0 = -2*math.sqrt(2/math.pi)*math.log2(math.e); c1 = c0*0.044715
        s(f"""s_mov_b32 s56, {fbits(c1)}
        s_mov_b32 s57, {fbits(c1)}
        v_mov_b32 v56, {fbits(c0)}
        v_mov_b32 v57, {fbits(c0)}
        s_mov_b32 s60, 1.0
        s_mov_b32 s61, 1.0
        s_mov_b32 s58, 0xffff0000""")
        T = ACC + 16
        for n in range(3):
            s(f"s_waitcnt vmcnt({4-2*n})")
            if s.opt.get('gst') and n == 0: s.stamp(1)
            s.al8()
            for q in range(8):
                s(f"v_lshlrev_b32 v{T+2*q}, 16, v{32+8*n+q}\nv_and_b32 v{T+2*q+1}, s58, v{32+8*n+q}")
            for r in range(0, 16, 2): s(f"v_pk_add_f32 {vr(ACC+r,2)}, {vr(ACC+r,2)}, {vr(T+r,2)}")
        for r in range(0, 16, 2): s(f"v_pk_mul_f32 {vr(T+r,2)}, {vr(ACC+r,2)}, {vr(ACC+r,2)}")
        for r in range(0, 16, 2): s(f"v_pk_fma_f32 {vr(T+r,2)}, {vr(T+r,2)}, s[56:57], v[56:57]")
        for r in range(0, 16, 2): s(f"v_pk_mul_f32 {vr(T+r,2)}, {vr(T+r,2)}, {vr(ACC+r,2)}")
        for r in range(16): s(f"v_exp_f32 v{T+r}, v{T+r}")
        for r in range(0, 16, 2): s(f"v_pk_add_f32 {vr(T+r,2)}, {vr(T+r,2)}, s[60:61]")
        for r in range(16): s(f"v_rcp_f32 v{T+r}, v{T+r}")
        for r in range(0, 16, 2): s(f"v_pk_mul_f32 {vr(T+r,2)}, {vr(T+r,2)}, {vr(ACC+r,2)}")
        for q in range(8): s(f"v_cvt_pk_bf16_f32 v{40+q}, v{T+2*q}, v{T+2*q+1}")
        if s.opt.get('gst'): s.stamp(2)
        s(f"""s_mul_i32 s54, s51, {4*10240}
        s_lshl_b32 s57, s52, 9
        s_add_u32 s54, s54, s57
        s_add_u32 s54, s54, {UI}
        s_add_u32 s57, s54, 20480
        buffer_store_dwordx4 v[40:43], v28, {srd(sWS)}, s54 offen sc1
        buffer_store_dwordx4 v[44:47], v28, {srd(sWS)}, s57 offen sc1
        """)
        if s.opt.get('gst'): s.stamp(3)
        for t in range(wa, wa+wb):
            for l in s.g2_dW(t): s(l)
        uw = s.opt.get('uw', 1); ur = s.opt.get('ur', 8)
        if uw:
            s(f"""s_mul_i32 s54, s52, 410
            s_add_u32 s58, s54, 397
            s_lshr_b32 s54, s54, 10
            s_lshr_b32 s58, s58, 10
            s_cmp_eq_u32 s54, s58
            s_mov_b32 s58, {((1 << ur) - 1) * 0x101}
            s_cmov_b32 s58, {(1 << ur) - 1}
            s_mov_b32 s59, 0
            s_mul_i32 s57, s{sF1}, 11
            s_lshr_b32 s57, s57, 5
            s_lshl_b32 s57, s57, 3
            s_add_u32 s54, s54, s57
            s_mul_i32 s54, s54, {8*FSP}
            s_add_u32 s54, s54, {F_U}
            v_mul_u32_u24 v32, {FSP}, v0
            v_mov_b32 v31, 1
            s_mov_b64 exec, s[58:59]
            s_waitcnt vmcnt({4*wb})
            buffer_atomic_add v31, v32, {srd(sWS)}, s54 offen sc1
            s_mov_b64 exec, -1""")
        else:
            s(f"""s_mul_i32 s54, s{sD1}, 13
            s_lshr_b32 s54, s54, 3
            s_mul_i32 s57, s{sF1}, 11
            s_lshr_b32 s57, s57, 5
            s_lshl_b32 s57, s57, 3
            s_add_u32 s54, s54, s57
            s_mul_i32 s54, s54, {8*FSP}
            s_add_u32 s54, s54, {F_U}
            s_bitcmp1_b32 s{sD1}, 0
            s_mov_b32 s58, 0xffff
            s_cmov_b32 s58, 0xffffff
            s_mov_b32 s59, 0
            v_mul_u32_u24 v32, {FSP}, v0""")
            s.arrive_add(SY_CU, 4, "s54", 32, "s[58:59]", 30, 31, 4*wb)
        s(f"s_branch {s.ln(fin)}")
        s.lab(skip)
        for _ in range(7): s("s_barrier")
        s("s_setprio 3")
        if s.opt.get('ldstamp'): s.end_wave()
        s.lds_spin(164, s.opt.get('skipw', 4), 165, off=SY_PA-SYN, sleep=8)
        for t in range(wa+wb):
            for l in s.g2_dW(t): s(l)
        s("s_waitcnt vmcnt(0)")
        s.lab(fin)
        s.pfwo()
        s.stamp(5)
        if s.opt.get('dbgx') or s.opt.get('ldstamp'): s.end_wave()

    def gemm2(s, sJ):
        ACC, UB, BB = 64, (24, 44), 144
        vW, vU, aT = 13, 14, 15
        sST, sDT, sOW, sOU, sTK = 62, 63, 64, 65, 66
        NS = 3
        dW = s.g2_dW
        def lU(t, rev=False):
            L = [f"buffer_load_dwordx4 {vr(UB[t&1]+4*di,4)}, v{vU}, {srd(sWS)}, s{sOU} offen offset:{256*di} sc1" for di in (range(4, -1, -1) if rev else range(5))]
            L[4] += f"\ns_add_u32 s{sOU}, s{sOU}, 40960"
            return L
        def rd(t, si):
            o = (t % NS)*4096
            return f"ds_read_b64_tr_b16 {vr(BB+4*si,2)}, v{aT+si} offset:{o}\nds_read_b64_tr_b16 {vr(BB+4*si+2,2)}, v{aT+si} offset:{o+1024}"
        def mf(t, si, di):
            d = vr(ACC+20*si+4*di,4)
            if s.opt.get('gnomf'): return "s_nop 3"
            return f"v_mfma_f32_16x16x32_bf16 {d}, {vr(UB[t&1]+4*di,4)}, {vr(BB+4*si,4)}, {d if t else 0}"
        s(f"s_setprio {s.opt.get('gp2', 0)}")
        for t in range(s.opt.get('wa', 0) + s.opt.get('wb', 1), 3):
            for l in dW(t): s(l)
            if (s.opt.get('wpre', 3) >> t) & 1: s("s_waitcnt vmcnt(0)")
        hl = [(28,1,25,sWS,"s57",0)]
        s(f"""s_setprio 3
        s_mul_i32 s55, s{sDT}, 80
        s_lshr_b32 s54, s55, 7
        s_add_u32 s55, s55, 79
        s_lshr_b32 s55, s55, 7
        s_cmp_eq_u32 s54, s55
        s_cselect_b32 s55, 12, 24
        {"s_mov_b32 s55, 36" if s.opt.get('uw', 1) else ""}
        s_lshl_b32 s54, s{sJ}, 3
        s_add_u32 s54, s54, s{sDT}
        s_lshl_b32 s54, s54, 3
        s_and_b32 s57, s{sXC}, {s.opt.get('ur', 8)-1}
        s_add_u32 s54, s54, s57
        s_mul_i32 s54, s54, {FSP}
        s_add_u32 s54, s54, {F_U}
        s_mul_i32 s57, s{sST}, {8*s.hsp}
        s_add_u32 s57, s57, {F_H}
        v_and_b32 v25, 7, v0
        v_mul_u32_u24 v25, {s.hsp}, v25""")
        s.poll_issue(hl)
        s.apoll("s54", "s55", 26, 27, s.opt.get('usl', 4))
        s.poll(hl, sleep=4, pre=0)
        s(f"""s_lshl_b32 s54, s{sTK}, 2
        s_add_u32 s54, s54, {GI}
        v_and_b32 v22, 15, v0
        v_lshlrev_b32 v22, 2, v22
        s_setprio {s.opt.get('gp2', 0)}
        buffer_load_dword v22, v22, {srd(sWS)}, s54 offen sc1""")
        s.stamp(6)
        if s.opt.get('dbgy') == 3: s.end_wave()
        for t in range(2):
            for l in lU(t): s(l)
        s("s_waitcnt vmcnt(10)")
        for si in range(4): s(rd(0, si))
        NT = 12
        s(f"""s_mul_i32 s56, s{sJ}, {160*1280}
        s_mul_i32 s54, s{sDT}, 160
        s_add_u32 s56, s56, s54""")
        def wo1(n):
            return f"s_add_u32 m0, s49, {n*1024}\ns_add_u32 s57, s56, {(n//5)*32*1280}\nbuffer_load_dwordx4 v{1+n%5}, {srd(sWO)}, s57 offen lds"
        cnt = []
        for t in range(NT):
            if t == s.opt.get('gp2t', 99): s(f"s_setprio {s.opt.get('gp2b', 0)}")
            nold = s.opt.get('gnold')
            uo = s.opt.get('uo', 1)
            if uo == 1: U = lU(t+1) if 0 < t and t+1 < NT and not nold else []
            else: U = lU(t+2) if t+2 < NT and not nold else []
            W = dW(t+3) if t+3 < NT else [wo1(4*(t-9) + q) for q in range(4)]
            if nold and t+3 < NT: W = []
            X = [wo1(18+t if t < 7 else 6+t)] + ([wo1(12)] if t == 10 else [])
            s(f"s_waitcnt vmcnt({cnt[-1] if t else 5})")
            cnt.append((0 if uo == 1 else len(U)) + len(W) + len(X))
            if t == 9: s.gpost()
            for si in range(4):
                s(f"s_waitcnt lgkmcnt({6 if t+1 < NT else 2*(3-si)})")
                for di in range(5):
                    s(mf(t, si, di if si % 2 == 0 or not s.opt.get('serp', 1) else 4-di))
                    if si == 3 and di < len(W): s(W[di])
                    if si == (2 if uo == 1 else 1) and di < len(X): s(X[di])
                    if uo == 1 and si == 0 and U: s(U[di])
                    if uo == 2 and si == 3 and U: s(lU(t+2, True)[di])
                if t+1 < NT: s(rd(t+1, si))
            if uo == 0:
                for l in U: s(l)
        s.stamp(7)
        if s.opt.get('dbgy') == 1: s.end_wave()
        s("s_setprio 3")
        s.gwait(1)
        ORD = [3, 7, 11, 15] + [t for t in range(20) if t % 4 != 3 or t > 15]
        OB = 64; AC = 24
        FX = s.opt.get('fx', 11)
        FB = [44, 48, 52, 56, 60, 144, 148, 152, 156] + [100 + 4*q for q in range(FX)]; NB = len(FB)
        def rdf(n):
            t, di = divmod(n, 5); b = FB[n % NB]; t = ORD[t]
            if t < 16:
                a = 6 if t < 8 else 7; o = (t % 8)*6400 + 32*di
                return f"ds_read_b64_tr_b16 {vr(b,2)}, v{a} offset:{o}\nds_read_b64_tr_b16 {vr(b+2,2)}, v{a} offset:{o+1280}"
            tp = t-16; a = 8 if tp < 2 else 10; o = (tp % 2)*25600 + 32*di
            return f"ds_read_b64_tr_b16 {vr(b,2)}, v{a} offset:{o}\nds_read_b64_tr_b16 {vr(b+2,2)}, v{a+1} offset:{o}"
        FD = s.opt.get('fd', 9)
        for n in range(FD): s(rdf(n))
        s(f"""v_lshlrev_b32 v13, 4, v0
        s_mul_i32 s54, s{sJ}, 15360
        s_add_u32 s54, s54, {KVB}
        v_add_u32 v1, s54, v13
        s_add_u32 s54, s54, 14336
        s_cmp_eq_u32 s{sJ}, 3
        s_cselect_b32 s54, 19200, s54
        v_add_u32 v2, s54, v13""")
        for n in range(1, 4):
            s(f"s_xor_b32 s54, s{sJ}, {n}\ns_mul_i32 s54, s54, 15360\ns_add_u32 s54, s54, {KVB + (n-1)*5120}\nv_add_u32 v{2+n}, s54, v13")
        s(f"""s_add_u32 s54, s54, 4096
        s_cmp_eq_u32 s{sJ}, 0
        s_cselect_b32 s54, 19200, s54
        v_add_u32 v13, s54, v13
        v_and_b32 v14, 7, v0
        v_lshlrev_b32 v14, 2, v14
        v_add_u32 v14, {SY_PA}, v14
        v_sub_f32 v22, 1.0, v22
        v_mul_f32 v20, v20, v22
        s_lshl_b32 s56, s{sTK}, 4
        s_add_u32 s56, s56, {OI}
        s_mul_i32 s54, s{sST}, {32*FSP}
        s_add_u32 s54, s54, {F_O}""")
        s.gpost()
        if s.opt.get('tst'): s.stamp(3)
        s.lds_spin(14, 17, 165, sleep=8)
        s.lds_spin(14, 20, 165, sleep=s.opt.get('esl', 1))
        if s.opt.get('tst'): s.stamp(4)
        for n in range(1, 4):
            for q in range(5):
                e = 5*(n-1) + q
                if e < 14: s(f"ds_write_b128 v1, {vr(ACC+20*n+4*q,4)} offset:{1024*e}")
                else:
                    s.gwait(0)
                    s(f"ds_write_b128 v2, {vr(ACC+20*n+4*q,4)}")
        s("s_waitcnt vmcnt(0)")
        s.gpost()
        ope = s.opt.get('ope', 1)
        oa = s.opt.get('oa', 1)
        s(f"""s_and_b32 s55, s{sDT}, {oa-1}
        s_lshl_b32 s55, s55, 8
        s_add_u32 s54, s54, s55
        s_lshr_b32 s55, s{sJ}, 1
        s_lshl_b32 s55, s55, 10
        s_add_u32 s54, s54, s55""")
        if ope == 2: s.apoll_issue("s54", 15, 16); s("s_mov_b64 exec, -1")
        s.gwait(0)
        if ope == 1: s.apoll_issue("s54", 15, 16); s("s_mov_b64 exec, -1")
        if s.opt.get('tst'): s.stamp(5)
        for n in range(1, 4):
            for q in range(5):
                if (n, q) != (3, 4): s(f"ds_read_b128 {vr(ACC+20*n+4*q,4)}, v{2+n} offset:{1024*q}")
                else: s(f"ds_read_b128 {vr(ACC+20*n+4*q,4)}, v13")
        for n in range(1, 4):
            s(f"s_waitcnt lgkmcnt({5*(3-n)})"); s.al8()
            for r in range(0, 20, 2): s(f"v_pk_add_f32 {vr(ACC+r,2)}, {vr(ACC+r,2)}, {vr(ACC+20*n+r,2)}")
        for r in range(0, 20, 2): s(f"v_pk_fma_f32 {vr(AC+r,2)}, {vr(ACC+r,2)}, v[22:23], v[20:21] op_sel_hi:[1,0,0]")
        for n in range(FD, FD+FX): s(rdf(n))
        if s.opt.get('tst'): s.stamp(6)
        s.apoll("s54", 32, 15, 16, s.opt.get('osl', 2), pre=bool(ope))
        s.stamp(8)
        if s.opt.get('dbgy') == 2: s.end_wave()
        def lO(t): return f"s_add_u32 s57, s56, {ORD[t]*131072}\nbuffer_load_dwordx4 {vr(OB+4*(t % NO),4)}, v12, {srd(sWS)}, s57 offen sc1"
        PD = s.opt.get('opd', 8); NO = 9 if FX else 20
        assert PD < NO
        for t in range(PD): s(lO(t))
        if s.opt.get('om', 1):
            s(f"""s_xor_b32 s55, s{sJ}, 1
            s_mul_i32 s55, s55, 15360
            s_add_u32 s55, s55, {KVB}
            v_and_b32 v17, 15, v0
            v_mul_u32_u24 v17, 160, v17
            v_lshrrev_b32 v18, 4, v0
            v_lshl_add_u32 v17, v18, 3, v17
            v_add_u32 v17, s55, v17
            v_lshlrev_b32 v18, 4, v0
            v_add_u32 v18, s55, v18""")
            for m in range(3):
                s(f"""v_add_u32 v1, {64*m}, v0
                v_mul_u32_u24 v2, 6554, v1
                v_lshrrev_b32 v2, 16, v2
                v_mul_u32_u24 v2, {1280-160}, v2
                v_lshl_add_u32 v{13+m}, v1, 4, v2""")
        F0 = FD + FX
        pos = {n: ((n-F0)*(99-FD))//(99-F0) for n in range(F0, 100)}
        issued = []
        if FX: s("s_waitcnt lgkmcnt(0)")
        for n in range(100):
            t, di = divmod(n, 5)
            w = []
            if di == 0: w.append(f"vmcnt({min(PD-1, 19-t)})")
            wg = {0: (1,1,1,1,1), 1: (3,0,0,2,0), 2: (2,0,2,0,1), 3: (5,0,0,0,0)}[s.opt.get('wg', 1)][di]
            last = n+wg-1
            if wg and last >= F0:
                assert last in issued
                w.append(f"lgkmcnt({min(15, 2*(len(issued)-1-issued.index(last)))})")
            if w: s("s_waitcnt " + " ".join(w))
            if s.opt.get('wst') and n in (0, 25, 50, 75, 99): s.stamp(3 + (n+1)//25)
            d = vr(AC+4*di,4)
            s(f"v_mfma_f32_16x16x32_bf16 {d}, {vr(FB[n % NB],4)}, {vr(OB+4*(t % NO),4)}, {d}")
            for k in sorted(pos):
                if pos[k] == n:
                    assert k - NB <= n
                    s(rdf(k)); issued.append(k)
            if di == 4 and t+PD < 20: s(lO(t+PD))
        osc = ("", " sc1", " nt", " sc0 sc1", " sc1 nt")[s.opt.get('osc', 0)]
        om = s.opt.get('om', 1)
        s(f"s_mul_i32 s54, s{sDT}, 160\ns_nop 7")
        if om == 0:
            for di in range(5):
                s(f"""v_cvt_pk_bf16_f32 v{2+2*di}, v{AC+4*di}, v{AC+4*di+1}
                v_cvt_pk_bf16_f32 v{3+2*di}, v{AC+4*di+2}, v{AC+4*di+3}
                buffer_store_dwordx2 {vr(2+2*di,2)}, v19, {srd(sOUT)}, s54 offen offset:{32*di}{osc}""")
        else:
            for di in range(5):
                s(f"""v_cvt_pk_bf16_f32 v{2+2*di}, v{AC+4*di}, v{AC+4*di+1}
                v_cvt_pk_bf16_f32 v{3+2*di}, v{AC+4*di+2}, v{AC+4*di+3}
                ds_write_b64 v17, {vr(2+2*di,2)} offset:{32*di}""")
            s(f"s_mul_i32 s55, s{sTK}, 1280\ns_add_u32 s54, s54, s55")
            for m in range(3): s(f"ds_read_b128 {vr(44+4*m,4)}, v18 offset:{1024*m}")
            for m in range(3):
                if m == 2: s("s_mov_b32 exec_hi, 0")
                s(f"s_waitcnt lgkmcnt({2-m})\nbuffer_store_dwordx4 {vr(44+4*m,4)}, v{13+m}, {srd(sOUT)}, s54 offen{osc}")

    def text(s):
        s.prologue()
        head = f".globl {s.k}\n.p2align 8\n.type {s.k},@function\n{s.k}:\n"
        return head + "\n".join(s.L) + "\n"

def kd(k):
    return f""".amdhsa_kernel {k}
  .amdhsa_next_free_vgpr 168
  .amdhsa_next_free_sgpr 102
  .amdhsa_accum_offset 168
  .amdhsa_group_segment_fixed_size 0
  .amdhsa_kernarg_size 96
  .amdhsa_user_sgpr_count 2
  .amdhsa_user_sgpr_kernarg_segment_ptr 1
  .amdhsa_system_sgpr_workgroup_id_x 1
.end_amdhsa_kernel
"""

def build(mode="fused", stamps=False, opt=None):
    k = NAME + "_kernel"
    out = f"; @launch grid=(256,1,1) block=(768,1,1) lds={LDS_BYTES}\n"
    out += '.amdgcn_target "amdgcn-amd-amdhsa--gfx950"\n.text\ncode_begin:\n'
    out += Gen(k, stamps, opt).text()
    out += 'code_end:\n.section .rodata,"a"\n.p2align 6\n' + kd(k)
    return out

if __name__ == "__main__":
    mode = sys.argv[1] if len(sys.argv) > 1 else "fused"
    stamps = "stamp" in sys.argv[2]
    opt = {}
    for a in sys.argv[3:]:
        k, v = a.split("="); opt[k] = int(v)
    open(sys.argv[2], "w").write(build(mode, stamps, opt))
```

```python
import sys, math, struct

NAME = "gated_mix__mha_block__mixer_token_mlp__prompt"

QI = 0x000000
KI = 0x280000
VI = 0x500000
HI = 0x780000
UI = 0xA00000
OI = 0xC00000
GI = 0xE80000
FL = 0xE90000
FSP = 64
F_P = FL
F_H = FL + 15360
F_U = FL + 0x4000
F_O = FL + 0x8000
F_Q = FL + 0xC000
FL_BYTES = 0x14000
HSP = 4
STAMP = 0xF00000
PI = 0x1000000
WS_BYTES = 0x1800000

GREG = 25600
XB = 102400
KVB = 117504
KVS = 11520
LNS = 148480
SYN = 163584
SY_PA = SYN
SY_PG = SYN + 32
SY_QOK = SYN + 52
SY_POK = SYN + 56
SY_UOK = SYN + 60
SY_OOK = SYN + 64
SY_CQ = SYN + 68
SY_CU = SYN + 72
SY_CO = SYN + 76
SY_CP = SYN + 80
DUMMY = 163328
LDS_BYTES = 163840

SPIN_LIMIT = 200000

def fbits(x):
    return "0x%08x" % struct.unpack("<I", struct.pack("<f", x))[0]

sX, sWQ, sWO, sW1, sW2, sWS, sOUT, sDBG = 4, 8, 12, 16, 20, 24, 28, 32
sB1, sB2, sGW = 36, 38, 40
sW, sXC, sI = 42, 43, 44
sSPIN = 45
sRT, sCT = 46, 47
sN1, sD1, sF1 = 3, 100, 101
def srd(n): return f"s[{n}:{n+3}]"
def vr(a, n): return f"v[{a}:{a+n-1}]" if n > 1 else f"v{a}"

class Gen:
    def __init__(s, kname, stamps=False, opt=None):
        s.L = []
        s.k = kname
        s.stamps = stamps
        s.uid = 0
        s.cold = []
        s.opt = opt or {}
        s.hsp = s.opt.get('hsp', HSP)
    def __call__(s, t):
        for l in t.split("\n"):
            l = l.strip()
            if l: s.L.append("    " + l)
    def al8(s):
        if s.opt.get('al8', 1): s.L.append(".p2align 3")
    def lab(s, n):
        s.L.append(f"{s.k}_{n}:")
    def ln(s, n):
        return f"{s.k}_{n}"
    def new(s, base):
        s.uid += 1
        return f"{base}{s.uid}"
    def stamp(s, i):
        if s.stamps:
            s(f"s_memrealtime s[76:77]\ns_memtime s[78:79]\ns_waitcnt lgkmcnt(0)\ns_mov_b32 s{80+2*i}, s76\ns_mov_b32 s{81+2*i}, s78")
    def end_wave(s):
        if 'probe' in s.opt:
            k = s.opt['probe'] % 10; w = s.opt['probe'] // 10
            s.stamp(9)
            lp, nx = s.new("pr"), s.new("pr")
            s(f"""s_cmp_lg_u32 s2, {s.opt.get('pwg', 100)}
            s_cbranch_scc1 {s.ln(nx)}
            s_cmp_lg_u32 s{sW}, {w}
            s_cbranch_scc1 {s.ln(nx)}
            s_add_u32 s46, s{80+2*k}, 10000""")
            s.lab(lp)
            s(f"""s_memrealtime s[76:77]
            s_waitcnt lgkmcnt(0)
            s_sub_u32 s47, s76, s46
            s_cmp_lt_i32 s47, 0
            s_cbranch_scc1 {s.ln(lp)}""")
            s.lab(nx)
            s("s_endpgm")
            return
        if s.stamps:
            s.stamp(9)
            s(f"s_mul_i32 s46, s2, 12\ns_add_u32 s46, s46, s{sW}\ns_lshl_b32 s46, s46, 7\ns_add_u32 s46, s46, {STAMP}")
            s("s_mov_b64 exec, -1\nv_lshlrev_b32 v1, 2, v0\nv_mov_b32 v2, 0")
            for i in range(20): s(f"v_writelane_b32 v2, s{80+i}, {i}")
            s(f"s_mov_b32 exec_hi, 0\nbuffer_store_dword v2, v1, {srd(sWS)}, s46 offen")
        s("s_endpgm")

    def lds_spin(s, vaddr, need, vtmp, off=0, sleep=1):
        a, b = s.new("spin"), s.new("spind")
        s(f"s_mov_b32 s{sSPIN}, {SPIN_LIMIT*4}")
        s.lab(a)
        s(f"""ds_read_b32 v{vtmp}, v{vaddr} offset:{off}
        s_waitcnt lgkmcnt(0)
        v_cmp_gt_u32 vcc, {need}, v{vtmp}
        s_cbranch_vccz {s.ln(b)}
        s_sleep {sleep}
        s_sub_u32 s{sSPIN}, s{sSPIN}, 1
        s_cbranch_scc0 {s.ln(a)}""")
        s.lab(b)

    def spin_ool(s, vaddr, need, vtmp, off=0, sleep=0):
        out, back = s.new("ool"), s.new("back")
        s(f"s_cbranch_vccnz {s.ln(out)}")
        s.lab(back)
        keep = s.L; s.L = []
        s.lab(out)
        s.lds_spin(vaddr, need, vtmp, off=off, sleep=sleep)
        s(f"s_branch {s.ln(back)}")
        s.cold += s.L; s.L = keep
    def flush_cold(s):
        s.L += s.cold; s.cold = []

    def poll_issue(s, loads):
        regs = []
        for (vd, n, vo, r, so, imm) in loads:
            sfx = {1: "dword", 2: "dwordx2", 4: "dwordx4"}[n]
            s(f"buffer_load_{sfx} {vr(vd,n)}, v{vo}, {srd(r)}, {so} offen offset:{imm} sc1")
            regs += list(range(vd, vd+n))
        return regs
    def poll(s, loads, sleep=2, pre=None):
        a, b, c = s.new("poll"), s.new("polld"), s.new("pollc")
        s(f"s_mov_b32 s{sSPIN}, {SPIN_LIMIT}")
        if pre is not None: s(f"s_waitcnt vmcnt({pre})\ns_branch {s.ln(c)}")
        s.lab(a)
        regs = s.poll_issue(loads)
        s("s_waitcnt vmcnt(0)")
        s.lab(c)
        for q in regs[1:]:
            s(f"v_min_u32 v{regs[0]}, v{regs[0]}, v{q}")
        s(f"""v_cmp_eq_u32 vcc, 0, v{regs[0]}
        s_cbranch_vccz {s.ln(b)}
        s_sleep {sleep}
        s_sub_u32 s{sSPIN}, s{sSPIN}, 1
        s_cbranch_scc0 {s.ln(a)}""")
        s.lab(b)

    def set_flag(s, soff, va, vb):
        s(f"""s_mov_b64 exec, 1
        v_mov_b32 v{va}, 0
        v_mov_b32 v{vb}, 1
        buffer_store_dword v{vb}, v{va}, {srd(sWS)}, {soff} offen sc1
        s_mov_b64 exec, -1""")

    def arrive(s, cnt, n, soff, va, vb, younger=0):
        nx = s.new("arr")
        s(f"""s_mov_b64 exec, 1
        v_mov_b32 v{va}, {cnt}
        v_mov_b32 v{vb}, 1
        s_waitcnt vmcnt({younger})
        ds_add_rtn_u32 v{va}, v{va}, v{vb}
        s_waitcnt lgkmcnt(0)
        v_cmp_eq_u32 vcc, {n-1}, v{va}
        v_mov_b32 v{va}, 0
        s_cbranch_vccz {s.ln(nx)}
        buffer_store_dword v{vb}, v{va}, {srd(sWS)}, {soff} offen sc1""")
        s.lab(nx)
        s("s_mov_b64 exec, -1")

    def arrive_add(s, cnt, n, soff, voff, mask, va, vb, younger=0):
        nx = s.new("arr")
        s(f"""v_mov_b32 v{vb}, 1
        s_mov_b64 exec, 1
        v_mov_b32 v{va}, {cnt}
        s_waitcnt vmcnt({younger})
        ds_add_rtn_u32 v{va}, v{va}, v{vb}
        s_waitcnt lgkmcnt(0)
        v_cmp_eq_u32 vcc, {n-1}, v{va}
        s_cbranch_vccz {s.ln(nx)}
        s_mov_b64 exec, {mask}
        buffer_atomic_add v{vb}, v{voff}, {srd(sWS)}, {soff} offen sc1""")
        s.lab(nx)
        s("s_mov_b64 exec, -1")

    def apoll_issue(s, soff, va, vb, mask=1):
        s(f"""s_mov_b64 exec, {mask}
        {f"v_mov_b32 v{va}, 0" if mask == 1 else ""}
        v_mov_b32 v{vb}, 0
        buffer_atomic_add v{vb}, v{va}, {srd(sWS)}, {soff} offen sc0 sc1""")
    def apoll(s, soff, need, va, vb, sleep, pre=False, mask=1):
        a, b, c = s.new("apoll"), s.new("apolld"), s.new("apollc")
        s(f"s_mov_b32 s{sSPIN}, {SPIN_LIMIT}")
        if pre: s(f"s_mov_b64 exec, {mask}\ns_branch {s.ln(c)}")
        s.lab(a)
        s.apoll_issue(soff, va, vb, mask)
        s.lab(c)
        s(f"""s_waitcnt vmcnt(0)
        v_cmp_gt_u32 vcc, {need}, v{vb}
        s_cbranch_vccz {s.ln(b)}
        s_sleep {sleep}
        s_sub_u32 s{sSPIN}, s{sSPIN}, 1
        s_cbranch_scc0 {s.ln(a)}""")
        s.lab(b)
        s("s_mov_b64 exec, -1")

    def lds_set(s, addr, val, va, vb):
        s(f"""v_mov_b32 v{va}, {addr}
        v_mov_b32 v{vb}, {val}
        ds_write_b32 v{va}, v{vb}""")

    def kwait(s):
        s("s_waitcnt lgkmcnt(0)")
        if s.stamps: s("s_mov_b32 s80, s76\ns_mov_b32 s81, s78")

    def prologue(s):
        c0 = s.opt.get('c0', 16)
        if c0: s(f"s_getpc_b64 s[4:5]\nv_and_b32 v1, {c0-1}, v0\nv_lshlrev_b32 v1, 7, v1\nglobal_load_dword v167, v1, s[4:5]".replace("s[4:5]", "s[50:51]"))
        if s.stamps: s("s_memrealtime s[76:77]\ns_memtime s[78:79]")
        s(f"s_cmp_ge_u32 s2, 256\ns_cbranch_scc1 {s.ln('exit')}")
        for reg, off in ((sX,0),(sWS,88)):
            s(f"s_load_dwordx2 s[{reg}:{reg+1}], s[0:1], {off}")
        s(f"s_lshr_b32 s{sI}, s2, 3")
        if s.opt.get('cpf', 1): s.code_prefetch()
        for reg, off in ((sWQ,8),(sGW,64),(sDBG,80),(sW1,32),(sW2,48),(sWO,16),(sOUT,72),(sB1,40),(sB2,56)):
            s(f"s_load_dwordx2 s[{reg}:{reg+1}], s[0:1], {off}")
        s("v_lshrrev_b32 v1, 6, v0\nv_and_b32 v0, 63, v0")
        s(f"v_readfirstlane_b32 s{sW}, v1")
        s(f"s_mov_b32 s{sX+3}, 0x00020000")
        for reg, n in ((sX,2621440),(sWQ,2457600),(sWO,819200),(sW1,6291456),(sW2,f"s{sW1+2}"),(sWS,WS_BYTES),(sOUT,f"s{sX+2}"),(sDBG,256)):
            s(f"s_mov_b32 s{reg+2}, {n}")
            if reg != sX: s(f"s_mov_b32 s{reg+3}, s{sX+3}")
        s(f"s_and_b32 s{sXC}, s2, 7")
        if s.stamps:
            for i in range(1, 10): s(f"s_mov_b32 s{80+2*i}, 0")
        s(f"""s_and_b32 s{sRT}, s{sXC}, 3
        s_lshl_b32 s{sRT}, s{sRT}, 2
        s_and_b32 s48, s{sI}, 3
        s_add_u32 s{sRT}, s{sRT}, s48
        s_lshr_b32 s49, s{sXC}, 2
        s_lshl_b32 s{sCT}, s49, 3
        s_lshr_b32 s48, s{sI}, 2
        s_add_u32 s{sCT}, s{sCT}, s48
        s_lshl_b32 s{sN1}, s49, 5
        s_add_u32 s{sN1}, s{sN1}, s{sI}
        s_min_u32 s{sN1}, s{sN1}, 59
        s_mul_i32 s{sF1}, s{sN1}, 52
        s_lshr_b32 s{sF1}, s{sF1}, 8
        s_mul_i32 s48, s{sF1}, 5
        s_sub_u32 s{sD1}, s{sN1}, s48
        s_cmp_ge_u32 s{sW}, 8
        s_cbranch_scc1 {s.ln('grole')}
        s_cmp_eq_u32 s{sCT}, 15
        s_cbranch_scc1 {s.ln('idle')}
        s_cmp_lt_u32 s{sW}, 4
        s_cbranch_scc1 {s.ln('qkv_comp')}""")
        s.loader()
        s(f"s_branch {s.ln('att')}")
        s.lab("idle")
        s.kwait()
        nx = s.new("idle")
        s(f"""s_cmp_lg_u32 s{sW}, 0
        s_cbranch_scc1 {s.ln(nx)}
        v_lshlrev_b32 v1, 4, v0
        v_mov_b32 v4, 0
        v_mov_b32 v5, 0
        v_mov_b32 v6, 0
        v_mov_b32 v7, 0
        s_mul_i32 s52, s{sRT}, {FL_BYTES//16}
        s_add_u32 s52, s52, {FL}""")
        for n in range(FL_BYTES//16384):
            s(f"buffer_store_dwordx4 v[4:7], v1, {srd(sWS)}, s52 offen offset:{(n&3)*1024} sc1")
            if n & 3 == 3: s("s_add_u32 s52, s52, 4096")
        s(f"""s_lshl_b32 s52, s{sRT}, 2
        s_mov_b64 exec, 1
        s_waitcnt vmcnt(0)
        v_mov_b32 v5, 1
        buffer_store_dword v5, v4, {srd(sDBG)}, s52 offen sc1
        s_mov_b64 exec, -1""")
        s.lab(nx)
        s.att_vsetup()
        for _ in range(15): s("s_barrier")
        s(f"s_cmp_lt_u32 s{sW}, 4\ns_cbranch_scc1 {s.ln('att')}\ns_barrier\ns_barrier\ns_branch {s.ln('att')}")
        s.lab("qkv_comp")
        s.qkv_compute()
        s.lab("att")
        s.attention()
        s.end_wave()
        s.flush_cold()
        s.att_slow()
        s.lab("grole2")
        s.grole()
        s.end_wave()
        s.lab("exit")
        s("s_endpgm")

    def code_prefetch(s):
        here, nx = s.new("pc"), s.new("pc")
        s("s_getpc_b64 s[50:51]")
        s.lab(here)
        s(f"""s_lshl_b32 s52, s{sI}, 3
        v_cmp_gt_u32 vcc, 64, v0
        v_add_u32 v1, s52, v0
        s_movk_i32 s54, {72 if s.opt.get('cpf', 1) == 1 else 64}
        v_cmp_gt_u32 s[52:53], s54, v0
        v_cndmask_b32 v1, v1, v0, vcc
        v_lshlrev_b32 v1, 7, v1
        v_min_u32 v1, code_end-{s.ln(here)}-4, v1
        s_mov_b64 exec, s[52:53]
        s_cbranch_execz {s.ln(nx)}
        global_load_dword v165, v1, s[50:51]""")
        s.lab(nx)
        s("s_mov_b64 exec, -1")

    def loader(s):
        if s.opt.get('lprio'): s(f"s_setprio {s.opt['lprio']}")
        s(f"""s_sub_u32 s48, s{sW}, 4
        v_lshrrev_b32 v32, 3, v0
        s_lshl_b32 s49, s48, 5
        v_add_u32 v32, s49, v32
        v_mul_u32_u24 v32, 1280, v32
        v_lshrrev_b32 v33, 4, v0
        v_and_b32 v34, 7, v0
        v_xor_b32 v34, v34, v33
        v_xor_b32 v35, 4, v34
        v_lshl_add_u32 v39, v34, 4, v32
        v_lshl_add_u32 v40, v35, 4, v32
        v_add_u32 v40, {10240-1024}, v40
        v_add_u32 v41, {2*(10240-1024)}, v39
        v_add_u32 v42, {2*(10240-1024)}, v40
        s_lshl_b32 s49, s48, 4
        v_add_u32 v32, s49, v33
        v_mul_u32_u24 v32, 3840, v32
        v_lshlrev_b32 v33, 2, v33
        v_and_b32 v34, 15, v0
        v_xor_b32 v34, v34, v33
        v_lshl_add_u32 v43, v34, 4, v32
        v_add_u32 v44, {15360-1024}, v43
        v_xor_b32 v46, 32, v43
        v_add_u32 v45, {2*(15360-1024)}, v46
        v_add_u32 v46, {3*(15360-1024)}, v46
        s_mul_i32 s50, s{sRT}, {128*1280}
        s_lshl_b32 s51, s{sCT}, 8
        s_lshl_b32 s52, s48, 12""")
        nt = " nt" if s.opt.get('qnt') else ""
        rot = s.opt.get('qrot', 2)
        if rot in (1, 2):
            qr, qc, qx, qe = s.opt.get('qr', 10), s.opt.get('qc', 4), s.opt.get('qx', 2 if rot == 2 else 0), s.opt.get('qe', 0)
            s(f"""s_and_b32 s53, s{sI}, 3
            s_mul_i32 s53, s53, {qr}
            s_lshr_b32 s54, s{sI}, 2
            s_mul_i32 s54, s54, {qc}
            s_add_u32 s53, s53, s54
            s_and_b32 s54, s{sXC}, 3
            s_mul_i32 s54, s54, {qx}
            s_add_u32 s53, s53, s54""")
            if qe: s(f"s_lshr_b32 s54, s{sXC}, 2\ns_mul_i32 s54, s54, {qe}\ns_add_u32 s53, s53, s54")
            s("s_lshr_b32 s53, s53, 2")
            for _ in range((3*qr + 7*qc + 3*qx + qe)//40): s("s_cmp_ge_u32 s53, 10\ns_cselect_b32 s54, 10, 0\ns_sub_u32 s53, s53, s54")
        elif rot == 0:
            s("s_mov_b32 s53, 0")
        else:
            T = {3: ["0412385679", "1250349678", "2306145789", "3012745689"],
                 4: ["0123456789", "1230567498", "2301674589", "3012745698"],
                 5: ["0213546879", "1032457698", "0132547689", "1023456798"],
                 6: ["0216354879", "1032745698", "0132485679", "1023549678"],
                 7: ["0123456789", "1032547698", "0123456789", "1032547698"],
                 8: ["0142356879", "1023547698", "0213465789", "1302457689"]}[rot]
            def enc(o):
                v = 0
                for j, ch in enumerate(o): v |= int(ch) << (4*j)
                return v
            s(f"""s_lshr_b32 s54, s{sI}, 2
            s_add_u32 s54, s54, s{sI}
            s_bitcmp1_b32 s54, 0
            s_cselect_b32 s56, {enc(T[1]) & 0xffffffff}, {0}
            s_cselect_b32 s57, {enc(T[1]) >> 32}, {0}
            s_cselect_b32 s58, {enc(T[3]) & 0xffffffff}, {0}
            s_cselect_b32 s59, {enc(T[3]) >> 32}, {0}
            s_cselect_b32 s60, 0, {enc(T[0]) & 0xffffffff}
            s_cselect_b32 s61, 0, {enc(T[0]) >> 32}
            s_cselect_b32 s62, 0, {enc(T[2]) & 0xffffffff}
            s_cselect_b32 s63, 0, {enc(T[2]) >> 32}
            s_or_b64 s[56:57], s[56:57], s[60:61]
            s_or_b64 s[58:59], s[58:59], s[62:63]
            s_bitcmp1_b32 s54, 1
            s_cselect_b64 s[56:57], s[58:59], s[56:57]
            s_and_b32 s53, s56, 15""")
        def issue(t):
            s(f"""s_lshl_b32 s54, s53, 7
            s_add_u32 m0, s52, {(t&3)*32768}
            s_add_u32 s54, s54, s50""")
            for n in range(4):
                s(f"buffer_load_dwordx4 v{39+n}, {srd(sX)}, s54 offen offset:{1024*n}{nt} lds")
            s(f"""s_mul_i32 s54, s53, {64*3840}
            s_add_u32 m0, s52, {(t&3)*32768+16384}
            s_add_u32 s54, s54, s51""")
            for n in range(4):
                s(f"buffer_load_dwordx4 v{43+n}, {srd(sWQ)}, s54 offen offset:{1024*n}{nt} lds")
            if rot < 3: s("s_add_u32 s53, s53, 1\ns_cmp_eq_u32 s53, 10\ns_cselect_b32 s53, 0, s53")
            else: s("s_lshr_b64 s[56:57], s[56:57], 4\ns_and_b32 s53, s56, 15")
        def issue1(t):
            s(f"""s_mul_i32 s54, s53, {64*1280}
            s_add_u32 m0, s52, {(t&3)*32768}
            s_add_u32 s54, s54, s50""")
            for n in range(4):
                s(f"buffer_load_dwordx4 v{47+n}, {srd(sWS)}, s54 offen offset:{1024*n} sc1 lds")
            s(f"""s_mul_i32 s54, s53, {64*3072}
            s_add_u32 m0, s52, {(t&3)*32768+16384}
            s_add_u32 s54, s54, s51""")
            for n in range(4):
                s(f"buffer_load_dwordx4 v{51+n}, {srd(sW1)}, s54 offen offset:{1024*n} lds")
            s("s_add_u32 s53, s53, 1\ns_and_b32 s53, s53, 7")
        pfq = s.opt.get('pfq', 1)
        tpf = s.opt.get('tpf', 1)
        stag = s.opt.get('stag', 2)
        pfts = [tpf + k for k in range({0: 1, 1: 4}.get(stag, s.opt.get('nsl', 7)))] if pfq else []
        th = s.opt.get('th', 7)
        ops = []
        s.kwait()
        if s.opt.get('b0st'): s.stamp(3)
        issue(0)
        if s.opt.get('b0st'): s.stamp(4)
        npre = s.opt.get('npre', 1)
        ops += [('s', 0)]
        if npre == 2: issue(1); ops += [('s', 1)]
        if s.opt.get('b0st'): s.stamp(5)
        s(f"""v_lshrrev_b32 v33, 4, v0
        v_add_u32 v33, s49, v33
        v_mul_u32_u24 v32, 3072, v33
        v_lshl_add_u32 v51, v34, 4, v32
        v_add_u32 v52, {12288-1024}, v51
        v_xor_b32 v54, 32, v51
        v_add_u32 v53, {2*(12288-1024)}, v54
        v_add_u32 v54, {3*(12288-1024)}, v54
        v_mul_u32_u24 v32, 1280, v33
        v_lshl_add_u32 v47, v34, 4, v32
        v_add_u32 v48, 4096, v47
        v_xor_b32 v50, 32, v47
        v_add_u32 v49, 8192, v50
        v_add_u32 v50, 12288, v50
        s_and_b32 s66, s{sXC}, 3
        s_mul_i32 s55, s66, {64*s.hsp}
        s_add_u32 s55, s55, {F_H}
        v_mul_u32_u24 v33, {s.hsp}, v0
        s_lshr_b32 s67, s{sI}, 2
        s_add_u32 s67, s67, s{sI}
        s_and_b32 s67, s67, 3
        s_cmp_ge_u32 s{sXC}, 4
        s_cselect_b32 s60, 12, 14
        s_cselect_b32 s61, 5, 4
        s_mov_b32 s62, {-(-65536//14)}
        s_cmov_b32 s62, {-(-65536//12)}
        s_cselect_b32 s63, 1536, 0
        s_mul_i32 s64, s60, s61
        s_sub_u32 s64, s64, 1
        v_min_u32 v32, s64, v0
        v_mul_u32_u24 v35, s62, v32
        v_lshrrev_b32 v35, 16, v35
        v_mul_u32_u24 v36, s60, v35
        v_sub_u32 v32, v32, v36
        s_lshl_b32 s64, s{sI}, 2
        s_add_u32 s64, s64, s48
        s_mul_i32 s64, s64, s61
        v_add_u32 v35, s64, v35
        v_min_u32 v35, 511, v35
        v_mul_u32_u24 v35, 3072, v35
        v_lshl_add_u32 v32, v32, 7, v35
        s_mul_i32 s64, s66, {512*3072}
        s_add_u32 s64, s64, s63""")
        if stag == 2: s(f"s_mul_i32 s67, s{sI}, s61\ns_mul_i32 s67, s67, {s.opt.get('nsl', 7)}\ns_lshr_b32 s67, s67, 7")
        over = s.new("over")
        s(f"s_branch {s.ln(over)}")
        s.lab("grole")
        s.gfront()
        s(f"s_branch {s.ln('grole2')}")
        s.lab(over)
        s.att_vsetup()
        if npre == 1: issue(1); ops += [('s', 1)]
        if s.opt.get('b0st'): s.stamp(6)
        hl = [(34,1,33,sWS,"s55",0)]
        def younger(tag):
            k = ops.index(tag)
            return sum(8 if o[0] == 's' else 1 for o in ops[k+1:])
        for t in range(17):
            s(f"s_waitcnt vmcnt({younger(('s', t))})")
            if s.opt.get('ldstamp') and s.opt['ldstamp'] <= t < s.opt['ldstamp']+6: s.stamp(3 + t - s.opt['ldstamp'])
            if s.opt.get('b0st') and t == 0: s.stamp(7)
            s("s_barrier")
            if t == 0: s.stamp(1)
            if t == 8:
                if not s.opt.get('noln'): s.poll(hl, sleep=s.opt.get('hsl', 8), pre=younger(('h', th)))
                s(f"""s_mul_i32 s50, s66, {512*1280}
                s_lshl_b32 s54, s{sD1}, 8
                s_add_u32 s50, s50, s54
                s_add_u32 s50, s50, {HI}
                s_mul_i32 s51, s66, {512*3072}
                s_lshl_b32 s54, s{sF1}, 8
                s_add_u32 s51, s51, s54""")
                r1 = s.opt.get('g1rot', 0)
                if r1 == 0: s("s_mov_b32 s53, 0")
                if r1 == 1: s(f"s_and_b32 s53, s{sF1}, 7")
                if r1 == 2: s(f"s_lshl_b32 s53, s{sD1}, 1\ns_add_u32 s53, s53, s{sF1}\ns_and_b32 s53, s53, 7")
            if t == th:
                s.poll_issue(hl); ops.append(('h', t))
            if t+2 <= 9: issue(t+2); ops.append(('s', t+2))
            elif t+2 <= 17: issue1(t+2); ops.append(('s', t+2))
            if t in pfts:
                if stag: s(f"s_cmp_eq_u32 s67, {t - tpf}\ns_cselect_b32 s54, s64, 0x1000000")
                s(f"buffer_load_dword v165, v32, {srd(sW1)}, s{54 if stag else 64} offen{' nt' if s.opt.get('pfnt') else ''}")
                ops.append(('x', t))
                if s.opt.get('pfnt') == 2:
                    s(f"buffer_load_dword v166, v32, {srd(sW1)}, s{54 if stag else 64} offen sc1"); ops.append(('y', t))

    @staticmethod
    def acc(i, j): return 64 + 16*(2*(i >> 1) + (j >> 1)) + 8*(i & 1) + 4*(j & 1)
    def gemm_ops(s, aX, xtr, aW):
        F = (32, 128)
        def tr(b, a, o): return [f"ds_read_b64_tr_b16 {vr(b,2)}, v{a} offset:{o}", f"ds_read_b64_tr_b16 {vr(b+2,2)}, v{a} offset:{o+1024}"]
        def reads(sl, ks):
            b = F[ks]; o = sl*32768
            def x(i): return tr(b+4*i, aX+i, o+ks*8192) if xtr else [f"ds_read_b128 {vr(b+4*i,4)}, v{aX+ks} offset:{o+2048*i}"]
            def w(j): return tr(b+16+4*j, aW+j, o+ks*8192)
            return x(0) + w(0) + x(1) + x(2) + x(3) + w(1) + w(2) + w(3)
        def mf(ks, i, j, isv):
            b = F[ks]; xa = vr(b+4*i,4); wa = vr(b+16+4*j,4); d = vr(s.acc(i,j),4)
            return f"v_mfma_f32_16x16x32_bf16 {d}, {xa if isv else wa}, {wa if isv else xa}, {d}"
        return reads, mf
    def gemm_loop(s, reads, mf, isv, tog, scnt, skip_last):
        lp = s.new("gl")
        s.lab(lp)
        for n in range(4):
            ks = n & 1
            R = reads(((n+1) >> 1) & 1, ks ^ 1)
            toggled = set()
            done = 0
            for k in range(16):
                j, i = k >> 2, k & 3
                if j & 1: i = 3 - i
                if k == 0: s("s_waitcnt lgkmcnt(6)")
                if k == 4: s(f"s_waitcnt lgkmcnt({4 + done})")
                if k == 8: s(f"s_waitcnt lgkmcnt({done})")
                s(mf(ks, i, j, isv))
                if k == 0 and ks == 1:
                    if n == 3 and skip_last:
                        nx = s.new("nb")
                        s(f"s_cmp_eq_u32 s{scnt}, 1\ns_cbranch_scc1 {s.ln(nx)}\ns_barrier")
                        s.lab(nx)
                    else: s("s_barrier")
                if done < len(R):
                    if n == 3:
                        a = int(R[done].split(", v")[1].split()[0])
                        if a not in toggled: s(f"v_xor_b32 v{a}, 0x10000, v{a}"); toggled.add(a)
                    s(R[done]); done += 1
                elif n == 3:
                    for a in tog:
                        if a not in toggled: s(f"v_xor_b32 v{a}, 0x10000, v{a}"); toggled.add(a)
            assert n != 3 or toggled == set(tog)
        s(f"s_sub_u32 s{scnt}, s{scnt}, 1\ns_cmp_lg_u32 s{scnt}, 0\ns_cbranch_scc1 {s.ln(lp)}")
    def tr_addr(s, va, base, su, t0, t1):
        L = f"""v_lshrrev_b32 v{t0}, 4, v0
        v_bfe_u32 v{t1}, v0, 2, 2
        v_lshl_add_u32 v{va}, v{t0}, 3, v{t1}
        v_lshlrev_b32 v{va}, 8, v{va}
        v_and_b32 v{t0}, 1, v{t0}
        v_lshl_add_u32 v{t0}, v{t1}, 1, v{t0}
        v_xor_b32 v{t0}, s{su}, v{t0}
        v_lshl_add_u32 v{va}, v{t0}, 5, v{va}
        v_and_b32 v{t0}, 3, v0
        v_lshl_add_u32 v{va}, v{t0}, 3, v{va}
        v_add_u32 v{va}, {base}, v{va}"""
        for k in range(1, 4): L += f"\nv_xor_b32 v{va+k}, {32*k}, v{va}"
        return L

    def qkv_compute(s):
        ACC = 64
        s.kwait()
        if s.opt.get('b0st'): s.stamp(5)
        s(f"""s_and_b32 s48, s{sW}, 1
        s_lshr_b32 s49, s{sW}, 1
        v_and_b32 v8, 31, v0
        v_lshrrev_b32 v9, 5, v0
        s_lshl_b32 s50, s48, 13
        v_and_b32 v10, 15, v0
        v_lshl_add_u32 v10, v10, 7, s50
        v_bfe_u32 v11, v0, 1, 3
        v_lshrrev_b32 v12, 4, v0
        v_xor_b32 v11, v11, v12
        v_lshl_add_u32 v2, v11, 4, v10
        v_xor_b32 v3, 64, v2
        s_lshl_b32 s50, s49, 2""")
        s(s.tr_addr(4, 16384, 50, 10, 11))
        s(f"""s_mul_i32 s58, s{sCT}, 13
        s_lshr_b32 s58, s58, 6
        s_mul_i32 s59, s58, 5
        s_sub_u32 s59, s{sCT}, s59
        s_lshl_b32 s59, s59, 1
        s_add_u32 s59, s59, s49
        v_lshrrev_b32 v10, 1, v0
        v_mul_u32_u24 v10, 5, v10
        v_and_b32 v11, 1, v0
        v_lshl_add_u32 v10, v11, 1, v10
        v_add_u32 v11, 2, v10
        v_lshrrev_b32 v10, 3, v10
        v_lshrrev_b32 v11, 3, v11
        v_cmp_eq_u32 s[56:57], s59, v10
        v_cmp_eq_u32 vcc, s59, v11
        v_lshlrev_b32 v13, 6, v0
        v_mov_b32 v12, 1
        s_lshr_b32 s59, s{sRT}, 1
        s_add_u32 s59, s59, 3
        s_cmp_eq_u32 s58, 0
        s_cselect_b32 s58, s59, s58
        s_lshl_b32 s58, s58, 11
        s_add_u32 s58, s58, {F_Q - 2048}
        s_or_b32 s56, s56, vcc_lo
        s_mov_b32 s57, 0""")
        for r in range(64): s(f"v_mov_b32 v{ACC+r}, 0")
        reads, mf = s.gemm_ops(2, False, 4)
        s.att_vsetup()
        if s.opt.get('b0st'): s.stamp(7)
        s(f"s_setprio {s.opt.get('cprio', 2)}\ns_barrier")
        s.stamp(1)
        for l in reads(0,0): s(l)
        s(f"s_mov_b32 s51, 5\ns_cmp_ge_u32 s47, 10\ns_cbranch_scc1 {s.ln('qkv_v')}")
        for isv in (0, 1):
            if isv: s.lab("qkv_v")
            s.gemm_loop(reads, mf, isv, range(2, 8), 51, False)
            s(f"s_setprio {s.opt.get('eprio', 3)}")
            nb = [10]
            def bar():
                nb[0] += 1; s("s_barrier")
            cuts = {0: (0,), 1: (0, 4), 2: (0, 3, 6), 3: (0, 2, 4, 6), 4: (4,), 5: (2, 6)}[s.opt.get('ecut', 4)]
            s.stamp(2)
            P = 32
            if not isv:
                s(f"""s_cmp_lt_u32 s47, 5
                s_cselect_b32 s52, {fbits(20**-0.5*math.log2(math.e))}, 1.0
                s_mov_b32 s53, s52
                v_lshlrev_b32 v2, 15, v9
                v_lshl_add_u32 v2, v8, 4, v2
                s_lshl_b32 s54, s47, 4
                s_lshl_b32 s55, s49, 3
                s_add_u32 s54, s54, s55
                s_lshl_b32 s54, s54, 15
                s_lshl_b32 s55, s46, 11
                s_add_u32 s54, s54, s55
                s_lshl_b32 s55, s48, 10
                s_add_u32 s54, s54, s55
                s_waitcnt lgkmcnt(0)""")
            else:
                s(f"""s_sub_u32 s54, s47, 10
                s_lshl_b32 s54, s54, 7
                s_lshl_b32 s55, s49, 6
                s_add_u32 s54, s54, s55
                v_add_u32 v4, s54, v8
                v_mul_u32_u24 v6, 320, v9""")
                for j in range(2):
                    s(f"""v_mul_u32_u24 v5, 3277, v4
                    v_lshrrev_b32 v5, 16, v5
                    v_mul_u32_u24 v{2+j}, {81920-320}, v5
                    v_lshl_add_u32 v{2+j}, v4, 4, v{2+j}
                    v_add_u32 v{2+j}, v{2+j}, v6
                    v_add_u32 v4, 32, v4""")
                s(f"""s_lshl_b32 s54, s46, 1
                s_add_u32 s54, s54, s48
                s_mul_i32 s54, s54, {8*320}
                s_add_u32 s54, s54, {VI}
                s_waitcnt lgkmcnt(0)""")
            for n in range(8):
                u, v = n >> 1, n & 1
                aa = (s.acc(u, 2*v), s.acc(u, 2*v+1)) if isv else (s.acc(2*v, u), s.acc(2*v+1, u))
                if n in cuts: bar()
                s.al8()
                p = P + 4*n
                if not isv:
                    for a in aa: s(f"v_pk_mul_f32 {vr(a,2)}, {vr(a,2)}, s[52:53]\nv_pk_mul_f32 {vr(a+2,2)}, {vr(a+2,2)}, s[52:53]")
                for q in range(4):
                    a = aa[q >> 1] + 2*(q & 1)
                    s(f"v_cvt_pk_bf16_f32 v{p+q}, v{a}, v{a+1}")
                s(f"s_nop 1\nv_permlane16_swap_b32 v{p}, v{p+2}\nv_permlane16_swap_b32 v{p+1}, v{p+3}")
                if s.opt.get('nost'): pass
                elif not isv:
                    s(f"buffer_store_dwordx4 {vr(p,4)}, v2, {srd(sWS)}, s54 offen offset:{512*v} sc1")
                else:
                    s(f"buffer_store_dwordx4 {vr(p,4)}, v{2+v}, {srd(sWS)}, s54 offen offset:{2*u*320} sc1")
                if not isv and v: s("s_add_u32 s54, s54, 65536")
            if not isv: s(f"s_branch {s.ln('qkv_pub')}")
        s.lab("qkv_pub")
        while nb[0] < s.opt.get('barr', 12): bar()
        s(f"""s_mov_b64 exec, s[56:57]
        s_waitcnt vmcnt(0)
        buffer_atomic_add v12, v13, {srd(sWS)}, s58 offen sc1
        s_mov_b64 exec, -1""")
        s.stamp(3)
        while nb[0] < 14: bar()

    def att_vsetup(s):
        aK1, aK2, aV, vK, vV, vIDX, aPW, aPR, vPC = 14, 15, 16, 17, 18, 19, 20, 21, 22
        w0, dn = s.new("vs"), s.new("vs")
        s(f"""s_and_b32 s68, s{sI}, 1
        s_lshr_b32 s69, s{sW}, 2
        v_and_b32 v23, 31, v0
        v_lshrrev_b32 v24, 5, v0
        v_and_b32 v30, 15, v0
        v_lshrrev_b32 v31, 4, v0
        s_mul_i32 s70, s68, 3
        v_add_u32 v{vK}, s70, v31
        v_cmp_gt_u32 vcc, 2, v31
        v_add_u32 v25, s70, v24
        s_lshl_b32 s71, s{sW}, 8
        v_cndmask_b32 v{vK}, 2, v{vK}, vcc
        v_lshlrev_b32 v{vK}, 15, v{vK}
        v_lshl_add_u32 v{vK}, v30, 4, v{vK}
        v_add_u32 v{vK}, s71, v{vK}
        v_cmp_lt_u32 vcc, 20, v0
        s_mul_i32 s71, s{sW}, 640
        v_subrev_u32 v{vV}, 1, v0
        v_cndmask_b32 v{vV}, v0, v{vV}, vcc
        v_lshlrev_b32 v{vV}, 4, v{vV}
        v_add_u32 v{vV}, s71, v{vV}
        v_and_b32 v29, 1, v31
        v_mul_u32_u24 v{aK2}, 768, v29
        v_lshl_add_u32 v{aK2}, v30, 4, v{aK2}
        s_mul_i32 s71, s69, 3072
        s_add_u32 s71, s71, {KVB}
        v_add_u32 v{aK2}, s71, v{aK2}
        v_lshl_add_u32 v{aK1}, v24, 8, v{aK2}
        s_lshl_b32 s70, s68, 3
        s_add_u32 s71, s70, 512
        v_add_u32 v{aK2}, s71, v{aK2}
        v_min_u32 v{aV}, 20, v23
        v_mul_u32_u24 v28, 336, v24
        v_mov_b32 v{vIDX}, 0xdddd
        v_lshl_add_u32 v{aV}, v{aV}, 4, v28
        s_mul_i32 s71, s69, 2688
        s_add_u32 s71, s71, {KVB+6144}
        v_add_u32 v{aV}, s71, v{aV}
        s_lshl_b32 s71, s{sW}, 2
        s_add_u32 s71, s71, {SY_PA}
        v_mov_b32 v{aPW}, s71
        v_and_b32 v{aPR}, 7, v0
        v_lshlrev_b32 v{aPR}, 2, v{aPR}
        v_add_u32 v{aPR}, {SY_PA}, v{aPR}
        v_mov_b32 v{vPC}, 1
        v_lshlrev_b32 v25, 15, v25
        v_lshl_add_u32 v25, v23, 4, v25
        v_lshlrev_b32 v26, 4, v23
        s_add_u32 s70, s70, 0x10000
        v_add_u32 v26, s70, v26
        v_lshlrev_b32 v27, 2, v23""")
        s(f"""s_mov_b32 exec_lo, 0xfee00000
        s_mov_b32 exec_hi, 0xfee00000
        v_mov_b32 v{aV}, 0x30000
        s_mov_b32 exec_lo, 0
        s_mov_b32 exec_hi, -1
        v_mov_b32 v{aK2}, 0x30000
        s_mov_b64 exec, -1
        s_cmp_eq_u32 s{sW}, 0
        s_cbranch_scc1 {s.ln(w0)}
        v_mul_u32_u24 v28, {KVS}, v31
        v_mul_u32_u24 v29, 336, v30
        v_add_u32 v28, v28, v29
        v_add_u32 v28, {KVB+6144+320}, v28
        s_branch {s.ln(dn)}""")
        s.lab(w0)
        s(f"""s_lshl_b32 s70, s{sXC}, 2
        s_and_b32 s71, s{sI}, 3
        s_add_u32 s70, s70, s71
        s_lshr_b32 s71, s70, 1
        s_mul_i32 s71, s71, 5
        s_lshl_b32 s68, s68, 1
        s_add_u32 s71, s71, s68
        s_and_b32 s71, s71, 7
        s_cmp_ge_u32 s71, 6
        s_cselect_b32 s71, 64, 32
        v_mov_b32 v29, s71
        s_lshr_b32 s71, s71, 3
        v_writelane_b32 v29, s71, 2
        s_lshl_b32 s70, s70, 6
        v_lshl_add_u32 v28, v0, 11, s70
        s_lshr_b32 s71, s{sI}, 2
        s_add_u32 s71, s71, 2
        s_lshl_b32 s71, s71, 11
        s_add_u32 s71, s71, s70
        v_writelane_b32 v28, s71, 2""")
        s.lab(dn)

    def attention(s):
        Q1, Q2, K1, K2, V0, V1 = 8, 12, 152, 150, 156, 160
        S = (32, 48); O = 64
        aK1, aK2, aV, vK, vV, vIDX, aPW, aPR, vPC, vPR = 14, 15, 16, 17, 18, 19, 20, 21, 22, 30
        sH, sQB, sP, sODD, sKO, sVO, sMK, sMV, sN, sNEED, sTOK = 48, 49, 50, 51, 52, 53, 54, 55, 56, 3, 100
        EK, EV = "s[58:59]", "s[60:61]"
        sKB, sVB = 62, 63
        s(f"""s_setprio 3
        s_lshl_b32 s{sH}, s{sXC}, 2
        s_and_b32 s57, s{sI}, 3
        s_add_u32 s{sH}, s{sH}, s57
        s_lshr_b32 s{sQB}, s{sI}, 2
        s_lshr_b32 s{sP}, s{sH}, 1
        s_and_b32 s{sODD}, s{sH}, 1
        s_mov_b32 s58, -1
        s_mov_b32 s59, 0xffff
        s_mov_b32 s60, 0xffefffff
        s_mov_b32 s61, 0x1ff
        s_mul_i32 s{sKB}, s{sP}, {5*32768}
        s_add_u32 s{sKB}, s{sKB}, {KI}
        s_mul_i32 s{sVB}, s{sH}, 81920
        s_add_u32 s{sVB}, s{sVB}, {VI}
        s_mul_i32 s{sMK}, s{sW}, 768
        s_add_u32 s{sMK}, s{sMK}, {KVB}
        s_mul_i32 s{sMV}, s{sW}, 672
        s_add_u32 s{sMV}, s{sMV}, {KVB+6144}
        s_lshl_b32 s{sTOK}, s{sQB}, 8
        s_and_b32 s57, s{sW}, 3
        s_lshl_b32 s57, s57, 6
        s_add_u32 s{sTOK}, s{sTOK}, s57
        s_lshr_b32 s{sN}, s{sW}, 2
        s_lshl_b32 s57, s{sN}, 5
        s_add_u32 s{sTOK}, s{sTOK}, s57
        """)
        SS = ((32, 96), (48, 112)); OO = (128, O); QQ = ((144, 148), (Q1, Q2))
        s(f"""
        s_lshl_b32 s70, s{sTOK}, 4
        s_add_u32 s70, s70, s{sKB}
        s_sub_u32 s70, s70, {KI-QI}
        s_lshl_b32 s71, s{sTOK}, 2
        s_add_u32 s71, s71, {GI}
        """)
        def dma(slot):
            slot = (slot + 2) & 3
            return [f"s_add_u32 m0, s{sMK}, {slot*KVS}",
                    f"s_mov_b64 exec, {EK}",
                    f"buffer_load_dwordx4 v{vK}, {srd(sWS)}, s{sKO} offen sc1 lds",
                    f"s_add_u32 m0, s{sMV}, {slot*KVS}",
                    f"s_mov_b64 exec, {EV}",
                    f"buffer_load_dwordx4 v{vV}, {srd(sWS)}, s{sVO} offen sc1 lds",
                    f"s_mov_b64 exec, -1",
                    f"s_add_u32 s{sKO}, s{sKO}, 2048",
                    f"s_add_u32 s{sVO}, s{sVO}, 5120"]
        s(f"s_mov_b32 s{sKO}, s{sKB}\ns_mov_b32 s{sVO}, s{sVB}")
        def first():
            s("\n".join(dma(0)))
            s(f"""buffer_load_dwordx4 {vr(Q1,4)}, v25, {srd(sWS)}, s70 offen sc1
            buffer_load_dwordx2 {vr(Q2,2)}, v84, {srd(sWS)}, s68 offen sc1
            buffer_load_dwordx4 {vr(QQ[0][0],4)}, v25, {srd(sWS)}, s67 offen sc1
            s_setprio {s.opt.get('sp2', 2)}""")
            s("\n".join(dma(1)))
        w1, b16, nidle, early, late0, late, go, nones = [s.new("a") for _ in range(8)]
        hl = [(90,1,87,sWS,"s65",0)]
        s(f"""v_mov_b32 v86, {SY_QOK}
        v_xor_b32 v84, s{sN}, v24
        v_lshl_add_u32 v84, v84, 9, v26
        s_xor_b32 s67, s70, 512
        s_andn2_b32 s68, s70, 512
        s_cmp_ge_u32 s{sW}, 4
        s_cbranch_scc1 {s.ln(b16)}
        s_cmp_lg_u32 s{sW}, 0
        s_cbranch_scc1 {s.ln(w1)}
        s_mul_i32 s65, s{sQB}, {32*s.hsp}
        s_add_u32 s65, s65, {F_H}
        v_mul_u32_u24 v87, {s.hsp}, v23
        s_mov_b32 s64, {F_Q}
        s_barrier
        s_cmp_lg_u32 s{sCT}, 15
        s_cbranch_scc1 {s.ln(nidle)}""")
        s.apoll("s64", 1, 28, 89, 16, mask=3)
        s.lab(nidle)
        s.poll_issue(hl)
        s.apoll_issue("s64", 28, 89, mask=7)
        s("s_mov_b64 exec, -1\ns_barrier")
        s.poll(hl, sleep=4, pre=1)
        s(f"""s_mov_b64 exec, 7
        s_waitcnt vmcnt(0)
        v_cmp_gt_u32 vcc, v29, v89
        s_cbranch_vccnz {s.ln(late0)}
        s_mov_b64 exec, 1
        v_mov_b32 v85, 1
        ds_write_b32 v86, v85
        s_mov_b64 exec, -1
        s_branch {s.ln(early if s.opt.get('ekv', 0) else late)}""")
        s.lab(late0)
        s.apoll_issue("s64", 28, 89, mask=7)
        s("s_mov_b64 exec, -1\ns_barrier")
        s.apoll("s64", "v29", 28, 89, s.opt.get('psl', 2), pre=True, mask=7)
        s(f"""s_mov_b64 exec, 1
        v_mov_b32 v85, 1
        ds_write_b32 v86, v85
        s_mov_b64 exec, -1""")
        s.stamp(4)
        first()
        s(f"s_branch {s.ln(go)}")
        s.lab(w1)
        s("s_barrier\ns_barrier")
        s.lab(b16)
        for _ in range(s.opt.get('ekv', 0)):
            s(f"""s_sleep 1
            ds_read_b32 v87, v86
            s_waitcnt lgkmcnt(0)
            v_cmp_gt_u32 vcc, 1, v87
            s_cbranch_vccz {s.ln(early)}""")
        s.lab(late)
        s("s_waitcnt vmcnt(0)\ns_barrier")
        s.stamp(8)
        s.lds_spin(86, 1, 87, sleep=s.opt.get('qsl', 0))
        s.stamp(4)
        first()
        s(f"s_branch {s.ln(go)}")
        s.lab(early)
        s.stamp(4)
        first()
        s("s_waitcnt vmcnt(7)\ns_barrier")
        s.stamp(8)
        s.lab(go)
        s(f"""s_cmp_lg_u32 s{sW}, 1
        s_cbranch_scc1 {s.ln(nones)}
        v_mov_b32 v88, 0x3f803f80
        v_mov_b32 v89, 0x3f803f80
        v_mov_b32 v90, 0x3f803f80
        v_mov_b32 v91, 0x3f803f80
        ds_write_b128 v28, v[88:91]""")
        s.lab(nones)
        ystag = s.opt.get('ystag', 1)
        for r in range(0, 16, 2): s(f"v_pk_mov_b32 {vr(O+r,2)}, 0, 0\nv_pk_mov_b32 {vr(128+r,2)}, 0, 0")
        for r in range(0, 8, 2): s(f"v_pk_mov_b32 {vr(SS[1][1]+8+r,2)}, 0, 0")
        for r in range(0, 4, 2): s(f"v_pk_mov_b32 {vr(V1+r,2)}, 0, 0")
        s(f"""v_pk_mov_b32 v[148:149], 0, 0
        s_mul_i32 s64, s{sW}, 3328
        s_add_u32 s64, s64, {XB}
        v_lshlrev_b32 v81, 4, v0
        s_xor_b32 s65, s{sW}, 4
        v_add_u32 v80, s64, v81
        v_lshl_add_u32 v85, v0, 2, s64
        s_mul_i32 s64, s65, 3328
        s_add_u32 s64, s64, {XB}
        v_add_u32 v81, s64, v81
        v_lshl_add_u32 v86, v0, 2, s64
        s_lshl_b32 s65, s65, 2
        s_add_u32 s65, s65, {SY_PA}
        v_mov_b32 v82, s65
        v_lshlrev_b32 v92, 4, v23
        v_lshl_add_u32 v83, v24, 15, v92
        v_cmp_eq_u32 s[72:73], 0, v24
        v_mov_b32 v93, {fbits(2.0**60)}
        v_mov_b32 v94, 0
        v_mov_b32 v95, 1
        s_lshl_b32 s64, s{sH}, 16
        s_lshl_b32 s65, s{sTOK}, 4
        s_add_u32 s65, s65, {OI}
        s_add_u32 s64, s64, s65
        s_add_u32 s57, s{sP}, 64
        s_lshl_b32 s57, s57, 15
        s_add_u32 s65, s65, s57
        s_xor_b32 s57, s{sP}, s{sH}
        s_and_b32 s57, s57, 1
        s_lshl_b32 s57, s57, 3
        s_add_u32 s65, s65, s57
        s_lshl_b32 s66, s{sTOK}, 3
        s_add_u32 s66, s66, {F_O}
        s_mov_b32 s70, {fbits(2.0**-30)}""")
        if s.opt.get('sst'): s.stamp(1)
        s(f"""s_mov_b32 s{sNEED}, 2
        s_waitcnt vmcnt(5) lgkmcnt(0)
        ds_write_b32 v{aPW}, v{vPC}""")
        if s.opt.get('sst'): s.stamp(2)
        for l in dma(2): s(l)
        if s.opt.get('nodma'):
            for l in dma(3): s(l)
            s("s_waitcnt vmcnt(0)")
        s(f"buffer_load_dword v31, v27, {srd(sWS)}, s71 offen sc1")
        if s.opt.get('sst'): s.stamp(3)
        s(f"""v_add_u32 v{vPC}, 1, v{vPC}
        s_waitcnt vmcnt(5)
        v_permlane32_swap_b32 v{Q2}, v148
        v_permlane32_swap_b32 v{Q2+1}, v149""")
        s.lds_spin(aPR, 1, vPR, sleep=0)
        s.stamp(5)
        def off(T):
            T %= 8
            return (((T >> 1) + 2) & 3)*KVS, T & 1
        def rK1(T):
            b, tt = off(T); return f"ds_read_b128 {vr(K1,4)}, v{aK1} offset:{b+tt*1536}"
        def rK2(T):
            b, tt = off(T); return f"ds_read_b64 {vr(K2,2)}, v{aK2} offset:{b+tt*1536}"
        def rV(T, a):
            b, tt = off(T); return f"ds_read_b128 {vr((V0,V1)[a],4)}, v{aV} offset:{b+(4*tt+2*a)*336}"
        def qk0(d, a): return f"v_mfma_f32_32x32x16_bf16 {vr(d,16)}, {vr(K1,4)}, {vr(QQ[a][0],4)}, 0"
        def qk1(d, a): return f"v_mfma_f32_32x32x8_bf16 {vr(d,16)}, {vr(K2,2)}, {vr(QQ[a][1],2)}, {vr(d,16)}"
        def pv(a, v, p): return f"v_smfmac_f32_32x32x32_bf16 {vr(OO[a],16)}, {vr(v,4)}, {vr(p,8)}, v{vIDX}"
        s(rK1(0)); s(rK2(0)); s(rV(0,0)); s("s_waitcnt lgkmcnt(1)")
        s(qk0(SS[0][0], 0)); s(qk1(SS[0][0], 0)); s(qk0(SS[1][0], 1)); s(rK1(1)); s(qk1(SS[1][0], 1)); s(rK2(1))
        s(f"""s_waitcnt vmcnt(3)
        ds_write_b32 v{aPW}, v{vPC}
        s_mov_b32 s69, 4
        v_add_u32 v{vPC}, 1, v{vPC}
        s_nop 3""")
        if s.opt.get('sst'): s.stamp(8)
        ap = s.opt.get('aprio', 1)
        nosync = s.opt.get('nosync'); nodma = s.opt.get('nodma')
        e0, e1, e2, e3 = {0: (2,6,10,14), 1: (2,5,9,13), 2: (3,7,11,15), 3: (2,6,9,13), 4: (2,7,10,14), 5: (4,8,12,16), 6: (2,5,10,13)}[s.opt.get('esp', 0)]
        def loop(pat):
          lp = s.new("attl")
          s.L.append(".p2align 6")
          for _ in range(s.opt.get('al', 0)): s("s_nop 0")
          s.lab(lp)
          late = ystag and pat is not None
          for n in range(16):
              if n == 14: s(f"s_sub_u32 s69, s69, 1\ns_cmp_eq_u32 s69, 0\ns_cbranch_scc1 {s.ln(join)}")
              T, a = n >> 1, n & 1
              c, m = n >> 2, n & 3
              cur, nn = SS[a][T & 1], SS[a][(T+1) & 1]
              prev = SS[1][(T-1) & 1] if a == 0 else SS[0][T & 1]
              E = [f"v_exp_f32{'_e64' if s.opt.get('e64') else ''} v{cur+i}, v{cur+i}" for i in range(16)]
              D = dma((c + 3) & 3) if not nodma else [""]*9
              apm = s.opt.get('apm', 0)
              if pat is not None and apm:
                  per = s.opt.get('app', 1)
                  h, l = apm % 100, apm // 100
                  for pos, pr in ((h, ap+1), (l, ap)):
                      if pos // 16 == n % per: E[pos % 16] = f"s_setprio {pr}\n" + E[pos % 16]
              elif pat is not None and pat[n] != pat[n-1]: s(f"s_setprio {pat[n]}")
              for e in E[:e0]: s(e)
              if a == 0:
                  s(pv(1, V1, prev+8)); s(rV(T,1))
                  if n == 4:
                      s(f"""s_cmp_eq_u32 s69, 1
                      s_cselect_b32 s{sKO}, {WS_BYTES}, s{sKO}
                      s_cselect_b32 s{sVO}, {WS_BYTES}, s{sVO}
                      s_cselect_b32 s{sMK}, 0x30000, s{sMK}
                      s_cselect_b32 s{sMV}, 0x30000, s{sMV}""")
                  for e in E[e0:e1]: s(e)
                  s("s_waitcnt lgkmcnt(1)")
                  s(qk0(nn, 0))
                  for e in E[e1:e2]: s(e)
                  s(qk1(nn, 0))
                  if m == 0 and nosync != 2: s(f"ds_read_b32 v{vPR}, v{aPR}")
                  for e in E[e2:e3]: s(e)
                  s(pv(0, V0, cur))
              else:
                  s("s_waitcnt lgkmcnt(0)")
                  s(pv(0, V1, prev+8))
                  if m == 1 and not nosync:
                      s(f"v_cmp_gt_u32 vcc, s{sNEED}, v{vPR}")
                      s.spin_ool(aPR, f"s{sNEED}", vPR, sleep=1)
                  if m == 3:
                      if late: s("\n".join(D))
                      if nosync != 2: s(f"s_waitcnt vmcnt({4 if s.opt.get('novm') else 2})\nds_write_b32 v{aPW}, v{vPC}")
                  for e in E[e0:e1]: s(e)
                  s(qk0(nn, 1)); s(rK1(T+2))
                  for e in E[e1:e2]: s(e)
                  s(qk1(nn, 1)); s(rK2(T+2))
                  if m == 1:
                      if not late: s("\n".join(D))
                      s(f"s_add_u32 s{sNEED}, s{sNEED}, 1")
                  if m == 3: s(f"v_add_u32 v{vPC}, 1, v{vPC}")
                  for e in E[e2:e3]: s(e)
                  s(pv(1, V0, cur)); s(rV(T+1,0))
              for e in E[e3:]: s(e)
          if s.opt.get('qst') and s.stamps:
              for k, c in ((1, 3), (2, 2), (3, 1)):
                  nx = s.new("st")
                  s(f"s_cmp_lg_u32 s69, {c}\ns_cbranch_scc1 {s.ln(nx)}")
                  s.stamp(k)
                  s.lab(nx)
          s(f"s_branch {s.ln(lp)}")
        pm = s.opt.get('apat', 119)
        young, join = s.new("young"), s.new("join")
        s(f"s_cmp_ge_u32 s{sW}, 4\ns_cbranch_scc1 {s.ln(young)}\ns_setprio {ap}")
        loop(None)
        s.lab(young)
        pat = [(s.opt.get('ylo', ap), s.opt.get('yhi', ap+1))[(pm >> (T % 8)) & 1] for T in range(16)]
        s(f"s_setprio {pat[15]}")
        loop(pat)
        s.lab(join)
        c0, c1 = SS[0][1], SS[1][1]
        E = [f"v_exp_f32 v{c0+i}, v{c0+i}" for i in range(16)]
        s(f"s_setprio {s.opt.get('tp0', 2)}")
        s(E[0]); s(E[1]); s(pv(1, V1, SS[1][0]+8)); s(rV(7,1))
        for e in E[2:10]: s(e)
        s("s_waitcnt lgkmcnt(1)"); s(pv(0, V0, c0))
        for e in E[10:]: s(e)
        E = [f"v_exp_f32 v{c1+i}, v{c1+i}" for i in range(16)]
        s(E[0]); s(E[1]); s("s_waitcnt lgkmcnt(0)"); s(pv(0, V1, c0+8))
        s(f"s_setprio {s.opt.get('tp1', 1)}")
        for e in E[2:10]: s(e)
        s(pv(1, V0, c1)); s(f"v_add_u32 v{vPC}, 1, v{vPC}"); s(E[10])
        for q in range(3): s(f"ds_write_b128 v80, {vr(128+4*q,4)} offset:{1024*q}")
        s("ds_write_b32 v85, v140 offset:3072")
        for e in E[11:]: s(e)
        s(f"""s_waitcnt vmcnt(0) lgkmcnt(0)
        ds_write_b32 v{aPW}, v{vPC}""")
        s(pv(1, V1, c1+8))
        s.lds_spin(82, 19, 87, sleep=0)
        s("s_setprio 3")
        for q in range(3): s(f"ds_read_b128 {vr(128+4*q,4)}, v81 offset:{1024*q}")
        s(f"""ds_read_b32 v140, v86 offset:3072
        v_add_u32 v{vPC}, 1, v{vPC}""")
        s.stamp(6)
        s(f"""s_waitcnt lgkmcnt(0)
        ds_write_b32 v{aPW}, v{vPC}
        v_add_f32 v{O+12}, v{O+12}, v140""")
        s.al8()
        for r in range(0, 12, 2): s(f"v_pk_add_f32 {vr(O+r,2)}, {vr(O+r,2)}, {vr(128+r,2)}")
        slow, norm = s.new("slow"), s.new("norm")
        s(f"v_cndmask_b32 v87, v{O+8}, v{O+12}, s[72:73]\nv_pk_mul_f32 v[88:89], {vr(O,2)}, 0")
        for r in range(2, 12, 2): s(f"v_pk_fma_f32 v[88:89], {vr(O+r,2)}, 0, v[88:89]")
        s(f"""v_add_f32 v88, v88, v89
        v_add_f32 v88, v88, v87
        v_med3_f32 v89, v88, s70, v93
        v_cmp_neq_f32 vcc, v89, v88
        s_cbranch_vccnz {s.ln(slow)}""")
        s.lab(norm)
        s(f"""v_rcp_f32 v88, v87
        s_nop 0
        v_mul_f32 v88, v88, v31""")
        s.al8()
        s.slow_args = (slow, norm, Q1, Q2, K1, K2, V0, V1, S, O, vIDX, sKB, sVB)
        for r in range(0, 12, 2): s(f"v_pk_mul_f32 {vr(O+r,2)}, {vr(O+r,2)}, v[88:89] op_sel_hi:[1,0]")
        for q in range(6): s(f"v_cvt_pk_bf16_f32 v{32+q}, v{O+2*q}, v{O+2*q+1}")
        s(f"""buffer_store_dwordx4 v[32:35], v83, {srd(sWS)}, s64 offen sc1
        s_mov_b32 exec_hi, 0
        buffer_store_dwordx2 v[36:37], v92, {srd(sWS)}, s65 offen sc1
        s_mov_b64 exec, 1
        s_waitcnt vmcnt(0)
        buffer_atomic_add v95, v94, {srd(sWS)}, s66 offen sc1""")
        s.stamp(7)

    def att_slow(s):
        slow, norm, Q1, Q2, K1, K2, V0, V1, S, O, vIDX, sKB, sVB = s.slow_args
        S0, C = S
        l1, l2 = s.new("slowa"), s.new("slowb")
        s.lab(slow)
        ldk = f"""buffer_load_dwordx4 {vr(K1,4)}, v25, {srd(sWS)}, s67 offen sc1
        buffer_load_dwordx2 {vr(K2,2)}, v26, {srd(sWS)}, s67 offen sc1"""
        s(f"""s_waitcnt vmcnt(0) lgkmcnt(0)
        v_mov_b32 v88, 0xff800000
        s_mov_b32 s67, s{sKB}
        s_mov_b32 s69, 64""")
        s.lab(l1)
        s(ldk)
        s(f"""s_waitcnt vmcnt(0)
        v_mfma_f32_32x32x16_bf16 {vr(S0,16)}, {vr(K1,4)}, {vr(Q1,4)}, 0
        v_mfma_f32_32x32x8_bf16 {vr(S0,16)}, {vr(K2,2)}, {vr(Q2,2)}, {vr(S0,16)}
        s_add_u32 s67, s67, 512
        s_nop 15""")
        for r in range(0, 16, 2): s(f"v_max3_f32 v88, v88, v{S0+r}, v{S0+r+1}")
        s(f"""s_sub_u32 s69, s69, 1
        s_cmp_lg_u32 s69, 0
        s_cbranch_scc1 {s.ln(l1)}
        v_mov_b32 v89, v88
        s_nop 1
        v_permlane32_swap_b32 v88, v89
        s_nop 1
        v_max_f32 v88, v88, v89
        v_mul_u32_u24 v89, 320, v24
        v_lshl_add_u32 v89, v23, 4, v89""")
        for r in range(16): s(f"v_sub_f32 v{C+r}, 0, v88\nv_mov_b32 v{O+r}, 0")
        for r in range(4): s(f"v_mov_b32 v{V0+r}, 0x3f803f80\nv_mov_b32 v{V1+r}, 0x3f803f80")
        s(f"""s_mov_b32 s67, s{sKB}
        s_mov_b32 s68, s{sVB}
        s_mov_b32 s69, 64
        s_mov_b32 s74, 0xfffff
        s_mov_b32 s75, 0xfffff""")
        s.lab(l2)
        s(ldk)
        s(f"""s_mov_b64 exec, s[74:75]
        buffer_load_dwordx4 {vr(V0,4)}, v89, {srd(sWS)}, s68 offen sc1
        buffer_load_dwordx4 {vr(V1,4)}, v89, {srd(sWS)}, s68 offen offset:640 sc1
        s_mov_b64 exec, -1
        s_waitcnt vmcnt(0)
        v_mfma_f32_32x32x16_bf16 {vr(S0,16)}, {vr(K1,4)}, {vr(Q1,4)}, {vr(C,16)}
        v_mfma_f32_32x32x8_bf16 {vr(S0,16)}, {vr(K2,2)}, {vr(Q2,2)}, {vr(S0,16)}
        s_add_u32 s67, s67, 512
        s_add_u32 s68, s68, 1280
        s_nop 15""")
        for r in range(16): s(f"v_exp_f32 v{S0+r}, v{S0+r}")
        s(f"""s_nop 1
        v_smfmac_f32_32x32x32_bf16 {vr(O,16)}, {vr(V0,4)}, {vr(S0,8)}, v{vIDX}
        v_smfmac_f32_32x32x32_bf16 {vr(O,16)}, {vr(V1,4)}, {vr(S0+8,8)}, v{vIDX}
        s_sub_u32 s69, s69, 1
        s_cmp_lg_u32 s69, 0
        s_nop 7
        s_cbranch_scc1 {s.ln(l2)}
        s_nop 15
        v_cndmask_b32 v87, v{O+8}, v{O+12}, s[72:73]
        s_branch {s.ln(norm)}""")

    def gfront(s):
        sJ = 48
        s(f"s_setprio {s.opt.get('lnp', 3)}\ns_sub_u32 s{sJ}, s{sW}, 8")
        s.ln_loads(sJ)
        s(f"""v_lshlrev_b32 v1, 2, v0
        v_add_u32 v1, {SYN}, v1
        v_mov_b32 v2, 0
        ds_write_b32 v1, v2""")
        if s.opt.get('noln'):
            s('s_barrier'); s.gtiles(sJ); s.nb = 1
        else: s.nb = s.layernorm(sJ)

    def grole(s):
        sJ = 48
        pre = s.gsetup(sJ)
        nb = s.nb
        assert nb <= s.opt.get('th', 7)
        s("s_setprio 0")
        lines = "\n".join(pre).split("\n")
        k = 11 - nb
        per = -(-len(lines) // k)
        for q in range(k):
            s("\n".join(lines[q*per:(q+1)*per])); s("s_barrier")
        s.stamp(2)
        s.gsync_n = 0
        s.gemm1(sJ)
        s.gemm2(sJ)

    def gtiles(s, sJ):
        s(f"""s_and_b32 s50, s{sXC}, 3
        s_lshl_b32 s51, s{sF1}, 2
        s_and_b32 s54, s{sJ}, 2
        s_add_u32 s51, s51, s54
        s_lshr_b32 s54, s50, 1
        s_add_u32 s51, s51, s54
        s_lshl_b32 s52, s{sD1}, 1
        s_and_b32 s54, s{sJ}, 1
        s_add_u32 s52, s52, s54
        s_lshl_b32 s52, s52, 1
        s_and_b32 s54, s50, 1
        s_add_u32 s52, s52, s54
        s_lshl_b32 s62, s{sXC}, 2
        s_and_b32 s54, s{sI}, 3
        s_add_u32 s62, s62, s54
        s_lshr_b32 s63, s{sI}, 2
        s_lshl_b32 s66, s62, 6
        s_lshl_b32 s54, s{sJ}, 4
        s_add_u32 s66, s66, s54
        s_lshl_b32 s54, s51, 6
        v_lshrrev_b32 v1, 4, v0
        v_lshl_add_u32 v1, v1, 3, s54
        v_and_b32 v2, 15, v0
        v_add_lshl_u32 v2, s66, v2, 1""")
        for q in range(2):
            s(f"global_load_dwordx2 {vr(54+2*q,2)}, v1, s[{sB1}:{sB1+1}] offset:{32*q}")
        s(f"global_load_ushort v62, v2, s[{sB2}:{sB2+1}]")

    def gsetup(s, sJ):
        B = []
        B.append(f"""s_mul_i32 s49, s{sJ}, {GREG}
        s_lshl_b32 s54, s{sJ}, 2
        s_add_u32 s54, s54, {SY_PG}
        v_mov_b32 v160, s54
        v_lshrrev_b32 v48, 4, v0
        v_and_b32 v49, 15, v0
        v_lshrrev_b32 v50, 5, v0
        v_and_b32 v51, 31, v0
        v_and_b32 v52, 3, v0
        v_bfe_u32 v53, v0, 2, 2
        v_lshlrev_b32 v161, 2, v52
        v_add_u32 v161, {SY_PG}, v161
        v_mov_b32 v164, {SYN}
        v_lshrrev_b32 v30, 3, v0
        v_and_b32 v31, 7, v0
        v_lshlrev_b32 v13, 1, v48
        v_xor_b32 v13, v13, v31
        v_lshlrev_b32 v30, 12, v30
        v_lshl_add_u32 v13, v13, 4, v30""")
        B.append(f"""s_mul_i32 s64, s{sJ}, {384*4096}
        s_lshl_b32 s54, s62, 7
        s_add_u32 s64, s64, s54
        s_mul_i32 s65, s{sJ}, {48*10240}
        s_mul_i32 s54, s63, 1280
        s_add_u32 s65, s65, s54
        s_add_u32 s65, s65, {UI}
        v_mul_u32_u24 v14, 10240, v48
        v_lshl_add_u32 v14, v49, 4, v14
        v_bfe_u32 v30, v0, 2, 3
        v_lshrrev_b32 v31, 2, v0
        v_lshlrev_b32 v31, 7, v31
        v_lshl_add_u32 v31, v52, 3, v31
        v_add_u32 v31, s49, v31
        v_lshrrev_b32 v32, 1, v30
        v_xor_b32 v32, s{sJ}, v32
        """ + "\n".join(f"v_xor_b32 v33, {si}, v32\nv_lshl_add_u32 v{15+si}, v33, 5, v31" for si in range(4)) + f"""
        v_lshlrev_b32 v12, 15, v48
        v_lshl_add_u32 v12, v49, 4, v12
        v_add_u32 v19, s66, v49
        v_mul_u32_u24 v19, 1280, v19
        v_lshl_add_u32 v19, v48, 3, v19""")
        B.append("\n".join(f"""v_add_u32 v31, {64*m}, v0
            v_mul_u32_u24 v32, 6554, v31
            v_lshrrev_b32 v32, 16, v32
            v_mul_u32_u24 v32, {1280-160}, v32
            v_lshl_add_u32 v{1+m}, v31, 4, v32""" for m in range(5)))
        B.append(f"""v_mul_u32_u24 v31, 20, v50
        v_add_u32 v31, v31, v30
        v_mul_u32_u24 v31, 160, v31
        v_lshl_add_u32 v6, v52, 3, v31
        v_add_u32 v7, 51200, v6
        v_mul_u32_u24 v31, 40, v48
        v_add_u32 v31, v31, v53
        v_add_u32 v31, 16, v31
        v_mul_u32_u24 v31, 160, v31
        v_lshl_add_u32 v31, v52, 3, v31
        v_and_b32 v32, 1, v48
        v_mul_u32_u24 v32, 3200, v32
        v_sub_u32 v9, v31, v32
        v_add_u32 v9, 3200, v9
        v_add_u32 v8, v31, v32
        v_add_u32 v10, 51200, v8
        v_add_u32 v11, 51200, v9""")
        B.append("s_and_b32 s54, s52, 3\ns_lshl_b32 s54, s54, 1\n" + s.tr_addr(24, 0x10000, 54, 32, 33))
        B.append("s_xor_b32 s54, s52, s51\ns_and_b32 s54, s54, 3\ns_lshl_b32 s54, s54, 6\ns_add_u32 s54, s54, 16384\n" + "\n".join(f"v_xor_b32 v{28+k}, s54, v{24+k}" for k in range(4)))
        B.append("\n".join(f"v_pk_mov_b32 {vr(r,2)}, 0, 0" for r in range(80, 128, 2)))
        B.append("s_waitcnt vmcnt(0)\n" + "\n".join(f"v_lshlrev_b32 v{64+2*q}, 16, v{54+q%4}\nv_and_b32 v{65+2*q}, 0xffff0000, v{54+q%4}" for q in range(8)) + "\nv_lshlrev_b32 v20, 16, v62")
        return B

    def xaddr(s, sJ, vw, vr0):
        s(f"v_lshlrev_b32 v{vw}, 4, v0")
        for n in range(1, 4):
            s(f"s_xor_b32 s54, s{sJ}, {n}\ns_mul_i32 s54, s54, {GREG}\ns_add_u32 s54, s54, {(n-1)*4096}\nv_add_u32 v{vr0+n-1}, s54, v{vw}")
        s(f"v_add_u32 v{vw}, s49, v{vw}")

    def gpost(s):
        s.gsync_n += 1
        s(f"s_waitcnt lgkmcnt(0)\nv_mov_b32 v162, {s.gsync_n}\nds_write_b32 v160, v162")
    def gwait(s, sleep=2):
        s.lds_spin(161, s.gsync_n, 163, sleep=sleep)

    def ln_loads(s, sJ):
        X = (8, 13); GWR = 18
        s(f"""s_and_b32 s67, s{sXC}, 3
        s_lshl_b32 s67, s67, 6
        s_lshr_b32 s68, s{sXC}, 2
        s_lshl_b32 s68, s68, 5
        s_add_u32 s67, s67, s68
        s_add_u32 s67, s67, s{sI}
        s_lshl_b32 s68, s67, 3
        s_lshl_b32 s69, s{sJ}, 1
        s_add_u32 s68, s68, s69
        s_mul_i32 s69, s68, 1280
        v_and_b32 v1, 31, v0
        v_lshrrev_b32 v3, 5, v0
        v_lshlrev_b32 v2, 3, v1
        v_lshlrev_b32 v1, 4, v1
        v_mul_u32_u24 v19, 1280, v3
        v_add_u32 v18, v19, v1
        v_add_u32 v19, v19, v2""")
        s.kwait()
        if s.opt.get('noln'): return
        s(f"""buffer_load_dwordx4 v[8:11], v18, {srd(sX)}, s69 offen
        buffer_load_dwordx4 v[12:15], v18, {srd(sX)}, s69 offen offset:512
        buffer_load_dwordx2 v[16:17], v19, {srd(sX)}, s69 offen offset:1024
        global_load_dwordx4 v[20:23], v1, s[{sGW}:{sGW+1}]
        global_load_dwordx4 v[24:27], v1, s[{sGW}:{sGW+1}] offset:512
        global_load_dwordx2 v[28:29], v2, s[{sGW}:{sGW+1}] offset:1024""")
        if s.opt.get('wpf', 0):
            s(f"""s_mul_i32 s70, s2, 9600
            s_mul_i32 s71, s{sJ}, {19*128}
            s_add_u32 s70, s70, s71
            v_min_u32 v166, 18, v0
            v_lshlrev_b32 v166, 7, v166
            buffer_load_dword v166, v166, {srd(sWQ)}, s70 offen""")

    def layernorm(s, sJ):
        X, GW, XV = 8, 20, 32
        nb = [0]
        def bar():
            nb[0] += 1; s("s_barrier")
        gl = [(31,1,30,sDBG,"0",0)]
        s(f"""s_mov_b32 s70, 0x3f803f80
        s_lshl_b32 s55, s68, 2
        s_add_u32 s55, s55, {GI}
        s_add_u32 s69, s69, {HI}
        v_lshlrev_b32 v3, 2, v3
        v_and_b32 v30, 15, v0
        v_lshlrev_b32 v30, 2, v30""")
        if s.opt.get('lnb', 0) == 2: s("s_waitcnt lgkmcnt(0)"); bar()
        s(f"s_waitcnt vmcnt({1 if s.opt.get('wpf', 0) else 0})")
        s.stamp(1)
        for i in range(10):
            s(f"v_dot2_f32_bf16 v4, v{X+i}, s70, {'v4' if i else 0}")
            s(f"v_dot2_f32_bf16 v5, v{X+i}, v{GW+i}, {'v5' if i else 0}")
        un = []
        for i in range(10):
            un += [f"v_lshlrev_b32 v{XV+2*i}, 16, v{X+i}", f"v_and_b32 v{XV+2*i+1}, 0xffff0000, v{X+i}"]
        def fill(n):
            for _ in range(n): s(un.pop(0) if un else "s_nop 0")
        fill(3)
        for k in (8, 4, 2, 1):
            for q in (4, 5): s(f"v_add_f32_dpp v{q}, v{q}, v{q} row_ror:{k} row_mask:0xf bank_mask:0xf")
            fill(1)
        s("v_mov_b32 v6, v4\nv_mov_b32 v7, v5"); fill(2)
        s("v_permlane16_swap_b32 v4, v6\nv_permlane16_swap_b32 v5, v7"); fill(2)
        s(f"""v_add_f32 v4, v4, v6
        v_add_f32 v5, v5, v7
        v_mul_f32 v4, {fbits(-1/640)}, v4
        v_mul_f32 v5, {fbits(-math.log2(math.e))}, v5
        v_exp_f32 v5, v5""")
        fill(len(un))
        s("v_add_f32 v5, 1.0, v5\nv_rcp_f32 v2, v5")
        for e in range(0, 20, 2): s(f"v_pk_add_f32 {vr(XV+e,2)}, {vr(XV+e,2)}, v[4:5] op_sel_hi:[1,0]")
        for e in range(0, 20, 2):
            a = (6, 52)[(e >> 1) & 1]
            if e < 4: s(f"v_pk_mul_f32 {vr(a,2)}, {vr(XV+e,2)}, {vr(XV+e,2)}")
            else: s(f"v_pk_fma_f32 {vr(a,2)}, {vr(XV+e,2)}, {vr(XV+e,2)}, {vr(a,2)}")
        s("v_pk_add_f32 v[6:7], v[6:7], v[52:53]\nv_add_f32 v6, v6, v7")
        for k in (8, 4, 2, 1):
            s(f"s_nop 1\nv_add_f32_dpp v6, v6, v6 row_ror:{k} row_mask:0xf bank_mask:0xf")
        s(f"""v_mov_b32 v7, v6
        v_mov_b32 v4, {fbits(1e-5)}
        s_nop 0
        v_permlane16_swap_b32 v6, v7
        s_nop 1
        v_add_f32 v6, v6, v7
        v_fmac_f32 v4, {fbits(1/640)}, v6
        v_rsq_f32 v4, v4
        s_nop 0""")
        for e in range(0, 20, 2):
            s(f"v_pk_mul_f32 {vr(XV+e,2)}, {vr(XV+e,2)}, v[4:5] op_sel_hi:[1,0]")
        for i in range(10): s(f"v_cvt_pk_bf16_f32 v{X+i}, v{XV+2*i}, v{XV+2*i+1}")
        nx, done = s.new("g"), s.new("g")
        if s.opt.get('lnb', 0) == 1: s("s_waitcnt lgkmcnt(0)"); bar()
        s(f"""buffer_store_dwordx4 v[8:11], v18, {srd(sWS)}, s69 offen sc1
        buffer_store_dwordx4 v[12:15], v18, {srd(sWS)}, s69 offen offset:512 sc1
        buffer_store_dwordx2 v[16:17], v19, {srd(sWS)}, s69 offen offset:1024 sc1
        s_mov_b32 exec_lo, 1
        s_mov_b32 exec_hi, 1
        buffer_store_dword v2, v3, {srd(sWS)}, s55 offen sc1
        s_mov_b64 exec, -1
        s_cmp_lg_u32 s{sJ}, 0
        s_cbranch_scc1 {s.ln(nx)}""")
        s.poll_issue(gl)
        s.lab(nx)
        if s.opt.get('b0st'): s.stamp(7)
        s("s_waitcnt lgkmcnt(0)")
        for _ in range(s.opt.get('lnw', 2)): bar()
        s("s_waitcnt vmcnt(0)")
        bar()
        s(f"""s_mul_i32 s54, s67, {s.hsp}
        s_add_u32 s54, s54, {F_H}
        s_cmp_lg_u32 s{sJ}, 0
        s_cbranch_scc1 {s.ln(done)}""")
        s.poll(gl, sleep=4, pre=0)
        s.set_flag("s54", 4, 5)
        s.lab(done)
        s.gtiles(sJ)
        return nb[0]

    def gpoll(s, pre, loads, ok, sleep, lsl=4, atom=None):
        nx = s.new("gp")
        s(f"s_cmp_lg_u32 s48, 0\ns_cbranch_scc1 {s.ln(nx)}")
        for addr, need in pre: s.lds_spin(164, need, 165, off=addr-SYN, sleep=lsl)
        if loads: s.poll(loads, sleep=sleep)
        if atom: s.apoll(*atom, sleep)
        s(f"v_mov_b32 v165, 1\nds_write_b32 v164, v165 offset:{ok-SYN}")
        s.lab(nx)
        s.lds_spin(164, 1, 165, off=ok-SYN, sleep=lsl)

    def g2_dW(s, t):
        L = []
        for n in range(4):
            pre = f"s_add_u32 m0, s49, {(t%3)*4096}\ns_nop 0\n" if n == 0 else ""
            inc = 32768-1024 if n < 3 else 32768+3*1024
            L.append(pre + f"buffer_load_dwordx4 v13, {srd(sW2)}, s64 offen offset:{1024*n} lds\ns_add_u32 s64, s64, {inc}")
        return L

    def pfwo(s):
        s(f"""s_lshl_b32 s60, s{sI}, 2
        s_add_u32 s60, s60, s48
        s_mul_i32 s61, s60, 6400
        v_min_u32 v30, 49, v0
        v_lshlrev_b32 v30, 7, v30
        buffer_load_dword v167, v30, {srd(sWO)}, s61 offen""")

    def gemm1(s, sJ):
        ACC = 64
        skip, fin = s.new("g1skip"), s.new("g1fin")
        s(f"s_cmp_eq_u32 s{sCT}, 15\ns_cbranch_scc1 {s.ln(skip)}")
        reads, mf = s.gemm_ops(24, True, 28)
        s(f"s_setprio {s.opt.get('gp1', 1)}")
        for l in reads(0,0): s(l)
        s("s_mov_b32 s54, 4")
        s.gemm_loop(reads, mf, 0, range(24, 32), 54, True)
        s.stamp(3)
        if s.opt.get('dbgx') == 3: s.end_wave()
        s(f"""s_setprio 3
        s_lshl_b32 s55, s{sN1}, 2
        s_lshl_b32 s57, s{sJ}, 11
        s_add_u32 s57, s57, {PI}
        v_lshlrev_b32 v29, 4, v0""")
        s.gpost()
        hold = s.opt.get('phold', 3)
        for n in range(1, 4):
            m = (0, 2, 1, 3)[n]
            p = 32 + 8*(n-1)
            s(f"""s_xor_b32 s54, s50, {m}
            s_add_u32 s54, s54, s55
            s_mul_i32 s54, s54, 24576
            s_add_u32 s54, s54, s57
            s_add_u32 s{57+n}, s54, {(n-1)*8192}""")
            s.al8()
            for q in range(8): s(f"v_cvt_pk_bf16_f32 v{p+q}, v{ACC+16*n+2*q}, v{ACC+16*n+2*q+1}")
        if hold: s.lds_spin(164, max(1, hold-1), 165, off=(SY_QOK if hold == 1 else SY_PA)-SYN, sleep=(2 if hold < 3 else 6))
        wa, wb = s.opt.get('wa', 0), s.opt.get('wb', 1)
        s.gwait()
        s(f"s_setprio {s.opt.get('psp', 0)}")
        for n in range(1, 4):
            p = 32 + 8*(n-1)
            s(f"""buffer_store_dwordx4 {vr(p,4)}, v29, {srd(sWS)}, s{57+n} offen sc1
            buffer_store_dwordx4 {vr(p+4,4)}, v29, {srd(sWS)}, s{57+n} offen offset:1024 sc1""")
        for t in range(wa):
            for l in s.g2_dW(t): s(l)
        s(f"""s_setprio 3
        s_add_u32 s54, s55, s{sJ}
        s_mul_i32 s54, s54, {FSP}
        s_add_u32 s54, s54, {F_P}
        s_add_u32 s56, s55, s50
        s_mul_i32 s56, s56, 24576
        s_add_u32 s56, s56, s57
        s_mov_b64 exec, 1
        v_mov_b32 v30, 0
        v_mov_b32 v31, 1
        s_waitcnt vmcnt({4*wa})
        buffer_atomic_add v31, v30, {srd(sWS)}, s54 offen sc0 sc1
        s_waitcnt vmcnt(0)
        v_add_u32 v31, 1, v31""")
        s.apoll("s54", 4, 30, 31, s.opt.get('ppsl', 4), pre=True)
        s.stamp(4)
        for n in range(3):
            p = 32 + 8*n
            s(f"""buffer_load_dwordx4 {vr(p,4)}, v29, {srd(sWS)}, s56 offen sc1
            buffer_load_dwordx4 {vr(p+4,4)}, v29, {srd(sWS)}, s56 offen offset:1024 sc1
            s_add_u32 s56, s56, 8192""")
        c0 = -2*math.sqrt(2/math.pi)*math.log2(math.e); c1 = c0*0.044715
        s(f"""s_mov_b32 s56, {fbits(c1)}
        s_mov_b32 s57, {fbits(c1)}
        v_mov_b32 v56, {fbits(c0)}
        v_mov_b32 v57, {fbits(c0)}
        s_mov_b32 s60, 1.0
        s_mov_b32 s61, 1.0
        s_mov_b32 s58, 0xffff0000""")
        T = ACC + 16
        for n in range(3):
            s(f"s_waitcnt vmcnt({4-2*n})")
            if s.opt.get('gst') and n == 0: s.stamp(1)
            s.al8()
            for q in range(8):
                s(f"v_lshlrev_b32 v{T+2*q}, 16, v{32+8*n+q}\nv_and_b32 v{T+2*q+1}, s58, v{32+8*n+q}")
            for r in range(0, 16, 2): s(f"v_pk_add_f32 {vr(ACC+r,2)}, {vr(ACC+r,2)}, {vr(T+r,2)}")
        for r in range(0, 16, 2): s(f"v_pk_mul_f32 {vr(T+r,2)}, {vr(ACC+r,2)}, {vr(ACC+r,2)}")
        for r in range(0, 16, 2): s(f"v_pk_fma_f32 {vr(T+r,2)}, {vr(T+r,2)}, s[56:57], v[56:57]")
        for r in range(0, 16, 2): s(f"v_pk_mul_f32 {vr(T+r,2)}, {vr(T+r,2)}, {vr(ACC+r,2)}")
        for r in range(16): s(f"v_exp_f32 v{T+r}, v{T+r}")
        for r in range(0, 16, 2): s(f"v_pk_add_f32 {vr(T+r,2)}, {vr(T+r,2)}, s[60:61]")
        for r in range(16): s(f"v_rcp_f32 v{T+r}, v{T+r}")
        for r in range(0, 16, 2): s(f"v_pk_mul_f32 {vr(T+r,2)}, {vr(T+r,2)}, {vr(ACC+r,2)}")
        for q in range(8): s(f"v_cvt_pk_bf16_f32 v{40+q}, v{T+2*q}, v{T+2*q+1}")
        if s.opt.get('gst'): s.stamp(2)
        s(f"""s_mul_i32 s54, s51, {4*10240}
        s_lshl_b32 s57, s52, 9
        s_add_u32 s54, s54, s57
        s_add_u32 s54, s54, {UI}
        buffer_store_dwordx4 v[40:43], v14, {srd(sWS)}, s54 offen sc1
        buffer_store_dwordx4 v[44:47], v14, {srd(sWS)}, s54 offen offset:256 sc1
        """)
        if s.opt.get('gst'): s.stamp(3)
        for t in range(wa, wa+wb):
            for l in s.g2_dW(t): s(l)
        uw = s.opt.get('uw', 1); ur = s.opt.get('ur', 8)
        if uw:
            s(f"""s_mul_i32 s54, s52, 410
            s_add_u32 s58, s54, 397
            s_lshr_b32 s54, s54, 10
            s_lshr_b32 s58, s58, 10
            s_cmp_eq_u32 s54, s58
            s_mov_b32 s58, {((1 << ur) - 1) * 0x101}
            s_cmov_b32 s58, {(1 << ur) - 1}
            s_mov_b32 s59, 0
            s_mul_i32 s57, s{sF1}, 11
            s_lshr_b32 s57, s57, 5
            s_lshl_b32 s57, s57, 3
            s_add_u32 s54, s54, s57
            s_mul_i32 s54, s54, {8*FSP}
            s_add_u32 s54, s54, {F_U}
            v_mul_u32_u24 v32, {FSP}, v0
            v_mov_b32 v31, 1
            s_mov_b64 exec, s[58:59]
            s_waitcnt vmcnt({4*wb})
            buffer_atomic_add v31, v32, {srd(sWS)}, s54 offen sc1
            s_mov_b64 exec, -1""")
        else:
            s(f"""s_mul_i32 s54, s{sD1}, 13
            s_lshr_b32 s54, s54, 3
            s_mul_i32 s57, s{sF1}, 11
            s_lshr_b32 s57, s57, 5
            s_lshl_b32 s57, s57, 3
            s_add_u32 s54, s54, s57
            s_mul_i32 s54, s54, {8*FSP}
            s_add_u32 s54, s54, {F_U}
            s_bitcmp1_b32 s{sD1}, 0
            s_mov_b32 s58, 0xffff
            s_cmov_b32 s58, 0xffffff
            s_mov_b32 s59, 0
            v_mul_u32_u24 v32, {FSP}, v0""")
            s.arrive_add(SY_CU, 4, "s54", 32, "s[58:59]", 30, 31, 4*wb)
        s(f"s_branch {s.ln(fin)}")
        s.lab(skip)
        for _ in range(7): s("s_barrier")
        s("s_setprio 3")
        if s.opt.get('ldstamp'): s.end_wave()
        s.lds_spin(164, s.opt.get('skipw', 4), 165, off=SY_PA-SYN, sleep=8)
        for t in range(wa+wb):
            for l in s.g2_dW(t): s(l)
        s("s_waitcnt vmcnt(0)")
        s.lab(fin)
        s.pfwo()
        s.stamp(5)
        if s.opt.get('dbgx') or s.opt.get('ldstamp'): s.end_wave()

    def gemm2(s, sJ):
        ACC, UB, BB = 64, (24, 44), 144
        vW, vU, aT = 13, 14, 15
        sST, sDT, sOW, sOU, sTK = 62, 63, 64, 65, 66
        NS = 3
        dW = s.g2_dW
        def lU(t, rev=False):
            L = [f"buffer_load_dwordx4 {vr(UB[t&1]+4*di,4)}, v{vU}, {srd(sWS)}, s{sOU} offen offset:{256*di} sc1" for di in (range(4, -1, -1) if rev else range(5))]
            L[4] += f"\ns_add_u32 s{sOU}, s{sOU}, 40960"
            return L
        def rd(t, si):
            o = (t % NS)*4096
            return f"ds_read_b64_tr_b16 {vr(BB+4*si,2)}, v{aT+si} offset:{o}\nds_read_b64_tr_b16 {vr(BB+4*si+2,2)}, v{aT+si} offset:{o+2048}"
        def mf(t, si, di):
            d = vr(ACC+20*si+4*di,4)
            if s.opt.get('gnomf'): return "s_nop 3"
            return f"v_mfma_f32_16x16x32_bf16 {d}, {vr(UB[t&1]+4*di,4)}, {vr(BB+4*si,4)}, {d if t else 0}"
        s(f"s_setprio {s.opt.get('gp2', 0)}")
        for t in range(s.opt.get('wa', 0) + s.opt.get('wb', 1), 3):
            for l in dW(t): s(l)
            if (s.opt.get('wpre', 3) >> t) & 1: s("s_waitcnt vmcnt(0)")
        hl = [(28,1,25,sWS,"s57",0)]
        s(f"""s_setprio 3
        s_mul_i32 s55, s{sDT}, 80
        s_lshr_b32 s54, s55, 7
        s_add_u32 s55, s55, 79
        s_lshr_b32 s55, s55, 7
        s_cmp_eq_u32 s54, s55
        s_cselect_b32 s55, 12, 24
        {"s_mov_b32 s55, 36" if s.opt.get('uw', 1) else ""}
        s_lshl_b32 s54, s{sJ}, 3
        s_add_u32 s54, s54, s{sDT}
        s_lshl_b32 s54, s54, 3
        s_and_b32 s57, s{sXC}, {s.opt.get('ur', 8)-1}
        s_add_u32 s54, s54, s57
        s_mul_i32 s54, s54, {FSP}
        s_add_u32 s54, s54, {F_U}
        s_mul_i32 s57, s{sST}, {8*s.hsp}
        s_add_u32 s57, s57, {F_H}
        v_and_b32 v25, 7, v0
        v_mul_u32_u24 v25, {s.hsp}, v25""")
        s.poll_issue(hl)
        s.apoll("s54", "s55", 26, 27, s.opt.get('usl', 4))
        s.poll(hl, sleep=4, pre=0)
        s(f"""s_lshl_b32 s54, s{sTK}, 2
        s_add_u32 s54, s54, {GI}
        v_and_b32 v22, 15, v0
        v_lshlrev_b32 v22, 2, v22
        s_setprio {s.opt.get('gp2', 0)}
        buffer_load_dword v22, v22, {srd(sWS)}, s54 offen sc1""")
        s.stamp(6)
        if s.opt.get('dbgy') == 3: s.end_wave()
        for t in range(2):
            for l in lU(t): s(l)
        s("s_waitcnt vmcnt(10)")
        for si in range(4): s(rd(0, si))
        NT = 12
        s(f"""s_mul_i32 s56, s{sJ}, {160*1280}
        s_mul_i32 s54, s{sDT}, 160
        s_add_u32 s56, s56, s54""")
        def wo1(n):
            return f"s_add_u32 m0, s49, {n*1024}\ns_add_u32 s57, s56, {(n//5)*32*1280}\nbuffer_load_dwordx4 v{1+n%5}, {srd(sWO)}, s57 offen lds"
        cnt = []
        for t in range(NT):
            if t == s.opt.get('gp2t', 99): s(f"s_setprio {s.opt.get('gp2b', 0)}")
            nold = s.opt.get('gnold')
            uo = s.opt.get('uo', 1)
            if uo == 1: U = lU(t+1) if 0 < t and t+1 < NT and not nold else []
            else: U = lU(t+2) if t+2 < NT and not nold else []
            W = dW(t+3) if t+3 < NT else [wo1(4*(t-9) + q) for q in range(4)]
            if nold and t+3 < NT: W = []
            X = [wo1(18+t if t < 7 else 6+t)] + ([wo1(12)] if t == 10 else [])
            s(f"s_waitcnt vmcnt({cnt[-1] if t else 5})")
            cnt.append((0 if uo == 1 else len(U)) + len(W) + len(X))
            if t == 9: s.gpost()
            for si in range(4):
                s(f"s_waitcnt lgkmcnt({6 if t+1 < NT else 2*(3-si)})")
                for di in range(5):
                    s(mf(t, si, di if si % 2 == 0 or not s.opt.get('serp', 1) else 4-di))
                    if si == 3 and di < len(W): s(W[di])
                    if si == (2 if uo == 1 else 1) and di < len(X): s(X[di])
                    if uo == 1 and si == 0 and U: s(U[di])
                    if uo == 2 and si == 3 and U: s(lU(t+2, True)[di])
                if t+1 < NT: s(rd(t+1, si))
            if uo == 0:
                for l in U: s(l)
        s.stamp(7)
        if s.opt.get('dbgy') == 1: s.end_wave()
        s("s_setprio 3")
        s.gwait(1)
        ORD = [3, 7, 11, 15] + [t for t in range(20) if t % 4 != 3 or t > 15]
        OB = 64; AC = 24
        FX = s.opt.get('fx', 11)
        FB = [44, 48, 52, 56, 60, 144, 148, 152, 156] + [100 + 4*q for q in range(FX)]; NB = len(FB)
        def rdf(n):
            t, di = divmod(n, 5); b = FB[n % NB]; t = ORD[t]
            if t < 16:
                a = 6 if t < 8 else 7; o = (t % 8)*6400 + 32*di
                return f"ds_read_b64_tr_b16 {vr(b,2)}, v{a} offset:{o}\nds_read_b64_tr_b16 {vr(b+2,2)}, v{a} offset:{o+1280}"
            tp = t-16; a = 8 if tp < 2 else 10; o = (tp % 2)*25600 + 32*di
            return f"ds_read_b64_tr_b16 {vr(b,2)}, v{a} offset:{o}\nds_read_b64_tr_b16 {vr(b+2,2)}, v{a+1} offset:{o}"
        FD = s.opt.get('fd', 9)
        for n in range(FD): s(rdf(n))
        s(f"""v_lshlrev_b32 v13, 4, v0
        s_mul_i32 s54, s{sJ}, 15360
        s_add_u32 s54, s54, {XB}
        v_add_u32 v1, s54, v13
        s_add_u32 s54, s54, 14336
        s_cmp_eq_u32 s{sJ}, 3
        s_cselect_b32 s54, 19200, s54
        v_add_u32 v2, s54, v13""")
        for n in range(1, 4):
            s(f"s_xor_b32 s54, s{sJ}, {n}\ns_mul_i32 s54, s54, 15360\ns_add_u32 s54, s54, {XB + (n-1)*5120}\nv_add_u32 v{2+n}, s54, v13")
        s(f"""s_add_u32 s54, s54, 4096
        s_cmp_eq_u32 s{sJ}, 0
        s_cselect_b32 s54, 19200, s54
        v_add_u32 v13, s54, v13
        v_and_b32 v14, 7, v0
        v_lshlrev_b32 v14, 2, v14
        v_add_u32 v14, {SY_PA}, v14
        v_sub_f32 v22, 1.0, v22
        v_mul_f32 v20, v20, v22
        s_lshl_b32 s56, s{sTK}, 4
        s_add_u32 s56, s56, {OI}
        s_lshr_b32 s54, s{sTK}, 5
        s_lshl_b32 s54, s54, 8
        s_add_u32 s54, s54, {F_O}""")
        s.gpost()
        if s.opt.get('tst'): s.stamp(3)
        s.lds_spin(14, 17, 165, sleep=8)
        s.lds_spin(14, 20, 165, sleep=s.opt.get('esl', 1))
        if s.opt.get('tst'): s.stamp(4)
        for n in range(1, 4):
            for q in range(5):
                e = 5*(n-1) + q
                if e < 14: s(f"ds_write_b128 v1, {vr(ACC+20*n+4*q,4)} offset:{1024*e}")
                else:
                    s.gwait(0)
                    s(f"ds_write_b128 v2, {vr(ACC+20*n+4*q,4)}")
        s("s_waitcnt vmcnt(0)")
        s.gpost()
        ope = s.opt.get('ope', 1)
        if ope == 2: s.apoll_issue("s54", 15, 16); s("s_mov_b64 exec, -1")
        s.gwait(0)
        if ope == 1: s.apoll_issue("s54", 15, 16); s("s_mov_b64 exec, -1")
        if s.opt.get('tst'): s.stamp(5)
        for n in range(1, 4):
            for q in range(5):
                if (n, q) != (3, 4): s(f"ds_read_b128 {vr(ACC+20*n+4*q,4)}, v{2+n} offset:{1024*q}")
                else: s(f"ds_read_b128 {vr(ACC+20*n+4*q,4)}, v13")
        for n in range(1, 4):
            s(f"s_waitcnt lgkmcnt({5*(3-n)})"); s.al8()
            for r in range(0, 20, 2): s(f"v_pk_add_f32 {vr(ACC+r,2)}, {vr(ACC+r,2)}, {vr(ACC+20*n+r,2)}")
        for r in range(0, 20, 2): s(f"v_pk_fma_f32 {vr(AC+r,2)}, {vr(ACC+r,2)}, v[22:23], v[20:21] op_sel_hi:[1,0,0]")
        for n in range(FD, FD+FX): s(rdf(n))
        if s.opt.get('tst'): s.stamp(6)
        s.apoll("s54", 32, 15, 16, s.opt.get('osl', 2), pre=bool(ope))
        s.stamp(8)
        if s.opt.get('dbgy') == 2: s.end_wave()
        def lO(t): return f"s_add_u32 s57, s56, {ORD[t]*131072}\nbuffer_load_dwordx4 {vr(OB+4*(t % NO),4)}, v12, {srd(sWS)}, s57 offen sc1"
        PD = s.opt.get('opd', 8); NO = 9 if FX else 20
        assert PD < NO
        for t in range(PD): s(lO(t))
        if s.opt.get('om', 1):
            s(f"""s_xor_b32 s55, s{sJ}, 1
            s_mul_i32 s55, s55, 15360
            s_add_u32 s55, s55, {XB}
            v_and_b32 v17, 15, v0
            v_mul_u32_u24 v17, 160, v17
            v_lshrrev_b32 v18, 4, v0
            v_lshl_add_u32 v17, v18, 3, v17
            v_add_u32 v17, s55, v17
            v_lshlrev_b32 v18, 4, v0
            v_add_u32 v18, s55, v18""")
            for m in range(3):
                s(f"""v_add_u32 v1, {64*m}, v0
                v_mul_u32_u24 v2, 6554, v1
                v_lshrrev_b32 v2, 16, v2
                v_mul_u32_u24 v2, {1280-160}, v2
                v_lshl_add_u32 v{13+m}, v1, 4, v2""")
        F0 = FD + FX
        pos = {n: ((n-F0)*(99-FD))//(99-F0) for n in range(F0, 100)}
        issued = []
        if FX: s("s_waitcnt lgkmcnt(0)")
        for n in range(100):
            t, di = divmod(n, 5)
            w = []
            if di == 0: w.append(f"vmcnt({min(PD-1, 19-t)})")
            wg = {0: (1,1,1,1,1), 1: (3,0,0,2,0), 2: (2,0,2,0,1), 3: (5,0,0,0,0)}[s.opt.get('wg', 1)][di]
            last = n+wg-1
            if wg and last >= F0:
                assert last in issued
                w.append(f"lgkmcnt({min(15, 2*(len(issued)-1-issued.index(last)))})")
            if w: s("s_waitcnt " + " ".join(w))
            if s.opt.get('wst') and n in (0, 25, 50, 75, 99): s.stamp(3 + (n+1)//25)
            d = vr(AC+4*di,4)
            s(f"v_mfma_f32_16x16x32_bf16 {d}, {vr(FB[n % NB],4)}, {vr(OB+4*(t % NO),4)}, {d}")
            for k in sorted(pos):
                if pos[k] == n:
                    assert k - NB <= n
                    s(rdf(k)); issued.append(k)
            if di == 4 and t+PD < 20: s(lO(t+PD))
        osc = ("", " sc1", " nt", " sc0 sc1", " sc1 nt")[s.opt.get('osc', 0)]
        om = s.opt.get('om', 1)
        s(f"s_mul_i32 s54, s{sDT}, 160\ns_nop 7")
        if om == 0:
            for di in range(5):
                s(f"""v_cvt_pk_bf16_f32 v{2+2*di}, v{AC+4*di}, v{AC+4*di+1}
                v_cvt_pk_bf16_f32 v{3+2*di}, v{AC+4*di+2}, v{AC+4*di+3}
                buffer_store_dwordx2 {vr(2+2*di,2)}, v19, {srd(sOUT)}, s54 offen offset:{32*di}{osc}""")
        else:
            for di in range(5):
                s(f"""v_cvt_pk_bf16_f32 v{2+2*di}, v{AC+4*di}, v{AC+4*di+1}
                v_cvt_pk_bf16_f32 v{3+2*di}, v{AC+4*di+2}, v{AC+4*di+3}
                ds_write_b64 v17, {vr(2+2*di,2)} offset:{32*di}""")
            s(f"s_mul_i32 s55, s{sTK}, 1280\ns_add_u32 s54, s54, s55")
            for m in range(3): s(f"ds_read_b128 {vr(44+4*m,4)}, v18 offset:{1024*m}")
            for m in range(3):
                if m == 2: s("s_mov_b32 exec_hi, 0")
                s(f"s_waitcnt lgkmcnt({2-m})\nbuffer_store_dwordx4 {vr(44+4*m,4)}, v{13+m}, {srd(sOUT)}, s54 offen{osc}")

    def text(s):
        s.prologue()
        head = f".globl {s.k}\n.p2align 8\n.type {s.k},@function\n{s.k}:\n"
        return head + "\n".join(s.L) + "\n"

def kd(k):
    return f""".amdhsa_kernel {k}
  .amdhsa_next_free_vgpr 168
  .amdhsa_next_free_sgpr 102
  .amdhsa_accum_offset 168
  .amdhsa_group_segment_fixed_size 0
  .amdhsa_kernarg_size 96
  .amdhsa_user_sgpr_count 2
  .amdhsa_user_sgpr_kernarg_segment_ptr 1
  .amdhsa_system_sgpr_workgroup_id_x 1
.end_amdhsa_kernel
"""

def build(mode="fused", stamps=False, opt=None):
    k = NAME + "_kernel"
    out = f"; @launch grid=(256,1,1) block=(768,1,1) lds={LDS_BYTES}\n"
    out += '.amdgcn_target "amdgcn-amd-amdhsa--gfx950"\n.text\ncode_begin:\n'
    out += Gen(k, stamps, opt).text()
    out += 'code_end:\n.section .rodata,"a"\n.p2align 6\n' + kd(k)
    return out

if __name__ == "__main__":
    mode = sys.argv[1] if len(sys.argv) > 1 else "fused"
    stamps = "stamp" in sys.argv[2]
    opt = {}
    for a in sys.argv[3:]:
        k, v = a.split("="); opt[k] = int(v)
    open(sys.argv[2], "w").write(build(mode, stamps, opt))
```

```python
import sys, math, struct

NAME = "gated_mix__mha_block__mixer_token_mlp__prompt"

QI = 0x000000
KI = 0x280000
VI = 0x500000
HI = 0x780000
UI = 0xA00000
OI = 0xC00000
GI = 0xE80000
FL = 0xE90000
FSP = 64
F_P = FL
F_H = FL + 15360
F_U = FL + 0x4000
F_O = FL + 0x8000
F_Q = FL + 0xC000
FL_BYTES = 0x14000
HSP = 4
STAMP = 0xF00000
PI = 0x1000000
WS_BYTES = 0x1800000

GREG = 25600
XB = 102400
KVB = 117504
KVS = 11520
LNS = 148480
SYN = 163584
SY_PA = SYN
SY_PG = SYN + 32
SY_QOK = SYN + 52
SY_POK = SYN + 56
SY_UOK = SYN + 60
SY_OOK = SYN + 64
SY_CQ = SYN + 68
SY_CU = SYN + 72
SY_CO = SYN + 76
SY_CP = SYN + 80
DUMMY = 163328
LDS_BYTES = 163840

SPIN_LIMIT = 200000

def fbits(x):
    return "0x%08x" % struct.unpack("<I", struct.pack("<f", x))[0]

sX, sWQ, sWO, sW1, sW2, sWS, sOUT, sDBG = 4, 8, 12, 16, 20, 24, 28, 32
sB1, sB2, sGW = 36, 38, 40
sW, sXC, sI = 42, 43, 44
sSPIN = 45
sRT, sCT = 46, 47
sN1, sD1, sF1 = 3, 100, 101
def srd(n): return f"s[{n}:{n+3}]"
def vr(a, n): return f"v[{a}:{a+n-1}]" if n > 1 else f"v{a}"

class Gen:
    def __init__(s, kname, stamps=False, opt=None):
        s.L = []
        s.k = kname
        s.stamps = stamps
        s.uid = 0
        s.cold = []
        s.opt = opt or {}
        s.hsp = s.opt.get('hsp', HSP)
    def __call__(s, t):
        for l in t.split("\n"):
            l = l.strip()
            if l: s.L.append("    " + l)
    def al8(s):
        if s.opt.get('al8', 1): s.L.append(".p2align 3")
    def lab(s, n):
        s.L.append(f"{s.k}_{n}:")
    def ln(s, n):
        return f"{s.k}_{n}"
    def new(s, base):
        s.uid += 1
        return f"{base}{s.uid}"
    def stamp(s, i):
        if s.stamps:
            s(f"s_memrealtime s[76:77]\ns_memtime s[78:79]\ns_waitcnt lgkmcnt(0)\ns_mov_b32 s{80+2*i}, s76\ns_mov_b32 s{81+2*i}, s78")
    def end_wave(s):
        if 'probe' in s.opt:
            k = s.opt['probe'] % 10; w = s.opt['probe'] // 10
            s.stamp(9)
            lp, nx = s.new("pr"), s.new("pr")
            s(f"""s_cmp_lg_u32 s2, {s.opt.get('pwg', 100)}
            s_cbranch_scc1 {s.ln(nx)}
            s_cmp_lg_u32 s{sW}, {w}
            s_cbranch_scc1 {s.ln(nx)}
            s_add_u32 s46, s{80+2*k}, 10000""")
            s.lab(lp)
            s(f"""s_memrealtime s[76:77]
            s_waitcnt lgkmcnt(0)
            s_sub_u32 s47, s76, s46
            s_cmp_lt_i32 s47, 0
            s_cbranch_scc1 {s.ln(lp)}""")
            s.lab(nx)
            s("s_endpgm")
            return
        if s.stamps:
            s.stamp(9)
            s(f"s_mul_i32 s46, s2, 12\ns_add_u32 s46, s46, s{sW}\ns_lshl_b32 s46, s46, 7\ns_add_u32 s46, s46, {STAMP}")
            s("s_mov_b64 exec, -1\nv_lshlrev_b32 v1, 2, v0\nv_mov_b32 v2, 0")
            for i in range(20): s(f"v_writelane_b32 v2, s{80+i}, {i}")
            s(f"s_mov_b32 exec_hi, 0\nbuffer_store_dword v2, v1, {srd(sWS)}, s46 offen")
        s("s_endpgm")

    def lds_spin(s, vaddr, need, vtmp, off=0, sleep=1):
        a, b = s.new("spin"), s.new("spind")
        s(f"s_mov_b32 s{sSPIN}, {SPIN_LIMIT*4}")
        s.lab(a)
        s(f"""ds_read_b32 v{vtmp}, v{vaddr} offset:{off}
        s_waitcnt lgkmcnt(0)
        v_cmp_gt_u32 vcc, {need}, v{vtmp}
        s_cbranch_vccz {s.ln(b)}
        s_sleep {sleep}
        s_sub_u32 s{sSPIN}, s{sSPIN}, 1
        s_cbranch_scc0 {s.ln(a)}""")
        s.lab(b)

    def spin_ool(s, vaddr, need, vtmp, off=0, sleep=0):
        out, back = s.new("ool"), s.new("back")
        s(f"s_cbranch_vccnz {s.ln(out)}")
        s.lab(back)
        keep = s.L; s.L = []
        s.lab(out)
        s.lds_spin(vaddr, need, vtmp, off=off, sleep=sleep)
        s(f"s_branch {s.ln(back)}")
        s.cold += s.L; s.L = keep
    def flush_cold(s):
        s.L += s.cold; s.cold = []

    def poll_issue(s, loads):
        regs = []
        for (vd, n, vo, r, so, imm) in loads:
            sfx = {1: "dword", 2: "dwordx2", 4: "dwordx4"}[n]
            s(f"buffer_load_{sfx} {vr(vd,n)}, v{vo}, {srd(r)}, {so} offen offset:{imm} sc1")
            regs += list(range(vd, vd+n))
        return regs
    def poll(s, loads, sleep=2, pre=None):
        a, b, c = s.new("poll"), s.new("polld"), s.new("pollc")
        s(f"s_mov_b32 s{sSPIN}, {SPIN_LIMIT}")
        if pre is not None: s(f"s_waitcnt vmcnt({pre})\ns_branch {s.ln(c)}")
        s.lab(a)
        regs = s.poll_issue(loads)
        s("s_waitcnt vmcnt(0)")
        s.lab(c)
        for q in regs[1:]:
            s(f"v_min_u32 v{regs[0]}, v{regs[0]}, v{q}")
        s(f"""v_cmp_eq_u32 vcc, 0, v{regs[0]}
        s_cbranch_vccz {s.ln(b)}
        s_sleep {sleep}
        s_sub_u32 s{sSPIN}, s{sSPIN}, 1
        s_cbranch_scc0 {s.ln(a)}""")
        s.lab(b)

    def set_flag(s, soff, va, vb):
        s(f"""s_mov_b64 exec, 1
        v_mov_b32 v{va}, 0
        v_mov_b32 v{vb}, 1
        buffer_store_dword v{vb}, v{va}, {srd(sWS)}, {soff} offen sc1
        s_mov_b64 exec, -1""")

    def arrive(s, cnt, n, soff, va, vb, younger=0):
        nx = s.new("arr")
        s(f"""s_mov_b64 exec, 1
        v_mov_b32 v{va}, {cnt}
        v_mov_b32 v{vb}, 1
        s_waitcnt vmcnt({younger})
        ds_add_rtn_u32 v{va}, v{va}, v{vb}
        s_waitcnt lgkmcnt(0)
        v_cmp_eq_u32 vcc, {n-1}, v{va}
        v_mov_b32 v{va}, 0
        s_cbranch_vccz {s.ln(nx)}
        buffer_store_dword v{vb}, v{va}, {srd(sWS)}, {soff} offen sc1""")
        s.lab(nx)
        s("s_mov_b64 exec, -1")

    def arrive_add(s, cnt, n, soff, voff, mask, va, vb, younger=0):
        nx = s.new("arr")
        s(f"""v_mov_b32 v{vb}, 1
        s_mov_b64 exec, 1
        v_mov_b32 v{va}, {cnt}
        s_waitcnt vmcnt({younger})
        ds_add_rtn_u32 v{va}, v{va}, v{vb}
        s_waitcnt lgkmcnt(0)
        v_cmp_eq_u32 vcc, {n-1}, v{va}
        s_cbranch_vccz {s.ln(nx)}
        s_mov_b64 exec, {mask}
        buffer_atomic_add v{vb}, v{voff}, {srd(sWS)}, {soff} offen sc1""")
        s.lab(nx)
        s("s_mov_b64 exec, -1")

    def apoll_issue(s, soff, va, vb, mask=1):
        s(f"""s_mov_b64 exec, {mask}
        {f"v_mov_b32 v{va}, 0" if mask == 1 else ""}
        v_mov_b32 v{vb}, 0
        buffer_atomic_add v{vb}, v{va}, {srd(sWS)}, {soff} offen sc0 sc1""")
    def apoll(s, soff, need, va, vb, sleep, pre=False, mask=1):
        a, b, c = s.new("apoll"), s.new("apolld"), s.new("apollc")
        s(f"s_mov_b32 s{sSPIN}, {SPIN_LIMIT}")
        if pre: s(f"s_mov_b64 exec, {mask}\ns_branch {s.ln(c)}")
        s.lab(a)
        s.apoll_issue(soff, va, vb, mask)
        s.lab(c)
        s(f"""s_waitcnt vmcnt(0)
        v_cmp_gt_u32 vcc, {need}, v{vb}
        s_cbranch_vccz {s.ln(b)}
        s_sleep {sleep}
        s_sub_u32 s{sSPIN}, s{sSPIN}, 1
        s_cbranch_scc0 {s.ln(a)}""")
        s.lab(b)
        s("s_mov_b64 exec, -1")

    def lds_set(s, addr, val, va, vb):
        s(f"""v_mov_b32 v{va}, {addr}
        v_mov_b32 v{vb}, {val}
        ds_write_b32 v{va}, v{vb}""")

    def kwait(s):
        s("s_waitcnt lgkmcnt(0)")
        if s.stamps: s("s_mov_b32 s80, s76\ns_mov_b32 s81, s78")

    def prologue(s):
        c0 = s.opt.get('c0', 16)
        if c0: s(f"s_getpc_b64 s[4:5]\nv_and_b32 v1, {c0-1}, v0\nv_lshlrev_b32 v1, 7, v1\nglobal_load_dword v167, v1, s[4:5]".replace("s[4:5]", "s[50:51]"))
        if s.stamps: s("s_memrealtime s[76:77]\ns_memtime s[78:79]")
        s(f"s_cmp_ge_u32 s2, 256\ns_cbranch_scc1 {s.ln('exit')}")
        for reg, off in ((sX,0),(sWS,88)):
            s(f"s_load_dwordx2 s[{reg}:{reg+1}], s[0:1], {off}")
        s(f"s_lshr_b32 s{sI}, s2, 3")
        if s.opt.get('cpf', 1): s.code_prefetch()
        for reg, off in ((sWQ,8),(sGW,64),(sDBG,80),(sW1,32),(sW2,48),(sWO,16),(sOUT,72),(sB1,40),(sB2,56)):
            s(f"s_load_dwordx2 s[{reg}:{reg+1}], s[0:1], {off}")
        s("v_lshrrev_b32 v1, 6, v0\nv_and_b32 v0, 63, v0")
        s(f"v_readfirstlane_b32 s{sW}, v1")
        s(f"s_mov_b32 s{sX+3}, 0x00020000")
        for reg, n in ((sX,2621440),(sWQ,2457600),(sWO,819200),(sW1,6291456),(sW2,f"s{sW1+2}"),(sWS,WS_BYTES),(sOUT,f"s{sX+2}"),(sDBG,256)):
            s(f"s_mov_b32 s{reg+2}, {n}")
            if reg != sX: s(f"s_mov_b32 s{reg+3}, s{sX+3}")
        xm = s.opt.get('xm', 0)
        if xm == 0: s(f"s_and_b32 s{sXC}, s2, 7")
        else:
            s(f"s_bfe_u32 s{sXC}, s2, 0x20001\ns_and_b32 s48, s2, 1")
            if xm == 2: s("s_xor_b32 s48, s48, 1")
            s(f"s_lshl_b32 s48, s48, 2\ns_or_b32 s{sXC}, s{sXC}, s48")
        if s.stamps:
            for i in range(1, 10): s(f"s_mov_b32 s{80+2*i}, 0")
        s(f"""s_and_b32 s{sRT}, s{sXC}, 3
        s_lshl_b32 s{sRT}, s{sRT}, 2
        s_and_b32 s48, s{sI}, 3
        s_add_u32 s{sRT}, s{sRT}, s48
        s_lshr_b32 s49, s{sXC}, 2
        s_lshl_b32 s{sCT}, s49, 3
        s_lshr_b32 s48, s{sI}, 2
        s_add_u32 s{sCT}, s{sCT}, s48
        s_lshl_b32 s{sN1}, s49, 5
        s_add_u32 s{sN1}, s{sN1}, s{sI}
        s_min_u32 s{sN1}, s{sN1}, 59
        s_mul_i32 s{sF1}, s{sN1}, 52
        s_lshr_b32 s{sF1}, s{sF1}, 8
        s_mul_i32 s48, s{sF1}, 5
        s_sub_u32 s{sD1}, s{sN1}, s48
        s_cmp_ge_u32 s{sW}, 8
        s_cbranch_scc1 {s.ln('grole')}
        s_cmp_eq_u32 s{sCT}, 15
        s_cbranch_scc1 {s.ln('idle')}
        s_cmp_lt_u32 s{sW}, 4
        s_cbranch_scc1 {s.ln('qkv_comp')}""")
        s.loader()
        s(f"s_branch {s.ln('att')}")
        s.lab("idle")
        s.kwait()
        nx = s.new("idle")
        s(f"""s_cmp_lg_u32 s{sW}, 0
        s_cbranch_scc1 {s.ln(nx)}
        v_lshlrev_b32 v1, 4, v0
        v_mov_b32 v4, 0
        v_mov_b32 v5, 0
        v_mov_b32 v6, 0
        v_mov_b32 v7, 0
        s_mul_i32 s52, s{sRT}, {FL_BYTES//16}
        s_add_u32 s52, s52, {FL}""")
        for n in range(FL_BYTES//16384):
            s(f"buffer_store_dwordx4 v[4:7], v1, {srd(sWS)}, s52 offen offset:{(n&3)*1024} sc1")
            if n & 3 == 3: s("s_add_u32 s52, s52, 4096")
        s(f"""s_lshl_b32 s52, s{sRT}, 2
        s_mov_b64 exec, 1
        s_waitcnt vmcnt(0)
        v_mov_b32 v5, 1
        buffer_store_dword v5, v4, {srd(sDBG)}, s52 offen sc1
        s_mov_b64 exec, -1""")
        s.lab(nx)
        s.att_vsetup()
        ipf = s.opt.get('ipf', 0)
        hi = s.new("idle")
        s(f"s_cmp_ge_u32 s{sW}, 4\ns_cbranch_scc1 {s.ln(hi)}")
        for _ in range(15): s("s_barrier")
        s(f"s_branch {s.ln('att')}")
        s.lab(hi)
        if ipf:
            s(f"""v_min_u32 v32, 59, v0
            v_mul_u32_u24 v33, {-(-65536//12)}, v32
            v_lshrrev_b32 v33, 16, v33
            v_mul_u32_u24 v34, {3072 - 12*128}, v33
            v_lshl_add_u32 v32, v32, 7, v34
            s_and_b32 s52, s{sI}, 3
            s_lshl_b32 s52, s52, 2
            s_add_u32 s52, s52, s{sW}
            s_sub_u32 s52, s52, 4
            s_mul_i32 s52, s52, 5
            s_and_b32 s53, s{sXC}, 3
            s_mul_i32 s53, s53, {512*3072}
            s_add_u32 s53, s53, 1536""")
            def pf():
                s(f"""s_min_u32 s54, s52, 507
                s_mul_i32 s54, s54, 3072
                s_add_u32 s54, s54, s53
                buffer_load_dword v166, v32, {srd(sW1)}, s54 offen
                s_add_u32 s52, s52, 80""")
            n0 = 0
            if ipf == 1: pf(); n0 += 1
            s("s_barrier")
            if ipf <= 2: pf(); n0 += 1
            for _ in range(3): s("s_barrier")
            for _ in range(n0, 7):
                s(f"s_waitcnt vmcnt({s.opt.get('ipd', 0)})"); pf()
            for _ in range(13): s("s_barrier")
        else:
            for _ in range(17): s("s_barrier")
        s(f"s_branch {s.ln('att')}")
        s.lab("qkv_comp")
        s.qkv_compute()
        s.lab("att")
        s.attention()
        s.end_wave()
        s.flush_cold()
        s.att_slow()
        s.lab("grole2")
        s.grole()
        s.end_wave()
        s.lab("exit")
        s("s_endpgm")

    def code_prefetch(s):
        here, nx = s.new("pc"), s.new("pc")
        s("s_getpc_b64 s[50:51]")
        s.lab(here)
        s(f"""s_lshl_b32 s52, s{sI}, 3
        v_cmp_gt_u32 vcc, 64, v0
        v_add_u32 v1, s52, v0
        s_movk_i32 s54, {72 if s.opt.get('cpf', 1) == 1 else 64}
        v_cmp_gt_u32 s[52:53], s54, v0
        v_cndmask_b32 v1, v1, v0, vcc
        v_lshlrev_b32 v1, 7, v1
        v_min_u32 v1, code_end-{s.ln(here)}-4, v1
        s_mov_b64 exec, s[52:53]
        s_cbranch_execz {s.ln(nx)}
        global_load_dword v165, v1, s[50:51]""")
        s.lab(nx)
        s("s_mov_b64 exec, -1")

    def loader(s):
        if s.opt.get('lprio'): s(f"s_setprio {s.opt['lprio']}")
        s(f"""s_sub_u32 s48, s{sW}, 4
        v_lshrrev_b32 v32, 3, v0
        s_lshl_b32 s49, s48, 5
        v_add_u32 v32, s49, v32
        v_mul_u32_u24 v32, 1280, v32
        v_lshrrev_b32 v33, 4, v0
        v_and_b32 v34, 7, v0
        v_xor_b32 v34, v34, v33
        v_xor_b32 v35, 4, v34
        v_lshl_add_u32 v39, v34, 4, v32
        v_lshl_add_u32 v40, v35, 4, v32
        v_add_u32 v40, {10240-1024}, v40
        v_add_u32 v41, {2*(10240-1024)}, v39
        v_add_u32 v42, {2*(10240-1024)}, v40
        s_lshl_b32 s49, s48, 4
        v_add_u32 v32, s49, v33
        v_mul_u32_u24 v32, 3840, v32
        v_lshlrev_b32 v33, 2, v33
        v_and_b32 v34, 15, v0
        v_xor_b32 v34, v34, v33
        v_lshl_add_u32 v43, v34, 4, v32
        v_add_u32 v44, {15360-1024}, v43
        v_xor_b32 v46, 32, v43
        v_add_u32 v45, {2*(15360-1024)}, v46
        v_add_u32 v46, {3*(15360-1024)}, v46
        s_mul_i32 s50, s{sRT}, {128*1280}
        s_lshl_b32 s51, s{sCT}, 8
        s_lshl_b32 s52, s48, 12""")
        nt = " nt" if s.opt.get('qnt') else ""
        rot = s.opt.get('qrot', 2)
        if rot in (1, 2):
            qr, qc, qx, qe = s.opt.get('qr', 10), s.opt.get('qc', 4), s.opt.get('qx', 2 if rot == 2 else 0), s.opt.get('qe', 0)
            s(f"""s_and_b32 s53, s{sI}, 3
            s_mul_i32 s53, s53, {qr}
            s_lshr_b32 s54, s{sI}, 2
            s_mul_i32 s54, s54, {qc}
            s_add_u32 s53, s53, s54
            s_and_b32 s54, s{sXC}, 3
            s_mul_i32 s54, s54, {qx}
            s_add_u32 s53, s53, s54""")
            if qe: s(f"s_lshr_b32 s54, s{sXC}, 2\ns_mul_i32 s54, s54, {qe}\ns_add_u32 s53, s53, s54")
            s("s_lshr_b32 s53, s53, 2")
            for _ in range((3*qr + 7*qc + 3*qx + qe)//40): s("s_cmp_ge_u32 s53, 10\ns_cselect_b32 s54, 10, 0\ns_sub_u32 s53, s53, s54")
        elif rot == 0:
            s("s_mov_b32 s53, 0")
        else:
            T = {3: ["0412385679", "1250349678", "2306145789", "3012745689"],
                 4: ["0123456789", "1230567498", "2301674589", "3012745698"],
                 5: ["0213546879", "1032457698", "0132547689", "1023456798"],
                 6: ["0216354879", "1032745698", "0132485679", "1023549678"],
                 7: ["0123456789", "1032547698", "0123456789", "1032547698"],
                 8: ["0142356879", "1023547698", "0213465789", "1302457689"]}[rot]
            def enc(o):
                v = 0
                for j, ch in enumerate(o): v |= int(ch) << (4*j)
                return v
            s(f"""s_lshr_b32 s54, s{sI}, 2
            s_add_u32 s54, s54, s{sI}
            s_bitcmp1_b32 s54, 0
            s_cselect_b32 s56, {enc(T[1]) & 0xffffffff}, {0}
            s_cselect_b32 s57, {enc(T[1]) >> 32}, {0}
            s_cselect_b32 s58, {enc(T[3]) & 0xffffffff}, {0}
            s_cselect_b32 s59, {enc(T[3]) >> 32}, {0}
            s_cselect_b32 s60, 0, {enc(T[0]) & 0xffffffff}
            s_cselect_b32 s61, 0, {enc(T[0]) >> 32}
            s_cselect_b32 s62, 0, {enc(T[2]) & 0xffffffff}
            s_cselect_b32 s63, 0, {enc(T[2]) >> 32}
            s_or_b64 s[56:57], s[56:57], s[60:61]
            s_or_b64 s[58:59], s[58:59], s[62:63]
            s_bitcmp1_b32 s54, 1
            s_cselect_b64 s[56:57], s[58:59], s[56:57]
            s_and_b32 s53, s56, 15""")
        def issue(t):
            s(f"""s_lshl_b32 s54, s53, 7
            s_add_u32 m0, s52, {(t&3)*32768}
            s_add_u32 s54, s54, s50""")
            for n in range(4):
                s(f"buffer_load_dwordx4 v{39+n}, {srd(sX)}, s54 offen offset:{1024*n}{nt} lds")
            s(f"""s_mul_i32 s54, s53, {64*3840}
            s_add_u32 m0, s52, {(t&3)*32768+16384}
            s_add_u32 s54, s54, s51""")
            for n in range(4):
                s(f"buffer_load_dwordx4 v{43+n}, {srd(sWQ)}, s54 offen offset:{1024*n}{nt} lds")
            if rot < 3: s("s_add_u32 s53, s53, 1\ns_cmp_eq_u32 s53, 10\ns_cselect_b32 s53, 0, s53")
            else: s("s_lshr_b64 s[56:57], s[56:57], 4\ns_and_b32 s53, s56, 15")
        def issue1(t):
            s(f"""s_mul_i32 s54, s53, {64*1280}
            s_add_u32 m0, s52, {(t&3)*32768}
            s_add_u32 s54, s54, s50""")
            for n in range(4):
                s(f"buffer_load_dwordx4 v{47+n}, {srd(sWS)}, s54 offen offset:{1024*n} sc1 lds")
            s(f"""s_mul_i32 s54, s53, {64*3072}
            s_add_u32 m0, s52, {(t&3)*32768+16384}
            s_add_u32 s54, s54, s51""")
            for n in range(4):
                s(f"buffer_load_dwordx4 v{51+n}, {srd(sW1)}, s54 offen offset:{1024*n} lds")
            s("s_add_u32 s53, s53, 1\ns_and_b32 s53, s53, 7")
        pfq = s.opt.get('pfq', 1)
        tpf = s.opt.get('tpf', 1)
        stag = s.opt.get('stag', 2)
        pfts = [tpf + k for k in range({0: 1, 1: 4}.get(stag, s.opt.get('nsl', 7)))] if pfq else []
        th = s.opt.get('th', 7)
        ops = []
        s.kwait()
        if s.opt.get('b0st'): s.stamp(3)
        issue(0)
        if s.opt.get('b0st'): s.stamp(4)
        npre = s.opt.get('npre', 1)
        ops += [('s', 0)]
        if npre == 2: issue(1); ops += [('s', 1)]
        if s.opt.get('b0st'): s.stamp(5)
        s(f"""v_lshrrev_b32 v33, 4, v0
        v_add_u32 v33, s49, v33
        v_mul_u32_u24 v32, 3072, v33
        v_lshl_add_u32 v51, v34, 4, v32
        v_add_u32 v52, {12288-1024}, v51
        v_xor_b32 v54, 32, v51
        v_add_u32 v53, {2*(12288-1024)}, v54
        v_add_u32 v54, {3*(12288-1024)}, v54
        v_mul_u32_u24 v32, 1280, v33
        v_lshl_add_u32 v47, v34, 4, v32
        v_add_u32 v48, 4096, v47
        v_xor_b32 v50, 32, v47
        v_add_u32 v49, 8192, v50
        v_add_u32 v50, 12288, v50
        s_and_b32 s66, s{sXC}, 3
        s_mul_i32 s55, s66, {64*s.hsp}
        s_add_u32 s55, s55, {F_H}
        v_mul_u32_u24 v33, {s.hsp}, v0
        s_lshr_b32 s67, s{sI}, 2
        s_add_u32 s67, s67, s{sI}
        s_and_b32 s67, s67, 3
        s_cmp_ge_u32 s{sXC}, 4
        s_cselect_b32 s60, 12, 14
        s_cselect_b32 s61, 5, 4
        s_mov_b32 s62, {-(-65536//14)}
        s_cmov_b32 s62, {-(-65536//12)}
        s_cselect_b32 s63, 1536, 0
        s_mul_i32 s64, s60, s61
        s_sub_u32 s64, s64, 1
        v_min_u32 v32, s64, v0
        v_mul_u32_u24 v35, s62, v32
        v_lshrrev_b32 v35, 16, v35
        v_mul_u32_u24 v36, s60, v35
        v_sub_u32 v32, v32, v36
        s_lshl_b32 s64, s{sI}, 2
        s_add_u32 s64, s64, s48
        s_mul_i32 s64, s64, s61
        v_add_u32 v35, s64, v35
        v_min_u32 v35, 511, v35
        v_mul_u32_u24 v35, 3072, v35
        v_lshl_add_u32 v32, v32, 7, v35
        s_mul_i32 s64, s66, {512*3072}
        s_add_u32 s64, s64, s63""")
        if stag == 2: s(f"s_mul_i32 s67, s{sI}, s61\ns_mul_i32 s67, s67, {s.opt.get('nsl', 7)}\ns_lshr_b32 s67, s67, 7")
        if s.opt.get('ipf', 0): s(f"s_cmp_ge_u32 s{sXC}, 4\ns_cselect_b32 s67, 63, s67")
        over = s.new("over")
        s(f"s_branch {s.ln(over)}")
        s.lab("grole")
        s.gfront()
        s(f"s_branch {s.ln('grole2')}")
        s.lab(over)
        s.att_vsetup()
        if npre == 1: issue(1); ops += [('s', 1)]
        if s.opt.get('b0st'): s.stamp(6)
        hl = [(34,1,33,sWS,"s55",0)]
        def younger(tag):
            k = ops.index(tag)
            return sum(8 if o[0] == 's' else 1 for o in ops[k+1:])
        for t in range(17):
            s(f"s_waitcnt vmcnt({younger(('s', t))})")
            if s.opt.get('ldstamp') and s.opt['ldstamp'] <= t < s.opt['ldstamp']+6: s.stamp(3 + t - s.opt['ldstamp'])
            if s.opt.get('b0st') and t == 0: s.stamp(7)
            s("s_barrier")
            if t == 0: s.stamp(1)
            if t == 8:
                if not s.opt.get('noln'): s.poll(hl, sleep=s.opt.get('hsl', 8), pre=younger(('h', th)))
                s(f"""s_mul_i32 s50, s66, {512*1280}
                s_lshl_b32 s54, s{sD1}, 8
                s_add_u32 s50, s50, s54
                s_add_u32 s50, s50, {HI}
                s_mul_i32 s51, s66, {512*3072}
                s_lshl_b32 s54, s{sF1}, 8
                s_add_u32 s51, s51, s54""")
                r1 = s.opt.get('g1rot', 0)
                if r1 == 0: s("s_mov_b32 s53, 0")
                if r1 == 1: s(f"s_and_b32 s53, s{sF1}, 7")
                if r1 == 2: s(f"s_lshl_b32 s53, s{sD1}, 1\ns_add_u32 s53, s53, s{sF1}\ns_and_b32 s53, s53, 7")
            if t == th:
                s.poll_issue(hl); ops.append(('h', t))
            if t+2 <= 9: issue(t+2); ops.append(('s', t+2))
            elif t+2 <= 17: issue1(t+2); ops.append(('s', t+2))
            if t in pfts:
                if stag: s(f"s_cmp_eq_u32 s67, {t - tpf}\ns_cselect_b32 s54, s64, 0x1000000")
                s(f"buffer_load_dword v165, v32, {srd(sW1)}, s{54 if stag else 64} offen{' nt' if s.opt.get('pfnt') else ''}")
                ops.append(('x', t))
                if s.opt.get('pfnt') == 2:
                    s(f"buffer_load_dword v166, v32, {srd(sW1)}, s{54 if stag else 64} offen sc1"); ops.append(('y', t))

    @staticmethod
    def acc(i, j): return 64 + 16*(2*(i >> 1) + (j >> 1)) + 8*(i & 1) + 4*(j & 1)
    def gemm_ops(s, aX, xtr, aW):
        F = (32, 128)
        def tr(b, a, o): return [f"ds_read_b64_tr_b16 {vr(b,2)}, v{a} offset:{o}", f"ds_read_b64_tr_b16 {vr(b+2,2)}, v{a} offset:{o+1024}"]
        def reads(sl, ks):
            b = F[ks]; o = sl*32768
            def x(i): return tr(b+4*i, aX+i, o+ks*8192) if xtr else [f"ds_read_b128 {vr(b+4*i,4)}, v{aX+ks} offset:{o+2048*i}"]
            def w(j): return tr(b+16+4*j, aW+j, o+ks*8192)
            return x(0) + w(0) + x(1) + x(2) + x(3) + w(1) + w(2) + w(3)
        def mf(ks, i, j, isv):
            b = F[ks]; xa = vr(b+4*i,4); wa = vr(b+16+4*j,4); d = vr(s.acc(i,j),4)
            return f"v_mfma_f32_16x16x32_bf16 {d}, {xa if isv else wa}, {wa if isv else xa}, {d}"
        return reads, mf
    def gemm_loop(s, reads, mf, isv, tog, scnt, skip_last):
        lp = s.new("gl")
        s.lab(lp)
        for n in range(4):
            ks = n & 1
            R = reads(((n+1) >> 1) & 1, ks ^ 1)
            toggled = set()
            done = 0
            for k in range(16):
                j, i = k >> 2, k & 3
                if j & 1: i = 3 - i
                if k == 0: s("s_waitcnt lgkmcnt(6)")
                if k == 4: s(f"s_waitcnt lgkmcnt({4 + done})")
                if k == 8: s(f"s_waitcnt lgkmcnt({done})")
                s(mf(ks, i, j, isv))
                if k == 0 and ks == 1:
                    if n == 3 and skip_last:
                        nx = s.new("nb")
                        s(f"s_cmp_eq_u32 s{scnt}, 1\ns_cbranch_scc1 {s.ln(nx)}\ns_barrier")
                        s.lab(nx)
                    else: s("s_barrier")
                if done < len(R):
                    if n == 3:
                        a = int(R[done].split(", v")[1].split()[0])
                        if a not in toggled: s(f"v_xor_b32 v{a}, 0x10000, v{a}"); toggled.add(a)
                    s(R[done]); done += 1
                elif n == 3:
                    for a in tog:
                        if a not in toggled: s(f"v_xor_b32 v{a}, 0x10000, v{a}"); toggled.add(a)
            assert n != 3 or toggled == set(tog)
        s(f"s_sub_u32 s{scnt}, s{scnt}, 1\ns_cmp_lg_u32 s{scnt}, 0\ns_cbranch_scc1 {s.ln(lp)}")
    def tr_addr(s, va, base, su, t0, t1):
        L = f"""v_lshrrev_b32 v{t0}, 4, v0
        v_bfe_u32 v{t1}, v0, 2, 2
        v_lshl_add_u32 v{va}, v{t0}, 3, v{t1}
        v_lshlrev_b32 v{va}, 8, v{va}
        v_and_b32 v{t0}, 1, v{t0}
        v_lshl_add_u32 v{t0}, v{t1}, 1, v{t0}
        v_xor_b32 v{t0}, s{su}, v{t0}
        v_lshl_add_u32 v{va}, v{t0}, 5, v{va}
        v_and_b32 v{t0}, 3, v0
        v_lshl_add_u32 v{va}, v{t0}, 3, v{va}
        v_add_u32 v{va}, {base}, v{va}"""
        for k in range(1, 4): L += f"\nv_xor_b32 v{va+k}, {32*k}, v{va}"
        return L

    def qkv_compute(s):
        ACC = 64
        s.kwait()
        if s.opt.get('b0st'): s.stamp(5)
        s(f"""s_and_b32 s48, s{sW}, 1
        s_lshr_b32 s49, s{sW}, 1
        v_and_b32 v8, 31, v0
        v_lshrrev_b32 v9, 5, v0
        s_lshl_b32 s50, s48, 13
        v_and_b32 v10, 15, v0
        v_lshl_add_u32 v10, v10, 7, s50
        v_bfe_u32 v11, v0, 1, 3
        v_lshrrev_b32 v12, 4, v0
        v_xor_b32 v11, v11, v12
        v_lshl_add_u32 v2, v11, 4, v10
        v_xor_b32 v3, 64, v2
        s_lshl_b32 s50, s49, 2""")
        s(s.tr_addr(4, 16384, 50, 10, 11))
        s(f"""s_mul_i32 s58, s{sCT}, 13
        s_lshr_b32 s58, s58, 6
        s_mul_i32 s59, s58, 5
        s_sub_u32 s59, s{sCT}, s59
        s_lshl_b32 s59, s59, 1
        s_add_u32 s59, s59, s49
        v_lshrrev_b32 v10, 1, v0
        v_mul_u32_u24 v10, 5, v10
        v_and_b32 v11, 1, v0
        v_lshl_add_u32 v10, v11, 1, v10
        v_add_u32 v11, 2, v10
        v_lshrrev_b32 v10, 3, v10
        v_lshrrev_b32 v11, 3, v11
        v_cmp_eq_u32 s[56:57], s59, v10
        v_cmp_eq_u32 vcc, s59, v11
        v_lshlrev_b32 v13, 6, v0
        v_mov_b32 v12, 1
        s_lshr_b32 s59, s{sRT}, 1
        s_add_u32 s59, s59, 3
        s_cmp_eq_u32 s58, 0
        s_cselect_b32 s58, s59, s58
        s_lshl_b32 s58, s58, 11
        s_add_u32 s58, s58, {F_Q - 2048}
        s_or_b32 s56, s56, vcc_lo
        s_mov_b32 s57, 0""")
        for r in range(64): s(f"v_mov_b32 v{ACC+r}, 0")
        reads, mf = s.gemm_ops(2, False, 4)
        s.att_vsetup()
        if s.opt.get('b0st'): s.stamp(7)
        s(f"s_setprio {s.opt.get('cprio', 2)}\ns_barrier")
        s.stamp(1)
        for l in reads(0,0): s(l)
        s(f"s_mov_b32 s51, 5\ns_cmp_ge_u32 s47, 10\ns_cbranch_scc1 {s.ln('qkv_v')}")
        for isv in (0, 1):
            if isv: s.lab("qkv_v")
            s.gemm_loop(reads, mf, isv, range(2, 8), 51, False)
            s(f"s_setprio {s.opt.get('eprio', 3)}")
            nb = [10]
            def bar():
                nb[0] += 1; s("s_barrier")
            cuts = {0: (0,), 1: (0, 4), 2: (0, 3, 6), 3: (0, 2, 4, 6), 4: (4,), 5: (2, 6)}[s.opt.get('ecut', 4)]
            s.stamp(2)
            P = 32
            if not isv:
                s(f"""s_cmp_lt_u32 s47, 5
                s_cselect_b32 s52, {fbits(20**-0.5*math.log2(math.e))}, 1.0
                s_mov_b32 s53, s52
                v_lshlrev_b32 v2, 15, v9
                v_lshl_add_u32 v2, v8, 4, v2
                s_lshl_b32 s54, s47, 4
                s_lshl_b32 s55, s49, 3
                s_add_u32 s54, s54, s55
                s_lshl_b32 s54, s54, 15
                s_lshl_b32 s55, s46, 11
                s_add_u32 s54, s54, s55
                s_lshl_b32 s55, s48, 10
                s_add_u32 s54, s54, s55
                s_waitcnt lgkmcnt(0)""")
            else:
                s(f"""s_sub_u32 s54, s47, 10
                s_lshl_b32 s54, s54, 7
                s_lshl_b32 s55, s49, 6
                s_add_u32 s54, s54, s55
                v_add_u32 v4, s54, v8
                v_mul_u32_u24 v6, 320, v9""")
                for j in range(2):
                    s(f"""v_mul_u32_u24 v5, 3277, v4
                    v_lshrrev_b32 v5, 16, v5
                    v_mul_u32_u24 v{2+j}, {81920-320}, v5
                    v_lshl_add_u32 v{2+j}, v4, 4, v{2+j}
                    v_add_u32 v{2+j}, v{2+j}, v6
                    v_add_u32 v4, 32, v4""")
                s(f"""s_lshl_b32 s54, s46, 1
                s_add_u32 s54, s54, s48
                s_mul_i32 s54, s54, {8*320}
                s_add_u32 s54, s54, {VI}
                s_waitcnt lgkmcnt(0)""")
            for n in range(8):
                u, v = n >> 1, n & 1
                aa = (s.acc(u, 2*v), s.acc(u, 2*v+1)) if isv else (s.acc(2*v, u), s.acc(2*v+1, u))
                if n in cuts: bar()
                s.al8()
                p = P + 4*n
                if not isv:
                    for a in aa: s(f"v_pk_mul_f32 {vr(a,2)}, {vr(a,2)}, s[52:53]\nv_pk_mul_f32 {vr(a+2,2)}, {vr(a+2,2)}, s[52:53]")
                for q in range(4):
                    a = aa[q >> 1] + 2*(q & 1)
                    s(f"v_cvt_pk_bf16_f32 v{p+q}, v{a}, v{a+1}")
                s(f"s_nop 1\nv_permlane16_swap_b32 v{p}, v{p+2}\nv_permlane16_swap_b32 v{p+1}, v{p+3}")
                if s.opt.get('nost'): pass
                elif not isv:
                    s(f"buffer_store_dwordx4 {vr(p,4)}, v2, {srd(sWS)}, s54 offen offset:{512*v} sc1")
                else:
                    s(f"buffer_store_dwordx4 {vr(p,4)}, v{2+v}, {srd(sWS)}, s54 offen offset:{2*u*320} sc1")
                if not isv and v: s("s_add_u32 s54, s54, 65536")
            if not isv: s(f"s_branch {s.ln('qkv_pub')}")
        s.lab("qkv_pub")
        while nb[0] < s.opt.get('barr', 12): bar()
        s(f"""s_mov_b64 exec, s[56:57]
        {"" if s.opt.get('noack', 0) & 2 else "s_waitcnt vmcnt(0)"}
        buffer_atomic_add v12, v13, {srd(sWS)}, s58 offen sc1
        s_mov_b64 exec, -1""")
        s.stamp(3)
        while nb[0] < 14: bar()

    def att_vsetup(s):
        aK1, aK2, aV, vK, vV, vIDX, aPW, aPR, vPC = 14, 15, 16, 17, 18, 19, 20, 21, 22
        w0, dn = s.new("vs"), s.new("vs")
        s(f"""s_and_b32 s68, s{sI}, 1
        s_lshr_b32 s69, s{sW}, 2
        v_and_b32 v23, 31, v0
        v_lshrrev_b32 v24, 5, v0
        v_and_b32 v30, 15, v0
        v_lshrrev_b32 v31, 4, v0
        s_mul_i32 s70, s68, 3
        v_add_u32 v{vK}, s70, v31
        v_cmp_gt_u32 vcc, 2, v31
        v_add_u32 v25, s70, v24
        s_lshl_b32 s71, s{sW}, 8
        v_cndmask_b32 v{vK}, 2, v{vK}, vcc
        v_lshlrev_b32 v{vK}, 15, v{vK}
        v_lshl_add_u32 v{vK}, v30, 4, v{vK}
        v_add_u32 v{vK}, s71, v{vK}
        v_cmp_lt_u32 vcc, 20, v0
        s_mul_i32 s71, s{sW}, 640
        v_subrev_u32 v{vV}, 1, v0
        v_cndmask_b32 v{vV}, v0, v{vV}, vcc
        v_lshlrev_b32 v{vV}, 4, v{vV}
        v_add_u32 v{vV}, s71, v{vV}
        v_and_b32 v29, 1, v31
        v_mul_u32_u24 v{aK2}, 768, v29
        v_lshl_add_u32 v{aK2}, v30, 4, v{aK2}
        s_mul_i32 s71, s69, 3072
        s_add_u32 s71, s71, {KVB}
        v_add_u32 v{aK2}, s71, v{aK2}
        v_lshl_add_u32 v{aK1}, v24, 8, v{aK2}
        s_lshl_b32 s70, s68, 3
        s_add_u32 s71, s70, 512
        v_add_u32 v{aK2}, s71, v{aK2}
        v_min_u32 v{aV}, 20, v23
        v_mul_u32_u24 v28, 336, v24
        v_mov_b32 v{vIDX}, 0xdddd
        v_lshl_add_u32 v{aV}, v{aV}, 4, v28
        s_mul_i32 s71, s69, 2688
        s_add_u32 s71, s71, {KVB+6144}
        v_add_u32 v{aV}, s71, v{aV}
        s_lshl_b32 s71, s{sW}, 2
        s_add_u32 s71, s71, {SY_PA}
        v_mov_b32 v{aPW}, s71
        v_and_b32 v{aPR}, 7, v0
        v_lshlrev_b32 v{aPR}, 2, v{aPR}
        v_add_u32 v{aPR}, {SY_PA}, v{aPR}
        v_mov_b32 v{vPC}, 1
        v_lshlrev_b32 v25, 15, v25
        v_lshl_add_u32 v25, v23, 4, v25
        v_lshlrev_b32 v26, 4, v23
        s_add_u32 s70, s70, 0x10000
        v_add_u32 v26, s70, v26
        v_lshlrev_b32 v27, 2, v23""")
        s(f"""s_mov_b32 exec_lo, 0xfee00000
        s_mov_b32 exec_hi, 0xfee00000
        v_mov_b32 v{aV}, 0x30000
        s_mov_b32 exec_lo, 0
        s_mov_b32 exec_hi, -1
        v_mov_b32 v{aK2}, 0x30000
        s_mov_b64 exec, -1
        s_cmp_eq_u32 s{sW}, 0
        s_cbranch_scc1 {s.ln(w0)}
        v_mul_u32_u24 v28, {KVS}, v31
        v_mul_u32_u24 v29, 336, v30
        v_add_u32 v28, v28, v29
        v_add_u32 v28, {KVB+6144+320}, v28
        s_branch {s.ln(dn)}""")
        s.lab(w0)
        s(f"""s_lshl_b32 s70, s{sXC}, 2
        s_and_b32 s71, s{sI}, 3
        s_add_u32 s70, s70, s71
        s_lshr_b32 s71, s70, 1
        s_mul_i32 s71, s71, 5
        s_lshl_b32 s68, s68, 1
        s_add_u32 s71, s71, s68
        s_and_b32 s71, s71, 7
        s_cmp_ge_u32 s71, 6
        s_cselect_b32 s71, 64, 32
        v_mov_b32 v29, s71
        s_lshr_b32 s71, s71, 3
        v_writelane_b32 v29, s71, 2
        s_lshl_b32 s70, s70, 6
        v_lshl_add_u32 v28, v0, 11, s70
        s_lshr_b32 s71, s{sI}, 2
        s_add_u32 s71, s71, 2
        s_lshl_b32 s71, s71, 11
        s_add_u32 s71, s71, s70
        v_writelane_b32 v28, s71, 2""")
        s.lab(dn)

    def attention(s):
        Q1, Q2, K1, K2, V0, V1 = 8, 12, 152, 150, 156, 160
        S = (32, 48); O = 64
        aK1, aK2, aV, vK, vV, vIDX, aPW, aPR, vPC, vPR = 14, 15, 16, 17, 18, 19, 20, 21, 22, 30
        sH, sQB, sP, sODD, sKO, sVO, sMK, sMV, sN, sNEED, sTOK = 48, 49, 50, 51, 52, 53, 54, 55, 56, 3, 100
        EK, EV = "s[58:59]", "s[60:61]"
        sKB, sVB = 62, 63
        s(f"""s_setprio 3
        s_lshl_b32 s{sH}, s{sXC}, 2
        s_and_b32 s57, s{sI}, 3
        s_add_u32 s{sH}, s{sH}, s57
        s_lshr_b32 s{sQB}, s{sI}, 2
        s_lshr_b32 s{sP}, s{sH}, 1
        s_and_b32 s{sODD}, s{sH}, 1
        s_mov_b32 s58, -1
        s_mov_b32 s59, 0xffff
        s_mov_b32 s60, 0xffefffff
        s_mov_b32 s61, 0x1ff
        s_mul_i32 s{sKB}, s{sP}, {5*32768}
        s_add_u32 s{sKB}, s{sKB}, {KI}
        s_mul_i32 s{sVB}, s{sH}, 81920
        s_add_u32 s{sVB}, s{sVB}, {VI}
        s_mul_i32 s{sMK}, s{sW}, 768
        s_add_u32 s{sMK}, s{sMK}, {KVB}
        s_mul_i32 s{sMV}, s{sW}, 672
        s_add_u32 s{sMV}, s{sMV}, {KVB+6144}
        s_lshl_b32 s{sTOK}, s{sQB}, 8
        s_and_b32 s57, s{sW}, 3
        s_lshl_b32 s57, s57, 6
        s_add_u32 s{sTOK}, s{sTOK}, s57
        s_lshr_b32 s{sN}, s{sW}, 2
        s_lshl_b32 s57, s{sN}, 5
        s_add_u32 s{sTOK}, s{sTOK}, s57
        """)
        SS = ((32, 96), (48, 112)); OO = (128, O); QQ = ((144, 148), (Q1, Q2))
        s(f"""
        s_lshl_b32 s70, s{sTOK}, 4
        s_add_u32 s70, s70, s{sKB}
        s_sub_u32 s70, s70, {KI-QI}
        s_lshl_b32 s71, s{sTOK}, 2
        s_add_u32 s71, s71, {GI}
        """)
        def dma(slot):
            slot = (slot + 2) & 3
            return [f"s_add_u32 m0, s{sMK}, {slot*KVS}",
                    f"s_mov_b64 exec, {EK}",
                    f"buffer_load_dwordx4 v{vK}, {srd(sWS)}, s{sKO} offen sc1 lds",
                    f"s_add_u32 m0, s{sMV}, {slot*KVS}",
                    f"s_mov_b64 exec, {EV}",
                    f"buffer_load_dwordx4 v{vV}, {srd(sWS)}, s{sVO} offen sc1 lds",
                    f"s_mov_b64 exec, -1",
                    f"s_add_u32 s{sKO}, s{sKO}, 2048",
                    f"s_add_u32 s{sVO}, s{sVO}, 5120"]
        s(f"s_mov_b32 s{sKO}, s{sKB}\ns_mov_b32 s{sVO}, s{sVB}")
        def first():
            s("\n".join(dma(0)))
            s(f"""buffer_load_dwordx4 {vr(Q1,4)}, v25, {srd(sWS)}, s70 offen sc1
            buffer_load_dwordx2 {vr(Q2,2)}, v84, {srd(sWS)}, s68 offen sc1
            buffer_load_dwordx4 {vr(QQ[0][0],4)}, v25, {srd(sWS)}, s67 offen sc1
            s_setprio {s.opt.get('sp2', 2)}""")
            s("\n".join(dma(1)))
        w1, b16, nidle, early, late0, late, go, nones = [s.new("a") for _ in range(8)]
        hl = [(90,1,87,sWS,"s65",0)]
        s(f"""v_mov_b32 v86, {SY_QOK}
        v_xor_b32 v84, s{sN}, v24
        v_lshl_add_u32 v84, v84, 9, v26
        s_xor_b32 s67, s70, 512
        s_andn2_b32 s68, s70, 512
        s_cmp_ge_u32 s{sW}, 4
        s_cbranch_scc1 {s.ln(b16)}
        s_cmp_lg_u32 s{sW}, 0
        s_cbranch_scc1 {s.ln(w1)}
        s_mul_i32 s65, s{sQB}, {32*s.hsp}
        s_add_u32 s65, s65, {F_H}
        v_mul_u32_u24 v87, {s.hsp}, v23
        s_mov_b32 s64, {F_Q}
        s_barrier
        s_cmp_lg_u32 s{sCT}, 15
        s_cbranch_scc1 {s.ln(nidle)}""")
        s.apoll("s64", 1, 28, 89, 16, mask=3)
        s.lab(nidle)
        s.poll_issue(hl)
        s.apoll_issue("s64", 28, 89, mask=7)
        s("s_mov_b64 exec, -1\ns_barrier")
        s.poll(hl, sleep=4, pre=1)
        s(f"""s_mov_b64 exec, 7
        s_waitcnt vmcnt(0)
        v_cmp_gt_u32 vcc, v29, v89
        s_cbranch_vccnz {s.ln(late0)}
        s_mov_b64 exec, 1
        v_mov_b32 v85, 1
        ds_write_b32 v86, v85
        s_mov_b64 exec, -1
        s_branch {s.ln(early if s.opt.get('ekv', 0) else late)}""")
        s.lab(late0)
        s.apoll_issue("s64", 28, 89, mask=7)
        s("s_mov_b64 exec, -1\ns_barrier")
        s.apoll("s64", "v29", 28, 89, s.opt.get('psl', 2), pre=True, mask=7)
        s(f"""s_mov_b64 exec, 1
        v_mov_b32 v85, 1
        ds_write_b32 v86, v85
        s_mov_b64 exec, -1""")
        s.stamp(4)
        first()
        s(f"s_branch {s.ln(go)}")
        s.lab(w1)
        s("s_barrier\ns_barrier")
        s.lab(b16)
        for _ in range(s.opt.get('ekv', 0)):
            s(f"""s_sleep 1
            ds_read_b32 v87, v86
            s_waitcnt lgkmcnt(0)
            v_cmp_gt_u32 vcc, 1, v87
            s_cbranch_vccz {s.ln(early)}""")
        s.lab(late)
        s("s_waitcnt vmcnt(0)\ns_barrier")
        s.stamp(8)
        s.lds_spin(86, 1, 87, sleep=s.opt.get('qsl', 0))
        s.stamp(4)
        first()
        s(f"s_branch {s.ln(go)}")
        s.lab(early)
        s.stamp(4)
        first()
        s("s_waitcnt vmcnt(7)\ns_barrier")
        s.stamp(8)
        s.lab(go)
        s(f"""s_cmp_lg_u32 s{sW}, 1
        s_cbranch_scc1 {s.ln(nones)}
        v_mov_b32 v88, 0x3f803f80
        v_mov_b32 v89, 0x3f803f80
        v_mov_b32 v90, 0x3f803f80
        v_mov_b32 v91, 0x3f803f80
        ds_write_b128 v28, v[88:91]""")
        s.lab(nones)
        ystag = s.opt.get('ystag', 1)
        for r in range(0, 16, 2): s(f"v_pk_mov_b32 {vr(O+r,2)}, 0, 0\nv_pk_mov_b32 {vr(128+r,2)}, 0, 0")
        for r in range(0, 8, 2): s(f"v_pk_mov_b32 {vr(SS[1][1]+8+r,2)}, 0, 0")
        for r in range(0, 4, 2): s(f"v_pk_mov_b32 {vr(V1+r,2)}, 0, 0")
        s(f"""v_pk_mov_b32 v[148:149], 0, 0
        s_mul_i32 s64, s{sW}, 3328
        s_add_u32 s64, s64, {XB}
        v_lshlrev_b32 v81, 4, v0
        s_xor_b32 s65, s{sW}, 4
        v_add_u32 v80, s64, v81
        v_lshl_add_u32 v85, v0, 2, s64
        s_mul_i32 s64, s65, 3328
        s_add_u32 s64, s64, {XB}
        v_add_u32 v81, s64, v81
        v_lshl_add_u32 v86, v0, 2, s64
        s_lshl_b32 s65, s65, 2
        s_add_u32 s65, s65, {SY_PA}
        v_mov_b32 v82, s65
        v_lshlrev_b32 v92, 4, v23
        v_lshl_add_u32 v83, v24, 15, v92
        v_cmp_eq_u32 s[72:73], 0, v24
        v_mov_b32 v93, {fbits(2.0**60)}
        v_mov_b32 v94, 0
        v_mov_b32 v95, 1
        s_lshl_b32 s64, s{sH}, 16
        s_lshl_b32 s65, s{sTOK}, 4
        s_add_u32 s65, s65, {OI}
        s_add_u32 s64, s64, s65
        s_lshl_b32 s65, s{sH}, 14
        s_lshl_b32 s57, s{sTOK}, 3
        s_add_u32 s65, s65, s57
        s_add_u32 s65, s65, {OI + 64*32768}
        v_lshlrev_b32 v92, 3, v23
        s_lshl_b32 s66, s{sTOK}, 3
        s_add_u32 s66, s66, {F_O}
        s_mov_b32 s70, {fbits(2.0**-30)}""")
        if s.opt.get('sst'): s.stamp(1)
        s(f"""s_mov_b32 s{sNEED}, 2
        s_waitcnt vmcnt(5) lgkmcnt(0)
        ds_write_b32 v{aPW}, v{vPC}""")
        if s.opt.get('sst'): s.stamp(2)
        for l in dma(2): s(l)
        if s.opt.get('nodma'):
            for l in dma(3): s(l)
            s("s_waitcnt vmcnt(0)")
        s(f"buffer_load_dword v31, v27, {srd(sWS)}, s71 offen sc1")
        if s.opt.get('sst'): s.stamp(3)
        s(f"""v_add_u32 v{vPC}, 1, v{vPC}
        s_waitcnt vmcnt(5)
        v_permlane32_swap_b32 v{Q2}, v148
        v_permlane32_swap_b32 v{Q2+1}, v149""")
        s.lds_spin(aPR, 1, vPR, sleep=0)
        s.stamp(5)
        def off(T):
            T %= 8
            return (((T >> 1) + 2) & 3)*KVS, T & 1
        def rK1(T):
            b, tt = off(T); return f"ds_read_b128 {vr(K1,4)}, v{aK1} offset:{b+tt*1536}"
        def rK2(T):
            b, tt = off(T); return f"ds_read_b64 {vr(K2,2)}, v{aK2} offset:{b+tt*1536}"
        def rV(T, a):
            b, tt = off(T); return f"ds_read_b128 {vr((V0,V1)[a],4)}, v{aV} offset:{b+(4*tt+2*a)*336}"
        def qk0(d, a): return f"v_mfma_f32_32x32x16_bf16 {vr(d,16)}, {vr(K1,4)}, {vr(QQ[a][0],4)}, 0"
        def qk1(d, a): return f"v_mfma_f32_32x32x8_bf16 {vr(d,16)}, {vr(K2,2)}, {vr(QQ[a][1],2)}, {vr(d,16)}"
        def pv(a, v, p): return f"v_smfmac_f32_32x32x32_bf16 {vr(OO[a],16)}, {vr(v,4)}, {vr(p,8)}, v{vIDX}"
        s(rK1(0)); s(rK2(0)); s(rV(0,0)); s("s_waitcnt lgkmcnt(1)")
        s(qk0(SS[0][0], 0)); s(qk1(SS[0][0], 0)); s(qk0(SS[1][0], 1)); s(rK1(1)); s(qk1(SS[1][0], 1)); s(rK2(1))
        s(f"""s_waitcnt vmcnt(3)
        ds_write_b32 v{aPW}, v{vPC}
        s_mov_b32 s69, 4
        v_add_u32 v{vPC}, 1, v{vPC}
        s_nop 3""")
        if s.opt.get('sst'): s.stamp(8)
        ap = s.opt.get('aprio', 1)
        nosync = s.opt.get('nosync'); nodma = s.opt.get('nodma')
        e0, e1, e2, e3 = {0: (2,6,10,14), 1: (2,5,9,13), 2: (3,7,11,15), 3: (2,6,9,13), 4: (2,7,10,14), 5: (4,8,12,16), 6: (2,5,10,13)}[s.opt.get('esp', 0)]
        def loop(pat):
          lp = s.new("attl")
          s.L.append(".p2align 6")
          for _ in range(s.opt.get('al', 0)): s("s_nop 0")
          s.lab(lp)
          late = ystag and pat is not None
          for n in range(16):
              if n == 14: s(f"s_sub_u32 s69, s69, 1\ns_cmp_eq_u32 s69, 0\ns_cbranch_scc1 {s.ln(join)}")
              T, a = n >> 1, n & 1
              c, m = n >> 2, n & 3
              cur, nn = SS[a][T & 1], SS[a][(T+1) & 1]
              prev = SS[1][(T-1) & 1] if a == 0 else SS[0][T & 1]
              E = [f"v_exp_f32{'_e64' if s.opt.get('e64') else ''} v{cur+i}, v{cur+i}" for i in range(16)]
              D = dma((c + 3) & 3) if not nodma else [""]*9
              apm = s.opt.get('apm', 0)
              if pat is not None and apm:
                  per = s.opt.get('app', 1)
                  h, l = apm % 100, apm // 100
                  for pos, pr in ((h, ap+1), (l, ap)):
                      if pos // 16 == n % per: E[pos % 16] = f"s_setprio {pr}\n" + E[pos % 16]
              elif pat is not None and pat[n] != pat[n-1]: s(f"s_setprio {pat[n]}")
              for e in E[:e0]: s(e)
              if a == 0:
                  s(pv(1, V1, prev+8)); s(rV(T,1))
                  if n == 4:
                      s(f"""s_cmp_eq_u32 s69, 1
                      s_cselect_b32 s{sKO}, {WS_BYTES}, s{sKO}
                      s_cselect_b32 s{sVO}, {WS_BYTES}, s{sVO}
                      s_cselect_b32 s{sMK}, 0x30000, s{sMK}
                      s_cselect_b32 s{sMV}, 0x30000, s{sMV}""")
                  for e in E[e0:e1]: s(e)
                  s("s_waitcnt lgkmcnt(1)")
                  s(qk0(nn, 0))
                  for e in E[e1:e2]: s(e)
                  s(qk1(nn, 0))
                  if m == 0 and nosync != 2: s(f"ds_read_b32 v{vPR}, v{aPR}")
                  for e in E[e2:e3]: s(e)
                  s(pv(0, V0, cur))
              else:
                  s("s_waitcnt lgkmcnt(0)")
                  s(pv(0, V1, prev+8))
                  if m == 1 and not nosync:
                      s(f"v_cmp_gt_u32 vcc, s{sNEED}, v{vPR}")
                      s.spin_ool(aPR, f"s{sNEED}", vPR, sleep=1)
                  if m == 3:
                      if late: s("\n".join(D))
                      if nosync != 2: s(f"s_waitcnt vmcnt({4 if s.opt.get('novm') else 2})\nds_write_b32 v{aPW}, v{vPC}")
                  for e in E[e0:e1]: s(e)
                  s(qk0(nn, 1)); s(rK1(T+2))
                  for e in E[e1:e2]: s(e)
                  s(qk1(nn, 1)); s(rK2(T+2))
                  if m == 1:
                      if not late: s("\n".join(D))
                      s(f"s_add_u32 s{sNEED}, s{sNEED}, 1")
                  if m == 3: s(f"v_add_u32 v{vPC}, 1, v{vPC}")
                  for e in E[e2:e3]: s(e)
                  s(pv(1, V0, cur)); s(rV(T+1,0))
              for e in E[e3:]: s(e)
          if s.opt.get('qst') and s.stamps:
              for k, c in ((1, 3), (2, 2), (3, 1)):
                  nx = s.new("st")
                  s(f"s_cmp_lg_u32 s69, {c}\ns_cbranch_scc1 {s.ln(nx)}")
                  s.stamp(k)
                  s.lab(nx)
          s(f"s_branch {s.ln(lp)}")
        pm = s.opt.get('apat', 119)
        young, join = s.new("young"), s.new("join")
        s(f"s_cmp_ge_u32 s{sW}, 4\ns_cbranch_scc1 {s.ln(young)}\ns_setprio {ap}")
        loop(None)
        s.lab(young)
        pat = [(s.opt.get('ylo', ap), s.opt.get('yhi', ap+1))[(pm >> (T % 8)) & 1] for T in range(16)]
        s(f"s_setprio {pat[15]}")
        loop(pat)
        s.lab(join)
        c0, c1 = SS[0][1], SS[1][1]
        E = [f"v_exp_f32 v{c0+i}, v{c0+i}" for i in range(16)]
        s(f"s_setprio {s.opt.get('tp0', 2)}")
        s(E[0]); s(E[1]); s(pv(1, V1, SS[1][0]+8)); s(rV(7,1))
        for e in E[2:10]: s(e)
        s("s_waitcnt lgkmcnt(1)"); s(pv(0, V0, c0))
        for e in E[10:]: s(e)
        E = [f"v_exp_f32 v{c1+i}, v{c1+i}" for i in range(16)]
        s(E[0]); s(E[1]); s("s_waitcnt lgkmcnt(0)"); s(pv(0, V1, c0+8))
        s(f"s_setprio {s.opt.get('tp1', 1)}")
        for e in E[2:10]: s(e)
        s(pv(1, V0, c1)); s(f"v_add_u32 v{vPC}, 1, v{vPC}"); s(E[10])
        for q in range(3): s(f"ds_write_b128 v80, {vr(128+4*q,4)} offset:{1024*q}")
        s("ds_write_b32 v85, v140 offset:3072")
        for e in E[11:]: s(e)
        s(f"""s_waitcnt vmcnt(0) lgkmcnt(0)
        ds_write_b32 v{aPW}, v{vPC}""")
        s(pv(1, V1, c1+8))
        s.lds_spin(82, 19, 87, sleep=0)
        s("s_setprio 3")
        for q in range(3): s(f"ds_read_b128 {vr(128+4*q,4)}, v81 offset:{1024*q}")
        s(f"""ds_read_b32 v140, v86 offset:3072
        v_add_u32 v{vPC}, 1, v{vPC}""")
        s.stamp(6)
        s(f"""s_waitcnt lgkmcnt(0)
        ds_write_b32 v{aPW}, v{vPC}
        v_add_f32 v{O+12}, v{O+12}, v140""")
        s.al8()
        for r in range(0, 12, 2): s(f"v_pk_add_f32 {vr(O+r,2)}, {vr(O+r,2)}, {vr(128+r,2)}")
        slow, norm = s.new("slow"), s.new("norm")
        s(f"v_cndmask_b32 v87, v{O+8}, v{O+12}, s[72:73]\nv_pk_mul_f32 v[88:89], {vr(O,2)}, 0")
        for r in range(2, 12, 2): s(f"v_pk_fma_f32 v[88:89], {vr(O+r,2)}, 0, v[88:89]")
        s(f"""v_add_f32 v88, v88, v89
        v_add_f32 v88, v88, v87
        v_med3_f32 v89, v88, s70, v93
        v_cmp_neq_f32 vcc, v89, v88
        s_cbranch_vccnz {s.ln(slow)}""")
        s.lab(norm)
        s(f"""v_rcp_f32 v88, v87
        s_nop 0
        v_mul_f32 v88, v88, v31""")
        s.al8()
        s.slow_args = (slow, norm, Q1, Q2, K1, K2, V0, V1, S, O, vIDX, sKB, sVB)
        for r in range(0, 12, 2): s(f"v_pk_mul_f32 {vr(O+r,2)}, {vr(O+r,2)}, v[88:89] op_sel_hi:[1,0]")
        for q in range(6): s(f"v_cvt_pk_bf16_f32 v{32+q}, v{O+2*q}, v{O+2*q+1}")
        s(f"""buffer_store_dwordx4 v[32:35], v83, {srd(sWS)}, s64 offen sc1
        s_mov_b32 exec_hi, 0
        buffer_store_dwordx2 v[36:37], v92, {srd(sWS)}, s65 offen sc1
        s_mov_b64 exec, 1
        {"" if s.opt.get('noack', 0) & 1 else "s_waitcnt vmcnt(0)"}
        buffer_atomic_add v95, v94, {srd(sWS)}, s66 offen sc1""")
        s.stamp(7)

    def att_slow(s):
        slow, norm, Q1, Q2, K1, K2, V0, V1, S, O, vIDX, sKB, sVB = s.slow_args
        S0, C = S
        l1, l2 = s.new("slowa"), s.new("slowb")
        s.lab(slow)
        ldk = f"""buffer_load_dwordx4 {vr(K1,4)}, v25, {srd(sWS)}, s67 offen sc1
        buffer_load_dwordx2 {vr(K2,2)}, v26, {srd(sWS)}, s67 offen sc1"""
        s(f"""s_waitcnt vmcnt(0) lgkmcnt(0)
        v_mov_b32 v88, 0xff800000
        s_mov_b32 s67, s{sKB}
        s_mov_b32 s69, 64""")
        s.lab(l1)
        s(ldk)
        s(f"""s_waitcnt vmcnt(0)
        v_mfma_f32_32x32x16_bf16 {vr(S0,16)}, {vr(K1,4)}, {vr(Q1,4)}, 0
        v_mfma_f32_32x32x8_bf16 {vr(S0,16)}, {vr(K2,2)}, {vr(Q2,2)}, {vr(S0,16)}
        s_add_u32 s67, s67, 512
        s_nop 15""")
        for r in range(0, 16, 2): s(f"v_max3_f32 v88, v88, v{S0+r}, v{S0+r+1}")
        s(f"""s_sub_u32 s69, s69, 1
        s_cmp_lg_u32 s69, 0
        s_cbranch_scc1 {s.ln(l1)}
        v_mov_b32 v89, v88
        s_nop 1
        v_permlane32_swap_b32 v88, v89
        s_nop 1
        v_max_f32 v88, v88, v89
        v_mul_u32_u24 v89, 320, v24
        v_lshl_add_u32 v89, v23, 4, v89""")
        for r in range(16): s(f"v_sub_f32 v{C+r}, 0, v88\nv_mov_b32 v{O+r}, 0")
        for r in range(4): s(f"v_mov_b32 v{V0+r}, 0x3f803f80\nv_mov_b32 v{V1+r}, 0x3f803f80")
        s(f"""s_mov_b32 s67, s{sKB}
        s_mov_b32 s68, s{sVB}
        s_mov_b32 s69, 64
        s_mov_b32 s74, 0xfffff
        s_mov_b32 s75, 0xfffff""")
        s.lab(l2)
        s(ldk)
        s(f"""s_mov_b64 exec, s[74:75]
        buffer_load_dwordx4 {vr(V0,4)}, v89, {srd(sWS)}, s68 offen sc1
        buffer_load_dwordx4 {vr(V1,4)}, v89, {srd(sWS)}, s68 offen offset:640 sc1
        s_mov_b64 exec, -1
        s_waitcnt vmcnt(0)
        v_mfma_f32_32x32x16_bf16 {vr(S0,16)}, {vr(K1,4)}, {vr(Q1,4)}, {vr(C,16)}
        v_mfma_f32_32x32x8_bf16 {vr(S0,16)}, {vr(K2,2)}, {vr(Q2,2)}, {vr(S0,16)}
        s_add_u32 s67, s67, 512
        s_add_u32 s68, s68, 1280
        s_nop 15""")
        for r in range(16): s(f"v_exp_f32 v{S0+r}, v{S0+r}")
        s(f"""s_nop 1
        v_smfmac_f32_32x32x32_bf16 {vr(O,16)}, {vr(V0,4)}, {vr(S0,8)}, v{vIDX}
        v_smfmac_f32_32x32x32_bf16 {vr(O,16)}, {vr(V1,4)}, {vr(S0+8,8)}, v{vIDX}
        s_sub_u32 s69, s69, 1
        s_cmp_lg_u32 s69, 0
        s_nop 7
        s_cbranch_scc1 {s.ln(l2)}
        s_nop 15
        v_cndmask_b32 v87, v{O+8}, v{O+12}, s[72:73]
        s_branch {s.ln(norm)}""")

    def gfront(s):
        sJ = 48
        s(f"s_setprio {s.opt.get('lnp', 3)}\ns_sub_u32 s{sJ}, s{sW}, 8")
        s.ln_loads(sJ)
        s(f"""v_lshlrev_b32 v1, 2, v0
        v_add_u32 v1, {SYN}, v1
        v_mov_b32 v2, 0
        ds_write_b32 v1, v2""")
        if s.opt.get('noln'):
            s('s_barrier'); s.gtiles(sJ); s.nb = 1
        else: s.nb = s.layernorm(sJ)

    def grole(s):
        sJ = 48
        pre = s.gsetup(sJ)
        nb = s.nb
        assert nb <= s.opt.get('th', 7)
        s("s_setprio 0")
        lines = "\n".join(pre).split("\n")
        k = 11 - nb
        per = -(-len(lines) // k)
        for q in range(k):
            s("\n".join(lines[q*per:(q+1)*per])); s("s_barrier")
        s.stamp(2)
        s.gsync_n = 0
        s.gemm1(sJ)
        s.gemm2(sJ)

    def gtiles(s, sJ):
        s(f"""s_and_b32 s50, s{sXC}, 3
        s_lshl_b32 s51, s{sF1}, 2
        s_and_b32 s54, s{sJ}, 2
        s_add_u32 s51, s51, s54
        s_lshr_b32 s54, s50, 1
        s_add_u32 s51, s51, s54
        s_lshl_b32 s52, s{sD1}, 1
        s_and_b32 s54, s{sJ}, 1
        s_add_u32 s52, s52, s54
        s_lshl_b32 s52, s52, 1
        s_and_b32 s54, s50, 1
        s_add_u32 s52, s52, s54
        s_lshl_b32 s62, s{sXC}, 2
        s_and_b32 s54, s{sI}, 3
        s_add_u32 s62, s62, s54
        s_lshr_b32 s63, s{sI}, 2
        s_lshl_b32 s66, s62, 6
        s_lshl_b32 s54, s{sJ}, 4
        s_add_u32 s66, s66, s54
        s_lshl_b32 s54, s51, 6
        v_lshrrev_b32 v1, 4, v0
        v_lshl_add_u32 v1, v1, 3, s54
        v_and_b32 v2, 15, v0
        v_add_lshl_u32 v2, s66, v2, 1""")
        for q in range(2):
            s(f"global_load_dwordx2 {vr(54+2*q,2)}, v1, s[{sB1}:{sB1+1}] offset:{32*q}")
        s(f"global_load_ushort v62, v2, s[{sB2}:{sB2+1}]")

    def gsetup(s, sJ):
        B = []
        B.append(f"""s_mul_i32 s49, s{sJ}, {GREG}
        s_lshl_b32 s54, s{sJ}, 2
        s_add_u32 s54, s54, {SY_PG}
        v_mov_b32 v160, s54
        v_lshrrev_b32 v48, 4, v0
        v_and_b32 v49, 15, v0
        v_lshrrev_b32 v50, 5, v0
        v_and_b32 v51, 31, v0
        v_and_b32 v52, 3, v0
        v_bfe_u32 v53, v0, 2, 2
        v_lshlrev_b32 v161, 2, v52
        v_add_u32 v161, {SY_PG}, v161
        v_mov_b32 v164, {SYN}
        v_lshrrev_b32 v30, 3, v0
        v_and_b32 v31, 7, v0
        v_lshlrev_b32 v13, 1, v48
        v_xor_b32 v13, v13, v31
        v_lshlrev_b32 v30, 12, v30
        v_lshl_add_u32 v13, v13, 4, v30""")
        B.append(f"""s_mul_i32 s64, s{sJ}, {384*4096}
        s_lshl_b32 s54, s62, 7
        s_add_u32 s64, s64, s54
        s_mul_i32 s65, s{sJ}, {48*10240}
        s_mul_i32 s54, s63, 1280
        s_add_u32 s65, s65, s54
        s_add_u32 s65, s65, {UI}
        v_mul_u32_u24 v14, 10240, v48
        v_lshl_add_u32 v14, v49, 4, v14
        v_bfe_u32 v30, v0, 2, 3
        v_lshrrev_b32 v31, 2, v0
        v_lshlrev_b32 v31, 7, v31
        v_lshl_add_u32 v31, v52, 3, v31
        v_add_u32 v31, s49, v31
        v_lshrrev_b32 v32, 1, v30
        v_xor_b32 v32, s{sJ}, v32
        """ + "\n".join(f"v_xor_b32 v33, {si}, v32\nv_lshl_add_u32 v{15+si}, v33, 5, v31" for si in range(4)) + f"""
        v_lshlrev_b32 v12, 15, v48
        v_lshl_add_u32 v12, v49, 4, v12
        v_add_u32 v19, s66, v49
        v_mul_u32_u24 v19, 1280, v19
        v_lshl_add_u32 v19, v48, 3, v19""")
        B.append("\n".join(f"""v_add_u32 v31, {64*m}, v0
            v_mul_u32_u24 v32, 6554, v31
            v_lshrrev_b32 v32, 16, v32
            v_mul_u32_u24 v32, {1280-160}, v32
            v_lshl_add_u32 v{1+m}, v31, 4, v32""" for m in range(5)))
        B.append(f"""v_mul_u32_u24 v31, 20, v50
        v_add_u32 v31, v31, v30
        v_mul_u32_u24 v31, 160, v31
        v_lshl_add_u32 v6, v52, 3, v31
        v_add_u32 v7, 51200, v6
        v_mul_u32_u24 v31, 40, v48
        v_add_u32 v31, v31, v53
        v_add_u32 v31, 16, v31
        v_mul_u32_u24 v31, 160, v31
        v_lshl_add_u32 v31, v52, 3, v31
        v_and_b32 v32, 1, v48
        v_mul_u32_u24 v32, 3200, v32
        v_sub_u32 v9, v31, v32
        v_add_u32 v9, 3200, v9
        v_add_u32 v8, v31, v32
        v_add_u32 v10, 51200, v8
        v_add_u32 v11, 51200, v9""")
        B.append("s_and_b32 s54, s52, 3\ns_lshl_b32 s54, s54, 1\n" + s.tr_addr(24, 0x10000, 54, 32, 33))
        B.append("s_xor_b32 s54, s52, s51\ns_and_b32 s54, s54, 3\ns_lshl_b32 s54, s54, 6\ns_add_u32 s54, s54, 16384\n" + "\n".join(f"v_xor_b32 v{28+k}, s54, v{24+k}" for k in range(4)))
        B.append("\n".join(f"v_pk_mov_b32 {vr(r,2)}, 0, 0" for r in range(80, 128, 2)))
        B.append("s_waitcnt vmcnt(0)\n" + "\n".join(f"v_lshlrev_b32 v{64+2*q}, 16, v{54+q%4}\nv_and_b32 v{65+2*q}, 0xffff0000, v{54+q%4}" for q in range(8)) + "\nv_lshlrev_b32 v20, 16, v62")
        return B

    def xaddr(s, sJ, vw, vr0):
        s(f"v_lshlrev_b32 v{vw}, 4, v0")
        for n in range(1, 4):
            s(f"s_xor_b32 s54, s{sJ}, {n}\ns_mul_i32 s54, s54, {GREG}\ns_add_u32 s54, s54, {(n-1)*4096}\nv_add_u32 v{vr0+n-1}, s54, v{vw}")
        s(f"v_add_u32 v{vw}, s49, v{vw}")

    def gpost(s):
        s.gsync_n += 1
        s(f"s_waitcnt lgkmcnt(0)\nv_mov_b32 v162, {s.gsync_n}\nds_write_b32 v160, v162")
    def gwait(s, sleep=2):
        s.lds_spin(161, s.gsync_n, 163, sleep=sleep)

    def ln_loads(s, sJ):
        X = (8, 13); GWR = 18
        s(f"""s_and_b32 s67, s{sXC}, 3
        s_lshl_b32 s67, s67, 6
        s_lshr_b32 s68, s{sXC}, 2
        s_lshl_b32 s68, s68, 5
        s_add_u32 s67, s67, s68
        s_add_u32 s67, s67, s{sI}
        s_lshl_b32 s68, s67, 3
        s_lshl_b32 s69, s{sJ}, 1
        s_add_u32 s68, s68, s69
        s_mul_i32 s69, s68, 1280
        v_and_b32 v1, 31, v0
        v_lshrrev_b32 v3, 5, v0
        v_lshlrev_b32 v2, 3, v1
        v_lshlrev_b32 v1, 4, v1
        v_mul_u32_u24 v19, 1280, v3
        v_add_u32 v18, v19, v1
        v_add_u32 v19, v19, v2""")
        s.kwait()
        if s.opt.get('noln'): return
        s(f"""buffer_load_dwordx4 v[8:11], v18, {srd(sX)}, s69 offen
        buffer_load_dwordx4 v[12:15], v18, {srd(sX)}, s69 offen offset:512
        buffer_load_dwordx2 v[16:17], v19, {srd(sX)}, s69 offen offset:1024
        global_load_dwordx4 v[20:23], v1, s[{sGW}:{sGW+1}]
        global_load_dwordx4 v[24:27], v1, s[{sGW}:{sGW+1}] offset:512
        global_load_dwordx2 v[28:29], v2, s[{sGW}:{sGW+1}] offset:1024""")
        if s.opt.get('wpf', 0):
            s(f"""s_mul_i32 s70, s2, 9600
            s_mul_i32 s71, s{sJ}, {19*128}
            s_add_u32 s70, s70, s71
            v_min_u32 v166, 18, v0
            v_lshlrev_b32 v166, 7, v166
            buffer_load_dword v166, v166, {srd(sWQ)}, s70 offen""")

    def layernorm(s, sJ):
        X, GW, XV = 8, 20, 32
        nb = [0]
        def bar():
            nb[0] += 1; s("s_barrier")
        gl = [(31,1,30,sDBG,"0",0)]
        s(f"""s_mov_b32 s70, 0x3f803f80
        s_lshl_b32 s55, s68, 2
        s_add_u32 s55, s55, {GI}
        s_add_u32 s69, s69, {HI}
        v_lshlrev_b32 v3, 2, v3
        v_and_b32 v30, 15, v0
        v_lshlrev_b32 v30, 2, v30""")
        if s.opt.get('lnb', 0) == 2: s("s_waitcnt lgkmcnt(0)"); bar()
        s(f"s_waitcnt vmcnt({1 if s.opt.get('wpf', 0) else 0})")
        s.stamp(1)
        for i in range(10):
            s(f"v_dot2_f32_bf16 v4, v{X+i}, s70, {'v4' if i else 0}")
            s(f"v_dot2_f32_bf16 v5, v{X+i}, v{GW+i}, {'v5' if i else 0}")
        un = []
        for i in range(10):
            un += [f"v_lshlrev_b32 v{XV+2*i}, 16, v{X+i}", f"v_and_b32 v{XV+2*i+1}, 0xffff0000, v{X+i}"]
        def fill(n):
            for _ in range(n): s(un.pop(0) if un else "s_nop 0")
        fill(3)
        for k in (8, 4, 2, 1):
            for q in (4, 5): s(f"v_add_f32_dpp v{q}, v{q}, v{q} row_ror:{k} row_mask:0xf bank_mask:0xf")
            fill(1)
        s("v_mov_b32 v6, v4\nv_mov_b32 v7, v5"); fill(2)
        s("v_permlane16_swap_b32 v4, v6\nv_permlane16_swap_b32 v5, v7"); fill(2)
        s(f"""v_add_f32 v4, v4, v6
        v_add_f32 v5, v5, v7
        v_mul_f32 v4, {fbits(-1/640)}, v4
        v_mul_f32 v5, {fbits(-math.log2(math.e))}, v5
        v_exp_f32 v5, v5""")
        fill(len(un))
        s("v_add_f32 v5, 1.0, v5\nv_rcp_f32 v2, v5")
        for e in range(0, 20, 2): s(f"v_pk_add_f32 {vr(XV+e,2)}, {vr(XV+e,2)}, v[4:5] op_sel_hi:[1,0]")
        for e in range(0, 20, 2):
            a = (6, 52)[(e >> 1) & 1]
            if e < 4: s(f"v_pk_mul_f32 {vr(a,2)}, {vr(XV+e,2)}, {vr(XV+e,2)}")
            else: s(f"v_pk_fma_f32 {vr(a,2)}, {vr(XV+e,2)}, {vr(XV+e,2)}, {vr(a,2)}")
        s("v_pk_add_f32 v[6:7], v[6:7], v[52:53]\nv_add_f32 v6, v6, v7")
        for k in (8, 4, 2, 1):
            s(f"s_nop 1\nv_add_f32_dpp v6, v6, v6 row_ror:{k} row_mask:0xf bank_mask:0xf")
        s(f"""v_mov_b32 v7, v6
        v_mov_b32 v4, {fbits(1e-5)}
        s_nop 0
        v_permlane16_swap_b32 v6, v7
        s_nop 1
        v_add_f32 v6, v6, v7
        v_fmac_f32 v4, {fbits(1/640)}, v6
        v_rsq_f32 v4, v4
        s_nop 0""")
        for e in range(0, 20, 2):
            s(f"v_pk_mul_f32 {vr(XV+e,2)}, {vr(XV+e,2)}, v[4:5] op_sel_hi:[1,0]")
        for i in range(10): s(f"v_cvt_pk_bf16_f32 v{X+i}, v{XV+2*i}, v{XV+2*i+1}")
        nx, done = s.new("g"), s.new("g")
        if s.opt.get('lnb', 0) == 1: s("s_waitcnt lgkmcnt(0)"); bar()
        s(f"""buffer_store_dwordx4 v[8:11], v18, {srd(sWS)}, s69 offen sc1
        buffer_store_dwordx4 v[12:15], v18, {srd(sWS)}, s69 offen offset:512 sc1
        buffer_store_dwordx2 v[16:17], v19, {srd(sWS)}, s69 offen offset:1024 sc1
        s_mov_b32 exec_lo, 1
        s_mov_b32 exec_hi, 1
        buffer_store_dword v2, v3, {srd(sWS)}, s55 offen sc1
        s_mov_b64 exec, -1
        s_cmp_lg_u32 s{sJ}, 0
        s_cbranch_scc1 {s.ln(nx)}""")
        s.poll_issue(gl)
        s.lab(nx)
        if s.opt.get('b0st'): s.stamp(7)
        s("s_waitcnt lgkmcnt(0)")
        for _ in range(s.opt.get('lnw', 2)): bar()
        s("s_waitcnt vmcnt(0)")
        bar()
        s(f"""s_mul_i32 s54, s67, {s.hsp}
        s_add_u32 s54, s54, {F_H}
        s_cmp_lg_u32 s{sJ}, 0
        s_cbranch_scc1 {s.ln(done)}""")
        s.poll(gl, sleep=4, pre=0)
        s.set_flag("s54", 4, 5)
        s.lab(done)
        s.gtiles(sJ)
        return nb[0]

    def gpoll(s, pre, loads, ok, sleep, lsl=4, atom=None):
        nx = s.new("gp")
        s(f"s_cmp_lg_u32 s48, 0\ns_cbranch_scc1 {s.ln(nx)}")
        for addr, need in pre: s.lds_spin(164, need, 165, off=addr-SYN, sleep=lsl)
        if loads: s.poll(loads, sleep=sleep)
        if atom: s.apoll(*atom, sleep)
        s(f"v_mov_b32 v165, 1\nds_write_b32 v164, v165 offset:{ok-SYN}")
        s.lab(nx)
        s.lds_spin(164, 1, 165, off=ok-SYN, sleep=lsl)

    def g2_dW(s, t):
        L = []
        for n in range(4):
            pre = f"s_add_u32 m0, s49, {(t%3)*4096}\ns_nop 0\n" if n == 0 else ""
            inc = 32768-1024 if n < 3 else 32768+3*1024
            L.append(pre + f"buffer_load_dwordx4 v13, {srd(sW2)}, s64 offen offset:{1024*n} lds\ns_add_u32 s64, s64, {inc}")
        return L

    def pfwo(s):
        s(f"""s_lshl_b32 s60, s{sI}, 2
        s_add_u32 s60, s60, s48
        s_mul_i32 s61, s60, 6400
        v_min_u32 v30, 49, v0
        v_lshlrev_b32 v30, 7, v30
        buffer_load_dword v167, v30, {srd(sWO)}, s61 offen""")

    def gemm1(s, sJ):
        ACC = 64
        skip, fin = s.new("g1skip"), s.new("g1fin")
        s(f"s_cmp_eq_u32 s{sCT}, 15\ns_cbranch_scc1 {s.ln(skip)}")
        reads, mf = s.gemm_ops(24, True, 28)
        s(f"s_setprio {s.opt.get('gp1', 1)}")
        for l in reads(0,0): s(l)
        s("s_mov_b32 s54, 4")
        s.gemm_loop(reads, mf, 0, range(24, 32), 54, True)
        s.stamp(3)
        if s.opt.get('dbgx') == 3: s.end_wave()
        s(f"""s_setprio 3
        s_lshl_b32 s55, s{sN1}, 2
        s_lshl_b32 s57, s{sJ}, 11
        s_add_u32 s57, s57, {PI}
        v_lshlrev_b32 v29, 4, v0""")
        s.gpost()
        hold = s.opt.get('phold', 3)
        for n in range(1, 4):
            m = (0, 2, 1, 3)[n]
            p = 32 + 8*(n-1)
            s(f"""s_xor_b32 s54, s50, {m}
            s_add_u32 s54, s54, s55
            s_mul_i32 s54, s54, 24576
            s_add_u32 s54, s54, s57
            s_add_u32 s{57+n}, s54, {(n-1)*8192}""")
            s.al8()
            for q in range(8): s(f"v_cvt_pk_bf16_f32 v{p+q}, v{ACC+16*n+2*q}, v{ACC+16*n+2*q+1}")
        if hold: s.lds_spin(164, max(1, hold-1), 165, off=(SY_QOK if hold == 1 else SY_PA)-SYN, sleep=(2 if hold < 3 else 6))
        wa, wb = s.opt.get('wa', 0), s.opt.get('wb', 1)
        s.gwait()
        s(f"s_setprio {s.opt.get('psp', 0)}")
        for n in range(1, 4):
            p = 32 + 8*(n-1)
            s(f"""buffer_store_dwordx4 {vr(p,4)}, v29, {srd(sWS)}, s{57+n} offen sc1
            buffer_store_dwordx4 {vr(p+4,4)}, v29, {srd(sWS)}, s{57+n} offen offset:1024 sc1""")
        for t in range(wa):
            for l in s.g2_dW(t): s(l)
        s(f"""s_setprio 3
        s_add_u32 s54, s55, s{sJ}
        s_mul_i32 s54, s54, {FSP}
        s_add_u32 s54, s54, {F_P}
        s_add_u32 s56, s55, s50
        s_mul_i32 s56, s56, 24576
        s_add_u32 s56, s56, s57
        s_mov_b64 exec, 1
        v_mov_b32 v30, 0
        v_mov_b32 v31, 1
        s_waitcnt vmcnt({4*wa})
        buffer_atomic_add v31, v30, {srd(sWS)}, s54 offen sc0 sc1
        s_waitcnt vmcnt(0)
        v_add_u32 v31, 1, v31""")
        s.apoll("s54", 4, 30, 31, s.opt.get('ppsl', 4), pre=True)
        s.stamp(4)
        for n in range(3):
            p = 32 + 8*n
            s(f"""buffer_load_dwordx4 {vr(p,4)}, v29, {srd(sWS)}, s56 offen sc1
            buffer_load_dwordx4 {vr(p+4,4)}, v29, {srd(sWS)}, s56 offen offset:1024 sc1
            s_add_u32 s56, s56, 8192""")
        c0 = -2*math.sqrt(2/math.pi)*math.log2(math.e); c1 = c0*0.044715
        s(f"""s_mov_b32 s56, {fbits(c1)}
        s_mov_b32 s57, {fbits(c1)}
        v_mov_b32 v56, {fbits(c0)}
        v_mov_b32 v57, {fbits(c0)}
        s_mov_b32 s60, 1.0
        s_mov_b32 s61, 1.0
        s_mov_b32 s58, 0xffff0000""")
        T = ACC + 16
        for n in range(3):
            s(f"s_waitcnt vmcnt({4-2*n})")
            if s.opt.get('gst') and n == 0: s.stamp(1)
            s.al8()
            for q in range(8):
                s(f"v_lshlrev_b32 v{T+2*q}, 16, v{32+8*n+q}\nv_and_b32 v{T+2*q+1}, s58, v{32+8*n+q}")
            for r in range(0, 16, 2): s(f"v_pk_add_f32 {vr(ACC+r,2)}, {vr(ACC+r,2)}, {vr(T+r,2)}")
        for r in range(0, 16, 2): s(f"v_pk_mul_f32 {vr(T+r,2)}, {vr(ACC+r,2)}, {vr(ACC+r,2)}")
        for r in range(0, 16, 2): s(f"v_pk_fma_f32 {vr(T+r,2)}, {vr(T+r,2)}, s[56:57], v[56:57]")
        for r in range(0, 16, 2): s(f"v_pk_mul_f32 {vr(T+r,2)}, {vr(T+r,2)}, {vr(ACC+r,2)}")
        for r in range(16): s(f"v_exp_f32 v{T+r}, v{T+r}")
        for r in range(0, 16, 2): s(f"v_pk_add_f32 {vr(T+r,2)}, {vr(T+r,2)}, s[60:61]")
        for r in range(16): s(f"v_rcp_f32 v{T+r}, v{T+r}")
        for r in range(0, 16, 2): s(f"v_pk_mul_f32 {vr(T+r,2)}, {vr(T+r,2)}, {vr(ACC+r,2)}")
        for q in range(8): s(f"v_cvt_pk_bf16_f32 v{40+q}, v{T+2*q}, v{T+2*q+1}")
        if s.opt.get('gst'): s.stamp(2)
        s(f"""s_mul_i32 s54, s51, {4*10240}
        s_lshl_b32 s57, s52, 9
        s_add_u32 s54, s54, s57
        s_add_u32 s54, s54, {UI}
        buffer_store_dwordx4 v[40:43], v14, {srd(sWS)}, s54 offen sc1
        buffer_store_dwordx4 v[44:47], v14, {srd(sWS)}, s54 offen offset:256 sc1
        """)
        if s.opt.get('gst'): s.stamp(3)
        for t in range(wa, wa+wb):
            for l in s.g2_dW(t): s(l)
        uw = s.opt.get('uw', 1); ur = s.opt.get('ur', 8)
        if uw:
            s(f"""s_mul_i32 s54, s52, 410
            s_add_u32 s58, s54, 397
            s_lshr_b32 s54, s54, 10
            s_lshr_b32 s58, s58, 10
            s_cmp_eq_u32 s54, s58
            s_mov_b32 s58, {((1 << ur) - 1) * 0x101}
            s_cmov_b32 s58, {(1 << ur) - 1}
            s_mov_b32 s59, 0
            s_mul_i32 s57, s{sF1}, 11
            s_lshr_b32 s57, s57, 5
            s_lshl_b32 s57, s57, 3
            s_add_u32 s54, s54, s57
            s_mul_i32 s54, s54, {8*FSP}
            s_add_u32 s54, s54, {F_U}
            v_mul_u32_u24 v32, {FSP}, v0
            v_mov_b32 v31, 1
            s_mov_b64 exec, s[58:59]
            s_waitcnt vmcnt({4*wb})
            buffer_atomic_add v31, v32, {srd(sWS)}, s54 offen sc1
            s_mov_b64 exec, -1""")
        else:
            s(f"""s_mul_i32 s54, s{sD1}, 13
            s_lshr_b32 s54, s54, 3
            s_mul_i32 s57, s{sF1}, 11
            s_lshr_b32 s57, s57, 5
            s_lshl_b32 s57, s57, 3
            s_add_u32 s54, s54, s57
            s_mul_i32 s54, s54, {8*FSP}
            s_add_u32 s54, s54, {F_U}
            s_bitcmp1_b32 s{sD1}, 0
            s_mov_b32 s58, 0xffff
            s_cmov_b32 s58, 0xffffff
            s_mov_b32 s59, 0
            v_mul_u32_u24 v32, {FSP}, v0""")
            s.arrive_add(SY_CU, 4, "s54", 32, "s[58:59]", 30, 31, 4*wb)
        s(f"s_branch {s.ln(fin)}")
        s.lab(skip)
        for _ in range(7): s("s_barrier")
        s("s_setprio 3")
        if s.opt.get('ldstamp'): s.end_wave()
        s.lds_spin(164, s.opt.get('skipw', 6), 165, off=SY_PA-SYN, sleep=8)
        for t in range(wa+wb):
            for l in s.g2_dW(t): s(l)
        s("s_waitcnt vmcnt(0)")
        s.lab(fin)
        s.pfwo()
        s.stamp(5)
        if s.opt.get('dbgx') or s.opt.get('ldstamp'): s.end_wave()

    def gemm2(s, sJ):
        ACC, UB, BB = 64, (24, 44), 144
        vW, vU, aT = 13, 14, 15
        sST, sDT, sOW, sOU, sTK = 62, 63, 64, 65, 66
        NS = 3
        dW = s.g2_dW
        def lU(t, rev=False):
            L = [f"buffer_load_dwordx4 {vr(UB[t&1]+4*di,4)}, v{vU}, {srd(sWS)}, s{sOU} offen offset:{256*di} sc1" for di in (range(4, -1, -1) if rev else range(5))]
            L[4] += f"\ns_add_u32 s{sOU}, s{sOU}, 40960"
            return L
        def rd(t, si):
            o = (t % NS)*4096
            return f"ds_read_b64_tr_b16 {vr(BB+4*si,2)}, v{aT+si} offset:{o}\nds_read_b64_tr_b16 {vr(BB+4*si+2,2)}, v{aT+si} offset:{o+2048}"
        def mf(t, si, di):
            d = vr(ACC+20*si+4*di,4)
            if s.opt.get('gnomf'): return "s_nop 3"
            return f"v_mfma_f32_16x16x32_bf16 {d}, {vr(UB[t&1]+4*di,4)}, {vr(BB+4*si,4)}, {d if t else 0}"
        s(f"s_setprio {s.opt.get('gp2', 0)}")
        for t in range(s.opt.get('wa', 0) + s.opt.get('wb', 1), 3):
            for l in dW(t): s(l)
            if (s.opt.get('wpre', 3) >> t) & 1: s("s_waitcnt vmcnt(0)")
        hl = [(28,1,25,sWS,"s57",0)]
        s(f"""s_setprio 3
        s_mul_i32 s55, s{sDT}, 80
        s_lshr_b32 s54, s55, 7
        s_add_u32 s55, s55, 79
        s_lshr_b32 s55, s55, 7
        s_cmp_eq_u32 s54, s55
        s_cselect_b32 s55, 12, 24
        {"s_mov_b32 s55, 36" if s.opt.get('uw', 1) else ""}
        s_lshl_b32 s54, s{sJ}, 3
        s_add_u32 s54, s54, s{sDT}
        s_lshl_b32 s54, s54, 3
        s_and_b32 s57, s{sXC}, {s.opt.get('ur', 8)-1}
        s_add_u32 s54, s54, s57
        s_mul_i32 s54, s54, {FSP}
        s_add_u32 s54, s54, {F_U}
        s_mul_i32 s57, s{sST}, {8*s.hsp}
        s_add_u32 s57, s57, {F_H}
        v_and_b32 v25, 7, v0
        v_mul_u32_u24 v25, {s.hsp}, v25""")
        s.poll_issue(hl)
        s.apoll("s54", "s55", 26, 27, s.opt.get('usl', 4))
        s.poll(hl, sleep=4, pre=0)
        s(f"""s_lshl_b32 s54, s{sTK}, 2
        s_add_u32 s54, s54, {GI}
        v_and_b32 v22, 15, v0
        v_lshlrev_b32 v22, 2, v22
        s_setprio {s.opt.get('gp2', 0)}
        buffer_load_dword v22, v22, {srd(sWS)}, s54 offen sc1""")
        s.stamp(6)
        if s.opt.get('dbgy') == 3: s.end_wave()
        for t in range(2):
            for l in lU(t): s(l)
        s("s_waitcnt vmcnt(10)")
        for si in range(4): s(rd(0, si))
        NT = 12
        s(f"""s_mul_i32 s56, s{sJ}, {160*1280}
        s_mul_i32 s54, s{sDT}, 160
        s_add_u32 s56, s56, s54""")
        def wo1(n):
            return f"s_add_u32 m0, s49, {n*1024}\ns_add_u32 s57, s56, {(n//5)*32*1280}\nbuffer_load_dwordx4 v{1+n%5}, {srd(sWO)}, s57 offen lds"
        cnt = []
        for t in range(NT):
            if t == s.opt.get('gp2t', 99): s(f"s_setprio {s.opt.get('gp2b', 0)}")
            nold = s.opt.get('gnold')
            uo = s.opt.get('uo', 1)
            if uo == 1: U = lU(t+1) if 0 < t and t+1 < NT and not nold else []
            else: U = lU(t+2) if t+2 < NT and not nold else []
            W = dW(t+3) if t+3 < NT else [wo1(4*(t-9) + q) for q in range(4)]
            if nold and t+3 < NT: W = []
            X = [wo1(18+t if t < 7 else 6+t)] + ([wo1(12)] if t == 10 else [])
            s(f"s_waitcnt vmcnt({cnt[-1] if t else 5})")
            cnt.append((0 if uo == 1 else len(U)) + len(W) + len(X))
            if t == 9: s.gpost()
            for si in range(4):
                s(f"s_waitcnt lgkmcnt({6 if t+1 < NT else 2*(3-si)})")
                for di in range(5):
                    s(mf(t, si, di if si % 2 == 0 or not s.opt.get('serp', 1) else 4-di))
                    if si == 3 and di < len(W): s(W[di])
                    if si == (2 if uo == 1 else 1) and di < len(X): s(X[di])
                    if uo == 1 and si == 0 and U: s(U[di])
                    if uo == 2 and si == 3 and U: s(lU(t+2, True)[di])
                if t+1 < NT: s(rd(t+1, si))
            if uo == 0:
                for l in U: s(l)
        s.stamp(7)
        if s.opt.get('dbgy') == 1: s.end_wave()
        s("s_setprio 3")
        s.gwait(1)
        ORD = [3, 7, 11, 15] + [t for t in range(20) if t % 4 != 3 or t > 15]
        OB = 64; AC = 24
        FX = s.opt.get('fx', 11)
        FB = [44, 48, 52, 56, 60, 144, 148, 152, 156] + [100 + 4*q for q in range(FX)]; NB = len(FB)
        def rdf(n):
            t, di = divmod(n, 5); b = FB[n % NB]; t = ORD[t]
            if t < 16:
                a = 6 if t < 8 else 7; o = (t % 8)*6400 + 32*di
                return f"ds_read_b64_tr_b16 {vr(b,2)}, v{a} offset:{o}\nds_read_b64_tr_b16 {vr(b+2,2)}, v{a} offset:{o+1280}"
            tp = t-16; a = 8 if tp < 2 else 10; o = (tp % 2)*25600 + 32*di
            return f"ds_read_b64_tr_b16 {vr(b,2)}, v{a} offset:{o}\nds_read_b64_tr_b16 {vr(b+2,2)}, v{a+1} offset:{o}"
        FD = s.opt.get('fd', 9)
        for n in range(FD): s(rdf(n))
        s(f"""v_lshlrev_b32 v13, 4, v0
        s_mul_i32 s54, s{sJ}, 15360
        s_add_u32 s54, s54, {XB}
        v_add_u32 v1, s54, v13
        s_add_u32 s54, s54, 14336
        s_cmp_eq_u32 s{sJ}, 3
        s_cselect_b32 s54, 19200, s54
        v_add_u32 v2, s54, v13""")
        for n in range(1, 4):
            s(f"s_xor_b32 s54, s{sJ}, {n}\ns_mul_i32 s54, s54, 15360\ns_add_u32 s54, s54, {XB + (n-1)*5120}\nv_add_u32 v{2+n}, s54, v13")
        s(f"""s_add_u32 s54, s54, 4096
        s_cmp_eq_u32 s{sJ}, 0
        s_cselect_b32 s54, 19200, s54
        v_add_u32 v13, s54, v13
        v_and_b32 v14, 7, v0
        v_lshlrev_b32 v14, 2, v14
        v_add_u32 v14, {SY_PA}, v14
        v_sub_f32 v22, 1.0, v22
        v_mul_f32 v20, v20, v22
        s_lshl_b32 s56, s{sTK}, 4
        s_add_u32 s56, s56, {OI}
        s_lshr_b32 s54, s{sTK}, 5
        s_lshl_b32 s54, s54, 8
        s_add_u32 s54, s54, {F_O}""")
        s.gpost()
        if s.opt.get('tst'): s.stamp(3)
        s.lds_spin(14, 17, 165, sleep=8)
        s.lds_spin(14, 20, 165, sleep=s.opt.get('esl', 1))
        if s.opt.get('tst'): s.stamp(4)
        for n in range(1, 4):
            for q in range(5):
                e = 5*(n-1) + q
                if e < 14: s(f"ds_write_b128 v1, {vr(ACC+20*n+4*q,4)} offset:{1024*e}")
                else:
                    s.gwait(0)
                    s(f"ds_write_b128 v2, {vr(ACC+20*n+4*q,4)}")
        s("s_waitcnt vmcnt(0)")
        s.gpost()
        ope = s.opt.get('ope', 1)
        if ope == 2: s.apoll_issue("s54", 15, 16); s("s_mov_b64 exec, -1")
        s.gwait(0)
        if ope == 1: s.apoll_issue("s54", 15, 16); s("s_mov_b64 exec, -1")
        if s.opt.get('tst'): s.stamp(5)
        for n in range(1, 4):
            for q in range(5):
                if (n, q) != (3, 4): s(f"ds_read_b128 {vr(ACC+20*n+4*q,4)}, v{2+n} offset:{1024*q}")
                else: s(f"ds_read_b128 {vr(ACC+20*n+4*q,4)}, v13")
        for n in range(1, 4):
            s(f"s_waitcnt lgkmcnt({5*(3-n)})"); s.al8()
            for r in range(0, 20, 2): s(f"v_pk_add_f32 {vr(ACC+r,2)}, {vr(ACC+r,2)}, {vr(ACC+20*n+r,2)}")
        for r in range(0, 20, 2): s(f"v_pk_fma_f32 {vr(AC+r,2)}, {vr(ACC+r,2)}, v[22:23], v[20:21] op_sel_hi:[1,0,0]")
        for n in range(FD, FD+FX): s(rdf(n))
        if s.opt.get('tst'): s.stamp(6)
        s.apoll("s54", 32, 15, 16, s.opt.get('osl', 2), pre=bool(ope))
        s.stamp(8)
        if s.opt.get('dbgy') == 2: s.end_wave()
        def lO(t):
            b = OB+4*(t % NO)
            if ORD[t] < 16: return f"s_add_u32 s57, s56, {ORD[t]*131072}\nbuffer_load_dwordx4 {vr(b,4)}, v12, {srd(sWS)}, s57 offen sc1"
            return f"s_add_u32 s57, s58, {ORD[t]*131072}\nbuffer_load_dwordx2 {vr(b,2)}, v3, {srd(sWS)}, s57 offen sc1\nbuffer_load_dwordx2 {vr(b+2,2)}, v4, {srd(sWS)}, s57 offen sc1"
        def nO(t0, t1): return sum(1 if ORD[t] < 16 else 2 for t in range(t0, t1))
        PD = s.opt.get('opd', 8); NO = 9 if FX else 20
        assert PD < NO
        for t in range(PD): s(lO(t))
        s(f"""s_lshl_b32 s58, s{sTK}, 3
        s_add_u32 s58, s58, {OI}
        v_lshrrev_b32 v3, 4, v0
        v_and_b32 v4, 1, v3
        v_lshl_add_u32 v3, v3, 1, v4
        v_lshlrev_b32 v3, 14, v3
        v_and_b32 v4, 15, v0
        v_lshl_add_u32 v3, v4, 3, v3
        v_xor_b32 v4, 0x4000, v3""")
        if s.opt.get('om', 1):
            s(f"""s_xor_b32 s55, s{sJ}, 1
            s_mul_i32 s55, s55, 15360
            s_add_u32 s55, s55, {XB}
            v_and_b32 v17, 15, v0
            v_mul_u32_u24 v17, 160, v17
            v_lshrrev_b32 v18, 4, v0
            v_lshl_add_u32 v17, v18, 3, v17
            v_add_u32 v17, s55, v17
            v_lshlrev_b32 v18, 4, v0
            v_add_u32 v18, s55, v18""")
            for m in range(3):
                s(f"""v_add_u32 v1, {64*m}, v0
                v_mul_u32_u24 v2, 6554, v1
                v_lshrrev_b32 v2, 16, v2
                v_mul_u32_u24 v2, {1280-160}, v2
                v_lshl_add_u32 v{13+m}, v1, 4, v2""")
        F0 = FD + FX
        pos = {n: ((n-F0)*(99-FD))//(99-F0) for n in range(F0, 100)}
        issued = []
        if FX: s("s_waitcnt lgkmcnt(0)")
        for n in range(100):
            t, di = divmod(n, 5)
            w = []
            if di == 0: w.append(f"vmcnt({nO(t+1, min(t+PD, 20))})")
            wg = {0: (1,1,1,1,1), 1: (3,0,0,2,0), 2: (2,0,2,0,1), 3: (5,0,0,0,0)}[s.opt.get('wg', 1)][di]
            last = n+wg-1
            if wg and last >= F0:
                assert last in issued
                w.append(f"lgkmcnt({min(15, 2*(len(issued)-1-issued.index(last)))})")
            if w: s("s_waitcnt " + " ".join(w))
            if s.opt.get('wst') and n in (0, 25, 50, 75, 99): s.stamp(3 + (n+1)//25)
            d = vr(AC+4*di,4)
            s(f"v_mfma_f32_16x16x32_bf16 {d}, {vr(FB[n % NB],4)}, {vr(OB+4*(t % NO),4)}, {d}")
            for k in sorted(pos):
                if pos[k] == n:
                    assert k - NB <= n
                    s(rdf(k)); issued.append(k)
            if di == 4 and t+PD < 20: s(lO(t+PD))
        osc = ("", " sc1", " nt", " sc0 sc1", " sc1 nt")[s.opt.get('osc', 0)]
        om = s.opt.get('om', 1)
        s(f"s_mul_i32 s54, s{sDT}, 160\ns_nop 7")
        if om == 0:
            for di in range(5):
                s(f"""v_cvt_pk_bf16_f32 v{2+2*di}, v{AC+4*di}, v{AC+4*di+1}
                v_cvt_pk_bf16_f32 v{3+2*di}, v{AC+4*di+2}, v{AC+4*di+3}
                buffer_store_dwordx2 {vr(2+2*di,2)}, v19, {srd(sOUT)}, s54 offen offset:{32*di}{osc}""")
        else:
            for di in range(5):
                s(f"""v_cvt_pk_bf16_f32 v{2+2*di}, v{AC+4*di}, v{AC+4*di+1}
                v_cvt_pk_bf16_f32 v{3+2*di}, v{AC+4*di+2}, v{AC+4*di+3}
                ds_write_b64 v17, {vr(2+2*di,2)} offset:{32*di}""")
            s(f"s_mul_i32 s55, s{sTK}, 1280\ns_add_u32 s54, s54, s55")
            for m in range(3): s(f"ds_read_b128 {vr(44+4*m,4)}, v18 offset:{1024*m}")
            for m in range(3):
                if m == 2: s("s_mov_b32 exec_hi, 0")
                s(f"s_waitcnt lgkmcnt({2-m})\nbuffer_store_dwordx4 {vr(44+4*m,4)}, v{13+m}, {srd(sOUT)}, s54 offen{osc}")

    def text(s):
        s.prologue()
        m = s.opt.get('asc', 0)
        for k, r in enumerate((sX, sWQ, sW1, sW2, sWO)):
            if (m >> k) & 1: s.L = [l.replace(" lds", " sc1 lds") if srd(r) in l and l.endswith(" lds") else l for l in s.L]
        head = f".globl {s.k}\n.p2align 8\n.type {s.k},@function\n{s.k}:\n"
        return head + "\n".join(s.L) + "\n"

def kd(k):
    return f""".amdhsa_kernel {k}
  .amdhsa_next_free_vgpr 168
  .amdhsa_next_free_sgpr 102
  .amdhsa_accum_offset 168
  .amdhsa_group_segment_fixed_size 0
  .amdhsa_kernarg_size 96
  .amdhsa_user_sgpr_count 2
  .amdhsa_user_sgpr_kernarg_segment_ptr 1
  .amdhsa_system_sgpr_workgroup_id_x 1
.end_amdhsa_kernel
"""

def build(mode="fused", stamps=False, opt=None):
    k = NAME + "_kernel"
    out = f"; @launch grid=(256,1,1) block=(768,1,1) lds={LDS_BYTES}\n"
    out += '.amdgcn_target "amdgcn-amd-amdhsa--gfx950"\n.text\ncode_begin:\n'
    out += Gen(k, stamps, opt).text()
    out += 'code_end:\n.section .rodata,"a"\n.p2align 6\n' + kd(k)
    return out

if __name__ == "__main__":
    mode = sys.argv[1] if len(sys.argv) > 1 else "fused"
    stamps = "stamp" in sys.argv[2]
    opt = {}
    for a in sys.argv[3:]:
        k, v = a.split("="); opt[k] = int(v)
    open(sys.argv[2], "w").write(build(mode, stamps, opt))
```

```python
import sys, math, struct

NAME = "gated_mix__mha_block__mixer_token_mlp__prompt"

QI = 0x000000
KI = 0x280000
VI = 0x500000
HI = 0x780000
UI = 0xA00000
OI = 0xC00000
GI = 0xE80000
FL = 0xE90000
FSP = 64
F_P = FL
F_H = FL + 15360
F_U = FL + 0x4000
F_O = FL + 0x8000
F_Q = FL + 0xC000
FL_BYTES = 0x14000
HSP = 4
STAMP = 0xF00000
PI = 0x1000000
WS_BYTES = 0x1800000

GREG = 25600
XB = 102400
KVB = 117504
KVS = 11520
LNS = 148480
SYN = 163584
SY_PA = SYN
SY_PG = SYN + 32
SY_QOK = SYN + 52
SY_POK = SYN + 56
SY_UOK = SYN + 60
SY_OOK = SYN + 64
SY_CQ = SYN + 68
SY_CU = SYN + 72
SY_CO = SYN + 76
SY_CP = SYN + 80
DUMMY = 163328
LDS_BYTES = 163840

SPIN_LIMIT = 200000

def fbits(x):
    return "0x%08x" % struct.unpack("<I", struct.pack("<f", x))[0]

sX, sWQ, sWO, sW1, sW2, sWS, sOUT, sDBG = 4, 8, 12, 16, 20, 24, 28, 32
sB1, sB2, sGW = 36, 38, 40
sW, sXC, sI = 42, 43, 44
sSPIN = 45
sRT, sCT = 46, 47
sN1, sD1, sF1 = 3, 100, 101
def srd(n): return f"s[{n}:{n+3}]"
def vr(a, n): return f"v[{a}:{a+n-1}]" if n > 1 else f"v{a}"

class Gen:
    def __init__(s, kname, stamps=False, opt=None):
        s.L = []
        s.k = kname
        s.stamps = stamps
        s.uid = 0
        s.cold = []
        s.opt = opt or {}
        s.hsp = s.opt.get('hsp', HSP)
    def __call__(s, t):
        for l in t.split("\n"):
            l = l.strip()
            if l: s.L.append("    " + l)
    def al8(s):
        if s.opt.get('al8', 1): s.L.append(".p2align 3")
    def lab(s, n):
        s.L.append(f"{s.k}_{n}:")
    def ln(s, n):
        return f"{s.k}_{n}"
    def new(s, base):
        s.uid += 1
        return f"{base}{s.uid}"
    def stamp(s, i):
        if s.stamps and not (getattr(s, 'mute', False) and i < 9):
            s(f"s_memrealtime s[76:77]\ns_memtime s[78:79]\ns_waitcnt lgkmcnt(0)\ns_mov_b32 s{80+2*i}, s76\ns_mov_b32 s{81+2*i}, s78")
    def end_wave(s):
        if 'probe' in s.opt:
            k = s.opt['probe'] % 10; w = s.opt['probe'] // 10
            s.stamp(9)
            lp, nx = s.new("pr"), s.new("pr")
            s(f"""s_cmp_lg_u32 s2, {s.opt.get('pwg', 100)}
            s_cbranch_scc1 {s.ln(nx)}
            s_cmp_lg_u32 s{sW}, {w}
            s_cbranch_scc1 {s.ln(nx)}
            s_add_u32 s46, s{80+2*k}, 10000""")
            s.lab(lp)
            s(f"""s_memrealtime s[76:77]
            s_waitcnt lgkmcnt(0)
            s_sub_u32 s47, s76, s46
            s_cmp_lt_i32 s47, 0
            s_cbranch_scc1 {s.ln(lp)}""")
            s.lab(nx)
            s("s_endpgm")
            return
        if s.stamps:
            s.stamp(9)
            s(f"s_mul_i32 s46, s2, 12\ns_add_u32 s46, s46, s{sW}\ns_lshl_b32 s46, s46, 7\ns_add_u32 s46, s46, {STAMP}")
            s("s_mov_b64 exec, -1\nv_lshlrev_b32 v1, 2, v0\nv_mov_b32 v2, 0")
            for i in range(20): s(f"v_writelane_b32 v2, s{80+i}, {i}")
            s(f"s_mov_b32 exec_hi, 0\nbuffer_store_dword v2, v1, {srd(sWS)}, s46 offen")
        s("s_endpgm")

    def lds_spin(s, vaddr, need, vtmp, off=0, sleep=1):
        a, b = s.new("spin"), s.new("spind")
        s(f"s_mov_b32 s{sSPIN}, {SPIN_LIMIT*4}")
        s.lab(a)
        s(f"""ds_read_b32 v{vtmp}, v{vaddr} offset:{off}
        s_waitcnt lgkmcnt(0)
        v_cmp_gt_u32 vcc, {need}, v{vtmp}
        s_cbranch_vccz {s.ln(b)}
        s_sleep {sleep}
        s_sub_u32 s{sSPIN}, s{sSPIN}, 1
        s_cbranch_scc0 {s.ln(a)}""")
        s.lab(b)

    def spin_ool(s, vaddr, need, vtmp, off=0, sleep=0):
        out, back = s.new("ool"), s.new("back")
        s(f"s_cbranch_vccnz {s.ln(out)}")
        s.lab(back)
        keep = s.L; s.L = []
        s.lab(out)
        s.lds_spin(vaddr, need, vtmp, off=off, sleep=sleep)
        s(f"s_branch {s.ln(back)}")
        s.cold += s.L; s.L = keep
    def flush_cold(s):
        s.L += s.cold; s.cold = []

    def poll_issue(s, loads):
        regs = []
        for (vd, n, vo, r, so, imm) in loads:
            sfx = {1: "dword", 2: "dwordx2", 4: "dwordx4"}[n]
            s(f"buffer_load_{sfx} {vr(vd,n)}, v{vo}, {srd(r)}, {so} offen offset:{imm} sc1")
            regs += list(range(vd, vd+n))
        return regs
    def poll(s, loads, sleep=2, pre=None):
        a, b, c = s.new("poll"), s.new("polld"), s.new("pollc")
        s(f"s_mov_b32 s{sSPIN}, {SPIN_LIMIT}")
        if pre is not None: s(f"s_waitcnt vmcnt({pre})\ns_branch {s.ln(c)}")
        s.lab(a)
        regs = s.poll_issue(loads)
        s("s_waitcnt vmcnt(0)")
        s.lab(c)
        for q in regs[1:]:
            s(f"v_min_u32 v{regs[0]}, v{regs[0]}, v{q}")
        s(f"""v_cmp_eq_u32 vcc, 0, v{regs[0]}
        s_cbranch_vccz {s.ln(b)}
        s_sleep {sleep}
        s_sub_u32 s{sSPIN}, s{sSPIN}, 1
        s_cbranch_scc0 {s.ln(a)}""")
        s.lab(b)

    def set_flag(s, soff, va, vb):
        s(f"""s_mov_b64 exec, 1
        v_mov_b32 v{va}, 0
        v_mov_b32 v{vb}, 1
        buffer_store_dword v{vb}, v{va}, {srd(sWS)}, {soff} offen sc1
        s_mov_b64 exec, -1""")

    def arrive(s, cnt, n, soff, va, vb, younger=0):
        nx = s.new("arr")
        s(f"""s_mov_b64 exec, 1
        v_mov_b32 v{va}, {cnt}
        v_mov_b32 v{vb}, 1
        s_waitcnt vmcnt({younger})
        ds_add_rtn_u32 v{va}, v{va}, v{vb}
        s_waitcnt lgkmcnt(0)
        v_cmp_eq_u32 vcc, {n-1}, v{va}
        v_mov_b32 v{va}, 0
        s_cbranch_vccz {s.ln(nx)}
        buffer_store_dword v{vb}, v{va}, {srd(sWS)}, {soff} offen sc1""")
        s.lab(nx)
        s("s_mov_b64 exec, -1")

    def arrive_add(s, cnt, n, soff, voff, mask, va, vb, younger=0):
        nx = s.new("arr")
        s(f"""v_mov_b32 v{vb}, 1
        s_mov_b64 exec, 1
        v_mov_b32 v{va}, {cnt}
        s_waitcnt vmcnt({younger})
        ds_add_rtn_u32 v{va}, v{va}, v{vb}
        s_waitcnt lgkmcnt(0)
        v_cmp_eq_u32 vcc, {n-1}, v{va}
        s_cbranch_vccz {s.ln(nx)}
        s_mov_b64 exec, {mask}
        buffer_atomic_add v{vb}, v{voff}, {srd(sWS)}, {soff} offen sc1""")
        s.lab(nx)
        s("s_mov_b64 exec, -1")

    def apoll_issue(s, soff, va, vb, mask=1):
        s(f"""s_mov_b64 exec, {mask}
        {f"v_mov_b32 v{va}, 0" if mask == 1 else ""}
        v_mov_b32 v{vb}, 0
        buffer_atomic_add v{vb}, v{va}, {srd(sWS)}, {soff} offen sc0 sc1""")
    def apoll(s, soff, need, va, vb, sleep, pre=False, mask=1):
        a, b, c = s.new("apoll"), s.new("apolld"), s.new("apollc")
        s(f"s_mov_b32 s{sSPIN}, {SPIN_LIMIT}")
        if pre: s(f"s_mov_b64 exec, {mask}\ns_branch {s.ln(c)}")
        s.lab(a)
        s.apoll_issue(soff, va, vb, mask)
        s.lab(c)
        s(f"""s_waitcnt vmcnt(0)
        v_cmp_gt_u32 vcc, {need}, v{vb}
        s_cbranch_vccz {s.ln(b)}
        s_sleep {sleep}
        s_sub_u32 s{sSPIN}, s{sSPIN}, 1
        s_cbranch_scc0 {s.ln(a)}""")
        s.lab(b)
        s("s_mov_b64 exec, -1")

    def lds_set(s, addr, val, va, vb):
        s(f"""v_mov_b32 v{va}, {addr}
        v_mov_b32 v{vb}, {val}
        ds_write_b32 v{va}, v{vb}""")

    def kwait(s):
        if s.stamps and s.opt.get('kst'): s("s_memrealtime s[72:73]\ns_memtime s[74:75]\ns_waitcnt lgkmcnt(0)\ns_mov_b32 s84, s72\ns_mov_b32 s85, s74")
        s("s_waitcnt lgkmcnt(0)")
        if s.stamps: s("s_mov_b32 s80, s76\ns_mov_b32 s81, s78")

    def rest_init(s):
        for reg, off in ((sWS,88),(sDBG,80),(sW1,32),(sW2,48),(sWO,16),(sOUT,72),(sB1,40),(sB2,56)):
            s(f"s_load_dwordx2 s[{reg}:{reg+1}], s[0:1], {off}")
        for reg, n in ((sWO,819200),(sW1,6291456),(sW2,f"s{sW1+2}"),(sWS,WS_BYTES),(sOUT,f"s{sX+2}"),(sDBG,256)):
            s(f"s_mov_b32 s{reg+2}, {n}\ns_mov_b32 s{reg+3}, s{sX+3}")
        if s.stamps:
            for i in range(1, 10):
                if not (s.opt.get('b0st') and i in (2, 3, 4)): s(f"s_mov_b32 s{80+2*i}, 0")
        s(f"""s_lshr_b32 s{sN1}, s{sXC}, 2
        s_lshl_b32 s{sN1}, s{sN1}, 5
        s_add_u32 s{sN1}, s{sN1}, s{sI}
        s_min_u32 s{sN1}, s{sN1}, 59
        s_mul_i32 s{sF1}, s{sN1}, 52
        s_lshr_b32 s{sF1}, s{sF1}, 8
        s_mul_i32 s{sD1}, s{sF1}, 5
        s_sub_u32 s{sD1}, s{sN1}, s{sD1}
        s_waitcnt lgkmcnt(0)""")

    def prologue(s):
        c0 = s.opt.get('c0', 64)
        if c0: s(f"s_getpc_b64 s[4:5]\nv_and_b32 v1, {c0-1}, v0\nv_lshlrev_b32 v1, 7, v1\nglobal_load_dword v167, v1, s[4:5]".replace("s[4:5]", "s[50:51]"))
        if s.stamps: s("s_memrealtime s[76:77]\ns_memtime s[78:79]")
        for reg, off in ((sX,0),(sWQ,8),(sGW,64)):
            s(f"s_load_dwordx2 s[{reg}:{reg+1}], s[0:1], {off}")
        s(f"""s_cmp_ge_u32 s2, 256
        s_cbranch_scc1 {s.ln('exit')}
        v_lshrrev_b32 v1, 6, v0
        s_lshr_b32 s{sI}, s2, 3
        v_readfirstlane_b32 s{sW}, v1
        s_mov_b32 s{sX+2}, 2621440
        s_mov_b32 s{sX+3}, 0x00020000
        s_mov_b32 s{sWQ+2}, 2457600
        s_mov_b32 s{sWQ+3}, s{sX+3}""")
        xm = s.opt.get('xm', 1)
        if xm == 0: s(f"s_and_b32 s{sRT}, s2, 3\ns_bfe_u32 s49, s2, 0x10002")
        else:
            s(f"s_bfe_u32 s{sRT}, s2, 0x20001\ns_and_b32 s49, s2, 1")
            if xm == 2: s("s_xor_b32 s49, s49, 1")
        s(f"""s_lshl2_add_u32 s{sXC}, s49, s{sRT}
        s_and_b32 s48, s{sI}, 3
        s_lshl2_add_u32 s{sRT}, s{sRT}, s48
        s_lshr_b32 s48, s{sI}, 2
        s_lshl3_add_u32 s{sCT}, s49, s48
        """)
        if s.opt.get('gfirst', 1):
            nx = s.new("p")
            s(f"s_cmp_lt_u32 s{sW}, 8\ns_cbranch_scc1 {s.ln(nx)}")
            s.gfront0()
            s(f"s_branch {s.ln('grole')}")
            s.lab(nx)
        else: s(f"s_cmp_ge_u32 s{sW}, 8\ns_cbranch_scc1 {s.ln('grole')}")
        s(f"""s_cmp_eq_u32 s{sCT}, 15
        s_cbranch_scc1 {s.ln('idle')}
        s_cmp_lt_u32 s{sW}, 4
        s_cbranch_scc1 {s.ln('qkv_comp')}
        v_and_b32 v0, 63, v0""")
        s.loader()
        s(f"s_branch {s.ln('att')}")
        s.lab("idle")
        if s.opt.get('cpf', 1): s.code_prefetch()
        s("v_and_b32 v0, 63, v0")
        s.rest_init()
        s.kwait()
        nx = s.new("idle")
        s(f"""s_cmp_lg_u32 s{sW}, 0
        s_cbranch_scc1 {s.ln(nx)}
        v_lshlrev_b32 v1, 4, v0
        v_mov_b32 v4, 0
        v_mov_b32 v5, 0
        v_mov_b32 v6, 0
        v_mov_b32 v7, 0
        s_mul_i32 s52, s{sRT}, {FL_BYTES//16}
        s_add_u32 s52, s52, {FL}""")
        for n in range(FL_BYTES//16384):
            s(f"buffer_store_dwordx4 v[4:7], v1, {srd(sWS)}, s52 offen offset:{(n&3)*1024} sc1")
            if n & 3 == 3: s("s_add_u32 s52, s52, 4096")
        s(f"""s_lshl_b32 s52, s{sRT}, 2
        s_mov_b64 exec, 1
        s_waitcnt vmcnt(0)
        v_mov_b32 v5, 1
        buffer_store_dword v5, v4, {srd(sDBG)}, s52 offen sc1
        s_mov_b64 exec, -1""")
        s.lab(nx)
        s.att_vsetup()
        ipf = s.opt.get('ipf', 2)
        hi = s.new("idle")
        s(f"s_cmp_ge_u32 s{sW}, 4\ns_cbranch_scc1 {s.ln(hi)}")
        for _ in range(15): s("s_barrier")
        s(f"s_branch {s.ln('att')}")
        s.lab(hi)
        if ipf:
            s(f"""v_min_u32 v32, 59, v0
            v_mul_u32_u24 v33, {-(-65536//12)}, v32
            v_lshrrev_b32 v33, 16, v33
            v_mul_u32_u24 v34, {3072 - 12*128}, v33
            v_lshl_add_u32 v32, v32, 7, v34
            s_and_b32 s52, s{sI}, 3
            s_lshl_b32 s52, s52, 2
            s_add_u32 s52, s52, s{sW}
            s_sub_u32 s52, s52, 4
            s_mul_i32 s52, s52, 5
            s_and_b32 s53, s{sXC}, 3
            s_mul_i32 s53, s53, {512*3072}
            s_add_u32 s53, s53, 1536""")
            def pf():
                s(f"""s_min_u32 s54, s52, 507
                s_mul_i32 s54, s54, 3072
                s_add_u32 s54, s54, s53
                buffer_load_dword v166, v32, {srd(sW1)}, s54 offen
                s_add_u32 s52, s52, 80""")
            n0 = 0
            if ipf == 1: pf(); n0 += 1
            s("s_barrier")
            if ipf <= 2: pf(); n0 += 1
            for _ in range(3): s("s_barrier")
            for _ in range(n0, 7):
                s(f"s_waitcnt vmcnt({s.opt.get('ipd', 0)})"); pf()
            ipw = s.opt.get('ipw', 0)
            if ipw:
                s(f"""v_lshrrev_b32 v33, 2, v0
                v_lshlrev_b32 v33, 12, v33
                v_and_b32 v34, 3, v0
                v_lshl_add_u32 v33, v34, 7, v33
                s_and_b32 s52, s{sI}, 3
                s_lshl_b32 s52, s52, 2
                s_add_u32 s52, s52, s{sW}
                s_sub_u32 s52, s52, 4
                s_lshl_b32 s52, s52, 16
                s_xor_b32 s53, s{sXC}, {4 if ipw & 8 else 0}
                s_lshl_b32 s53, s53, 9
                s_add_u32 s52, s52, s53""")
                for _ in range(ipw & 7):
                    s(f"s_waitcnt vmcnt(0)\nbuffer_load_dword v166, v33, {srd(sW2)}, s52 offen\ns_add_u32 s52, s52, {256*4096}")
            for _ in range(13): s("s_barrier")
        else:
            for _ in range(17): s("s_barrier")
        s(f"s_branch {s.ln('att')}")
        s.lab("qkv_comp")
        s.qkv_compute()
        s.lab("att")
        s.mute = bool(s.opt.get('b0st'))
        s.attention()
        s.mute = False
        s.end_wave()
        s.flush_cold()
        s.att_slow()
        s.lab("grole2")
        s.grole()
        s.end_wave()
        s.lab("exit")
        s("s_endpgm")

    def code_prefetch(s):
        here, nx = s.new("pc"), s.new("pc")
        s("s_getpc_b64 s[50:51]")
        s.lab(here)
        s(f"""s_sub_u32 s50, s50, {s.ln(here)}-{s.k}
        s_subb_u32 s51, s51, 0
        s_lshl_b32 s52, s{sI}, 3
        v_cmp_gt_u32 vcc, 64, v0
        v_add_u32 v1, s52, v0
        s_movk_i32 s54, {72 if s.opt.get('cpf', 1) == 1 else 64}
        v_cmp_gt_u32 s[52:53], s54, v0
        v_cndmask_b32 v1, v1, v0, vcc
        v_lshlrev_b32 v1, 7, v1
        v_min_u32 v1, code_end-{s.k}-4, v1
        s_mov_b64 exec, s[52:53]
        s_cbranch_execz {s.ln(nx)}
        global_load_dword v165, v1, s[50:51]""")
        s.lab(nx)
        s("s_mov_b64 exec, -1")

    def loader(s):
        if s.opt.get('lprio'): s(f"s_setprio {s.opt['lprio']}")
        s(f"""s_and_b32 s53, s{sRT}, 3
        s_mul_i32 s53, s53, 5
        s_lshl1_add_u32 s53, s48, s53
        s_lshr_b32 s54, s{sRT}, 2
        s_add_u32 s53, s53, s54
        s_lshr_b32 s53, s53, 1
        s_cmp_ge_u32 s53, 10
        s_cselect_b32 s54, 10, 0
        s_sub_u32 s53, s53, s54
        s_sub_u32 s48, s{sW}, 4
        s_lshl_b32 s49, s48, 4
        v_lshrrev_b32 v33, 4, v0
        v_add_u32 v32, s49, v33
        v_mul_u32_u24 v32, 3840, v32
        v_lshlrev_b32 v35, 2, v33
        v_and_b32 v34, 15, v0
        v_xor_b32 v34, v34, v35
        v_lshl_add_u32 v43, v34, 4, v32
        s_movk_i32 s54, {15360-1024}
        v_add_u32 v44, s54, v43
        v_xor_b32 v45, 32, v44
        v_add_u32 v45, s54, v45
        v_add_u32 v46, s54, v45
        s_lshl_b32 s51, s{sCT}, 8
        s_lshl_b32 s52, s48, 12""")
        xsetup = f"""v_lshrrev_b32 v32, 3, v0
        s_lshl_b32 s54, s48, 5
        v_add_u32 v32, s54, v32
        v_mul_u32_u24 v32, 1280, v32
        v_and_b32 v35, 7, v0
        v_xor_b32 v35, v35, v33
        v_lshl_add_u32 v39, v35, 4, v32
        s_movk_i32 s54, {10240-1024}
        v_xor_b32 v40, 64, v39
        v_add_u32 v40, s54, v40
        s_lshl_b32 s54, s54, 1
        v_add_u32 v41, s54, v39
        v_add_u32 v42, s54, v40
        s_mul_i32 s50, s{sRT}, {128*1280}"""
        def issue(t):
            def xs():
                s(f"""s_lshl_b32 s54, s53, 7
                s_add_u32 m0, s52, {(t&3)*32768}
                s_add_u32 s54, s54, s50""")
                for n in range(4):
                    s(f"buffer_load_dwordx4 v{39+n}, {srd(sX)}, s54 offen offset:{1024*n} lds")
            def ws():
                s(f"""s_mul_i32 s54, s53, {64*3840}
                s_add_u32 m0, s52, {(t&3)*32768+16384}
                s_add_u32 s54, s54, s51""")
                for n in range(4):
                    s(f"buffer_load_dwordx4 v{43+n}, {srd(sWQ)}, s54 offen offset:{1024*n} lds")
            if t == 0: ws(); s(xsetup); xs()
            elif s.opt.get('wf', 0): ws(); xs()
            else: xs(); ws()
            s("s_add_u32 s53, s53, 1\ns_cmp_eq_u32 s53, 10\ns_cselect_b32 s53, 0, s53")
        def issue1(t):
            s(f"""s_mul_i32 s54, s53, {64*1280}
            s_add_u32 m0, s52, {(t&3)*32768}
            s_add_u32 s54, s54, s50""")
            for n in range(4):
                s(f"buffer_load_dwordx4 v{47+n}, {srd(sWS)}, s54 offen offset:{1024*n} sc1 lds")
            s(f"""s_mul_i32 s54, s53, {64*3072}
            s_add_u32 m0, s52, {(t&3)*32768+16384}
            s_add_u32 s54, s54, s51""")
            for n in range(4):
                s(f"buffer_load_dwordx4 v{51+n}, {srd(sW1)}, s54 offen offset:{1024*n} lds")
            s("s_add_u32 s53, s53, 1\ns_and_b32 s53, s53, 7")
        pfq = s.opt.get('pfq', 1)
        tpf = s.opt.get('tpf', 1)
        stag = s.opt.get('stag', 2)
        pfts = [tpf + k for k in range({0: 1, 1: 4}.get(stag, s.opt.get('nsl', 5)))] if pfq else []
        th = s.opt.get('th', 7)
        ops = []
        s.kwait()
        if s.opt.get('b0st'): s.stamp(3)
        issue(0)
        if s.opt.get('b0st'): s.stamp(4)
        over = s.new("over")
        s(f"s_branch {s.ln(over)}")
        s.lab("grole")
        s.gfront()
        s(f"s_branch {s.ln('grole2')}")
        s.lab(over)
        s.rest_init()
        npre = s.opt.get('npre', 1)
        ops += [('s', 0)]
        if npre == 2: issue(1); ops += [('s', 1)]
        if s.opt.get('b0st'): s.stamp(5)
        s(f"""v_lshrrev_b32 v33, 4, v0
        v_add_u32 v33, s49, v33
        v_mul_u32_u24 v32, 3072, v33
        v_lshl_add_u32 v51, v34, 4, v32
        v_add_u32 v52, {12288-1024}, v51
        v_xor_b32 v54, 32, v51
        v_add_u32 v53, {2*(12288-1024)}, v54
        v_add_u32 v54, {3*(12288-1024)}, v54
        v_mul_u32_u24 v32, 1280, v33
        v_lshl_add_u32 v47, v34, 4, v32
        v_add_u32 v48, 4096, v47
        v_xor_b32 v50, 32, v47
        v_add_u32 v49, 8192, v50
        v_add_u32 v50, 12288, v50
        s_and_b32 s66, s{sXC}, 3
        s_mul_i32 s55, s66, {64*s.hsp}
        s_add_u32 s55, s55, {F_H}
        v_mul_u32_u24 v33, {s.hsp}, v0
        s_lshr_b32 s67, s{sI}, 2
        s_add_u32 s67, s67, s{sI}
        s_and_b32 s67, s67, 3
        s_cmp_ge_u32 s{sXC}, 4
        s_cselect_b32 s60, 12, 14
        s_cselect_b32 s61, 5, 4
        s_mov_b32 s62, {-(-65536//14)}
        s_cmov_b32 s62, {-(-65536//12)}
        s_cselect_b32 s63, 1536, 0
        s_mul_i32 s64, s60, s61
        s_sub_u32 s64, s64, 1
        v_min_u32 v32, s64, v0
        v_mul_u32_u24 v35, s62, v32
        v_lshrrev_b32 v35, 16, v35
        v_mul_u32_u24 v36, s60, v35
        v_sub_u32 v32, v32, v36
        s_lshl_b32 s64, s{sI}, 2
        s_add_u32 s64, s64, s48
        s_mul_i32 s64, s64, s61
        v_add_u32 v35, s64, v35
        v_min_u32 v35, 511, v35
        v_mul_u32_u24 v35, 3072, v35
        v_lshl_add_u32 v32, v32, 7, v35
        s_mul_i32 s64, s66, {512*3072}
        s_add_u32 s64, s64, s63""")
        if stag == 2: s(f"s_mul_i32 s67, s{sI}, s61\ns_mul_i32 s67, s67, {s.opt.get('nsl', 5)}\ns_lshr_b32 s67, s67, 7")
        if s.opt.get('ipf', 2): s(f"s_cmp_ge_u32 s{sXC}, 4\ns_cselect_b32 s67, 63, s67")
        s.att_vsetup()
        if npre == 1: issue(1); ops += [('s', 1)]
        if s.opt.get('b0st'): s.stamp(6)
        hl = [(34,1,33,sWS,"s55",0)]
        def younger(tag):
            k = ops.index(tag)
            return sum(8 if o[0] == 's' else 1 for o in ops[k+1:])
        for t in range(17):
            s(f"s_waitcnt vmcnt({younger(('s', t))})")
            if s.opt.get('ldstamp') and s.opt['ldstamp'] <= t < s.opt['ldstamp']+6: s.stamp(3 + t - s.opt['ldstamp'])
            if s.opt.get('b0st') and t == 0: s.stamp(7)
            s("s_barrier")
            if t == 0: s.stamp(1)
            if t == 8:
                if not s.opt.get('noln'): s.poll(hl, sleep=s.opt.get('hsl', 8), pre=younger(('h', th)))
                s(f"""s_mul_i32 s50, s66, {512*1280}
                s_lshl_b32 s54, s{sD1}, 8
                s_add_u32 s50, s50, s54
                s_add_u32 s50, s50, {HI}
                s_mul_i32 s51, s66, {512*3072}
                s_lshl_b32 s54, s{sF1}, 8
                s_add_u32 s51, s51, s54""")
                r1 = s.opt.get('g1rot', 0)
                if r1 == 0: s("s_mov_b32 s53, 0")
                if r1 == 1: s(f"s_and_b32 s53, s{sF1}, 7")
                if r1 == 2: s(f"s_lshl_b32 s53, s{sD1}, 1\ns_add_u32 s53, s53, s{sF1}\ns_and_b32 s53, s53, 7")
            if t == th:
                s.poll_issue(hl); ops.append(('h', t))
            if t+2 <= 9: issue(t+2); ops.append(('s', t+2))
            elif t+2 <= 17: issue1(t+2); ops.append(('s', t+2))
            if t in pfts:
                if stag: s(f"s_cmp_eq_u32 s67, {t - tpf}\ns_cselect_b32 s54, s64, 0x1000000")
                s(f"buffer_load_dword v165, v32, {srd(sW1)}, s{54 if stag else 64} offen{' nt' if s.opt.get('pfnt') else ''}")
                ops.append(('x', t))
                if s.opt.get('pfnt') == 2:
                    s(f"buffer_load_dword v166, v32, {srd(sW1)}, s{54 if stag else 64} offen sc1"); ops.append(('y', t))

    @staticmethod
    def acc(i, j): return 64 + 16*(2*(i >> 1) + (j >> 1)) + 8*(i & 1) + 4*(j & 1)
    def gemm_ops(s, aX, xtr, aW):
        F = (32, 128)
        def tr(b, a, o): return [f"ds_read_b64_tr_b16 {vr(b,2)}, v{a} offset:{o}", f"ds_read_b64_tr_b16 {vr(b+2,2)}, v{a} offset:{o+1024}"]
        def reads(sl, ks):
            b = F[ks]; o = sl*32768
            def x(i): return tr(b+4*i, aX+i, o+ks*8192) if xtr else [f"ds_read_b128 {vr(b+4*i,4)}, v{aX+ks} offset:{o+2048*i}"]
            def w(j): return tr(b+16+4*j, aW+j, o+ks*8192)
            return x(0) + w(0) + x(1) + x(2) + x(3) + w(1) + w(2) + w(3)
        def mf(ks, i, j, isv):
            b = F[ks]; xa = vr(b+4*i,4); wa = vr(b+16+4*j,4); d = vr(s.acc(i,j),4)
            return f"v_mfma_f32_16x16x32_bf16 {d}, {xa if isv else wa}, {wa if isv else xa}, {d}"
        return reads, mf
    def gemm_loop(s, reads, mf, isv, tog, scnt, skip_last):
        lp = s.new("gl")
        s.lab(lp)
        for n in range(4):
            ks = n & 1
            R = reads(((n+1) >> 1) & 1, ks ^ 1)
            toggled = set()
            done = 0
            for k in range(16):
                j, i = k >> 2, k & 3
                if j & 1: i = 3 - i
                if k == 0: s("s_waitcnt lgkmcnt(6)")
                if k == 4: s(f"s_waitcnt lgkmcnt({4 + done})")
                if k == 8: s(f"s_waitcnt lgkmcnt({done})")
                s(mf(ks, i, j, isv))
                if k == 0 and ks == 1:
                    if n == 3 and skip_last:
                        nx = s.new("nb")
                        s(f"s_cmp_eq_u32 s{scnt}, 1\ns_cbranch_scc1 {s.ln(nx)}\ns_barrier")
                        s.lab(nx)
                    else: s("s_barrier")
                if done < len(R):
                    if n == 3:
                        a = int(R[done].split(", v")[1].split()[0])
                        if a not in toggled: s(f"v_xor_b32 v{a}, 0x10000, v{a}"); toggled.add(a)
                    s(R[done]); done += 1
                elif n == 3:
                    for a in tog:
                        if a not in toggled: s(f"v_xor_b32 v{a}, 0x10000, v{a}"); toggled.add(a)
            assert n != 3 or toggled == set(tog)
        s(f"s_sub_u32 s{scnt}, s{scnt}, 1\ns_cmp_lg_u32 s{scnt}, 0\ns_cbranch_scc1 {s.ln(lp)}")
    def tr_addr(s, va, base, su, t0, t1):
        L = f"""v_lshrrev_b32 v{t0}, 4, v0
        v_bfe_u32 v{t1}, v0, 2, 2
        v_lshl_add_u32 v{va}, v{t0}, 3, v{t1}
        v_lshlrev_b32 v{va}, 8, v{va}
        v_and_b32 v{t0}, 1, v{t0}
        v_lshl_add_u32 v{t0}, v{t1}, 1, v{t0}
        v_xor_b32 v{t0}, s{su}, v{t0}
        v_lshl_add_u32 v{va}, v{t0}, 5, v{va}
        v_and_b32 v{t0}, 3, v0
        v_lshl_add_u32 v{va}, v{t0}, 3, v{va}
        v_add_u32 v{va}, {base}, v{va}"""
        for k in range(1, 4): L += f"\nv_xor_b32 v{va+k}, {32*k}, v{va}"
        return L

    def qkv_compute(s):
        ACC = 64
        if s.opt.get('cpf', 1): s.code_prefetch()
        s("v_and_b32 v0, 63, v0")
        s.rest_init()
        s.kwait()
        if s.opt.get('b0st'): s.stamp(5)
        s(f"""s_and_b32 s48, s{sW}, 1
        s_lshr_b32 s49, s{sW}, 1
        v_and_b32 v8, 31, v0
        v_lshrrev_b32 v9, 5, v0
        s_lshl_b32 s50, s48, 13
        v_and_b32 v10, 15, v0
        v_lshl_add_u32 v10, v10, 7, s50
        v_bfe_u32 v11, v0, 1, 3
        v_lshrrev_b32 v12, 4, v0
        v_xor_b32 v11, v11, v12
        v_lshl_add_u32 v2, v11, 4, v10
        v_xor_b32 v3, 64, v2
        s_lshl_b32 s50, s49, 2""")
        s(s.tr_addr(4, 16384, 50, 10, 11))
        s(f"""s_mul_i32 s58, s{sCT}, 13
        s_lshr_b32 s58, s58, 6
        s_mul_i32 s59, s58, 5
        s_sub_u32 s59, s{sCT}, s59
        s_lshl_b32 s59, s59, 1
        s_add_u32 s59, s59, s49
        v_lshrrev_b32 v10, 1, v0
        v_mul_u32_u24 v10, 5, v10
        v_and_b32 v11, 1, v0
        v_lshl_add_u32 v10, v11, 1, v10
        v_add_u32 v11, 2, v10
        v_lshrrev_b32 v10, 3, v10
        v_lshrrev_b32 v11, 3, v11
        v_cmp_eq_u32 s[56:57], s59, v10
        v_cmp_eq_u32 vcc, s59, v11
        v_lshlrev_b32 v13, 6, v0
        v_mov_b32 v12, 1
        s_lshr_b32 s59, s{sRT}, 1
        s_add_u32 s59, s59, 3
        s_cmp_eq_u32 s58, 0
        s_cselect_b32 s58, s59, s58
        s_lshl_b32 s58, s58, 11
        s_add_u32 s58, s58, {F_Q - 2048}
        s_or_b32 s56, s56, vcc_lo
        s_mov_b32 s57, 0""")
        for r in range(64): s(f"v_mov_b32 v{ACC+r}, 0")
        reads, mf = s.gemm_ops(2, False, 4)
        s.att_vsetup()
        if s.opt.get('b0st'): s.stamp(7)
        s(f"s_setprio {s.opt.get('cprio', 2)}\ns_barrier")
        s.stamp(1)
        for l in reads(0,0): s(l)
        s(f"s_mov_b32 s51, 5\ns_cmp_ge_u32 s47, 10\ns_cbranch_scc1 {s.ln('qkv_v')}")
        for isv in (0, 1):
            if isv: s.lab("qkv_v")
            s.gemm_loop(reads, mf, isv, range(2, 8), 51, False)
            s(f"s_setprio {s.opt.get('eprio', 3)}")
            nb = [10]
            def bar():
                nb[0] += 1; s("s_barrier")
            cuts = {0: (0,), 1: (0, 4), 2: (0, 3, 6), 3: (0, 2, 4, 6), 4: (4,), 5: (2, 6)}[s.opt.get('ecut', 4)]
            s.stamp(2)
            P = 32
            if not isv:
                s(f"""s_cmp_lt_u32 s47, 5
                s_cselect_b32 s52, {fbits(20**-0.5*math.log2(math.e))}, 1.0
                s_mov_b32 s53, s52
                v_lshlrev_b32 v2, 15, v9
                v_lshl_add_u32 v2, v8, 4, v2
                s_lshl_b32 s54, s47, 4
                s_lshl_b32 s55, s49, 3
                s_add_u32 s54, s54, s55
                s_lshl_b32 s54, s54, 15
                s_lshl_b32 s55, s46, 11
                s_add_u32 s54, s54, s55
                s_lshl_b32 s55, s48, 10
                s_add_u32 s54, s54, s55
                s_waitcnt lgkmcnt(0)""")
            else:
                s(f"""s_sub_u32 s54, s47, 10
                s_lshl_b32 s54, s54, 7
                s_lshl_b32 s55, s49, 6
                s_add_u32 s54, s54, s55
                v_add_u32 v4, s54, v8
                v_mul_u32_u24 v6, 320, v9""")
                for j in range(2):
                    s(f"""v_mul_u32_u24 v5, 3277, v4
                    v_lshrrev_b32 v5, 16, v5
                    v_mul_u32_u24 v{2+j}, {81920-320}, v5
                    v_lshl_add_u32 v{2+j}, v4, 4, v{2+j}
                    v_add_u32 v{2+j}, v{2+j}, v6
                    v_add_u32 v4, 32, v4""")
                s(f"""s_lshl_b32 s54, s46, 1
                s_add_u32 s54, s54, s48
                s_mul_i32 s54, s54, {8*320}
                s_add_u32 s54, s54, {VI}
                s_waitcnt lgkmcnt(0)""")
            for n in range(8):
                u, v = n >> 1, n & 1
                aa = (s.acc(u, 2*v), s.acc(u, 2*v+1)) if isv else (s.acc(2*v, u), s.acc(2*v+1, u))
                if n in cuts: bar()
                s.al8()
                p = P + 4*n
                if not isv:
                    for a in aa: s(f"v_pk_mul_f32 {vr(a,2)}, {vr(a,2)}, s[52:53]\nv_pk_mul_f32 {vr(a+2,2)}, {vr(a+2,2)}, s[52:53]")
                for q in range(4):
                    a = aa[q >> 1] + 2*(q & 1)
                    s(f"v_cvt_pk_bf16_f32 v{p+q}, v{a}, v{a+1}")
                s(f"s_nop 1\nv_permlane16_swap_b32 v{p}, v{p+2}\nv_permlane16_swap_b32 v{p+1}, v{p+3}")
                if s.opt.get('nost'): pass
                elif not isv:
                    s(f"buffer_store_dwordx4 {vr(p,4)}, v2, {srd(sWS)}, s54 offen offset:{512*v} sc1")
                else:
                    s(f"buffer_store_dwordx4 {vr(p,4)}, v{2+v}, {srd(sWS)}, s54 offen offset:{2*u*320} sc1")
                if not isv and v: s("s_add_u32 s54, s54, 65536")
            if not isv: s(f"s_branch {s.ln('qkv_pub')}")
        s.lab("qkv_pub")
        while nb[0] < s.opt.get('barr', 12): bar()
        s(f"""s_mov_b64 exec, s[56:57]
        {"" if s.opt.get('noack', 0) & 2 else "s_waitcnt vmcnt(0)"}
        buffer_atomic_add v12, v13, {srd(sWS)}, s58 offen sc1
        s_mov_b64 exec, -1""")
        s.stamp(3)
        while nb[0] < 14: bar()

    def att_vsetup(s):
        aK1, aK2, aV, vK, vV, vIDX, aPW, aPR, vPC = 14, 15, 16, 17, 18, 19, 20, 21, 22
        w0, dn = s.new("vs"), s.new("vs")
        s(f"""s_and_b32 s68, s{sI}, 1
        s_lshr_b32 s69, s{sW}, 2
        v_and_b32 v23, 31, v0
        v_lshrrev_b32 v24, 5, v0
        v_and_b32 v30, 15, v0
        v_lshrrev_b32 v31, 4, v0
        s_mul_i32 s70, s68, 3
        v_add_u32 v{vK}, s70, v31
        v_cmp_gt_u32 vcc, 2, v31
        v_add_u32 v25, s70, v24
        s_lshl_b32 s71, s{sW}, 8
        v_cndmask_b32 v{vK}, 2, v{vK}, vcc
        v_lshlrev_b32 v{vK}, 15, v{vK}
        v_lshl_add_u32 v{vK}, v30, 4, v{vK}
        v_add_u32 v{vK}, s71, v{vK}
        v_cmp_lt_u32 vcc, 20, v0
        s_mul_i32 s71, s{sW}, 640
        v_subrev_u32 v{vV}, 1, v0
        v_cndmask_b32 v{vV}, v0, v{vV}, vcc
        v_lshlrev_b32 v{vV}, 4, v{vV}
        v_add_u32 v{vV}, s71, v{vV}
        v_and_b32 v29, 1, v31
        v_mul_u32_u24 v{aK2}, 768, v29
        v_lshl_add_u32 v{aK2}, v30, 4, v{aK2}
        s_mul_i32 s71, s69, 3072
        s_add_u32 s71, s71, {KVB}
        v_add_u32 v{aK2}, s71, v{aK2}
        v_lshl_add_u32 v{aK1}, v24, 8, v{aK2}
        s_lshl_b32 s70, s68, 3
        s_add_u32 s71, s70, 512
        v_add_u32 v{aK2}, s71, v{aK2}
        v_min_u32 v{aV}, 20, v23
        v_mul_u32_u24 v28, 336, v24
        v_mov_b32 v{vIDX}, 0xdddd
        v_lshl_add_u32 v{aV}, v{aV}, 4, v28
        s_mul_i32 s71, s69, 2688
        s_add_u32 s71, s71, {KVB+6144}
        v_add_u32 v{aV}, s71, v{aV}
        s_lshl_b32 s71, s{sW}, 2
        s_add_u32 s71, s71, {SY_PA}
        v_mov_b32 v{aPW}, s71
        v_and_b32 v{aPR}, 7, v0
        v_lshlrev_b32 v{aPR}, 2, v{aPR}
        v_add_u32 v{aPR}, {SY_PA}, v{aPR}
        v_mov_b32 v{vPC}, 1
        v_lshlrev_b32 v25, 15, v25
        v_lshl_add_u32 v25, v23, 4, v25
        v_lshlrev_b32 v26, 4, v23
        s_add_u32 s70, s70, 0x10000
        v_add_u32 v26, s70, v26
        v_lshlrev_b32 v27, 2, v23""")
        s(f"""s_mov_b32 exec_lo, 0xfee00000
        s_mov_b32 exec_hi, 0xfee00000
        v_mov_b32 v{aV}, 0x30000
        s_mov_b32 exec_lo, 0
        s_mov_b32 exec_hi, -1
        v_mov_b32 v{aK2}, 0x30000
        s_mov_b64 exec, -1
        s_cmp_eq_u32 s{sW}, 0
        s_cbranch_scc1 {s.ln(w0)}
        v_mul_u32_u24 v28, {KVS}, v31
        v_mul_u32_u24 v29, 336, v30
        v_add_u32 v28, v28, v29
        v_add_u32 v28, {KVB+6144+320}, v28
        s_branch {s.ln(dn)}""")
        s.lab(w0)
        s(f"""s_lshl_b32 s70, s{sXC}, 2
        s_and_b32 s71, s{sI}, 3
        s_add_u32 s70, s70, s71
        s_lshr_b32 s71, s70, 1
        s_mul_i32 s71, s71, 5
        s_lshl_b32 s68, s68, 1
        s_add_u32 s71, s71, s68
        s_and_b32 s71, s71, 7
        s_cmp_ge_u32 s71, 6
        s_cselect_b32 s71, 64, 32
        v_mov_b32 v29, s71
        s_lshr_b32 s71, s71, 3
        v_writelane_b32 v29, s71, 2
        s_lshl_b32 s70, s70, 6
        v_lshl_add_u32 v28, v0, 11, s70
        s_lshr_b32 s71, s{sI}, 2
        s_add_u32 s71, s71, 2
        s_lshl_b32 s71, s71, 11
        s_add_u32 s71, s71, s70
        v_writelane_b32 v28, s71, 2""")
        s.lab(dn)

    def attention(s):
        Q1, Q2, K1, K2, V0, V1 = 8, 12, 152, 150, 156, 160
        S = (32, 48); O = 64
        aK1, aK2, aV, vK, vV, vIDX, aPW, aPR, vPC, vPR = 14, 15, 16, 17, 18, 19, 20, 21, 22, 30
        sH, sQB, sP, sODD, sKO, sVO, sMK, sMV, sN, sNEED, sTOK = 48, 49, 50, 51, 52, 53, 54, 55, 56, 3, 100
        EK, EV = "s[58:59]", "s[60:61]"
        sKB, sVB = 62, 63
        s(f"""s_setprio 3
        s_lshl_b32 s{sH}, s{sXC}, 2
        s_and_b32 s57, s{sI}, 3
        s_add_u32 s{sH}, s{sH}, s57
        s_lshr_b32 s{sQB}, s{sI}, 2
        s_lshr_b32 s{sP}, s{sH}, 1
        s_and_b32 s{sODD}, s{sH}, 1
        s_mov_b32 s58, -1
        s_mov_b32 s59, 0xffff
        s_mov_b32 s60, 0xffefffff
        s_mov_b32 s61, 0x1ff
        s_mul_i32 s{sKB}, s{sP}, {5*32768}
        s_add_u32 s{sKB}, s{sKB}, {KI}
        s_mul_i32 s{sVB}, s{sH}, 81920
        s_add_u32 s{sVB}, s{sVB}, {VI}
        s_mul_i32 s{sMK}, s{sW}, 768
        s_add_u32 s{sMK}, s{sMK}, {KVB}
        s_mul_i32 s{sMV}, s{sW}, 672
        s_add_u32 s{sMV}, s{sMV}, {KVB+6144}
        s_lshl_b32 s{sTOK}, s{sQB}, 8
        s_and_b32 s57, s{sW}, 3
        s_lshl_b32 s57, s57, 6
        s_add_u32 s{sTOK}, s{sTOK}, s57
        s_lshr_b32 s{sN}, s{sW}, 2
        s_lshl_b32 s57, s{sN}, 5
        s_add_u32 s{sTOK}, s{sTOK}, s57
        """)
        SS = ((32, 96), (48, 112)); OO = (128, O); QQ = ((144, 148), (Q1, Q2))
        s(f"""
        s_lshl_b32 s70, s{sTOK}, 4
        s_add_u32 s70, s70, s{sKB}
        s_sub_u32 s70, s70, {KI-QI}
        s_lshl_b32 s71, s{sTOK}, 2
        s_add_u32 s71, s71, {GI}
        """)
        def dma(slot):
            slot = (slot + 2) & 3
            return [f"s_add_u32 m0, s{sMK}, {slot*KVS}",
                    f"s_mov_b64 exec, {EK}",
                    f"buffer_load_dwordx4 v{vK}, {srd(sWS)}, s{sKO} offen sc1 lds",
                    f"s_add_u32 m0, s{sMV}, {slot*KVS}",
                    f"s_mov_b64 exec, {EV}",
                    f"buffer_load_dwordx4 v{vV}, {srd(sWS)}, s{sVO} offen sc1 lds",
                    f"s_mov_b64 exec, -1",
                    f"s_add_u32 s{sKO}, s{sKO}, 2048",
                    f"s_add_u32 s{sVO}, s{sVO}, 5120"]
        s(f"s_mov_b32 s{sKO}, s{sKB}\ns_mov_b32 s{sVO}, s{sVB}")
        def first():
            s("\n".join(dma(0)))
            s(f"""buffer_load_dwordx4 {vr(Q1,4)}, v25, {srd(sWS)}, s70 offen sc1
            buffer_load_dwordx2 {vr(Q2,2)}, v84, {srd(sWS)}, s68 offen sc1
            buffer_load_dwordx4 {vr(QQ[0][0],4)}, v25, {srd(sWS)}, s67 offen sc1
            s_setprio {s.opt.get('sp2', 2)}""")
            s("\n".join(dma(1)))
        w1, b16, nidle, early, late0, late, go, nones = [s.new("a") for _ in range(8)]
        hl = [(90,1,87,sWS,"s65",0)]
        s(f"""v_mov_b32 v86, {SY_QOK}
        v_xor_b32 v84, s{sN}, v24
        v_lshl_add_u32 v84, v84, 9, v26
        s_xor_b32 s67, s70, 512
        s_andn2_b32 s68, s70, 512
        s_cmp_ge_u32 s{sW}, 4
        s_cbranch_scc1 {s.ln(b16)}
        s_cmp_lg_u32 s{sW}, 0
        s_cbranch_scc1 {s.ln(w1)}
        s_mul_i32 s65, s{sQB}, {32*s.hsp}
        s_add_u32 s65, s65, {F_H}
        v_mul_u32_u24 v87, {s.hsp}, v23
        s_mov_b32 s64, {F_Q}
        s_barrier
        s_cmp_lg_u32 s{sCT}, 15
        s_cbranch_scc1 {s.ln(nidle)}""")
        s.apoll("s64", 1, 28, 89, 16, mask=3)
        s.lab(nidle)
        s.poll_issue(hl)
        s.apoll_issue("s64", 28, 89, mask=7)
        s("s_mov_b64 exec, -1\ns_barrier")
        s.poll(hl, sleep=4, pre=1)
        s(f"""s_mov_b64 exec, 7
        s_waitcnt vmcnt(0)
        v_cmp_gt_u32 vcc, v29, v89
        s_cbranch_vccnz {s.ln(late0)}
        s_mov_b64 exec, 1
        v_mov_b32 v85, 1
        ds_write_b32 v86, v85
        s_mov_b64 exec, -1
        s_branch {s.ln(early if s.opt.get('ekv', 0) else late)}""")
        s.lab(late0)
        s.apoll_issue("s64", 28, 89, mask=7)
        s("s_mov_b64 exec, -1\ns_barrier")
        s.apoll("s64", "v29", 28, 89, s.opt.get('psl', 2), pre=True, mask=7)
        s(f"""s_mov_b64 exec, 1
        v_mov_b32 v85, 1
        ds_write_b32 v86, v85
        s_mov_b64 exec, -1""")
        s.stamp(4)
        first()
        s(f"s_branch {s.ln(go)}")
        s.lab(w1)
        s("s_barrier\ns_barrier")
        s.lab(b16)
        for _ in range(s.opt.get('ekv', 0)):
            s(f"""s_sleep 1
            ds_read_b32 v87, v86
            s_waitcnt lgkmcnt(0)
            v_cmp_gt_u32 vcc, 1, v87
            s_cbranch_vccz {s.ln(early)}""")
        s.lab(late)
        s("s_waitcnt vmcnt(0)\ns_barrier")
        s.stamp(8)
        s.lds_spin(86, 1, 87, sleep=s.opt.get('qsl', 0))
        s.stamp(4)
        first()
        s(f"s_branch {s.ln(go)}")
        s.lab(early)
        s.stamp(4)
        first()
        s("s_waitcnt vmcnt(7)\ns_barrier")
        s.stamp(8)
        s.lab(go)
        s(f"""s_cmp_lg_u32 s{sW}, 1
        s_cbranch_scc1 {s.ln(nones)}
        v_mov_b32 v88, 0x3f803f80
        v_mov_b32 v89, 0x3f803f80
        v_mov_b32 v90, 0x3f803f80
        v_mov_b32 v91, 0x3f803f80
        ds_write_b128 v28, v[88:91]""")
        s.lab(nones)
        ystag = s.opt.get('ystag', 1)
        for r in range(0, 16, 2): s(f"v_pk_mov_b32 {vr(O+r,2)}, 0, 0\nv_pk_mov_b32 {vr(128+r,2)}, 0, 0")
        for r in range(0, 8, 2): s(f"v_pk_mov_b32 {vr(SS[1][1]+8+r,2)}, 0, 0")
        for r in range(0, 4, 2): s(f"v_pk_mov_b32 {vr(V1+r,2)}, 0, 0")
        s(f"""v_pk_mov_b32 v[148:149], 0, 0
        s_mul_i32 s64, s{sW}, 3328
        s_add_u32 s64, s64, {XB}
        v_lshlrev_b32 v81, 4, v0
        s_xor_b32 s65, s{sW}, 4
        v_add_u32 v80, s64, v81
        v_lshl_add_u32 v85, v0, 2, s64
        s_mul_i32 s64, s65, 3328
        s_add_u32 s64, s64, {XB}
        v_add_u32 v81, s64, v81
        v_lshl_add_u32 v86, v0, 2, s64
        s_lshl_b32 s65, s65, 2
        s_add_u32 s65, s65, {SY_PA}
        v_mov_b32 v82, s65
        v_lshlrev_b32 v92, 4, v23
        v_lshl_add_u32 v83, v24, 15, v92
        v_cmp_eq_u32 s[72:73], 0, v24
        v_mov_b32 v93, {fbits(2.0**60)}
        v_mov_b32 v94, 0
        v_mov_b32 v95, 1
        s_lshl_b32 s64, s{sH}, 16
        s_lshl_b32 s65, s{sTOK}, 4
        s_add_u32 s65, s65, {OI}
        s_add_u32 s64, s64, s65
        s_lshl_b32 s65, s{sH}, 14
        s_lshl_b32 s57, s{sTOK}, 3
        s_add_u32 s65, s65, s57
        s_add_u32 s65, s65, {OI + 64*32768}
        v_lshlrev_b32 v92, 3, v23
        s_lshl_b32 s66, s{sTOK}, 3
        s_add_u32 s66, s66, {F_O}
        s_mov_b32 s70, {fbits(2.0**-30)}""")
        if s.opt.get('sst'): s.stamp(1)
        s(f"""s_mov_b32 s{sNEED}, 2
        s_waitcnt vmcnt(5) lgkmcnt(0)
        ds_write_b32 v{aPW}, v{vPC}""")
        if s.opt.get('sst'): s.stamp(2)
        for l in dma(2): s(l)
        if s.opt.get('nodma'):
            for l in dma(3): s(l)
            s("s_waitcnt vmcnt(0)")
        s(f"buffer_load_dword v31, v27, {srd(sWS)}, s71 offen sc1")
        if s.opt.get('sst'): s.stamp(3)
        s(f"""v_add_u32 v{vPC}, 1, v{vPC}
        s_waitcnt vmcnt(5)
        v_permlane32_swap_b32 v{Q2}, v148
        v_permlane32_swap_b32 v{Q2+1}, v149""")
        s.lds_spin(aPR, 1, vPR, sleep=0)
        s.stamp(5)
        def off(T):
            T %= 8
            return (((T >> 1) + 2) & 3)*KVS, T & 1
        def rK1(T):
            b, tt = off(T); return f"ds_read_b128 {vr(K1,4)}, v{aK1} offset:{b+tt*1536}"
        def rK2(T):
            b, tt = off(T); return f"ds_read_b64 {vr(K2,2)}, v{aK2} offset:{b+tt*1536}"
        def rV(T, a):
            b, tt = off(T); return f"ds_read_b128 {vr((V0,V1)[a],4)}, v{aV} offset:{b+(4*tt+2*a)*336}"
        def qk0(d, a): return f"v_mfma_f32_32x32x16_bf16 {vr(d,16)}, {vr(K1,4)}, {vr(QQ[a][0],4)}, 0"
        def qk1(d, a): return f"v_mfma_f32_32x32x8_bf16 {vr(d,16)}, {vr(K2,2)}, {vr(QQ[a][1],2)}, {vr(d,16)}"
        def pv(a, v, p): return f"v_smfmac_f32_32x32x32_bf16 {vr(OO[a],16)}, {vr(v,4)}, {vr(p,8)}, v{vIDX}"
        s(rK1(0)); s(rK2(0)); s(rV(0,0)); s("s_waitcnt lgkmcnt(1)")
        s(qk0(SS[0][0], 0)); s(qk1(SS[0][0], 0)); s(qk0(SS[1][0], 1)); s(rK1(1)); s(qk1(SS[1][0], 1)); s(rK2(1))
        s(f"""s_waitcnt vmcnt(3)
        ds_write_b32 v{aPW}, v{vPC}
        s_mov_b32 s69, 4
        v_add_u32 v{vPC}, 1, v{vPC}
        s_nop 3""")
        if s.opt.get('sst'): s.stamp(8)
        ap = s.opt.get('aprio', 1)
        nosync = s.opt.get('nosync'); nodma = s.opt.get('nodma')
        e0, e1, e2, e3 = {0: (2,6,10,14), 1: (2,5,9,13), 2: (3,7,11,15), 3: (2,6,9,13), 4: (2,7,10,14), 5: (4,8,12,16), 6: (2,5,10,13)}[s.opt.get('esp', 0)]
        def loop(pat):
          lp = s.new("attl")
          s.L.append(".p2align 6")
          for _ in range(s.opt.get('al', 0)): s("s_nop 0")
          s.lab(lp)
          late = ystag and pat is not None
          for n in range(16):
              if n == 14: s(f"s_sub_u32 s69, s69, 1\ns_cmp_eq_u32 s69, 0\ns_cbranch_scc1 {s.ln(join)}")
              T, a = n >> 1, n & 1
              c, m = n >> 2, n & 3
              cur, nn = SS[a][T & 1], SS[a][(T+1) & 1]
              prev = SS[1][(T-1) & 1] if a == 0 else SS[0][T & 1]
              E = [f"v_exp_f32{'_e64' if s.opt.get('e64') else ''} v{cur+i}, v{cur+i}" for i in range(16)]
              D = dma((c + 3) & 3) if not nodma else [""]*9
              apm = s.opt.get('apm', 0)
              if pat is not None and apm:
                  per = s.opt.get('app', 1)
                  h, l = apm % 100, apm // 100
                  for pos, pr in ((h, ap+1), (l, ap)):
                      if pos // 16 == n % per: E[pos % 16] = f"s_setprio {pr}\n" + E[pos % 16]
              elif pat is not None and pat[n] != pat[n-1]: s(f"s_setprio {pat[n]}")
              for e in E[:e0]: s(e)
              if a == 0:
                  s(pv(1, V1, prev+8)); s(rV(T,1))
                  if n == 4:
                      s(f"""s_cmp_eq_u32 s69, 1
                      s_cselect_b32 s{sKO}, {WS_BYTES}, s{sKO}
                      s_cselect_b32 s{sVO}, {WS_BYTES}, s{sVO}
                      s_cselect_b32 s{sMK}, 0x30000, s{sMK}
                      s_cselect_b32 s{sMV}, 0x30000, s{sMV}""")
                  for e in E[e0:e1]: s(e)
                  s("s_waitcnt lgkmcnt(1)")
                  s(qk0(nn, 0))
                  for e in E[e1:e2]: s(e)
                  s(qk1(nn, 0))
                  if m == 0 and nosync != 2: s(f"ds_read_b32 v{vPR}, v{aPR}")
                  for e in E[e2:e3]: s(e)
                  s(pv(0, V0, cur))
              else:
                  s("s_waitcnt lgkmcnt(0)")
                  s(pv(0, V1, prev+8))
                  if m == 1 and not nosync:
                      s(f"v_cmp_gt_u32 vcc, s{sNEED}, v{vPR}")
                      s.spin_ool(aPR, f"s{sNEED}", vPR, sleep=1)
                  if m == 3:
                      if late: s("\n".join(D))
                      if nosync != 2: s(f"s_waitcnt vmcnt({4 if s.opt.get('novm') else 2})\nds_write_b32 v{aPW}, v{vPC}")
                  for e in E[e0:e1]: s(e)
                  s(qk0(nn, 1)); s(rK1(T+2))
                  for e in E[e1:e2]: s(e)
                  s(qk1(nn, 1)); s(rK2(T+2))
                  if m == 1:
                      if not late: s("\n".join(D))
                      s(f"s_add_u32 s{sNEED}, s{sNEED}, 1")
                  if m == 3: s(f"v_add_u32 v{vPC}, 1, v{vPC}")
                  for e in E[e2:e3]: s(e)
                  s(pv(1, V0, cur)); s(rV(T+1,0))
              for e in E[e3:]: s(e)
          if s.opt.get('qst') and s.stamps:
              for k, c in ((1, 3), (2, 2), (3, 1)):
                  nx = s.new("st")
                  s(f"s_cmp_lg_u32 s69, {c}\ns_cbranch_scc1 {s.ln(nx)}")
                  s.stamp(k)
                  s.lab(nx)
          s(f"s_branch {s.ln(lp)}")
        pm = s.opt.get('apat', 119)
        young, join = s.new("young"), s.new("join")
        s(f"s_cmp_ge_u32 s{sW}, 4\ns_cbranch_scc1 {s.ln(young)}\ns_setprio {ap}")
        loop(None)
        s.lab(young)
        pat = [(s.opt.get('ylo', ap), s.opt.get('yhi', ap+1))[(pm >> (T % 8)) & 1] for T in range(16)]
        s(f"s_setprio {pat[15]}")
        loop(pat)
        s.lab(join)
        c0, c1 = SS[0][1], SS[1][1]
        E = [f"v_exp_f32 v{c0+i}, v{c0+i}" for i in range(16)]
        s(f"s_setprio {s.opt.get('tp0', 2)}")
        s(E[0]); s(E[1]); s(pv(1, V1, SS[1][0]+8)); s(rV(7,1))
        for e in E[2:10]: s(e)
        s("s_waitcnt lgkmcnt(1)"); s(pv(0, V0, c0))
        for e in E[10:]: s(e)
        E = [f"v_exp_f32 v{c1+i}, v{c1+i}" for i in range(16)]
        s(E[0]); s(E[1]); s("s_waitcnt lgkmcnt(0)"); s(pv(0, V1, c0+8))
        s(f"s_setprio {s.opt.get('tp1', 1)}")
        for e in E[2:10]: s(e)
        s(pv(1, V0, c1)); s(f"v_add_u32 v{vPC}, 1, v{vPC}"); s(E[10])
        for q in range(3): s(f"ds_write_b128 v80, {vr(128+4*q,4)} offset:{1024*q}")
        s("ds_write_b32 v85, v140 offset:3072")
        for e in E[11:]: s(e)
        s(f"""s_waitcnt vmcnt(0) lgkmcnt(0)
        ds_write_b32 v{aPW}, v{vPC}""")
        s(pv(1, V1, c1+8))
        s.lds_spin(82, 19, 87, sleep=0)
        s("s_setprio 3")
        for q in range(3): s(f"ds_read_b128 {vr(128+4*q,4)}, v81 offset:{1024*q}")
        s(f"""ds_read_b32 v140, v86 offset:3072
        v_add_u32 v{vPC}, 1, v{vPC}""")
        s.stamp(6)
        s(f"""s_waitcnt lgkmcnt(0)
        ds_write_b32 v{aPW}, v{vPC}
        v_add_f32 v{O+12}, v{O+12}, v140""")
        s.al8()
        for r in range(0, 12, 2): s(f"v_pk_add_f32 {vr(O+r,2)}, {vr(O+r,2)}, {vr(128+r,2)}")
        slow, norm = s.new("slow"), s.new("norm")
        s(f"v_cndmask_b32 v87, v{O+8}, v{O+12}, s[72:73]\nv_pk_mul_f32 v[88:89], {vr(O,2)}, 0")
        for r in range(2, 12, 2): s(f"v_pk_fma_f32 v[88:89], {vr(O+r,2)}, 0, v[88:89]")
        s(f"""v_add_f32 v88, v88, v89
        v_add_f32 v88, v88, v87
        v_med3_f32 v89, v88, s70, v93
        v_cmp_neq_f32 vcc, v89, v88
        s_cbranch_vccnz {s.ln(slow)}""")
        s.lab(norm)
        s(f"""v_rcp_f32 v88, v87
        s_nop 0
        v_mul_f32 v88, v88, v31""")
        s.al8()
        s.slow_args = (slow, norm, Q1, Q2, K1, K2, V0, V1, S, O, vIDX, sKB, sVB)
        for r in range(0, 12, 2): s(f"v_pk_mul_f32 {vr(O+r,2)}, {vr(O+r,2)}, v[88:89] op_sel_hi:[1,0]")
        for q in range(6): s(f"v_cvt_pk_bf16_f32 v{32+q}, v{O+2*q}, v{O+2*q+1}")
        s(f"""buffer_store_dwordx4 v[32:35], v83, {srd(sWS)}, s64 offen sc1
        s_mov_b32 exec_hi, 0
        buffer_store_dwordx2 v[36:37], v92, {srd(sWS)}, s65 offen sc1
        s_mov_b64 exec, 1
        {"" if s.opt.get('noack', 0) & 1 else "s_waitcnt vmcnt(0)"}
        buffer_atomic_add v95, v94, {srd(sWS)}, s66 offen sc1""")
        s.stamp(7)

    def att_slow(s):
        slow, norm, Q1, Q2, K1, K2, V0, V1, S, O, vIDX, sKB, sVB = s.slow_args
        S0, C = S
        l1, l2 = s.new("slowa"), s.new("slowb")
        s.lab(slow)
        ldk = f"""buffer_load_dwordx4 {vr(K1,4)}, v25, {srd(sWS)}, s67 offen sc1
        buffer_load_dwordx2 {vr(K2,2)}, v26, {srd(sWS)}, s67 offen sc1"""
        s(f"""s_waitcnt vmcnt(0) lgkmcnt(0)
        v_mov_b32 v88, 0xff800000
        s_mov_b32 s67, s{sKB}
        s_mov_b32 s69, 64""")
        s.lab(l1)
        s(ldk)
        s(f"""s_waitcnt vmcnt(0)
        v_mfma_f32_32x32x16_bf16 {vr(S0,16)}, {vr(K1,4)}, {vr(Q1,4)}, 0
        v_mfma_f32_32x32x8_bf16 {vr(S0,16)}, {vr(K2,2)}, {vr(Q2,2)}, {vr(S0,16)}
        s_add_u32 s67, s67, 512
        s_nop 15""")
        for r in range(0, 16, 2): s(f"v_max3_f32 v88, v88, v{S0+r}, v{S0+r+1}")
        s(f"""s_sub_u32 s69, s69, 1
        s_cmp_lg_u32 s69, 0
        s_cbranch_scc1 {s.ln(l1)}
        v_mov_b32 v89, v88
        s_nop 1
        v_permlane32_swap_b32 v88, v89
        s_nop 1
        v_max_f32 v88, v88, v89
        v_mul_u32_u24 v89, 320, v24
        v_lshl_add_u32 v89, v23, 4, v89""")
        for r in range(16): s(f"v_sub_f32 v{C+r}, 0, v88\nv_mov_b32 v{O+r}, 0")
        for r in range(4): s(f"v_mov_b32 v{V0+r}, 0x3f803f80\nv_mov_b32 v{V1+r}, 0x3f803f80")
        s(f"""s_mov_b32 s67, s{sKB}
        s_mov_b32 s68, s{sVB}
        s_mov_b32 s69, 64
        s_mov_b32 s74, 0xfffff
        s_mov_b32 s75, 0xfffff""")
        s.lab(l2)
        s(ldk)
        s(f"""s_mov_b64 exec, s[74:75]
        buffer_load_dwordx4 {vr(V0,4)}, v89, {srd(sWS)}, s68 offen sc1
        buffer_load_dwordx4 {vr(V1,4)}, v89, {srd(sWS)}, s68 offen offset:640 sc1
        s_mov_b64 exec, -1
        s_waitcnt vmcnt(0)
        v_mfma_f32_32x32x16_bf16 {vr(S0,16)}, {vr(K1,4)}, {vr(Q1,4)}, {vr(C,16)}
        v_mfma_f32_32x32x8_bf16 {vr(S0,16)}, {vr(K2,2)}, {vr(Q2,2)}, {vr(S0,16)}
        s_add_u32 s67, s67, 512
        s_add_u32 s68, s68, 1280
        s_nop 15""")
        for r in range(16): s(f"v_exp_f32 v{S0+r}, v{S0+r}")
        s(f"""s_nop 1
        v_smfmac_f32_32x32x32_bf16 {vr(O,16)}, {vr(V0,4)}, {vr(S0,8)}, v{vIDX}
        v_smfmac_f32_32x32x32_bf16 {vr(O,16)}, {vr(V1,4)}, {vr(S0+8,8)}, v{vIDX}
        s_sub_u32 s69, s69, 1
        s_cmp_lg_u32 s69, 0
        s_nop 7
        s_cbranch_scc1 {s.ln(l2)}
        s_nop 15
        v_cndmask_b32 v87, v{O+8}, v{O+12}, s[72:73]
        s_branch {s.ln(norm)}""")

    def gfront0(s):
        s(f"s_setprio {s.opt.get('lnp', 3)}\ns_sub_u32 s48, s{sW}, 8\nv_and_b32 v0, 63, v0")
        s.ln_loads(48)
    def gate_loads(s):
        s(f"""global_load_dwordx4 v[20:23], v1, s[{sGW}:{sGW+1}]
        global_load_dwordx4 v[24:27], v1, s[{sGW}:{sGW+1}] offset:512
        global_load_dwordx2 v[28:29], v2, s[{sGW}:{sGW+1}] offset:1024""")
    def gfront(s):
        sJ = 48
        if not s.opt.get('gfirst', 1): s.gfront0()
        if s.opt.get('glate', 0): s.gate_loads()
        s.rest_init()
        s(f"""v_lshlrev_b32 v1, 2, v0
        v_add_u32 v1, {SYN}, v1
        v_mov_b32 v2, 0
        ds_write_b32 v1, v2""")
        if s.opt.get('noln'):
            s('s_barrier'); s.gtiles(sJ); s.nb = 1
        else: s.nb = s.layernorm(sJ)

    def grole(s):
        sJ = 48
        pre = s.gsetup(sJ)
        nb = s.nb
        assert nb <= s.opt.get('th', 7)
        s("s_setprio 0")
        lines = "\n".join(pre).split("\n")
        k = 11 - nb
        per = -(-len(lines) // k)
        for q in range(k):
            s("\n".join(lines[q*per:(q+1)*per])); s("s_barrier")
        s.stamp(2)
        s.gsync_n = 0
        s.gemm1(sJ)
        s.gemm2(sJ)

    def gtiles(s, sJ):
        s(f"""s_and_b32 s50, s{sXC}, 3
        s_lshl_b32 s51, s{sF1}, 2
        s_and_b32 s54, s{sJ}, 2
        s_add_u32 s51, s51, s54
        s_lshr_b32 s54, s50, 1
        s_add_u32 s51, s51, s54
        s_lshl_b32 s52, s{sD1}, 1
        s_and_b32 s54, s{sJ}, 1
        s_add_u32 s52, s52, s54
        s_lshl_b32 s52, s52, 1
        s_and_b32 s54, s50, 1
        s_add_u32 s52, s52, s54
        s_lshl_b32 s62, s{sXC}, 2
        s_and_b32 s54, s{sI}, 3
        s_add_u32 s62, s62, s54
        s_lshr_b32 s63, s{sI}, 2
        s_lshl_b32 s66, s62, 6
        s_lshl_b32 s54, s{sJ}, 4
        s_add_u32 s66, s66, s54
        s_lshl_b32 s54, s51, 6
        v_lshrrev_b32 v1, 4, v0
        v_lshl_add_u32 v1, v1, 3, s54
        v_and_b32 v2, 15, v0
        v_add_lshl_u32 v2, s66, v2, 1""")
        for q in range(2):
            s(f"global_load_dwordx2 {vr(54+2*q,2)}, v1, s[{sB1}:{sB1+1}] offset:{32*q}")
        s(f"global_load_ushort v62, v2, s[{sB2}:{sB2+1}]")

    def gsetup(s, sJ):
        B = []
        B.append(f"""s_mul_i32 s49, s{sJ}, {GREG}
        s_lshl_b32 s54, s{sJ}, 2
        s_add_u32 s54, s54, {SY_PG}
        v_mov_b32 v160, s54
        v_lshrrev_b32 v48, 4, v0
        v_and_b32 v49, 15, v0
        v_lshrrev_b32 v50, 5, v0
        v_and_b32 v51, 31, v0
        v_and_b32 v52, 3, v0
        v_bfe_u32 v53, v0, 2, 2
        v_lshlrev_b32 v161, 2, v52
        v_add_u32 v161, {SY_PG}, v161
        v_mov_b32 v164, {SYN}
        v_lshrrev_b32 v30, 3, v0
        v_and_b32 v31, 7, v0
        v_lshlrev_b32 v13, 1, v48
        v_xor_b32 v13, v13, v31
        v_lshlrev_b32 v30, 12, v30
        v_lshl_add_u32 v13, v13, 4, v30""")
        B.append(f"""s_mul_i32 s64, s{sJ}, {384*4096}
        s_lshl_b32 s54, s62, 7
        s_add_u32 s64, s64, s54
        s_mul_i32 s65, s{sJ}, {48*10240}
        s_mul_i32 s54, s63, 1280
        s_add_u32 s65, s65, s54
        s_add_u32 s65, s65, {UI}
        v_mul_u32_u24 v14, 10240, v48
        v_lshl_add_u32 v14, v49, 4, v14
        v_bfe_u32 v30, v0, 2, 3
        v_lshrrev_b32 v31, 2, v0
        v_lshlrev_b32 v31, 7, v31
        v_lshl_add_u32 v31, v52, 3, v31
        v_add_u32 v31, s49, v31
        v_lshrrev_b32 v32, 1, v30
        v_xor_b32 v32, s{sJ}, v32
        """ + "\n".join(f"v_xor_b32 v33, {si}, v32\nv_lshl_add_u32 v{15+si}, v33, 5, v31" for si in range(4)) + f"""
        v_lshlrev_b32 v12, 15, v48
        v_lshl_add_u32 v12, v49, 4, v12
        v_add_u32 v19, s66, v49
        v_mul_u32_u24 v19, 1280, v19
        v_lshl_add_u32 v19, v48, 3, v19""")
        B.append("\n".join(f"""v_add_u32 v31, {64*m}, v0
            v_mul_u32_u24 v32, 6554, v31
            v_lshrrev_b32 v32, 16, v32
            v_mul_u32_u24 v32, {1280-160}, v32
            v_lshl_add_u32 v{1+m}, v31, 4, v32""" for m in range(5)))
        B.append(f"""v_mul_u32_u24 v31, 20, v50
        v_add_u32 v31, v31, v30
        v_mul_u32_u24 v31, 160, v31
        v_lshl_add_u32 v6, v52, 3, v31
        v_add_u32 v7, 51200, v6
        v_mul_u32_u24 v31, 40, v48
        v_add_u32 v31, v31, v53
        v_add_u32 v31, 16, v31
        v_mul_u32_u24 v31, 160, v31
        v_lshl_add_u32 v31, v52, 3, v31
        v_and_b32 v32, 1, v48
        v_mul_u32_u24 v32, 3200, v32
        v_sub_u32 v9, v31, v32
        v_add_u32 v9, 3200, v9
        v_add_u32 v8, v31, v32
        v_add_u32 v10, 51200, v8
        v_add_u32 v11, 51200, v9""")
        B.append("s_and_b32 s54, s52, 3\ns_lshl_b32 s54, s54, 1\n" + s.tr_addr(24, 0x10000, 54, 32, 33))
        B.append("s_xor_b32 s54, s52, s51\ns_and_b32 s54, s54, 3\ns_lshl_b32 s54, s54, 6\ns_add_u32 s54, s54, 16384\n" + "\n".join(f"v_xor_b32 v{28+k}, s54, v{24+k}" for k in range(4)))
        B.append("\n".join(f"v_pk_mov_b32 {vr(r,2)}, 0, 0" for r in range(80, 128, 2)))
        B.append("s_waitcnt vmcnt(0)\n" + "\n".join(f"v_lshlrev_b32 v{64+2*q}, 16, v{54+q%4}\nv_and_b32 v{65+2*q}, 0xffff0000, v{54+q%4}" for q in range(8)) + "\nv_lshlrev_b32 v20, 16, v62")
        return B

    def xaddr(s, sJ, vw, vr0):
        s(f"v_lshlrev_b32 v{vw}, 4, v0")
        for n in range(1, 4):
            s(f"s_xor_b32 s54, s{sJ}, {n}\ns_mul_i32 s54, s54, {GREG}\ns_add_u32 s54, s54, {(n-1)*4096}\nv_add_u32 v{vr0+n-1}, s54, v{vw}")
        s(f"v_add_u32 v{vw}, s49, v{vw}")

    def gpost(s):
        s.gsync_n += 1
        s(f"s_waitcnt lgkmcnt(0)\nv_mov_b32 v162, {s.gsync_n}\nds_write_b32 v160, v162")
    def gwait(s, sleep=2):
        s.lds_spin(161, s.gsync_n, 163, sleep=sleep)

    def ln_loads(s, sJ):
        X = (8, 13); GWR = 18
        s(f"""s_and_b32 s67, s{sXC}, 3
        s_lshl1_add_u32 s67, s67, s49
        s_lshl_b32 s67, s67, 5
        s_add_u32 s67, s67, s{sI}
        s_lshl2_add_u32 s68, s67, s{sJ}
        s_lshl_b32 s68, s68, 1
        s_mul_i32 s69, s68, 1280
        v_and_b32 v1, 31, v0
        v_lshrrev_b32 v3, 5, v0
        v_lshlrev_b32 v2, 3, v1
        v_lshlrev_b32 v1, 4, v1
        v_mul_u32_u24 v19, 1280, v3
        v_add_u32 v18, v19, v1
        v_add_u32 v19, v19, v2""")
        s.kwait()
        if s.opt.get('noln'): return
        s(f"""buffer_load_dwordx4 v[8:11], v18, {srd(sX)}, s69 offen
        buffer_load_dwordx4 v[12:15], v18, {srd(sX)}, s69 offen offset:512
        buffer_load_dwordx2 v[16:17], v19, {srd(sX)}, s69 offen offset:1024
        """)
        if not s.opt.get('glate', 0): s.gate_loads()
        if s.opt.get('wpf', 0):
            s(f"""s_mul_i32 s70, s2, 9600
            s_mul_i32 s71, s{sJ}, {19*128}
            s_add_u32 s70, s70, s71
            v_min_u32 v166, 18, v0
            v_lshlrev_b32 v166, 7, v166
            buffer_load_dword v166, v166, {srd(sWQ)}, s70 offen""")

    def layernorm(s, sJ):
        X, GW, XV = 8, 20, 32
        nb = [0]
        def bar():
            nb[0] += 1; s("s_barrier")
        gl = [(31,1,30,sDBG,"0",0)]
        s(f"""s_mov_b32 s70, 0x3f803f80
        s_lshl_b32 s55, s68, 2
        s_add_u32 s55, s55, {GI}
        s_add_u32 s69, s69, {HI}
        v_lshlrev_b32 v3, 2, v3
        v_and_b32 v30, 15, v0
        v_lshlrev_b32 v30, 2, v30""")
        if s.opt.get('lnb', 1) & 2: s("s_waitcnt lgkmcnt(0)"); bar()
        s(f"s_waitcnt vmcnt({1 if s.opt.get('wpf', 0) else 0})")
        s.stamp(1)
        for i in range(10):
            s(f"v_dot2_f32_bf16 v4, v{X+i}, s70, {'v4' if i else 0}")
            s(f"v_dot2_f32_bf16 v5, v{X+i}, v{GW+i}, {'v5' if i else 0}")
        un = []
        for i in range(10):
            un += [f"v_lshlrev_b32 v{XV+2*i}, 16, v{X+i}", f"v_and_b32 v{XV+2*i+1}, 0xffff0000, v{X+i}"]
        def fill(n):
            for _ in range(n): s(un.pop(0) if un else "s_nop 0")
        fill(3)
        for k in (8, 4, 2, 1):
            for q in (4, 5): s(f"v_add_f32_dpp v{q}, v{q}, v{q} row_ror:{k} row_mask:0xf bank_mask:0xf")
            fill(1)
        s("v_mov_b32 v6, v4\nv_mov_b32 v7, v5"); fill(2)
        s("v_permlane16_swap_b32 v4, v6\nv_permlane16_swap_b32 v5, v7"); fill(2)
        s(f"""v_add_f32 v4, v4, v6
        v_add_f32 v5, v5, v7
        v_mul_f32 v4, {fbits(-1/640)}, v4
        v_mul_f32 v5, {fbits(-math.log2(math.e))}, v5
        v_exp_f32 v5, v5""")
        fill(len(un))
        s("v_add_f32 v5, 1.0, v5\nv_rcp_f32 v2, v5")
        for e in range(0, 20, 2): s(f"v_pk_add_f32 {vr(XV+e,2)}, {vr(XV+e,2)}, v[4:5] op_sel_hi:[1,0]")
        for e in range(0, 20, 2):
            a = (6, 52)[(e >> 1) & 1]
            if e < 4: s(f"v_pk_mul_f32 {vr(a,2)}, {vr(XV+e,2)}, {vr(XV+e,2)}")
            else: s(f"v_pk_fma_f32 {vr(a,2)}, {vr(XV+e,2)}, {vr(XV+e,2)}, {vr(a,2)}")
        s("v_pk_add_f32 v[6:7], v[6:7], v[52:53]\nv_add_f32 v6, v6, v7")
        for k in (8, 4, 2, 1):
            s(f"s_nop 1\nv_add_f32_dpp v6, v6, v6 row_ror:{k} row_mask:0xf bank_mask:0xf")
        s(f"""v_mov_b32 v7, v6
        v_mov_b32 v4, {fbits(1e-5)}
        s_nop 0
        v_permlane16_swap_b32 v6, v7
        s_nop 1
        v_add_f32 v6, v6, v7
        v_fmac_f32 v4, {fbits(1/640)}, v6
        v_rsq_f32 v4, v4
        s_nop 0""")
        for e in range(0, 20, 2):
            s(f"v_pk_mul_f32 {vr(XV+e,2)}, {vr(XV+e,2)}, v[4:5] op_sel_hi:[1,0]")
        for i in range(10): s(f"v_cvt_pk_bf16_f32 v{X+i}, v{XV+2*i}, v{XV+2*i+1}")
        nx, done = s.new("g"), s.new("g")
        if s.opt.get('lnb', 1) & 1: s("s_waitcnt lgkmcnt(0)"); bar()
        s(f"""buffer_store_dwordx4 v[8:11], v18, {srd(sWS)}, s69 offen sc1
        buffer_store_dwordx4 v[12:15], v18, {srd(sWS)}, s69 offen offset:512 sc1
        buffer_store_dwordx2 v[16:17], v19, {srd(sWS)}, s69 offen offset:1024 sc1
        s_mov_b32 exec_lo, 1
        s_mov_b32 exec_hi, 1
        buffer_store_dword v2, v3, {srd(sWS)}, s55 offen sc1
        s_mov_b64 exec, -1
        s_cmp_lg_u32 s{sJ}, 0
        s_cbranch_scc1 {s.ln(nx)}""")
        s.poll_issue(gl)
        s.lab(nx)
        if s.opt.get('b0st'): s.stamp(7)
        s("s_waitcnt lgkmcnt(0)")
        for _ in range(s.opt.get('lnw', 1)): bar()
        s("s_waitcnt vmcnt(0)")
        bar()
        s(f"""s_mul_i32 s54, s67, {s.hsp}
        s_add_u32 s54, s54, {F_H}
        s_cmp_lg_u32 s{sJ}, 0
        s_cbranch_scc1 {s.ln(done)}""")
        s.poll(gl, sleep=4, pre=0)
        s.set_flag("s54", 4, 5)
        s.lab(done)
        s.gtiles(sJ)
        return nb[0]

    def gpoll(s, pre, loads, ok, sleep, lsl=4, atom=None):
        nx = s.new("gp")
        s(f"s_cmp_lg_u32 s48, 0\ns_cbranch_scc1 {s.ln(nx)}")
        for addr, need in pre: s.lds_spin(164, need, 165, off=addr-SYN, sleep=lsl)
        if loads: s.poll(loads, sleep=sleep)
        if atom: s.apoll(*atom, sleep)
        s(f"v_mov_b32 v165, 1\nds_write_b32 v164, v165 offset:{ok-SYN}")
        s.lab(nx)
        s.lds_spin(164, 1, 165, off=ok-SYN, sleep=lsl)

    def g2_dW(s, t):
        L = []
        for n in range(4):
            pre = f"s_add_u32 m0, s49, {(t%3)*4096}\ns_nop 0\n" if n == 0 else ""
            inc = 32768-1024 if n < 3 else 32768+3*1024
            L.append(pre + f"buffer_load_dwordx4 v13, {srd(sW2)}, s64 offen offset:{1024*n} lds\ns_add_u32 s64, s64, {inc}")
        return L

    def pfwo(s):
        s(f"""s_lshl_b32 s60, s{sI}, 2
        s_add_u32 s60, s60, s48
        s_mul_i32 s61, s60, 6400
        v_min_u32 v30, 49, v0
        v_lshlrev_b32 v30, 7, v30
        buffer_load_dword v167, v30, {srd(sWO)}, s61 offen""")

    def gemm1(s, sJ):
        ACC = 64
        skip, fin = s.new("g1skip"), s.new("g1fin")
        s(f"s_cmp_eq_u32 s{sCT}, 15\ns_cbranch_scc1 {s.ln(skip)}")
        reads, mf = s.gemm_ops(24, True, 28)
        s(f"s_setprio {s.opt.get('gp1', 1)}")
        for l in reads(0,0): s(l)
        s("s_mov_b32 s54, 4")
        s.gemm_loop(reads, mf, 0, range(24, 32), 54, True)
        s.stamp(3)
        if s.opt.get('dbgx') == 3: s.end_wave()
        s(f"""s_setprio 3
        s_lshl_b32 s55, s{sN1}, 2
        s_lshl_b32 s57, s{sJ}, 11
        s_add_u32 s57, s57, {PI}
        v_lshlrev_b32 v29, 4, v0""")
        s.gpost()
        hold = s.opt.get('phold', 3)
        for n in range(1, 4):
            m = (0, 2, 1, 3)[n]
            p = 32 + 8*(n-1)
            s(f"""s_xor_b32 s54, s50, {m}
            s_add_u32 s54, s54, s55
            s_mul_i32 s54, s54, 24576
            s_add_u32 s54, s54, s57
            s_add_u32 s{57+n}, s54, {(n-1)*8192}""")
            s.al8()
            for q in range(8): s(f"v_cvt_pk_bf16_f32 v{p+q}, v{ACC+16*n+2*q}, v{ACC+16*n+2*q+1}")
        if hold: s.lds_spin(164, max(1, hold-1), 165, off=(SY_QOK if hold == 1 else SY_PA)-SYN, sleep=(2 if hold < 3 else 6))
        wa, wb = s.opt.get('wa', 0), s.opt.get('wb', 1)
        s.gwait()
        s(f"s_setprio {s.opt.get('psp', 0)}")
        for n in range(1, 4):
            p = 32 + 8*(n-1)
            s(f"""buffer_store_dwordx4 {vr(p,4)}, v29, {srd(sWS)}, s{57+n} offen sc1
            buffer_store_dwordx4 {vr(p+4,4)}, v29, {srd(sWS)}, s{57+n} offen offset:1024 sc1""")
        for t in range(wa):
            for l in s.g2_dW(t): s(l)
        s(f"""s_setprio 3
        s_add_u32 s54, s55, s{sJ}
        s_mul_i32 s54, s54, {FSP}
        s_add_u32 s54, s54, {F_P}
        s_add_u32 s56, s55, s50
        s_mul_i32 s56, s56, 24576
        s_add_u32 s56, s56, s57
        s_mov_b64 exec, 1
        v_mov_b32 v30, 0
        v_mov_b32 v31, 1
        s_waitcnt vmcnt({4*wa})
        buffer_atomic_add v31, v30, {srd(sWS)}, s54 offen sc0 sc1
        s_waitcnt vmcnt(0)
        v_add_u32 v31, 1, v31""")
        s.apoll("s54", 4, 30, 31, s.opt.get('ppsl', 4), pre=True)
        s.stamp(4)
        for n in range(3):
            p = 32 + 8*n
            s(f"""buffer_load_dwordx4 {vr(p,4)}, v29, {srd(sWS)}, s56 offen sc1
            buffer_load_dwordx4 {vr(p+4,4)}, v29, {srd(sWS)}, s56 offen offset:1024 sc1
            s_add_u32 s56, s56, 8192""")
        c0 = -2*math.sqrt(2/math.pi)*math.log2(math.e); c1 = c0*0.044715
        s(f"""s_mov_b32 s56, {fbits(c1)}
        s_mov_b32 s57, {fbits(c1)}
        v_mov_b32 v56, {fbits(c0)}
        v_mov_b32 v57, {fbits(c0)}
        s_mov_b32 s60, 1.0
        s_mov_b32 s61, 1.0
        s_mov_b32 s58, 0xffff0000""")
        T = ACC + 16
        for n in range(3):
            s(f"s_waitcnt vmcnt({4-2*n})")
            if s.opt.get('gst') and n == 0: s.stamp(1)
            s.al8()
            for q in range(8):
                s(f"v_lshlrev_b32 v{T+2*q}, 16, v{32+8*n+q}\nv_and_b32 v{T+2*q+1}, s58, v{32+8*n+q}")
            for r in range(0, 16, 2): s(f"v_pk_add_f32 {vr(ACC+r,2)}, {vr(ACC+r,2)}, {vr(T+r,2)}")
        for r in range(0, 16, 2): s(f"v_pk_mul_f32 {vr(T+r,2)}, {vr(ACC+r,2)}, {vr(ACC+r,2)}")
        for r in range(0, 16, 2): s(f"v_pk_fma_f32 {vr(T+r,2)}, {vr(T+r,2)}, s[56:57], v[56:57]")
        for r in range(0, 16, 2): s(f"v_pk_mul_f32 {vr(T+r,2)}, {vr(T+r,2)}, {vr(ACC+r,2)}")
        for r in range(16): s(f"v_exp_f32 v{T+r}, v{T+r}")
        for r in range(0, 16, 2): s(f"v_pk_add_f32 {vr(T+r,2)}, {vr(T+r,2)}, s[60:61]")
        for r in range(16): s(f"v_rcp_f32 v{T+r}, v{T+r}")
        for r in range(0, 16, 2): s(f"v_pk_mul_f32 {vr(T+r,2)}, {vr(T+r,2)}, {vr(ACC+r,2)}")
        for q in range(8): s(f"v_cvt_pk_bf16_f32 v{40+q}, v{T+2*q}, v{T+2*q+1}")
        if s.opt.get('gst'): s.stamp(2)
        s(f"""s_mul_i32 s54, s51, {4*10240}
        s_lshl_b32 s57, s52, 9
        s_add_u32 s54, s54, s57
        s_add_u32 s54, s54, {UI}
        buffer_store_dwordx4 v[40:43], v14, {srd(sWS)}, s54 offen sc1
        buffer_store_dwordx4 v[44:47], v14, {srd(sWS)}, s54 offen offset:256 sc1
        """)
        if s.opt.get('gst'): s.stamp(3)
        for t in range(wa, wa+wb):
            for l in s.g2_dW(t): s(l)
        uw = s.opt.get('uw', 1); ur = s.opt.get('ur', 8)
        if uw:
            s(f"""s_mul_i32 s54, s52, 410
            s_add_u32 s58, s54, 397
            s_lshr_b32 s54, s54, 10
            s_lshr_b32 s58, s58, 10
            s_cmp_eq_u32 s54, s58
            s_mov_b32 s58, {((1 << ur) - 1) * 0x101}
            s_cmov_b32 s58, {(1 << ur) - 1}
            s_mov_b32 s59, 0
            s_mul_i32 s57, s{sF1}, 11
            s_lshr_b32 s57, s57, 5
            s_lshl_b32 s57, s57, 3
            s_add_u32 s54, s54, s57
            s_mul_i32 s54, s54, {8*FSP}
            s_add_u32 s54, s54, {F_U}
            v_mul_u32_u24 v32, {FSP}, v0
            v_mov_b32 v31, 1
            s_mov_b64 exec, s[58:59]
            s_waitcnt vmcnt({4*wb})
            buffer_atomic_add v31, v32, {srd(sWS)}, s54 offen sc1
            s_mov_b64 exec, -1""")
        else:
            s(f"""s_mul_i32 s54, s{sD1}, 13
            s_lshr_b32 s54, s54, 3
            s_mul_i32 s57, s{sF1}, 11
            s_lshr_b32 s57, s57, 5
            s_lshl_b32 s57, s57, 3
            s_add_u32 s54, s54, s57
            s_mul_i32 s54, s54, {8*FSP}
            s_add_u32 s54, s54, {F_U}
            s_bitcmp1_b32 s{sD1}, 0
            s_mov_b32 s58, 0xffff
            s_cmov_b32 s58, 0xffffff
            s_mov_b32 s59, 0
            v_mul_u32_u24 v32, {FSP}, v0""")
            s.arrive_add(SY_CU, 4, "s54", 32, "s[58:59]", 30, 31, 4*wb)
        s(f"s_branch {s.ln(fin)}")
        s.lab(skip)
        for _ in range(7): s("s_barrier")
        s("s_setprio 3")
        if s.opt.get('ldstamp'): s.end_wave()
        s.lds_spin(164, s.opt.get('skipw', 6), 165, off=SY_PA-SYN, sleep=8)
        for t in range(wa+wb):
            for l in s.g2_dW(t): s(l)
        s("s_waitcnt vmcnt(0)")
        s.lab(fin)
        s.pfwo()
        s.stamp(5)
        if s.opt.get('dbgx') or s.opt.get('ldstamp'): s.end_wave()

    def gemm2(s, sJ):
        ACC, UB, BB = 64, (24, 44), 144
        vW, vU, aT = 13, 14, 15
        sST, sDT, sOW, sOU, sTK = 62, 63, 64, 65, 66
        NS = 3
        dW = s.g2_dW
        def lU(t, rev=False):
            L = [f"buffer_load_dwordx4 {vr(UB[t&1]+4*di,4)}, v{vU}, {srd(sWS)}, s{sOU} offen offset:{256*di} sc1" for di in (range(4, -1, -1) if rev else range(5))]
            L[4] += f"\ns_add_u32 s{sOU}, s{sOU}, 40960"
            return L
        def rd(t, si):
            o = (t % NS)*4096
            return f"ds_read_b64_tr_b16 {vr(BB+4*si,2)}, v{aT+si} offset:{o}\nds_read_b64_tr_b16 {vr(BB+4*si+2,2)}, v{aT+si} offset:{o+2048}"
        def mf(t, si, di):
            d = vr(ACC+20*si+4*di,4)
            if s.opt.get('gnomf'): return "s_nop 3"
            return f"v_mfma_f32_16x16x32_bf16 {d}, {vr(UB[t&1]+4*di,4)}, {vr(BB+4*si,4)}, {d if t else 0}"
        s(f"s_setprio {s.opt.get('gp2', 0)}")
        for t in range(s.opt.get('wa', 0) + s.opt.get('wb', 1), 3):
            for l in dW(t): s(l)
            if (s.opt.get('wpre', 3) >> t) & 1: s("s_waitcnt vmcnt(0)")
        hl = [(28,1,25,sWS,"s57",0)]
        s(f"""s_setprio 3
        s_mul_i32 s55, s{sDT}, 80
        s_lshr_b32 s54, s55, 7
        s_add_u32 s55, s55, 79
        s_lshr_b32 s55, s55, 7
        s_cmp_eq_u32 s54, s55
        s_cselect_b32 s55, 12, 24
        {"s_mov_b32 s55, 36" if s.opt.get('uw', 1) else ""}
        s_lshl_b32 s54, s{sJ}, 3
        s_add_u32 s54, s54, s{sDT}
        s_lshl_b32 s54, s54, 3
        s_and_b32 s57, s{sXC}, {s.opt.get('ur', 8)-1}
        s_add_u32 s54, s54, s57
        s_mul_i32 s54, s54, {FSP}
        s_add_u32 s54, s54, {F_U}
        s_mul_i32 s57, s{sST}, {8*s.hsp}
        s_add_u32 s57, s57, {F_H}
        v_and_b32 v25, 7, v0
        v_mul_u32_u24 v25, {s.hsp}, v25""")
        s.poll_issue(hl)
        s.apoll("s54", "s55", 26, 27, s.opt.get('usl', 4))
        s.poll(hl, sleep=4, pre=0)
        s(f"""s_lshl_b32 s54, s{sTK}, 2
        s_add_u32 s54, s54, {GI}
        v_and_b32 v22, 15, v0
        v_lshlrev_b32 v22, 2, v22
        s_setprio {s.opt.get('gp2', 0)}
        buffer_load_dword v22, v22, {srd(sWS)}, s54 offen sc1""")
        s.stamp(6)
        if s.opt.get('dbgy') == 3: s.end_wave()
        for t in range(2):
            for l in lU(t): s(l)
        s("s_waitcnt vmcnt(10)")
        for si in range(4): s(rd(0, si))
        NT = 12
        s(f"""s_mul_i32 s56, s{sJ}, {160*1280}
        s_mul_i32 s54, s{sDT}, 160
        s_add_u32 s56, s56, s54""")
        def wo1(n):
            return f"s_add_u32 m0, s49, {n*1024}\ns_add_u32 s57, s56, {(n//5)*32*1280}\nbuffer_load_dwordx4 v{1+n%5}, {srd(sWO)}, s57 offen lds"
        cnt = []
        for t in range(NT):
            if t == s.opt.get('gp2t', 99): s(f"s_setprio {s.opt.get('gp2b', 0)}")
            nold = s.opt.get('gnold')
            uo = s.opt.get('uo', 1)
            if uo == 1: U = lU(t+1) if 0 < t and t+1 < NT and not nold else []
            else: U = lU(t+2) if t+2 < NT and not nold else []
            W = dW(t+3) if t+3 < NT else [wo1(4*(t-9) + q) for q in range(4)]
            if nold and t+3 < NT: W = []
            X = [wo1(18+t if t < 7 else 6+t)] + ([wo1(12)] if t == 10 else [])
            s(f"s_waitcnt vmcnt({cnt[-1] if t else 5})")
            cnt.append((0 if uo == 1 else len(U)) + len(W) + len(X))
            if t == 9: s.gpost()
            for si in range(4):
                s(f"s_waitcnt lgkmcnt({6 if t+1 < NT else 2*(3-si)})")
                for di in range(5):
                    s(mf(t, si, di if si % 2 == 0 or not s.opt.get('serp', 1) else 4-di))
                    if si == 3 and di < len(W): s(W[di])
                    if si == (2 if uo == 1 else 1) and di < len(X): s(X[di])
                    if uo == 1 and si == 0 and U: s(U[di])
                    if uo == 2 and si == 3 and U: s(lU(t+2, True)[di])
                if t+1 < NT: s(rd(t+1, si))
            if uo == 0:
                for l in U: s(l)
        s.stamp(7)
        if s.opt.get('dbgy') == 1: s.end_wave()
        s("s_setprio 3")
        s.gwait(1)
        ORD = [3, 7, 11, 15] + [t for t in range(20) if t % 4 != 3 or t > 15]
        OB = 64; AC = 24
        FX = s.opt.get('fx', 11)
        FB = [44, 48, 52, 56, 60, 144, 148, 152, 156] + [100 + 4*q for q in range(FX)]; NB = len(FB)
        def rdf(n):
            t, di = divmod(n, 5); b = FB[n % NB]; t = ORD[t]
            if t < 16:
                a = 6 if t < 8 else 7; o = (t % 8)*6400 + 32*di
                return f"ds_read_b64_tr_b16 {vr(b,2)}, v{a} offset:{o}\nds_read_b64_tr_b16 {vr(b+2,2)}, v{a} offset:{o+1280}"
            tp = t-16; a = 8 if tp < 2 else 10; o = (tp % 2)*25600 + 32*di
            return f"ds_read_b64_tr_b16 {vr(b,2)}, v{a} offset:{o}\nds_read_b64_tr_b16 {vr(b+2,2)}, v{a+1} offset:{o}"
        FD = s.opt.get('fd', 9)
        for n in range(FD): s(rdf(n))
        s(f"""v_lshlrev_b32 v13, 4, v0
        s_mul_i32 s54, s{sJ}, 15360
        s_add_u32 s54, s54, {XB}
        v_add_u32 v1, s54, v13
        s_add_u32 s54, s54, 14336
        s_cmp_eq_u32 s{sJ}, 3
        s_cselect_b32 s54, 19200, s54
        v_add_u32 v2, s54, v13""")
        for n in range(1, 4):
            s(f"s_xor_b32 s54, s{sJ}, {n}\ns_mul_i32 s54, s54, 15360\ns_add_u32 s54, s54, {XB + (n-1)*5120}\nv_add_u32 v{2+n}, s54, v13")
        s(f"""s_add_u32 s54, s54, 4096
        s_cmp_eq_u32 s{sJ}, 0
        s_cselect_b32 s54, 19200, s54
        v_add_u32 v13, s54, v13
        v_and_b32 v14, 7, v0
        v_lshlrev_b32 v14, 2, v14
        v_add_u32 v14, {SY_PA}, v14
        v_sub_f32 v22, 1.0, v22
        v_mul_f32 v20, v20, v22
        s_lshl_b32 s56, s{sTK}, 4
        s_add_u32 s56, s56, {OI}
        s_lshr_b32 s54, s{sTK}, 5
        s_lshl_b32 s54, s54, 8
        s_add_u32 s54, s54, {F_O}""")
        s.gpost()
        if s.opt.get('tst'): s.stamp(3)
        s.lds_spin(14, 17, 165, sleep=8)
        s.lds_spin(14, 20, 165, sleep=s.opt.get('esl', 1))
        if s.opt.get('tst'): s.stamp(4)
        for n in range(1, 4):
            for q in range(5):
                e = 5*(n-1) + q
                if e < 14: s(f"ds_write_b128 v1, {vr(ACC+20*n+4*q,4)} offset:{1024*e}")
                else:
                    s.gwait(0)
                    s(f"ds_write_b128 v2, {vr(ACC+20*n+4*q,4)}")
        s("s_waitcnt vmcnt(0)")
        s.gpost()
        ope = s.opt.get('ope', 1)
        if ope == 2: s.apoll_issue("s54", 15, 16); s("s_mov_b64 exec, -1")
        s.gwait(0)
        if ope == 1: s.apoll_issue("s54", 15, 16); s("s_mov_b64 exec, -1")
        if s.opt.get('tst'): s.stamp(5)
        for n in range(1, 4):
            for q in range(5):
                if (n, q) != (3, 4): s(f"ds_read_b128 {vr(ACC+20*n+4*q,4)}, v{2+n} offset:{1024*q}")
                else: s(f"ds_read_b128 {vr(ACC+20*n+4*q,4)}, v13")
        for n in range(1, 4):
            s(f"s_waitcnt lgkmcnt({5*(3-n)})"); s.al8()
            for r in range(0, 20, 2): s(f"v_pk_add_f32 {vr(ACC+r,2)}, {vr(ACC+r,2)}, {vr(ACC+20*n+r,2)}")
        for r in range(0, 20, 2): s(f"v_pk_fma_f32 {vr(AC+r,2)}, {vr(ACC+r,2)}, v[22:23], v[20:21] op_sel_hi:[1,0,0]")
        for n in range(FD, FD+FX): s(rdf(n))
        if s.opt.get('tst'): s.stamp(6)
        s.apoll("s54", 32, 15, 16, s.opt.get('osl', 2), pre=bool(ope))
        s.stamp(8)
        if s.opt.get('dbgy') == 2: s.end_wave()
        def lO(t):
            b = OB+4*(t % NO)
            if ORD[t] < 16: return f"s_add_u32 s57, s56, {ORD[t]*131072}\nbuffer_load_dwordx4 {vr(b,4)}, v12, {srd(sWS)}, s57 offen sc1"
            return f"s_add_u32 s57, s58, {ORD[t]*131072}\nbuffer_load_dwordx2 {vr(b,2)}, v3, {srd(sWS)}, s57 offen sc1\nbuffer_load_dwordx2 {vr(b+2,2)}, v4, {srd(sWS)}, s57 offen sc1"
        def nO(t0, t1): return sum(1 if ORD[t] < 16 else 2 for t in range(t0, t1))
        PD = s.opt.get('opd', 8); NO = 9 if FX else 20
        assert PD < NO
        for t in range(PD): s(lO(t))
        s(f"""s_lshl_b32 s58, s{sTK}, 3
        s_add_u32 s58, s58, {OI}
        v_lshrrev_b32 v3, 4, v0
        v_and_b32 v4, 1, v3
        v_lshl_add_u32 v3, v3, 1, v4
        v_lshlrev_b32 v3, 14, v3
        v_and_b32 v4, 15, v0
        v_lshl_add_u32 v3, v4, 3, v3
        v_xor_b32 v4, 0x4000, v3""")
        if s.opt.get('om', 1):
            s(f"""s_xor_b32 s55, s{sJ}, 1
            s_mul_i32 s55, s55, 15360
            s_add_u32 s55, s55, {XB}
            v_and_b32 v17, 15, v0
            v_mul_u32_u24 v17, 160, v17
            v_lshrrev_b32 v18, 4, v0
            v_lshl_add_u32 v17, v18, 3, v17
            v_add_u32 v17, s55, v17
            v_lshlrev_b32 v18, 4, v0
            v_add_u32 v18, s55, v18""")
            for m in range(3):
                s(f"""v_add_u32 v1, {64*m}, v0
                v_mul_u32_u24 v2, 6554, v1
                v_lshrrev_b32 v2, 16, v2
                v_mul_u32_u24 v2, {1280-160}, v2
                v_lshl_add_u32 v{13+m}, v1, 4, v2""")
        F0 = FD + FX
        pos = {n: ((n-F0)*(99-FD))//(99-F0) for n in range(F0, 100)}
        issued = []
        if FX: s("s_waitcnt lgkmcnt(0)")
        for n in range(100):
            t, di = divmod(n, 5)
            w = []
            if di == 0: w.append(f"vmcnt({nO(t+1, min(t+PD, 20))})")
            wg = {0: (1,1,1,1,1), 1: (3,0,0,2,0), 2: (2,0,2,0,1), 3: (5,0,0,0,0)}[s.opt.get('wg', 1)][di]
            last = n+wg-1
            if wg and last >= F0:
                assert last in issued
                w.append(f"lgkmcnt({min(15, 2*(len(issued)-1-issued.index(last)))})")
            if w: s("s_waitcnt " + " ".join(w))
            if s.opt.get('wst') and n in (0, 25, 50, 75, 99): s.stamp(3 + (n+1)//25)
            d = vr(AC+4*di,4)
            s(f"v_mfma_f32_16x16x32_bf16 {d}, {vr(FB[n % NB],4)}, {vr(OB+4*(t % NO),4)}, {d}")
            for k in sorted(pos):
                if pos[k] == n:
                    assert k - NB <= n
                    s(rdf(k)); issued.append(k)
            if di == 4 and t+PD < 20: s(lO(t+PD))
        osc = ("", " sc1", " nt", " sc0 sc1", " sc1 nt")[s.opt.get('osc', 0)]
        om = s.opt.get('om', 1)
        s(f"s_mul_i32 s54, s{sDT}, 160\ns_nop 7")
        if om == 0:
            for di in range(5):
                s(f"""v_cvt_pk_bf16_f32 v{2+2*di}, v{AC+4*di}, v{AC+4*di+1}
                v_cvt_pk_bf16_f32 v{3+2*di}, v{AC+4*di+2}, v{AC+4*di+3}
                buffer_store_dwordx2 {vr(2+2*di,2)}, v19, {srd(sOUT)}, s54 offen offset:{32*di}{osc}""")
        else:
            for di in range(5):
                s(f"""v_cvt_pk_bf16_f32 v{2+2*di}, v{AC+4*di}, v{AC+4*di+1}
                v_cvt_pk_bf16_f32 v{3+2*di}, v{AC+4*di+2}, v{AC+4*di+3}
                ds_write_b64 v17, {vr(2+2*di,2)} offset:{32*di}""")
            s(f"s_mul_i32 s55, s{sTK}, 1280\ns_add_u32 s54, s54, s55")
            for m in range(3): s(f"ds_read_b128 {vr(44+4*m,4)}, v18 offset:{1024*m}")
            for m in range(3):
                if m == 2: s("s_mov_b32 exec_hi, 0")
                s(f"s_waitcnt lgkmcnt({2-m})\nbuffer_store_dwordx4 {vr(44+4*m,4)}, v{13+m}, {srd(sOUT)}, s54 offen{osc}")

    def text(s):
        s.prologue()
        m = s.opt.get('asc', 0)
        for k, r in enumerate((sX, sWQ, sW1, sW2, sWO)):
            if (m >> k) & 1: s.L = [l.replace(" lds", " sc1 lds") if srd(r) in l and l.endswith(" lds") else l for l in s.L]
        head = f".globl {s.k}\n.p2align 8\n.type {s.k},@function\n{s.k}:\n"
        return head + "\n".join(s.L) + "\n"

def kd(k):
    return f""".amdhsa_kernel {k}
  .amdhsa_next_free_vgpr 168
  .amdhsa_next_free_sgpr 102
  .amdhsa_accum_offset 168
  .amdhsa_group_segment_fixed_size 0
  .amdhsa_kernarg_size 96
  .amdhsa_user_sgpr_count 2
  .amdhsa_user_sgpr_kernarg_segment_ptr 1
  .amdhsa_system_sgpr_workgroup_id_x 1
.end_amdhsa_kernel
"""

HEADER = """; out = g * MHA(x) + (1 - g) * TokenMixer(x), one persistent launch: 256 workgroups of 12 waves, one per CU.
; Kernarg (8-byte pointers): A_x, A_wqkv, A_wo, B_x (unused by the reference), B_w1, B_b1, B_w2, B_b2, gate_w, out, debug, ws.
;
;          128x128 tile of LN(x)^T*w1 over a quarter of the tokens (G waves). G waves first compute LN(x) and the gate for 8 rows.
;  middle: A waves run attention for one head and 256 queries (S^T = K Q^T, exp2, O^T += V^T P^T with the row sum as an extra
;          row of ones). P feeds the sparse MFMA as it leaves v_exp_f32: the index operand selects the high (bf16) halves.
;          Meanwhile the G waves add the split-K partial sums, apply the tanh-form GELU and run the second mixer GEMM.
;  tail  : G waves add (g*o)*wo to (1-g)*(mixer + b2) and store the 64x80 output tile.
; Softmax shift: the main loop uses the shift 0. Each wave then checks that every row sum lies in [2^-30, 2^60] and that all
; accumulators are finite; otherwise it recomputes its rows in two passes with the true row maximum (label *_slow*).
; Hand-offs between workgroups: write-through stores, wait for completion, atomic counter (or flag) in ws; readers poll and use
; sc1 loads. The counters are cleared at the start of every launch; d_debug carries the "cleared" signal. All waits are bounded.
"""

def build(mode="fused", stamps=False, opt=None):
    k = NAME + "_kernel"
    out = HEADER + f"; @launch grid=(256,1,1) block=(768,1,1) lds={LDS_BYTES}\n"
    out += '.amdgcn_target "amdgcn-amd-amdhsa--gfx950"\n.text\ncode_begin:\n'
    out += Gen(k, stamps, opt).text()
    out += 'code_end:\n.section .rodata,"a"\n.p2align 6\n' + kd(k)
    return out

if __name__ == "__main__":
    mode = sys.argv[1] if len(sys.argv) > 1 else "fused"
    stamps = "stamp" in sys.argv[2]
    opt = {}
    for a in sys.argv[3:]:
        k, v = a.split("="); opt[k] = int(v)
    open(sys.argv[2], "w").write(build(mode, stamps, opt))
```

```python
import sys, math, struct

NAME = "gated_mix__mha_block__mixer_token_mlp__prompt"

QI = 0x000000
KI = 0x280000
VI = 0x500000
HI = 0x780000
UI = 0xA00000
OI = 0xC00000
GI = 0xE80000
FL = 0xE90000
FSP = 64
F_P = FL
F_H = FL + 15360
F_U = FL + 0x4000
F_O = FL + 0x8000
F_Q = FL + 0xC000
FL_BYTES = 0x14000
HSP = 4
STAMP = 0xF00000
PI = 0x1000000
WS_BYTES = 0x1800000

GREG = 25600
XB = 102400
KVB = 117504
KVS = 11520
LNS = 148480
SYN = 163584
SY_PA = SYN
SY_PG = SYN + 32
SY_QOK = SYN + 52
SY_POK = SYN + 56
SY_UOK = SYN + 60
SY_OOK = SYN + 64
SY_CQ = SYN + 68
SY_CU = SYN + 72
SY_CO = SYN + 76
SY_CP = SYN + 80
DUMMY = 163328
LDS_BYTES = 163840

SPIN_LIMIT = 200000

def fbits(x):
    return "0x%08x" % struct.unpack("<I", struct.pack("<f", x))[0]

sX, sWQ, sWO, sW1, sW2, sWS, sOUT, sDBG = 4, 8, 12, 16, 20, 24, 28, 32
sB1, sB2, sGW = 36, 38, 40
sW, sXC, sI = 42, 43, 44
sSPIN = 45
sRT, sCT = 46, 47
sN1, sD1, sF1 = 3, 100, 101
def srd(n): return f"s[{n}:{n+3}]"
def vr(a, n): return f"v[{a}:{a+n-1}]" if n > 1 else f"v{a}"

class Gen:
    def __init__(s, kname, stamps=False, opt=None):
        s.L = []
        s.k = kname
        s.stamps = stamps
        s.uid = 0
        s.cold = []
        s.opt = opt or {}
        s.hsp = s.opt.get('hsp', HSP)
    def __call__(s, t):
        for l in t.split("\n"):
            l = l.strip()
            if l: s.L.append("    " + l)
    def al8(s):
        if s.opt.get('al8', 1): s.L.append(".p2align 3")
    def lab(s, n):
        s.L.append(f"{s.k}_{n}:")
    def ln(s, n):
        return f"{s.k}_{n}"
    def new(s, base):
        s.uid += 1
        return f"{base}{s.uid}"
    def stamp(s, i):
        if s.stamps and not (getattr(s, 'mute', False) and i < 9):
            s(f"s_memrealtime s[76:77]\ns_memtime s[78:79]\ns_waitcnt lgkmcnt(0)\ns_mov_b32 s{80+2*i}, s76\ns_mov_b32 s{81+2*i}, s78")
    def end_wave(s):
        if 'probe' in s.opt:
            k = s.opt['probe'] % 10; w = s.opt['probe'] // 10
            s.stamp(9)
            lp, nx = s.new("pr"), s.new("pr")
            s(f"""s_cmp_lg_u32 s2, {s.opt.get('pwg', 100)}
            s_cbranch_scc1 {s.ln(nx)}
            s_cmp_lg_u32 s{sW}, {w}
            s_cbranch_scc1 {s.ln(nx)}
            s_add_u32 s46, s{80+2*k}, 10000""")
            s.lab(lp)
            s(f"""s_memrealtime s[76:77]
            s_waitcnt lgkmcnt(0)
            s_sub_u32 s47, s76, s46
            s_cmp_lt_i32 s47, 0
            s_cbranch_scc1 {s.ln(lp)}""")
            s.lab(nx)
            s("s_endpgm")
            return
        if s.stamps:
            s.stamp(9)
            s(f"s_mul_i32 s46, s2, 12\ns_add_u32 s46, s46, s{sW}\ns_lshl_b32 s46, s46, 7\ns_add_u32 s46, s46, {STAMP}")
            s("s_mov_b64 exec, -1\nv_lshlrev_b32 v1, 2, v0\nv_mov_b32 v2, 0")
            for i in range(20): s(f"v_writelane_b32 v2, s{80+i}, {i}")
            s(f"s_mov_b32 exec_hi, 0\nbuffer_store_dword v2, v1, {srd(sWS)}, s46 offen")
        s("s_endpgm")

    def lds_spin(s, vaddr, need, vtmp, off=0, sleep=1):
        a, b = s.new("spin"), s.new("spind")
        s(f"s_mov_b32 s{sSPIN}, {SPIN_LIMIT*4}")
        s.lab(a)
        s(f"""ds_read_b32 v{vtmp}, v{vaddr} offset:{off}
        s_waitcnt lgkmcnt(0)
        v_cmp_gt_u32 vcc, {need}, v{vtmp}
        s_cbranch_vccz {s.ln(b)}
        s_sleep {sleep}
        s_sub_u32 s{sSPIN}, s{sSPIN}, 1
        s_cbranch_scc0 {s.ln(a)}""")
        s.lab(b)

    def spin_ool(s, vaddr, need, vtmp, off=0, sleep=0):
        out, back = s.new("ool"), s.new("back")
        s(f"s_cbranch_vccnz {s.ln(out)}")
        s.lab(back)
        keep = s.L; s.L = []
        s.lab(out)
        s.lds_spin(vaddr, need, vtmp, off=off, sleep=sleep)
        s(f"s_branch {s.ln(back)}")
        s.cold += s.L; s.L = keep
    def flush_cold(s):
        s.L += s.cold; s.cold = []

    def poll_issue(s, loads):
        regs = []
        for (vd, n, vo, r, so, imm) in loads:
            sfx = {1: "dword", 2: "dwordx2", 4: "dwordx4"}[n]
            s(f"buffer_load_{sfx} {vr(vd,n)}, v{vo}, {srd(r)}, {so} offen offset:{imm} sc1")
            regs += list(range(vd, vd+n))
        return regs
    def poll(s, loads, sleep=2, pre=None):
        a, b, c = s.new("poll"), s.new("polld"), s.new("pollc")
        s(f"s_mov_b32 s{sSPIN}, {SPIN_LIMIT}")
        if pre is not None: s(f"s_waitcnt vmcnt({pre})\ns_branch {s.ln(c)}")
        s.lab(a)
        regs = s.poll_issue(loads)
        s("s_waitcnt vmcnt(0)")
        s.lab(c)
        for q in regs[1:]:
            s(f"v_min_u32 v{regs[0]}, v{regs[0]}, v{q}")
        s(f"""v_cmp_eq_u32 vcc, 0, v{regs[0]}
        s_cbranch_vccz {s.ln(b)}
        s_sleep {sleep}
        s_sub_u32 s{sSPIN}, s{sSPIN}, 1
        s_cbranch_scc0 {s.ln(a)}""")
        s.lab(b)

    def set_flag(s, soff, va, vb):
        s(f"""s_mov_b64 exec, 1
        v_mov_b32 v{va}, 0
        v_mov_b32 v{vb}, 1
        buffer_store_dword v{vb}, v{va}, {srd(sWS)}, {soff} offen sc1
        s_mov_b64 exec, -1""")

    def arrive(s, cnt, n, soff, va, vb, younger=0):
        nx = s.new("arr")
        s(f"""s_mov_b64 exec, 1
        v_mov_b32 v{va}, {cnt}
        v_mov_b32 v{vb}, 1
        s_waitcnt vmcnt({younger})
        ds_add_rtn_u32 v{va}, v{va}, v{vb}
        s_waitcnt lgkmcnt(0)
        v_cmp_eq_u32 vcc, {n-1}, v{va}
        v_mov_b32 v{va}, 0
        s_cbranch_vccz {s.ln(nx)}
        buffer_store_dword v{vb}, v{va}, {srd(sWS)}, {soff} offen sc1""")
        s.lab(nx)
        s("s_mov_b64 exec, -1")

    def arrive_add(s, cnt, n, soff, voff, mask, va, vb, younger=0):
        nx = s.new("arr")
        s(f"""v_mov_b32 v{vb}, 1
        s_mov_b64 exec, 1
        v_mov_b32 v{va}, {cnt}
        s_waitcnt vmcnt({younger})
        ds_add_rtn_u32 v{va}, v{va}, v{vb}
        s_waitcnt lgkmcnt(0)
        v_cmp_eq_u32 vcc, {n-1}, v{va}
        s_cbranch_vccz {s.ln(nx)}
        s_mov_b64 exec, {mask}
        buffer_atomic_add v{vb}, v{voff}, {srd(sWS)}, {soff} offen sc1""")
        s.lab(nx)
        s("s_mov_b64 exec, -1")

    def apoll_issue(s, soff, va, vb, mask=1):
        s(f"""s_mov_b64 exec, {mask}
        {f"v_mov_b32 v{va}, 0" if mask == 1 else ""}
        v_mov_b32 v{vb}, 0
        buffer_atomic_add v{vb}, v{va}, {srd(sWS)}, {soff} offen sc0 sc1""")
    def apoll(s, soff, need, va, vb, sleep, pre=False, mask=1):
        a, b, c = s.new("apoll"), s.new("apolld"), s.new("apollc")
        s(f"s_mov_b32 s{sSPIN}, {SPIN_LIMIT}")
        if pre: s(f"s_mov_b64 exec, {mask}\ns_branch {s.ln(c)}")
        s.lab(a)
        s.apoll_issue(soff, va, vb, mask)
        s.lab(c)
        s(f"""s_waitcnt vmcnt(0)
        v_cmp_gt_u32 vcc, {need}, v{vb}
        s_cbranch_vccz {s.ln(b)}
        s_sleep {sleep}
        s_sub_u32 s{sSPIN}, s{sSPIN}, 1
        s_cbranch_scc0 {s.ln(a)}""")
        s.lab(b)
        s("s_mov_b64 exec, -1")

    def lds_set(s, addr, val, va, vb):
        s(f"""v_mov_b32 v{va}, {addr}
        v_mov_b32 v{vb}, {val}
        ds_write_b32 v{va}, v{vb}""")

    def kwait(s):
        if s.stamps and s.opt.get('kst'): s("s_memrealtime s[72:73]\ns_memtime s[74:75]\ns_waitcnt lgkmcnt(0)\ns_mov_b32 s84, s72\ns_mov_b32 s85, s74")
        s("s_waitcnt lgkmcnt(0)")
        if s.stamps: s("s_mov_b32 s80, s76\ns_mov_b32 s81, s78")

    def rest_init(s):
        for reg, off in ((sWS,88),(sDBG,80),(sW1,32),(sW2,48),(sWO,16),(sOUT,72),(sB1,40),(sB2,56)):
            s(f"s_load_dwordx2 s[{reg}:{reg+1}], s[0:1], {off}")
        for reg, n in ((sWO,819200),(sW1,6291456),(sW2,f"s{sW1+2}"),(sWS,WS_BYTES),(sOUT,f"s{sX+2}"),(sDBG,256)):
            s(f"s_mov_b32 s{reg+2}, {n}\ns_mov_b32 s{reg+3}, s{sX+3}")
        if s.stamps:
            for i in range(1, 10):
                if not (s.opt.get('b0st') and i in (2, 3, 4)): s(f"s_mov_b32 s{80+2*i}, 0")
        s(f"""s_lshr_b32 s{sN1}, s{sXC}, 2
        s_lshl_b32 s{sN1}, s{sN1}, 5
        s_add_u32 s{sN1}, s{sN1}, s{sI}
        s_min_u32 s{sN1}, s{sN1}, 59
        s_mul_i32 s{sF1}, s{sN1}, 52
        s_lshr_b32 s{sF1}, s{sF1}, 8
        s_mul_i32 s{sD1}, s{sF1}, 5
        s_sub_u32 s{sD1}, s{sN1}, s{sD1}
        s_waitcnt lgkmcnt(0)""")

    def prologue(s):
        c0 = s.opt.get('c0', 64)
        if c0: s(f"s_getpc_b64 s[4:5]\nv_and_b32 v1, {c0-1}, v0\nv_lshlrev_b32 v1, 7, v1\nglobal_load_dword v167, v1, s[4:5]".replace("s[4:5]", "s[50:51]"))
        if s.stamps: s("s_memrealtime s[76:77]\ns_memtime s[78:79]")
        for reg, off in ((sX,0),(sWQ,8),(sGW,64)):
            s(f"s_load_dwordx2 s[{reg}:{reg+1}], s[0:1], {off}")
        s(f"""s_cmp_ge_u32 s2, 256
        s_cbranch_scc1 {s.ln('exit')}
        v_lshrrev_b32 v1, 6, v0
        s_lshr_b32 s{sI}, s2, 3
        v_readfirstlane_b32 s{sW}, v1
        s_mov_b32 s{sX+2}, 2621440
        s_mov_b32 s{sX+3}, 0x00020000
        s_mov_b32 s{sWQ+2}, 2457600
        s_mov_b32 s{sWQ+3}, s{sX+3}""")
        xm = s.opt.get('xm', 1)
        if xm == 0: s(f"s_and_b32 s{sRT}, s2, 3\ns_bfe_u32 s49, s2, 0x10002")
        else:
            s(f"s_bfe_u32 s{sRT}, s2, 0x20001\ns_and_b32 s49, s2, 1")
            if xm == 2: s("s_xor_b32 s49, s49, 1")
        s(f"""s_lshl2_add_u32 s{sXC}, s49, s{sRT}
        s_and_b32 s48, s{sI}, 3
        s_lshl2_add_u32 s{sRT}, s{sRT}, s48
        s_lshr_b32 s48, s{sI}, 2
        s_lshl3_add_u32 s{sCT}, s49, s48
        """)
        if s.opt.get('gfirst', 1):
            nx = s.new("p")
            s(f"s_cmp_lt_u32 s{sW}, 8\ns_cbranch_scc1 {s.ln(nx)}")
            s.gfront0()
            s(f"s_branch {s.ln('grole')}")
            s.lab(nx)
        else: s(f"s_cmp_ge_u32 s{sW}, 8\ns_cbranch_scc1 {s.ln('grole')}")
        s(f"""s_cmp_eq_u32 s{sCT}, 15
        s_cbranch_scc1 {s.ln('idle')}
        s_cmp_lt_u32 s{sW}, 4
        s_cbranch_scc1 {s.ln('qkv_comp')}
        v_and_b32 v0, 63, v0""")
        s.loader()
        s(f"s_branch {s.ln('att')}")
        s.lab("idle")
        if s.opt.get('cpf', 1): s.code_prefetch()
        s("v_and_b32 v0, 63, v0")
        s.rest_init()
        s.kwait()
        nx = s.new("idle")
        s(f"""s_cmp_lg_u32 s{sW}, 0
        s_cbranch_scc1 {s.ln(nx)}
        v_lshlrev_b32 v1, 4, v0
        v_mov_b32 v4, 0
        v_mov_b32 v5, 0
        v_mov_b32 v6, 0
        v_mov_b32 v7, 0
        s_mul_i32 s52, s{sRT}, {FL_BYTES//16}
        s_add_u32 s52, s52, {FL}""")
        for n in range(FL_BYTES//16384):
            s(f"buffer_store_dwordx4 v[4:7], v1, {srd(sWS)}, s52 offen offset:{(n&3)*1024} sc1")
            if n & 3 == 3: s("s_add_u32 s52, s52, 4096")
        s(f"""s_lshl_b32 s52, s{sRT}, 2
        s_mov_b64 exec, 1
        s_waitcnt vmcnt(0)
        v_mov_b32 v5, 1
        buffer_store_dword v5, v4, {srd(sDBG)}, s52 offen sc1
        s_mov_b64 exec, -1""")
        s.lab(nx)
        s.att_vsetup()
        ipf = s.opt.get('ipf', 2)
        hi = s.new("idle")
        s(f"s_cmp_ge_u32 s{sW}, 4\ns_cbranch_scc1 {s.ln(hi)}")
        for _ in range(15): s("s_barrier")
        s(f"s_branch {s.ln('att')}")
        s.lab(hi)
        if ipf:
            s(f"""v_min_u32 v32, 59, v0
            v_mul_u32_u24 v33, {-(-65536//12)}, v32
            v_lshrrev_b32 v33, 16, v33
            v_mul_u32_u24 v34, {3072 - 12*128}, v33
            v_lshl_add_u32 v32, v32, 7, v34
            s_and_b32 s52, s{sI}, 3
            s_lshl_b32 s52, s52, 2
            s_add_u32 s52, s52, s{sW}
            s_sub_u32 s52, s52, 4
            s_mul_i32 s52, s52, 5
            s_and_b32 s53, s{sXC}, 3
            s_mul_i32 s53, s53, {512*3072}
            s_add_u32 s53, s53, 1536""")
            def pf():
                s(f"""s_min_u32 s54, s52, 507
                s_mul_i32 s54, s54, 3072
                s_add_u32 s54, s54, s53
                buffer_load_dword v166, v32, {srd(sW1)}, s54 offen
                s_add_u32 s52, s52, 80""")
            n0 = 0
            if ipf == 1: pf(); n0 += 1
            s("s_barrier")
            if ipf <= 2: pf(); n0 += 1
            for _ in range(3): s("s_barrier")
            for _ in range(n0, 7):
                s(f"s_waitcnt vmcnt({s.opt.get('ipd', 0)})"); pf()
            ipw = s.opt.get('ipw', 0)
            if ipw:
                s(f"""v_lshrrev_b32 v33, 2, v0
                v_lshlrev_b32 v33, 12, v33
                v_and_b32 v34, 3, v0
                v_lshl_add_u32 v33, v34, 7, v33
                s_and_b32 s52, s{sI}, 3
                s_lshl_b32 s52, s52, 2
                s_add_u32 s52, s52, s{sW}
                s_sub_u32 s52, s52, 4
                s_lshl_b32 s52, s52, 16
                s_xor_b32 s53, s{sXC}, {4 if ipw & 8 else 0}
                s_lshl_b32 s53, s53, 9
                s_add_u32 s52, s52, s53""")
                for _ in range(ipw & 7):
                    s(f"s_waitcnt vmcnt(0)\nbuffer_load_dword v166, v33, {srd(sW2)}, s52 offen\ns_add_u32 s52, s52, {256*4096}")
            for _ in range(13): s("s_barrier")
        else:
            for _ in range(17): s("s_barrier")
        s(f"s_branch {s.ln('att')}")
        s.lab("qkv_comp")
        s.qkv_compute()
        s.lab("att")
        s.mute = bool(s.opt.get('b0st'))
        s.attention()
        s.mute = False
        s.end_wave()
        s.flush_cold()
        s.att_slow()
        s.lab("grole2")
        s.grole()
        s.end_wave()
        s.lab("exit")
        s("s_endpgm")

    def code_prefetch(s):
        here, nx = s.new("pc"), s.new("pc")
        s("s_getpc_b64 s[50:51]")
        s.lab(here)
        s(f"""s_sub_u32 s50, s50, {s.ln(here)}-{s.k}
        s_subb_u32 s51, s51, 0
        s_lshl_b32 s52, s{sI}, 3
        v_cmp_gt_u32 vcc, 64, v0
        v_add_u32 v1, s52, v0
        s_movk_i32 s54, {72 if s.opt.get('cpf', 1) == 1 else 64}
        v_cmp_gt_u32 s[52:53], s54, v0
        v_cndmask_b32 v1, v1, v0, vcc
        v_lshlrev_b32 v1, 7, v1
        v_min_u32 v1, code_end-{s.k}-4, v1
        s_mov_b64 exec, s[52:53]
        s_cbranch_execz {s.ln(nx)}
        global_load_dword v165, v1, s[50:51]""")
        s.lab(nx)
        s("s_mov_b64 exec, -1")

    def loader(s):
        if s.opt.get('lprio'): s(f"s_setprio {s.opt['lprio']}")
        s(f"""s_and_b32 s53, s{sRT}, 3
        s_mul_i32 s53, s53, 5
        s_lshl1_add_u32 s53, s48, s53
        s_lshr_b32 s54, s{sRT}, 2
        s_add_u32 s53, s53, s54
        s_lshr_b32 s53, s53, 1
        s_cmp_ge_u32 s53, 10
        s_cselect_b32 s54, 10, 0
        s_sub_u32 s53, s53, s54
        s_sub_u32 s48, s{sW}, 4
        s_lshl_b32 s49, s48, 4
        v_lshrrev_b32 v33, 4, v0
        v_add_u32 v32, s49, v33
        v_mul_u32_u24 v32, 3840, v32
        v_lshlrev_b32 v35, 2, v33
        v_and_b32 v34, 15, v0
        v_xor_b32 v34, v34, v35
        v_lshl_add_u32 v43, v34, 4, v32
        s_movk_i32 s54, {15360-1024}
        v_add_u32 v44, s54, v43
        v_xor_b32 v45, 32, v44
        v_add_u32 v45, s54, v45
        v_add_u32 v46, s54, v45
        s_lshl_b32 s51, s{sCT}, 8
        s_lshl_b32 s52, s48, 12""")
        xsetup = f"""v_lshrrev_b32 v32, 3, v0
        s_lshl_b32 s54, s48, 5
        v_add_u32 v32, s54, v32
        v_mul_u32_u24 v32, 1280, v32
        v_and_b32 v35, 7, v0
        v_xor_b32 v35, v35, v33
        v_lshl_add_u32 v39, v35, 4, v32
        s_movk_i32 s54, {10240-1024}
        v_xor_b32 v40, 64, v39
        v_add_u32 v40, s54, v40
        s_lshl_b32 s54, s54, 1
        v_add_u32 v41, s54, v39
        v_add_u32 v42, s54, v40
        s_mul_i32 s50, s{sRT}, {128*1280}"""
        def issue(t):
            def xs():
                s(f"""s_lshl_b32 s54, s53, 7
                s_add_u32 m0, s52, {(t&3)*32768}
                s_add_u32 s54, s54, s50""")
                for n in range(4):
                    s(f"buffer_load_dwordx4 v{39+n}, {srd(sX)}, s54 offen offset:{1024*n} lds")
            def ws():
                s(f"""s_mul_i32 s54, s53, {64*3840}
                s_add_u32 m0, s52, {(t&3)*32768+16384}
                s_add_u32 s54, s54, s51""")
                for n in range(4):
                    s(f"buffer_load_dwordx4 v{43+n}, {srd(sWQ)}, s54 offen offset:{1024*n} lds")
            if t == 0: ws(); s(xsetup); xs()
            elif s.opt.get('wf', 0): ws(); xs()
            else: xs(); ws()
            s("s_add_u32 s53, s53, 1\ns_cmp_eq_u32 s53, 10\ns_cselect_b32 s53, 0, s53")
        def issue1(t):
            s(f"""s_mul_i32 s54, s53, {64*1280}
            s_add_u32 m0, s52, {(t&3)*32768}
            s_add_u32 s54, s54, s50""")
            for n in range(4):
                s(f"buffer_load_dwordx4 v{47+n}, {srd(sWS)}, s54 offen offset:{1024*n} sc1 lds")
            s(f"""s_mul_i32 s54, s53, {64*3072}
            s_add_u32 m0, s52, {(t&3)*32768+16384}
            s_add_u32 s54, s54, s51""")
            for n in range(4):
                s(f"buffer_load_dwordx4 v{51+n}, {srd(sW1)}, s54 offen offset:{1024*n} lds")
            s("s_add_u32 s53, s53, 1\ns_and_b32 s53, s53, 7")
        pfq = s.opt.get('pfq', 1)
        tpf = s.opt.get('tpf', 1)
        stag = s.opt.get('stag', 2)
        pfts = [tpf + k for k in range({0: 1, 1: 4}.get(stag, s.opt.get('nsl', 5)))] if pfq else []
        th = s.opt.get('th', 7)
        ops = []
        s.kwait()
        if s.opt.get('b0st'): s.stamp(3)
        issue(0)
        if s.opt.get('b0st'): s.stamp(4)
        over = s.new("over")
        s(f"s_branch {s.ln(over)}")
        s.lab("grole")
        s.gfront()
        s(f"s_branch {s.ln('grole2')}")
        s.lab(over)
        s.rest_init()
        npre = s.opt.get('npre', 1)
        ops += [('s', 0)]
        if npre == 2: issue(1); ops += [('s', 1)]
        if s.opt.get('b0st'): s.stamp(5)
        s(f"""v_lshrrev_b32 v33, 4, v0
        v_add_u32 v33, s49, v33
        v_mul_u32_u24 v32, 3072, v33
        v_lshl_add_u32 v51, v34, 4, v32
        v_add_u32 v52, {12288-1024}, v51
        v_xor_b32 v54, 32, v51
        v_add_u32 v53, {2*(12288-1024)}, v54
        v_add_u32 v54, {3*(12288-1024)}, v54
        v_mul_u32_u24 v32, 1280, v33
        v_lshl_add_u32 v47, v34, 4, v32
        v_add_u32 v48, 4096, v47
        v_xor_b32 v50, 32, v47
        v_add_u32 v49, 8192, v50
        v_add_u32 v50, 12288, v50
        s_and_b32 s66, s{sXC}, 3
        s_mul_i32 s55, s66, {64*s.hsp}
        s_add_u32 s55, s55, {F_H}
        v_mul_u32_u24 v33, {s.hsp}, v0
        s_lshr_b32 s67, s{sI}, 2
        s_add_u32 s67, s67, s{sI}
        s_and_b32 s67, s67, 3
        s_cmp_ge_u32 s{sXC}, 4
        s_cselect_b32 s60, 12, 14
        s_cselect_b32 s61, 5, 4
        s_mov_b32 s62, {-(-65536//14)}
        s_cmov_b32 s62, {-(-65536//12)}
        s_cselect_b32 s63, 1536, 0
        s_mul_i32 s64, s60, s61
        s_sub_u32 s64, s64, 1
        v_min_u32 v32, s64, v0
        v_mul_u32_u24 v35, s62, v32
        v_lshrrev_b32 v35, 16, v35
        v_mul_u32_u24 v36, s60, v35
        v_sub_u32 v32, v32, v36
        s_lshl_b32 s64, s{sI}, 2
        s_add_u32 s64, s64, s48
        s_mul_i32 s64, s64, s61
        v_add_u32 v35, s64, v35
        v_min_u32 v35, 511, v35
        v_mul_u32_u24 v35, 3072, v35
        v_lshl_add_u32 v32, v32, 7, v35
        s_mul_i32 s64, s66, {512*3072}
        s_add_u32 s64, s64, s63""")
        if stag == 2: s(f"s_mul_i32 s67, s{sI}, s61\ns_mul_i32 s67, s67, {s.opt.get('nsl', 5)}\ns_lshr_b32 s67, s67, 7")
        if s.opt.get('ipf', 2): s(f"s_cmp_ge_u32 s{sXC}, 4\ns_cselect_b32 s67, 63, s67")
        s.att_vsetup()
        if npre == 1: issue(1); ops += [('s', 1)]
        if s.opt.get('b0st'): s.stamp(6)
        hl = [(34,1,33,sWS,"s55",0)]
        def younger(tag):
            k = ops.index(tag)
            return sum(8 if o[0] == 's' else 1 for o in ops[k+1:])
        for t in range(17):
            s(f"s_waitcnt vmcnt({younger(('s', t))})")
            if s.opt.get('ldstamp') and s.opt['ldstamp'] <= t < s.opt['ldstamp']+6: s.stamp(3 + t - s.opt['ldstamp'])
            if s.opt.get('b0st') and t == 0: s.stamp(7)
            s("s_barrier")
            if t == 0: s.stamp(1)
            if t == 8:
                if not s.opt.get('noln'): s.poll(hl, sleep=s.opt.get('hsl', 8), pre=younger(('h', th)))
                s(f"""s_mul_i32 s50, s66, {512*1280}
                s_lshl_b32 s54, s{sD1}, 8
                s_add_u32 s50, s50, s54
                s_add_u32 s50, s50, {HI}
                s_mul_i32 s51, s66, {512*3072}
                s_lshl_b32 s54, s{sF1}, 8
                s_add_u32 s51, s51, s54""")
                r1 = s.opt.get('g1rot', 0)
                if r1 == 0: s("s_mov_b32 s53, 0")
                if r1 == 1: s(f"s_and_b32 s53, s{sF1}, 7")
                if r1 == 2: s(f"s_lshl_b32 s53, s{sD1}, 1\ns_add_u32 s53, s53, s{sF1}\ns_and_b32 s53, s53, 7")
            if t == th:
                s.poll_issue(hl); ops.append(('h', t))
            if t+2 <= 9: issue(t+2); ops.append(('s', t+2))
            elif t+2 <= 17: issue1(t+2); ops.append(('s', t+2))
            if t in pfts:
                if stag: s(f"s_cmp_eq_u32 s67, {t - tpf}\ns_cselect_b32 s54, s64, 0x1000000")
                s(f"buffer_load_dword v165, v32, {srd(sW1)}, s{54 if stag else 64} offen{' nt' if s.opt.get('pfnt') else ''}")
                ops.append(('x', t))
                if s.opt.get('pfnt') == 2:
                    s(f"buffer_load_dword v166, v32, {srd(sW1)}, s{54 if stag else 64} offen sc1"); ops.append(('y', t))

    @staticmethod
    def acc(i, j): return 64 + 16*(2*(i >> 1) + (j >> 1)) + 8*(i & 1) + 4*(j & 1)
    def gemm_ops(s, aX, xtr, aW):
        F = (32, 128)
        def tr(b, a, o): return [f"ds_read_b64_tr_b16 {vr(b,2)}, v{a} offset:{o}", f"ds_read_b64_tr_b16 {vr(b+2,2)}, v{a} offset:{o+1024}"]
        def reads(sl, ks):
            b = F[ks]; o = sl*32768
            def x(i): return tr(b+4*i, aX+i, o+ks*8192) if xtr else [f"ds_read_b128 {vr(b+4*i,4)}, v{aX+ks} offset:{o+2048*i}"]
            def w(j): return tr(b+16+4*j, aW+j, o+ks*8192)
            return x(0) + w(0) + x(1) + x(2) + x(3) + w(1) + w(2) + w(3)
        def mf(ks, i, j, isv):
            b = F[ks]; xa = vr(b+4*i,4); wa = vr(b+16+4*j,4); d = vr(s.acc(i,j),4)
            return f"v_mfma_f32_16x16x32_bf16 {d}, {xa if isv else wa}, {wa if isv else xa}, {d}"
        return reads, mf
    def gemm_loop(s, reads, mf, isv, tog, scnt, skip_last):
        lp = s.new("gl")
        s.lab(lp)
        for n in range(4):
            ks = n & 1
            R = reads(((n+1) >> 1) & 1, ks ^ 1)
            toggled = set()
            done = 0
            for k in range(16):
                j, i = k >> 2, k & 3
                if j & 1: i = 3 - i
                if k == 0: s("s_waitcnt lgkmcnt(6)")
                if k == 4: s(f"s_waitcnt lgkmcnt({4 + done})")
                if k == 8: s(f"s_waitcnt lgkmcnt({done})")
                s(mf(ks, i, j, isv))
                if k == 0 and ks == 1:
                    if n == 3 and skip_last:
                        nx = s.new("nb")
                        s(f"s_cmp_eq_u32 s{scnt}, 1\ns_cbranch_scc1 {s.ln(nx)}\ns_barrier")
                        s.lab(nx)
                    else: s("s_barrier")
                if done < len(R):
                    if n == 3:
                        a = int(R[done].split(", v")[1].split()[0])
                        if a not in toggled: s(f"v_xor_b32 v{a}, 0x10000, v{a}"); toggled.add(a)
                    s(R[done]); done += 1
                elif n == 3:
                    for a in tog:
                        if a not in toggled: s(f"v_xor_b32 v{a}, 0x10000, v{a}"); toggled.add(a)
            assert n != 3 or toggled == set(tog)
        s(f"s_sub_u32 s{scnt}, s{scnt}, 1\ns_cmp_lg_u32 s{scnt}, 0\ns_cbranch_scc1 {s.ln(lp)}")
    def tr_addr(s, va, base, su, t0, t1):
        L = f"""v_lshrrev_b32 v{t0}, 4, v0
        v_bfe_u32 v{t1}, v0, 2, 2
        v_lshl_add_u32 v{va}, v{t0}, 3, v{t1}
        v_lshlrev_b32 v{va}, 8, v{va}
        v_and_b32 v{t0}, 1, v{t0}
        v_lshl_add_u32 v{t0}, v{t1}, 1, v{t0}
        v_xor_b32 v{t0}, s{su}, v{t0}
        v_lshl_add_u32 v{va}, v{t0}, 5, v{va}
        v_and_b32 v{t0}, 3, v0
        v_lshl_add_u32 v{va}, v{t0}, 3, v{va}
        v_add_u32 v{va}, {base}, v{va}"""
        for k in range(1, 4): L += f"\nv_xor_b32 v{va+k}, {32*k}, v{va}"
        return L

    def qkv_compute(s):
        ACC = 64
        if s.opt.get('cpf', 1): s.code_prefetch()
        s("v_and_b32 v0, 63, v0")
        s.rest_init()
        s.kwait()
        if s.opt.get('tlb', 0) & 6:
            nx = s.new("t")
            s(f"s_cmp_lg_u32 s{sW}, 2\ns_cbranch_scc1 {s.ln(nx)}\nv_lshlrev_b32 v1, 20, v0")
            if s.opt['tlb'] & 2: s(f"buffer_load_dword v166, v1, {srd(sWS)}, 0 offen sc1")
            if s.opt['tlb'] & 4:
                for k, r in enumerate((sW2, sWO, sOUT, sW1)): s(f"buffer_load_dword v{160+k}, v1, {srd(r)}, 0 offen")
            s.lab(nx)
        if s.opt.get('b0st'): s.stamp(5)
        s(f"""s_and_b32 s48, s{sW}, 1
        s_lshr_b32 s49, s{sW}, 1
        v_and_b32 v8, 31, v0
        v_lshrrev_b32 v9, 5, v0
        s_lshl_b32 s50, s48, 13
        v_and_b32 v10, 15, v0
        v_lshl_add_u32 v10, v10, 7, s50
        v_bfe_u32 v11, v0, 1, 3
        v_lshrrev_b32 v12, 4, v0
        v_xor_b32 v11, v11, v12
        v_lshl_add_u32 v2, v11, 4, v10
        v_xor_b32 v3, 64, v2
        s_lshl_b32 s50, s49, 2""")
        s(s.tr_addr(4, 16384, 50, 10, 11))
        s(f"""s_mul_i32 s58, s{sCT}, 13
        s_lshr_b32 s58, s58, 6
        s_mul_i32 s59, s58, 5
        s_sub_u32 s59, s{sCT}, s59
        s_lshl_b32 s59, s59, 1
        s_add_u32 s59, s59, s49
        v_lshrrev_b32 v10, 1, v0
        v_mul_u32_u24 v10, 5, v10
        v_and_b32 v11, 1, v0
        v_lshl_add_u32 v10, v11, 1, v10
        v_add_u32 v11, 2, v10
        v_lshrrev_b32 v10, 3, v10
        v_lshrrev_b32 v11, 3, v11
        v_cmp_eq_u32 s[56:57], s59, v10
        v_cmp_eq_u32 vcc, s59, v11
        v_lshlrev_b32 v13, 6, v0
        v_mov_b32 v12, 1
        s_lshr_b32 s59, s{sRT}, 1
        s_add_u32 s59, s59, 3
        s_cmp_eq_u32 s58, 0
        s_cselect_b32 s58, s59, s58
        s_lshl_b32 s58, s58, 11
        s_add_u32 s58, s58, {F_Q - 2048}
        s_or_b32 s56, s56, vcc_lo
        s_mov_b32 s57, 0""")
        for r in range(64): s(f"v_mov_b32 v{ACC+r}, 0")
        reads, mf = s.gemm_ops(2, False, 4)
        s.att_vsetup()
        if s.opt.get('b0st'): s.stamp(7)
        s(f"s_setprio {s.opt.get('cprio', 2)}\ns_barrier")
        s.stamp(1)
        for l in reads(0,0): s(l)
        s(f"s_mov_b32 s51, 5\ns_cmp_ge_u32 s47, 10\ns_cbranch_scc1 {s.ln('qkv_v')}")
        for isv in (0, 1):
            if isv: s.lab("qkv_v")
            s.gemm_loop(reads, mf, isv, range(2, 8), 51, False)
            s(f"s_setprio {s.opt.get('eprio', 3)}")
            nb = [10]
            def bar():
                nb[0] += 1; s("s_barrier")
            cuts = {0: (0,), 1: (0, 4), 2: (0, 3, 6), 3: (0, 2, 4, 6), 4: (4,), 5: (2, 6)}[s.opt.get('ecut', 4)]
            s.stamp(2)
            P = 32
            if not isv:
                s(f"""s_cmp_lt_u32 s47, 5
                s_cselect_b32 s52, {fbits(20**-0.5*math.log2(math.e))}, 1.0
                s_mov_b32 s53, s52
                v_lshlrev_b32 v2, 15, v9
                v_lshl_add_u32 v2, v8, 4, v2
                s_lshl_b32 s54, s47, 4
                s_lshl_b32 s55, s49, 3
                s_add_u32 s54, s54, s55
                s_lshl_b32 s54, s54, 15
                s_lshl_b32 s55, s46, 11
                s_add_u32 s54, s54, s55
                s_lshl_b32 s55, s48, 10
                s_add_u32 s54, s54, s55
                s_waitcnt lgkmcnt(0)""")
            else:
                s(f"""s_sub_u32 s54, s47, 10
                s_lshl_b32 s54, s54, 7
                s_lshl_b32 s55, s49, 6
                s_add_u32 s54, s54, s55
                v_add_u32 v4, s54, v8
                v_mul_u32_u24 v6, 320, v9""")
                for j in range(2):
                    s(f"""v_mul_u32_u24 v5, 3277, v4
                    v_lshrrev_b32 v5, 16, v5
                    v_mul_u32_u24 v{2+j}, {81920-320}, v5
                    v_lshl_add_u32 v{2+j}, v4, 4, v{2+j}
                    v_add_u32 v{2+j}, v{2+j}, v6
                    v_add_u32 v4, 32, v4""")
                s(f"""s_lshl_b32 s54, s46, 1
                s_add_u32 s54, s54, s48
                s_mul_i32 s54, s54, {8*320}
                s_add_u32 s54, s54, {VI}
                s_waitcnt lgkmcnt(0)""")
            for n in range(8):
                u, v = n >> 1, n & 1
                aa = (s.acc(u, 2*v), s.acc(u, 2*v+1)) if isv else (s.acc(2*v, u), s.acc(2*v+1, u))
                if n in cuts: bar()
                s.al8()
                p = P + 4*n
                if not isv:
                    for a in aa: s(f"v_pk_mul_f32 {vr(a,2)}, {vr(a,2)}, s[52:53]\nv_pk_mul_f32 {vr(a+2,2)}, {vr(a+2,2)}, s[52:53]")
                for q in range(4):
                    a = aa[q >> 1] + 2*(q & 1)
                    s(f"v_cvt_pk_bf16_f32 v{p+q}, v{a}, v{a+1}")
                s(f"s_nop 1\nv_permlane16_swap_b32 v{p}, v{p+2}\nv_permlane16_swap_b32 v{p+1}, v{p+3}")
                if s.opt.get('nost'): pass
                elif not isv:
                    s(f"buffer_store_dwordx4 {vr(p,4)}, v2, {srd(sWS)}, s54 offen offset:{512*v} sc1")
                else:
                    s(f"buffer_store_dwordx4 {vr(p,4)}, v{2+v}, {srd(sWS)}, s54 offen offset:{2*u*320} sc1")
                if not isv and v: s("s_add_u32 s54, s54, 65536")
            if not isv: s(f"s_branch {s.ln('qkv_pub')}")
        s.lab("qkv_pub")
        while nb[0] < s.opt.get('barr', 12): bar()
        s(f"""s_mov_b64 exec, s[56:57]
        {"" if s.opt.get('noack', 0) & 2 else "s_waitcnt vmcnt(0)"}
        buffer_atomic_add v12, v13, {srd(sWS)}, s58 offen sc1
        s_mov_b64 exec, -1""")
        s.stamp(3)
        while nb[0] < 14: bar()

    def att_vsetup(s):
        aK1, aK2, aV, vK, vV, vIDX, aPW, aPR, vPC = 14, 15, 16, 17, 18, 19, 20, 21, 22
        w0, dn = s.new("vs"), s.new("vs")
        s(f"""s_and_b32 s68, s{sI}, 1
        s_lshr_b32 s69, s{sW}, 2
        v_and_b32 v23, 31, v0
        v_lshrrev_b32 v24, 5, v0
        v_and_b32 v30, 15, v0
        v_lshrrev_b32 v31, 4, v0
        s_mul_i32 s70, s68, 3
        v_add_u32 v{vK}, s70, v31
        v_cmp_gt_u32 vcc, 2, v31
        v_add_u32 v25, s70, v24
        s_lshl_b32 s71, s{sW}, 8
        v_cndmask_b32 v{vK}, 2, v{vK}, vcc
        v_lshlrev_b32 v{vK}, 15, v{vK}
        v_lshl_add_u32 v{vK}, v30, 4, v{vK}
        v_add_u32 v{vK}, s71, v{vK}
        v_cmp_lt_u32 vcc, 20, v0
        s_mul_i32 s71, s{sW}, 640
        v_subrev_u32 v{vV}, 1, v0
        v_cndmask_b32 v{vV}, v0, v{vV}, vcc
        v_lshlrev_b32 v{vV}, 4, v{vV}
        v_add_u32 v{vV}, s71, v{vV}
        v_and_b32 v29, 1, v31
        v_mul_u32_u24 v{aK2}, 768, v29
        v_lshl_add_u32 v{aK2}, v30, 4, v{aK2}
        s_mul_i32 s71, s69, 3072
        s_add_u32 s71, s71, {KVB}
        v_add_u32 v{aK2}, s71, v{aK2}
        v_lshl_add_u32 v{aK1}, v24, 8, v{aK2}
        s_lshl_b32 s70, s68, 3
        s_add_u32 s71, s70, 512
        v_add_u32 v{aK2}, s71, v{aK2}
        v_min_u32 v{aV}, 20, v23
        v_mul_u32_u24 v28, 336, v24
        v_mov_b32 v{vIDX}, 0xdddd
        v_lshl_add_u32 v{aV}, v{aV}, 4, v28
        s_mul_i32 s71, s69, 2688
        s_add_u32 s71, s71, {KVB+6144}
        v_add_u32 v{aV}, s71, v{aV}
        s_lshl_b32 s71, s{sW}, 2
        s_add_u32 s71, s71, {SY_PA}
        v_mov_b32 v{aPW}, s71
        v_and_b32 v{aPR}, 7, v0
        v_lshlrev_b32 v{aPR}, 2, v{aPR}
        v_add_u32 v{aPR}, {SY_PA}, v{aPR}
        v_mov_b32 v{vPC}, 1
        v_lshlrev_b32 v25, 15, v25
        v_lshl_add_u32 v25, v23, 4, v25
        v_lshlrev_b32 v26, 4, v23
        s_add_u32 s70, s70, 0x10000
        v_add_u32 v26, s70, v26
        v_lshlrev_b32 v27, 2, v23""")
        s(f"""s_mov_b32 exec_lo, 0xfee00000
        s_mov_b32 exec_hi, 0xfee00000
        v_mov_b32 v{aV}, 0x30000
        s_mov_b32 exec_lo, 0
        s_mov_b32 exec_hi, -1
        v_mov_b32 v{aK2}, 0x30000
        s_mov_b64 exec, -1
        s_cmp_eq_u32 s{sW}, 0
        s_cbranch_scc1 {s.ln(w0)}
        v_mul_u32_u24 v28, {KVS}, v31
        v_mul_u32_u24 v29, 336, v30
        v_add_u32 v28, v28, v29
        v_add_u32 v28, {KVB+6144+320}, v28
        s_branch {s.ln(dn)}""")
        s.lab(w0)
        s(f"""s_lshl_b32 s70, s{sXC}, 2
        s_and_b32 s71, s{sI}, 3
        s_add_u32 s70, s70, s71
        s_lshr_b32 s71, s70, 1
        s_mul_i32 s71, s71, 5
        s_lshl_b32 s68, s68, 1
        s_add_u32 s71, s71, s68
        s_and_b32 s71, s71, 7
        s_cmp_ge_u32 s71, 6
        s_cselect_b32 s71, 64, 32
        v_mov_b32 v29, s71
        s_lshr_b32 s71, s71, 3
        v_writelane_b32 v29, s71, 2
        s_lshl_b32 s70, s70, 6
        v_lshl_add_u32 v28, v0, 11, s70
        s_lshr_b32 s71, s{sI}, 2
        s_add_u32 s71, s71, 2
        s_lshl_b32 s71, s71, 11
        s_add_u32 s71, s71, s70
        v_writelane_b32 v28, s71, 2""")
        s.lab(dn)

    def attention(s):
        Q1, Q2, K1, K2, V0, V1 = 8, 12, 152, 150, 156, 160
        S = (32, 48); O = 64
        aK1, aK2, aV, vK, vV, vIDX, aPW, aPR, vPC, vPR = 14, 15, 16, 17, 18, 19, 20, 21, 22, 30
        sH, sQB, sP, sODD, sKO, sVO, sMK, sMV, sN, sNEED, sTOK = 48, 49, 50, 51, 52, 53, 54, 55, 56, 3, 100
        EK, EV = "s[58:59]", "s[60:61]"
        sKB, sVB = 62, 63
        s(f"""s_setprio 3
        s_lshl_b32 s{sH}, s{sXC}, 2
        s_and_b32 s57, s{sI}, 3
        s_add_u32 s{sH}, s{sH}, s57
        s_lshr_b32 s{sQB}, s{sI}, 2
        s_lshr_b32 s{sP}, s{sH}, 1
        s_and_b32 s{sODD}, s{sH}, 1
        s_mov_b32 s58, -1
        s_mov_b32 s59, 0xffff
        s_mov_b32 s60, 0xffefffff
        s_mov_b32 s61, 0x1ff
        s_mul_i32 s{sKB}, s{sP}, {5*32768}
        s_add_u32 s{sKB}, s{sKB}, {KI}
        s_mul_i32 s{sVB}, s{sH}, 81920
        s_add_u32 s{sVB}, s{sVB}, {VI}
        s_mul_i32 s{sMK}, s{sW}, 768
        s_add_u32 s{sMK}, s{sMK}, {KVB}
        s_mul_i32 s{sMV}, s{sW}, 672
        s_add_u32 s{sMV}, s{sMV}, {KVB+6144}
        s_lshl_b32 s{sTOK}, s{sQB}, 8
        s_and_b32 s57, s{sW}, 3
        s_lshl_b32 s57, s57, 6
        s_add_u32 s{sTOK}, s{sTOK}, s57
        s_lshr_b32 s{sN}, s{sW}, 2
        s_lshl_b32 s57, s{sN}, 5
        s_add_u32 s{sTOK}, s{sTOK}, s57
        """)
        SS = ((32, 96), (48, 112)); OO = (128, O); QQ = ((144, 148), (Q1, Q2))
        s(f"""
        s_lshl_b32 s70, s{sTOK}, 4
        s_add_u32 s70, s70, s{sKB}
        s_sub_u32 s70, s70, {KI-QI}
        s_lshl_b32 s71, s{sTOK}, 2
        s_add_u32 s71, s71, {GI}
        """)
        def dma(slot):
            slot = (slot + 2) & 3
            return [f"s_add_u32 m0, s{sMK}, {slot*KVS}",
                    f"s_mov_b64 exec, {EK}",
                    f"buffer_load_dwordx4 v{vK}, {srd(sWS)}, s{sKO} offen sc1 lds",
                    f"s_add_u32 m0, s{sMV}, {slot*KVS}",
                    f"s_mov_b64 exec, {EV}",
                    f"buffer_load_dwordx4 v{vV}, {srd(sWS)}, s{sVO} offen sc1 lds",
                    f"s_mov_b64 exec, -1",
                    f"s_add_u32 s{sKO}, s{sKO}, 2048",
                    f"s_add_u32 s{sVO}, s{sVO}, 5120"]
        s(f"s_mov_b32 s{sKO}, s{sKB}\ns_mov_b32 s{sVO}, s{sVB}")
        def first():
            s("\n".join(dma(0)))
            s(f"""buffer_load_dwordx4 {vr(Q1,4)}, v25, {srd(sWS)}, s70 offen sc1
            buffer_load_dwordx2 {vr(Q2,2)}, v84, {srd(sWS)}, s68 offen sc1
            buffer_load_dwordx4 {vr(QQ[0][0],4)}, v25, {srd(sWS)}, s67 offen sc1
            s_setprio {s.opt.get('sp2', 2)}""")
            s("\n".join(dma(1)))
        w1, b16, nidle, early, late0, late, go, nones = [s.new("a") for _ in range(8)]
        hl = [(90,1,87,sWS,"s65",0)]
        s(f"""v_mov_b32 v86, {SY_QOK}
        v_xor_b32 v84, s{sN}, v24
        v_lshl_add_u32 v84, v84, 9, v26
        s_xor_b32 s67, s70, 512
        s_andn2_b32 s68, s70, 512
        s_cmp_ge_u32 s{sW}, 4
        s_cbranch_scc1 {s.ln(b16)}
        s_cmp_lg_u32 s{sW}, 0
        s_cbranch_scc1 {s.ln(w1)}
        s_mul_i32 s65, s{sQB}, {32*s.hsp}
        s_add_u32 s65, s65, {F_H}
        v_mul_u32_u24 v87, {s.hsp}, v23
        s_mov_b32 s64, {F_Q}
        s_barrier
        s_cmp_lg_u32 s{sCT}, 15
        s_cbranch_scc1 {s.ln(nidle)}""")
        s.apoll("s64", 1, 28, 89, 16, mask=3)
        s.lab(nidle)
        s.poll_issue(hl)
        s.apoll_issue("s64", 28, 89, mask=7)
        s("s_mov_b64 exec, -1\ns_barrier")
        s.poll(hl, sleep=4, pre=1)
        s(f"""s_mov_b64 exec, 7
        s_waitcnt vmcnt(0)
        v_cmp_gt_u32 vcc, v29, v89
        s_cbranch_vccnz {s.ln(late0)}
        s_mov_b64 exec, 1
        v_mov_b32 v85, 1
        ds_write_b32 v86, v85
        s_mov_b64 exec, -1
        s_branch {s.ln(early if s.opt.get('ekv', 0) else late)}""")
        s.lab(late0)
        s.apoll_issue("s64", 28, 89, mask=7)
        s("s_mov_b64 exec, -1\ns_barrier")
        s.apoll("s64", "v29", 28, 89, s.opt.get('psl', 2), pre=True, mask=7)
        s(f"""s_mov_b64 exec, 1
        v_mov_b32 v85, 1
        ds_write_b32 v86, v85
        s_mov_b64 exec, -1""")
        s.stamp(4)
        first()
        s(f"s_branch {s.ln(go)}")
        s.lab(w1)
        s("s_barrier\ns_barrier")
        s.lab(b16)
        for _ in range(s.opt.get('ekv', 0)):
            s(f"""s_sleep 1
            ds_read_b32 v87, v86
            s_waitcnt lgkmcnt(0)
            v_cmp_gt_u32 vcc, 1, v87
            s_cbranch_vccz {s.ln(early)}""")
        s.lab(late)
        s("s_waitcnt vmcnt(0)\ns_barrier")
        s.stamp(8)
        s.lds_spin(86, 1, 87, sleep=s.opt.get('qsl', 0))
        s.stamp(4)
        first()
        s(f"s_branch {s.ln(go)}")
        s.lab(early)
        s.stamp(4)
        first()
        s("s_waitcnt vmcnt(7)\ns_barrier")
        s.stamp(8)
        s.lab(go)
        s(f"""s_cmp_lg_u32 s{sW}, 1
        s_cbranch_scc1 {s.ln(nones)}
        v_mov_b32 v88, 0x3f803f80
        v_mov_b32 v89, 0x3f803f80
        v_mov_b32 v90, 0x3f803f80
        v_mov_b32 v91, 0x3f803f80
        ds_write_b128 v28, v[88:91]""")
        s.lab(nones)
        ystag = s.opt.get('ystag', 1)
        for r in range(0, 16, 2): s(f"v_pk_mov_b32 {vr(O+r,2)}, 0, 0\nv_pk_mov_b32 {vr(128+r,2)}, 0, 0")
        for r in range(0, 8, 2): s(f"v_pk_mov_b32 {vr(SS[1][1]+8+r,2)}, 0, 0")
        for r in range(0, 4, 2): s(f"v_pk_mov_b32 {vr(V1+r,2)}, 0, 0")
        s(f"""v_pk_mov_b32 v[148:149], 0, 0
        s_mul_i32 s64, s{sW}, 3328
        s_add_u32 s64, s64, {XB}
        v_lshlrev_b32 v81, 4, v0
        s_xor_b32 s65, s{sW}, 4
        v_add_u32 v80, s64, v81
        v_lshl_add_u32 v85, v0, 2, s64
        s_mul_i32 s64, s65, 3328
        s_add_u32 s64, s64, {XB}
        v_add_u32 v81, s64, v81
        v_lshl_add_u32 v86, v0, 2, s64
        s_lshl_b32 s65, s65, 2
        s_add_u32 s65, s65, {SY_PA}
        v_mov_b32 v82, s65
        v_lshlrev_b32 v92, 4, v23
        v_lshl_add_u32 v83, v24, 15, v92
        v_cmp_eq_u32 s[72:73], 0, v24
        v_mov_b32 v93, {fbits(2.0**60)}
        v_mov_b32 v94, 0
        v_mov_b32 v95, 1
        s_lshl_b32 s64, s{sH}, 16
        s_lshl_b32 s65, s{sTOK}, 4
        s_add_u32 s65, s65, {OI}
        s_add_u32 s64, s64, s65
        s_lshl_b32 s65, s{sH}, 14
        s_lshl_b32 s57, s{sTOK}, 3
        s_add_u32 s65, s65, s57
        s_add_u32 s65, s65, {OI + 64*32768}
        v_lshlrev_b32 v92, 3, v23
        s_lshl_b32 s66, s{sTOK}, 3
        s_add_u32 s66, s66, {F_O}
        s_mov_b32 s70, {fbits(2.0**-30)}""")
        if s.opt.get('sst'): s.stamp(1)
        s(f"""s_mov_b32 s{sNEED}, 2
        s_waitcnt vmcnt(5) lgkmcnt(0)
        ds_write_b32 v{aPW}, v{vPC}""")
        if s.opt.get('sst'): s.stamp(2)
        for l in dma(2): s(l)
        if s.opt.get('nodma'):
            for l in dma(3): s(l)
            s("s_waitcnt vmcnt(0)")
        s(f"buffer_load_dword v31, v27, {srd(sWS)}, s71 offen sc1")
        if s.opt.get('sst'): s.stamp(3)
        s(f"""v_add_u32 v{vPC}, 1, v{vPC}
        s_waitcnt vmcnt(5)
        v_permlane32_swap_b32 v{Q2}, v148
        v_permlane32_swap_b32 v{Q2+1}, v149""")
        s.lds_spin(aPR, 1, vPR, sleep=0)
        s.stamp(5)
        def off(T):
            T %= 8
            return (((T >> 1) + 2) & 3)*KVS, T & 1
        def rK1(T):
            b, tt = off(T); return f"ds_read_b128 {vr(K1,4)}, v{aK1} offset:{b+tt*1536}"
        def rK2(T):
            b, tt = off(T); return f"ds_read_b64 {vr(K2,2)}, v{aK2} offset:{b+tt*1536}"
        def rV(T, a):
            b, tt = off(T); return f"ds_read_b128 {vr((V0,V1)[a],4)}, v{aV} offset:{b+(4*tt+2*a)*336}"
        def qk0(d, a): return f"v_mfma_f32_32x32x16_bf16 {vr(d,16)}, {vr(K1,4)}, {vr(QQ[a][0],4)}, 0"
        def qk1(d, a): return f"v_mfma_f32_32x32x8_bf16 {vr(d,16)}, {vr(K2,2)}, {vr(QQ[a][1],2)}, {vr(d,16)}"
        def pv(a, v, p): return f"v_smfmac_f32_32x32x32_bf16 {vr(OO[a],16)}, {vr(v,4)}, {vr(p,8)}, v{vIDX}"
        s(rK1(0)); s(rK2(0)); s(rV(0,0)); s("s_waitcnt lgkmcnt(1)")
        s(qk0(SS[0][0], 0)); s(qk1(SS[0][0], 0)); s(qk0(SS[1][0], 1)); s(rK1(1)); s(qk1(SS[1][0], 1)); s(rK2(1))
        s(f"""s_waitcnt vmcnt(3)
        ds_write_b32 v{aPW}, v{vPC}
        s_mov_b32 s69, 4
        v_add_u32 v{vPC}, 1, v{vPC}
        s_nop 3""")
        if s.opt.get('sst'): s.stamp(8)
        ap = s.opt.get('aprio', 1)
        nosync = s.opt.get('nosync'); nodma = s.opt.get('nodma')
        e0, e1, e2, e3 = {0: (2,6,10,14), 1: (2,5,9,13), 2: (3,7,11,15), 3: (2,6,9,13), 4: (2,7,10,14), 5: (4,8,12,16), 6: (2,5,10,13)}[s.opt.get('esp', 0)]
        def loop(pat):
          lp = s.new("attl")
          s.L.append(".p2align 6")
          for _ in range(s.opt.get('al', 0)): s("s_nop 0")
          s.lab(lp)
          late = ystag and pat is not None
          for n in range(16):
              if n == 14: s(f"s_sub_u32 s69, s69, 1\ns_cmp_eq_u32 s69, 0\ns_cbranch_scc1 {s.ln(join)}")
              T, a = n >> 1, n & 1
              c, m = n >> 2, n & 3
              cur, nn = SS[a][T & 1], SS[a][(T+1) & 1]
              prev = SS[1][(T-1) & 1] if a == 0 else SS[0][T & 1]
              E = [f"v_exp_f32{'_e64' if s.opt.get('e64') else ''} v{cur+i}, v{cur+i}" for i in range(16)]
              D = dma((c + 3) & 3) if not nodma else [""]*9
              apm = s.opt.get('apm', 0)
              if pat is not None and apm:
                  per = s.opt.get('app', 1)
                  h, l = apm % 100, apm // 100
                  for pos, pr in ((h, ap+1), (l, ap)):
                      if pos // 16 == n % per: E[pos % 16] = f"s_setprio {pr}\n" + E[pos % 16]
              elif pat is not None and pat[n] != pat[n-1]: s(f"s_setprio {pat[n]}")
              for e in E[:e0]: s(e)
              if a == 0:
                  s(pv(1, V1, prev+8)); s(rV(T,1))
                  if n == 4:
                      s(f"""s_cmp_eq_u32 s69, 1
                      s_cselect_b32 s{sKO}, {WS_BYTES}, s{sKO}
                      s_cselect_b32 s{sVO}, {WS_BYTES}, s{sVO}
                      s_cselect_b32 s{sMK}, 0x30000, s{sMK}
                      s_cselect_b32 s{sMV}, 0x30000, s{sMV}""")
                  for e in E[e0:e1]: s(e)
                  s("s_waitcnt lgkmcnt(1)")
                  s(qk0(nn, 0))
                  for e in E[e1:e2]: s(e)
                  s(qk1(nn, 0))
                  if m == 0 and nosync != 2: s(f"ds_read_b32 v{vPR}, v{aPR}")
                  for e in E[e2:e3]: s(e)
                  s(pv(0, V0, cur))
              else:
                  s("s_waitcnt lgkmcnt(0)")
                  s(pv(0, V1, prev+8))
                  if m == 1 and not nosync:
                      s(f"v_cmp_gt_u32 vcc, s{sNEED}, v{vPR}")
                      s.spin_ool(aPR, f"s{sNEED}", vPR, sleep=1)
                  if m == 3:
                      if late: s("\n".join(D))
                      if nosync != 2: s(f"s_waitcnt vmcnt({4 if s.opt.get('novm') else 2})\nds_write_b32 v{aPW}, v{vPC}")
                  for e in E[e0:e1]: s(e)
                  s(qk0(nn, 1)); s(rK1(T+2))
                  for e in E[e1:e2]: s(e)
                  s(qk1(nn, 1)); s(rK2(T+2))
                  if m == 1:
                      if not late: s("\n".join(D))
                      s(f"s_add_u32 s{sNEED}, s{sNEED}, 1")
                  if m == 3: s(f"v_add_u32 v{vPC}, 1, v{vPC}")
                  for e in E[e2:e3]: s(e)
                  s(pv(1, V0, cur)); s(rV(T+1,0))
              for e in E[e3:]: s(e)
          if s.opt.get('qst') and s.stamps:
              for k, c in ((1, 3), (2, 2), (3, 1)):
                  nx = s.new("st")
                  s(f"s_cmp_lg_u32 s69, {c}\ns_cbranch_scc1 {s.ln(nx)}")
                  s.stamp(k)
                  s.lab(nx)
          s(f"s_branch {s.ln(lp)}")
        pm = s.opt.get('apat', 119)
        young, join = s.new("young"), s.new("join")
        s(f"s_cmp_ge_u32 s{sW}, 4\ns_cbranch_scc1 {s.ln(young)}\ns_setprio {ap}")
        loop(None)
        s.lab(young)
        pat = [(s.opt.get('ylo', ap), s.opt.get('yhi', ap+1))[(pm >> (T % 8)) & 1] for T in range(16)]
        s(f"s_setprio {pat[15]}")
        loop(pat)
        s.lab(join)
        c0, c1 = SS[0][1], SS[1][1]
        E = [f"v_exp_f32 v{c0+i}, v{c0+i}" for i in range(16)]
        s(f"s_setprio {s.opt.get('tp0', 2)}")
        s(E[0]); s(E[1]); s(pv(1, V1, SS[1][0]+8)); s(rV(7,1))
        for e in E[2:10]: s(e)
        s("s_waitcnt lgkmcnt(1)"); s(pv(0, V0, c0))
        for e in E[10:]: s(e)
        E = [f"v_exp_f32 v{c1+i}, v{c1+i}" for i in range(16)]
        s(E[0]); s(E[1]); s("s_waitcnt lgkmcnt(0)"); s(pv(0, V1, c0+8))
        s(f"s_setprio {s.opt.get('tp1', 1)}")
        for e in E[2:10]: s(e)
        s(pv(1, V0, c1)); s(f"v_add_u32 v{vPC}, 1, v{vPC}"); s(E[10])
        for q in range(3): s(f"ds_write_b128 v80, {vr(128+4*q,4)} offset:{1024*q}")
        s("ds_write_b32 v85, v140 offset:3072")
        for e in E[11:]: s(e)
        s(f"""s_waitcnt vmcnt(0) lgkmcnt(0)
        ds_write_b32 v{aPW}, v{vPC}""")
        s(pv(1, V1, c1+8))
        s.lds_spin(82, 19, 87, sleep=0)
        s("s_setprio 3")
        for q in range(3): s(f"ds_read_b128 {vr(128+4*q,4)}, v81 offset:{1024*q}")
        s(f"""ds_read_b32 v140, v86 offset:3072
        v_add_u32 v{vPC}, 1, v{vPC}""")
        s.stamp(6)
        s(f"""s_waitcnt lgkmcnt(0)
        ds_write_b32 v{aPW}, v{vPC}
        v_add_f32 v{O+12}, v{O+12}, v140""")
        s.al8()
        for r in range(0, 12, 2): s(f"v_pk_add_f32 {vr(O+r,2)}, {vr(O+r,2)}, {vr(128+r,2)}")
        slow, norm = s.new("slow"), s.new("norm")
        s(f"v_cndmask_b32 v87, v{O+8}, v{O+12}, s[72:73]\nv_pk_mul_f32 v[88:89], {vr(O,2)}, 0")
        for r in range(2, 12, 2): s(f"v_pk_fma_f32 v[88:89], {vr(O+r,2)}, 0, v[88:89]")
        s(f"""v_add_f32 v88, v88, v89
        v_add_f32 v88, v88, v87
        v_med3_f32 v89, v88, s70, v93
        v_cmp_neq_f32 vcc, v89, v88
        s_cbranch_vccnz {s.ln(slow)}""")
        s.lab(norm)
        s(f"""v_rcp_f32 v88, v87
        s_nop 0
        v_mul_f32 v88, v88, v31""")
        s.al8()
        s.slow_args = (slow, norm, Q1, Q2, K1, K2, V0, V1, S, O, vIDX, sKB, sVB)
        for r in range(0, 12, 2): s(f"v_pk_mul_f32 {vr(O+r,2)}, {vr(O+r,2)}, v[88:89] op_sel_hi:[1,0]")
        for q in range(6): s(f"v_cvt_pk_bf16_f32 v{32+q}, v{O+2*q}, v{O+2*q+1}")
        s(f"""buffer_store_dwordx4 v[32:35], v83, {srd(sWS)}, s64 offen sc1
        s_mov_b32 exec_hi, 0
        buffer_store_dwordx2 v[36:37], v92, {srd(sWS)}, s65 offen sc1
        s_mov_b64 exec, 1
        {"" if s.opt.get('noack', 0) & 1 else "s_waitcnt vmcnt(0)"}
        buffer_atomic_add v95, v94, {srd(sWS)}, s66 offen sc1""")
        s.stamp(7)

    def att_slow(s):
        slow, norm, Q1, Q2, K1, K2, V0, V1, S, O, vIDX, sKB, sVB = s.slow_args
        S0, C = S
        l1, l2 = s.new("slowa"), s.new("slowb")
        s.lab(slow)
        ldk = f"""buffer_load_dwordx4 {vr(K1,4)}, v25, {srd(sWS)}, s67 offen sc1
        buffer_load_dwordx2 {vr(K2,2)}, v26, {srd(sWS)}, s67 offen sc1"""
        s(f"""s_waitcnt vmcnt(0) lgkmcnt(0)
        v_mov_b32 v88, 0xff800000
        s_mov_b32 s67, s{sKB}
        s_mov_b32 s69, 64""")
        s.lab(l1)
        s(ldk)
        s(f"""s_waitcnt vmcnt(0)
        v_mfma_f32_32x32x16_bf16 {vr(S0,16)}, {vr(K1,4)}, {vr(Q1,4)}, 0
        v_mfma_f32_32x32x8_bf16 {vr(S0,16)}, {vr(K2,2)}, {vr(Q2,2)}, {vr(S0,16)}
        s_add_u32 s67, s67, 512
        s_nop 15""")
        for r in range(0, 16, 2): s(f"v_max3_f32 v88, v88, v{S0+r}, v{S0+r+1}")
        s(f"""s_sub_u32 s69, s69, 1
        s_cmp_lg_u32 s69, 0
        s_cbranch_scc1 {s.ln(l1)}
        v_mov_b32 v89, v88
        s_nop 1
        v_permlane32_swap_b32 v88, v89
        s_nop 1
        v_max_f32 v88, v88, v89
        v_mul_u32_u24 v89, 320, v24
        v_lshl_add_u32 v89, v23, 4, v89""")
        for r in range(16): s(f"v_sub_f32 v{C+r}, 0, v88\nv_mov_b32 v{O+r}, 0")
        for r in range(4): s(f"v_mov_b32 v{V0+r}, 0x3f803f80\nv_mov_b32 v{V1+r}, 0x3f803f80")
        s(f"""s_mov_b32 s67, s{sKB}
        s_mov_b32 s68, s{sVB}
        s_mov_b32 s69, 64
        s_mov_b32 s74, 0xfffff
        s_mov_b32 s75, 0xfffff""")
        s.lab(l2)
        s(ldk)
        s(f"""s_mov_b64 exec, s[74:75]
        buffer_load_dwordx4 {vr(V0,4)}, v89, {srd(sWS)}, s68 offen sc1
        buffer_load_dwordx4 {vr(V1,4)}, v89, {srd(sWS)}, s68 offen offset:640 sc1
        s_mov_b64 exec, -1
        s_waitcnt vmcnt(0)
        v_mfma_f32_32x32x16_bf16 {vr(S0,16)}, {vr(K1,4)}, {vr(Q1,4)}, {vr(C,16)}
        v_mfma_f32_32x32x8_bf16 {vr(S0,16)}, {vr(K2,2)}, {vr(Q2,2)}, {vr(S0,16)}
        s_add_u32 s67, s67, 512
        s_add_u32 s68, s68, 1280
        s_nop 15""")
        for r in range(16): s(f"v_exp_f32 v{S0+r}, v{S0+r}")
        s(f"""s_nop 1
        v_smfmac_f32_32x32x32_bf16 {vr(O,16)}, {vr(V0,4)}, {vr(S0,8)}, v{vIDX}
        v_smfmac_f32_32x32x32_bf16 {vr(O,16)}, {vr(V1,4)}, {vr(S0+8,8)}, v{vIDX}
        s_sub_u32 s69, s69, 1
        s_cmp_lg_u32 s69, 0
        s_nop 7
        s_cbranch_scc1 {s.ln(l2)}
        s_nop 15
        v_cndmask_b32 v87, v{O+8}, v{O+12}, s[72:73]
        s_branch {s.ln(norm)}""")

    def gfront0(s):
        s(f"s_setprio {s.opt.get('lnp', 3)}\ns_sub_u32 s48, s{sW}, 8\nv_and_b32 v0, 63, v0")
        s.ln_loads(48)
    def gate_loads(s):
        s(f"""global_load_dwordx4 v[20:23], v1, s[{sGW}:{sGW+1}]
        global_load_dwordx4 v[24:27], v1, s[{sGW}:{sGW+1}] offset:512
        global_load_dwordx2 v[28:29], v2, s[{sGW}:{sGW+1}] offset:1024""")
    def gfront(s):
        sJ = 48
        if not s.opt.get('gfirst', 1): s.gfront0()
        if s.opt.get('glate', 0): s.gate_loads()
        s.rest_init()
        s(f"""v_lshlrev_b32 v1, 2, v0
        v_add_u32 v1, {SYN}, v1
        v_mov_b32 v2, 0
        ds_write_b32 v1, v2""")
        if s.opt.get('noln'):
            s('s_barrier'); s.gtiles(sJ); s.nb = 1
        else: s.nb = s.layernorm(sJ)

    def grole(s):
        sJ = 48
        pre = s.gsetup(sJ)
        nb = s.nb
        assert nb <= s.opt.get('th', 7)
        s("s_setprio 0")
        lines = "\n".join(pre).split("\n")
        k = 11 - nb
        per = -(-len(lines) // k)
        for q in range(k):
            s("\n".join(lines[q*per:(q+1)*per])); s("s_barrier")
        s.stamp(2)
        s.gsync_n = 0
        s.gemm1(sJ)
        s.gemm2(sJ)

    def gtiles(s, sJ):
        s(f"""s_and_b32 s50, s{sXC}, 3
        s_lshl_b32 s51, s{sF1}, 2
        s_and_b32 s54, s{sJ}, 2
        s_add_u32 s51, s51, s54
        s_lshr_b32 s54, s50, 1
        s_add_u32 s51, s51, s54
        s_lshl_b32 s52, s{sD1}, 1
        s_and_b32 s54, s{sJ}, 1
        s_add_u32 s52, s52, s54
        s_lshl_b32 s52, s52, 1
        s_and_b32 s54, s50, 1
        s_add_u32 s52, s52, s54
        s_lshl_b32 s62, s{sXC}, 2
        s_and_b32 s54, s{sI}, 3
        s_add_u32 s62, s62, s54
        s_lshr_b32 s63, s{sI}, 2
        s_lshl_b32 s66, s62, 6
        s_lshl_b32 s54, s{sJ}, 4
        s_add_u32 s66, s66, s54
        s_lshl_b32 s54, s51, 6
        v_lshrrev_b32 v1, 4, v0
        v_lshl_add_u32 v1, v1, 3, s54
        v_and_b32 v2, 15, v0
        v_add_lshl_u32 v2, s66, v2, 1""")
        for q in range(2):
            s(f"global_load_dwordx2 {vr(54+2*q,2)}, v1, s[{sB1}:{sB1+1}] offset:{32*q}")
        s(f"global_load_ushort v62, v2, s[{sB2}:{sB2+1}]")

    def gsetup(s, sJ):
        B = []
        B.append(f"""s_mul_i32 s49, s{sJ}, {GREG}
        s_lshl_b32 s54, s{sJ}, 2
        s_add_u32 s54, s54, {SY_PG}
        v_mov_b32 v160, s54
        v_lshrrev_b32 v48, 4, v0
        v_and_b32 v49, 15, v0
        v_lshrrev_b32 v50, 5, v0
        v_and_b32 v51, 31, v0
        v_and_b32 v52, 3, v0
        v_bfe_u32 v53, v0, 2, 2
        v_lshlrev_b32 v161, 2, v52
        v_add_u32 v161, {SY_PG}, v161
        v_mov_b32 v164, {SYN}
        v_lshrrev_b32 v30, 3, v0
        v_and_b32 v31, 7, v0
        v_lshlrev_b32 v13, 1, v48
        v_xor_b32 v13, v13, v31
        v_lshlrev_b32 v30, 12, v30
        v_lshl_add_u32 v13, v13, 4, v30""")
        B.append(f"""s_mul_i32 s64, s{sJ}, {384*4096}
        s_lshl_b32 s54, s62, 7
        s_add_u32 s64, s64, s54
        s_mul_i32 s65, s{sJ}, {48*10240}
        s_mul_i32 s54, s63, 1280
        s_add_u32 s65, s65, s54
        s_add_u32 s65, s65, {UI}
        v_mul_u32_u24 v14, 10240, v48
        v_lshl_add_u32 v14, v49, 4, v14
        v_bfe_u32 v30, v0, 2, 3
        v_lshrrev_b32 v31, 2, v0
        v_lshlrev_b32 v31, 7, v31
        v_lshl_add_u32 v31, v52, 3, v31
        v_add_u32 v31, s49, v31
        v_lshrrev_b32 v32, 1, v30
        v_xor_b32 v32, s{sJ}, v32
        """ + "\n".join(f"v_xor_b32 v33, {si}, v32\nv_lshl_add_u32 v{15+si}, v33, 5, v31" for si in range(4)) + f"""
        v_lshlrev_b32 v12, 15, v48
        v_lshl_add_u32 v12, v49, 4, v12
        v_add_u32 v19, s66, v49
        v_mul_u32_u24 v19, 1280, v19
        v_lshl_add_u32 v19, v48, 3, v19""")
        B.append("\n".join(f"""v_add_u32 v31, {64*m}, v0
            v_mul_u32_u24 v32, 6554, v31
            v_lshrrev_b32 v32, 16, v32
            v_mul_u32_u24 v32, {1280-160}, v32
            v_lshl_add_u32 v{1+m}, v31, 4, v32""" for m in range(5)))
        B.append(f"""v_mul_u32_u24 v31, 20, v50
        v_add_u32 v31, v31, v30
        v_mul_u32_u24 v31, 160, v31
        v_lshl_add_u32 v6, v52, 3, v31
        v_add_u32 v7, 51200, v6
        v_mul_u32_u24 v31, 40, v48
        v_add_u32 v31, v31, v53
        v_add_u32 v31, 16, v31
        v_mul_u32_u24 v31, 160, v31
        v_lshl_add_u32 v31, v52, 3, v31
        v_and_b32 v32, 1, v48
        v_mul_u32_u24 v32, 3200, v32
        v_sub_u32 v9, v31, v32
        v_add_u32 v9, 3200, v9
        v_add_u32 v8, v31, v32
        v_add_u32 v10, 51200, v8
        v_add_u32 v11, 51200, v9""")
        B.append("s_and_b32 s54, s52, 3\ns_lshl_b32 s54, s54, 1\n" + s.tr_addr(24, 0x10000, 54, 32, 33))
        B.append("s_xor_b32 s54, s52, s51\ns_and_b32 s54, s54, 3\ns_lshl_b32 s54, s54, 6\ns_add_u32 s54, s54, 16384\n" + "\n".join(f"v_xor_b32 v{28+k}, s54, v{24+k}" for k in range(4)))
        B.append("\n".join(f"v_pk_mov_b32 {vr(r,2)}, 0, 0" for r in range(80, 128, 2)))
        B.append("s_waitcnt vmcnt(0)\n" + "\n".join(f"v_lshlrev_b32 v{64+2*q}, 16, v{54+q%4}\nv_and_b32 v{65+2*q}, 0xffff0000, v{54+q%4}" for q in range(8)) + "\nv_lshlrev_b32 v20, 16, v62")
        return B

    def xaddr(s, sJ, vw, vr0):
        s(f"v_lshlrev_b32 v{vw}, 4, v0")
        for n in range(1, 4):
            s(f"s_xor_b32 s54, s{sJ}, {n}\ns_mul_i32 s54, s54, {GREG}\ns_add_u32 s54, s54, {(n-1)*4096}\nv_add_u32 v{vr0+n-1}, s54, v{vw}")
        s(f"v_add_u32 v{vw}, s49, v{vw}")

    def gpost(s):
        s.gsync_n += 1
        s(f"s_waitcnt lgkmcnt(0)\nv_mov_b32 v162, {s.gsync_n}\nds_write_b32 v160, v162")
    def gwait(s, sleep=2):
        s.lds_spin(161, s.gsync_n, 163, sleep=sleep)

    def ln_loads(s, sJ):
        X = (8, 13); GWR = 18
        s(f"""s_and_b32 s67, s{sXC}, 3
        s_lshl1_add_u32 s67, s67, s49
        s_lshl_b32 s67, s67, 5
        s_add_u32 s67, s67, s{sI}
        s_lshl2_add_u32 s68, s67, s{sJ}
        s_lshl_b32 s68, s68, 1
        s_mul_i32 s69, s68, 1280
        v_and_b32 v1, 31, v0
        v_lshrrev_b32 v3, 5, v0
        v_lshlrev_b32 v2, 3, v1
        v_lshlrev_b32 v1, 4, v1
        v_mul_u32_u24 v19, 1280, v3
        v_add_u32 v18, v19, v1
        v_add_u32 v19, v19, v2""")
        s.kwait()
        if s.opt.get('noln'): return
        s(f"""buffer_load_dwordx4 v[8:11], v18, {srd(sX)}, s69 offen
        buffer_load_dwordx4 v[12:15], v18, {srd(sX)}, s69 offen offset:512
        buffer_load_dwordx2 v[16:17], v19, {srd(sX)}, s69 offen offset:1024
        """)
        if not s.opt.get('glate', 0): s.gate_loads()
        if s.opt.get('wpf', 0):
            s(f"""s_mul_i32 s70, s2, 9600
            s_mul_i32 s71, s{sJ}, {19*128}
            s_add_u32 s70, s70, s71
            v_min_u32 v166, 18, v0
            v_lshlrev_b32 v166, 7, v166
            buffer_load_dword v166, v166, {srd(sWQ)}, s70 offen""")

    def layernorm(s, sJ):
        X, GW, XV = 8, 20, 32
        nb = [0]
        def bar():
            nb[0] += 1; s("s_barrier")
        gl = [(31,1,30,sDBG,"0",0)]
        s(f"""s_mov_b32 s70, 0x3f803f80
        s_lshl_b32 s55, s68, 2
        s_add_u32 s55, s55, {GI}
        s_add_u32 s69, s69, {HI}
        v_lshlrev_b32 v3, 2, v3
        v_and_b32 v30, 15, v0
        v_lshlrev_b32 v30, 2, v30""")
        if s.opt.get('lnb', 1) & 2: s("s_waitcnt lgkmcnt(0)"); bar()
        s(f"s_waitcnt vmcnt({1 if s.opt.get('wpf', 0) else 0})")
        s.stamp(1)
        for i in range(10):
            s(f"v_dot2_f32_bf16 v4, v{X+i}, s70, {'v4' if i else 0}")
            s(f"v_dot2_f32_bf16 v5, v{X+i}, v{GW+i}, {'v5' if i else 0}")
        un = []
        for i in range(10):
            un += [f"v_lshlrev_b32 v{XV+2*i}, 16, v{X+i}", f"v_and_b32 v{XV+2*i+1}, 0xffff0000, v{X+i}"]
        def fill(n):
            for _ in range(n): s(un.pop(0) if un else "s_nop 0")
        fill(3)
        for k in (8, 4, 2, 1):
            for q in (4, 5): s(f"v_add_f32_dpp v{q}, v{q}, v{q} row_ror:{k} row_mask:0xf bank_mask:0xf")
            fill(1)
        s("v_mov_b32 v6, v4\nv_mov_b32 v7, v5"); fill(2)
        s("v_permlane16_swap_b32 v4, v6\nv_permlane16_swap_b32 v5, v7"); fill(2)
        s(f"""v_add_f32 v4, v4, v6
        v_add_f32 v5, v5, v7
        v_mul_f32 v4, {fbits(-1/640)}, v4
        v_mul_f32 v5, {fbits(-math.log2(math.e))}, v5
        v_exp_f32 v5, v5""")
        fill(len(un))
        s("v_add_f32 v5, 1.0, v5\nv_rcp_f32 v2, v5")
        for e in range(0, 20, 2): s(f"v_pk_add_f32 {vr(XV+e,2)}, {vr(XV+e,2)}, v[4:5] op_sel_hi:[1,0]")
        for e in range(0, 20, 2):
            a = (6, 52)[(e >> 1) & 1]
            if e < 4: s(f"v_pk_mul_f32 {vr(a,2)}, {vr(XV+e,2)}, {vr(XV+e,2)}")
            else: s(f"v_pk_fma_f32 {vr(a,2)}, {vr(XV+e,2)}, {vr(XV+e,2)}, {vr(a,2)}")
        s("v_pk_add_f32 v[6:7], v[6:7], v[52:53]\nv_add_f32 v6, v6, v7")
        for k in (8, 4, 2, 1):
            s(f"s_nop 1\nv_add_f32_dpp v6, v6, v6 row_ror:{k} row_mask:0xf bank_mask:0xf")
        s(f"""v_mov_b32 v7, v6
        v_mov_b32 v4, {fbits(1e-5)}
        s_nop 0
        v_permlane16_swap_b32 v6, v7
        s_nop 1
        v_add_f32 v6, v6, v7
        v_fmac_f32 v4, {fbits(1/640)}, v6
        v_rsq_f32 v4, v4
        s_nop 0""")
        for e in range(0, 20, 2):
            s(f"v_pk_mul_f32 {vr(XV+e,2)}, {vr(XV+e,2)}, v[4:5] op_sel_hi:[1,0]")
        for i in range(10): s(f"v_cvt_pk_bf16_f32 v{X+i}, v{XV+2*i}, v{XV+2*i+1}")
        nx, done = s.new("g"), s.new("g")
        if s.opt.get('lnb', 1) & 1: s("s_waitcnt lgkmcnt(0)"); bar()
        s(f"""buffer_store_dwordx4 v[8:11], v18, {srd(sWS)}, s69 offen sc1
        buffer_store_dwordx4 v[12:15], v18, {srd(sWS)}, s69 offen offset:512 sc1
        buffer_store_dwordx2 v[16:17], v19, {srd(sWS)}, s69 offen offset:1024 sc1
        s_mov_b32 exec_lo, 1
        s_mov_b32 exec_hi, 1
        buffer_store_dword v2, v3, {srd(sWS)}, s55 offen sc1
        s_mov_b64 exec, -1
        s_cmp_lg_u32 s{sJ}, 0
        s_cbranch_scc1 {s.ln(nx)}""")
        s.poll_issue(gl)
        s.lab(nx)
        if s.opt.get('b0st'): s.stamp(7)
        s("s_waitcnt lgkmcnt(0)")
        for _ in range(s.opt.get('lnw', 1)): bar()
        s("s_waitcnt vmcnt(0)")
        bar()
        s(f"""s_mul_i32 s54, s67, {s.hsp}
        s_add_u32 s54, s54, {F_H}
        s_cmp_lg_u32 s{sJ}, 0
        s_cbranch_scc1 {s.ln(done)}""")
        s.poll(gl, sleep=4, pre=0)
        s.set_flag("s54", 4, 5)
        s.lab(done)
        s.gtiles(sJ)
        return nb[0]

    def gpoll(s, pre, loads, ok, sleep, lsl=4, atom=None):
        nx = s.new("gp")
        s(f"s_cmp_lg_u32 s48, 0\ns_cbranch_scc1 {s.ln(nx)}")
        for addr, need in pre: s.lds_spin(164, need, 165, off=addr-SYN, sleep=lsl)
        if loads: s.poll(loads, sleep=sleep)
        if atom: s.apoll(*atom, sleep)
        s(f"v_mov_b32 v165, 1\nds_write_b32 v164, v165 offset:{ok-SYN}")
        s.lab(nx)
        s.lds_spin(164, 1, 165, off=ok-SYN, sleep=lsl)

    def g2_dW(s, t):
        L = []
        for n in range(4):
            pre = f"s_add_u32 m0, s49, {(t%3)*4096}\ns_nop 0\n" if n == 0 else ""
            inc = 32768-1024 if n < 3 else 32768+3*1024
            L.append(pre + f"buffer_load_dwordx4 v13, {srd(sW2)}, s64 offen offset:{1024*n} lds\ns_add_u32 s64, s64, {inc}")
        return L

    def pfwo(s):
        s(f"""s_lshl_b32 s60, s{sI}, 2
        s_add_u32 s60, s60, s48
        s_mul_i32 s61, s60, 6400
        v_min_u32 v30, 49, v0
        v_lshlrev_b32 v30, 7, v30
        buffer_load_dword v167, v30, {srd(sWO)}, s61 offen""")

    def gemm1(s, sJ):
        ACC = 64
        skip, fin = s.new("g1skip"), s.new("g1fin")
        s(f"s_cmp_eq_u32 s{sCT}, 15\ns_cbranch_scc1 {s.ln(skip)}")
        reads, mf = s.gemm_ops(24, True, 28)
        s(f"s_setprio {s.opt.get('gp1', 1)}")
        for l in reads(0,0): s(l)
        s("s_mov_b32 s54, 4")
        s.gemm_loop(reads, mf, 0, range(24, 32), 54, True)
        s.stamp(3)
        if s.opt.get('dbgx') == 3: s.end_wave()
        s(f"""s_setprio 3
        s_lshl_b32 s55, s{sN1}, 2
        s_lshl_b32 s57, s{sJ}, 11
        s_add_u32 s57, s57, {PI}
        v_lshlrev_b32 v29, 4, v0""")
        s.gpost()
        hold = s.opt.get('phold', 3)
        for n in range(1, 4):
            m = (0, 2, 1, 3)[n]
            p = 32 + 8*(n-1)
            s(f"""s_xor_b32 s54, s50, {m}
            s_add_u32 s54, s54, s55
            s_mul_i32 s54, s54, 24576
            s_add_u32 s54, s54, s57
            s_add_u32 s{57+n}, s54, {(n-1)*8192}""")
            s.al8()
            for q in range(8): s(f"v_cvt_pk_bf16_f32 v{p+q}, v{ACC+16*n+2*q}, v{ACC+16*n+2*q+1}")
        if hold: s.lds_spin(164, max(1, hold-1), 165, off=(SY_QOK if hold == 1 else SY_PA)-SYN, sleep=(2 if hold < 3 else 6))
        wa, wb = s.opt.get('wa', 0), s.opt.get('wb', 1)
        s.gwait()
        s(f"s_setprio {s.opt.get('psp', 0)}")
        for n in range(1, 4):
            p = 32 + 8*(n-1)
            s(f"""buffer_store_dwordx4 {vr(p,4)}, v29, {srd(sWS)}, s{57+n} offen sc1
            buffer_store_dwordx4 {vr(p+4,4)}, v29, {srd(sWS)}, s{57+n} offen offset:1024 sc1""")
        for t in range(wa):
            for l in s.g2_dW(t): s(l)
        s(f"""s_setprio 3
        s_add_u32 s54, s55, s{sJ}
        s_mul_i32 s54, s54, {FSP}
        s_add_u32 s54, s54, {F_P}
        s_add_u32 s56, s55, s50
        s_mul_i32 s56, s56, 24576
        s_add_u32 s56, s56, s57
        s_mov_b64 exec, 1
        v_mov_b32 v30, 0
        v_mov_b32 v31, 1
        s_waitcnt vmcnt({4*wa})
        buffer_atomic_add v31, v30, {srd(sWS)}, s54 offen sc0 sc1
        s_waitcnt vmcnt(0)
        v_add_u32 v31, 1, v31""")
        s.apoll("s54", 4, 30, 31, s.opt.get('ppsl', 4), pre=True)
        s.stamp(4)
        for n in range(3):
            p = 32 + 8*n
            s(f"""buffer_load_dwordx4 {vr(p,4)}, v29, {srd(sWS)}, s56 offen sc1
            buffer_load_dwordx4 {vr(p+4,4)}, v29, {srd(sWS)}, s56 offen offset:1024 sc1
            s_add_u32 s56, s56, 8192""")
        c0 = -2*math.sqrt(2/math.pi)*math.log2(math.e); c1 = c0*0.044715
        s(f"""s_mov_b32 s56, {fbits(c1)}
        s_mov_b32 s57, {fbits(c1)}
        v_mov_b32 v56, {fbits(c0)}
        v_mov_b32 v57, {fbits(c0)}
        s_mov_b32 s60, 1.0
        s_mov_b32 s61, 1.0
        s_mov_b32 s58, 0xffff0000""")
        T = ACC + 16
        for n in range(3):
            s(f"s_waitcnt vmcnt({4-2*n})")
            if s.opt.get('gst') and n == 0: s.stamp(1)
            s.al8()
            for q in range(8):
                s(f"v_lshlrev_b32 v{T+2*q}, 16, v{32+8*n+q}\nv_and_b32 v{T+2*q+1}, s58, v{32+8*n+q}")
            for r in range(0, 16, 2): s(f"v_pk_add_f32 {vr(ACC+r,2)}, {vr(ACC+r,2)}, {vr(T+r,2)}")
        for r in range(0, 16, 2): s(f"v_pk_mul_f32 {vr(T+r,2)}, {vr(ACC+r,2)}, {vr(ACC+r,2)}")
        for r in range(0, 16, 2): s(f"v_pk_fma_f32 {vr(T+r,2)}, {vr(T+r,2)}, s[56:57], v[56:57]")
        for r in range(0, 16, 2): s(f"v_pk_mul_f32 {vr(T+r,2)}, {vr(T+r,2)}, {vr(ACC+r,2)}")
        for r in range(16): s(f"v_exp_f32 v{T+r}, v{T+r}")
        for r in range(0, 16, 2): s(f"v_pk_add_f32 {vr(T+r,2)}, {vr(T+r,2)}, s[60:61]")
        for r in range(16): s(f"v_rcp_f32 v{T+r}, v{T+r}")
        for r in range(0, 16, 2): s(f"v_pk_mul_f32 {vr(T+r,2)}, {vr(T+r,2)}, {vr(ACC+r,2)}")
        for q in range(8): s(f"v_cvt_pk_bf16_f32 v{40+q}, v{T+2*q}, v{T+2*q+1}")
        if s.opt.get('gst'): s.stamp(2)
        s(f"""s_mul_i32 s54, s51, {4*10240}
        s_lshl_b32 s57, s52, 9
        s_add_u32 s54, s54, s57
        s_add_u32 s54, s54, {UI}
        buffer_store_dwordx4 v[40:43], v14, {srd(sWS)}, s54 offen sc1
        buffer_store_dwordx4 v[44:47], v14, {srd(sWS)}, s54 offen offset:256 sc1
        """)
        if s.opt.get('gst'): s.stamp(3)
        for t in range(wa, wa+wb):
            for l in s.g2_dW(t): s(l)
        uw = s.opt.get('uw', 1); ur = s.opt.get('ur', 8)
        if uw:
            s(f"""s_mul_i32 s54, s52, 410
            s_add_u32 s58, s54, 397
            s_lshr_b32 s54, s54, 10
            s_lshr_b32 s58, s58, 10
            s_cmp_eq_u32 s54, s58
            s_mov_b32 s58, {((1 << ur) - 1) * 0x101}
            s_cmov_b32 s58, {(1 << ur) - 1}
            s_mov_b32 s59, 0
            s_mul_i32 s57, s{sF1}, 11
            s_lshr_b32 s57, s57, 5
            s_lshl_b32 s57, s57, 3
            s_add_u32 s54, s54, s57
            s_mul_i32 s54, s54, {8*FSP}
            s_add_u32 s54, s54, {F_U}
            v_mul_u32_u24 v32, {FSP}, v0
            v_mov_b32 v31, 1
            s_mov_b64 exec, s[58:59]
            s_waitcnt vmcnt({4*wb})
            buffer_atomic_add v31, v32, {srd(sWS)}, s54 offen sc1
            s_mov_b64 exec, -1""")
        else:
            s(f"""s_mul_i32 s54, s{sD1}, 13
            s_lshr_b32 s54, s54, 3
            s_mul_i32 s57, s{sF1}, 11
            s_lshr_b32 s57, s57, 5
            s_lshl_b32 s57, s57, 3
            s_add_u32 s54, s54, s57
            s_mul_i32 s54, s54, {8*FSP}
            s_add_u32 s54, s54, {F_U}
            s_bitcmp1_b32 s{sD1}, 0
            s_mov_b32 s58, 0xffff
            s_cmov_b32 s58, 0xffffff
            s_mov_b32 s59, 0
            v_mul_u32_u24 v32, {FSP}, v0""")
            s.arrive_add(SY_CU, 4, "s54", 32, "s[58:59]", 30, 31, 4*wb)
        s(f"s_branch {s.ln(fin)}")
        s.lab(skip)
        for _ in range(7): s("s_barrier")
        s("s_setprio 3")
        if s.opt.get('ldstamp'): s.end_wave()
        s.lds_spin(164, s.opt.get('skipw', 6), 165, off=SY_PA-SYN, sleep=8)
        for t in range(wa+wb):
            for l in s.g2_dW(t): s(l)
        s("s_waitcnt vmcnt(0)")
        s.lab(fin)
        s.pfwo()
        s.stamp(5)
        if s.opt.get('dbgx') or s.opt.get('ldstamp'): s.end_wave()

    def gemm2(s, sJ):
        ACC, UB, BB = 64, (24, 44), 144
        vW, vU, aT = 13, 14, 15
        sST, sDT, sOW, sOU, sTK = 62, 63, 64, 65, 66
        NS = 3
        dW = s.g2_dW
        def lU(t, rev=False):
            L = [f"buffer_load_dwordx4 {vr(UB[t&1]+4*di,4)}, v{vU}, {srd(sWS)}, s{sOU} offen offset:{256*di} sc1" for di in (range(4, -1, -1) if rev else range(5))]
            L[4] += f"\ns_add_u32 s{sOU}, s{sOU}, 40960"
            return L
        def rd(t, si):
            o = (t % NS)*4096
            return f"ds_read_b64_tr_b16 {vr(BB+4*si,2)}, v{aT+si} offset:{o}\nds_read_b64_tr_b16 {vr(BB+4*si+2,2)}, v{aT+si} offset:{o+2048}"
        def mf(t, si, di):
            d = vr(ACC+20*si+4*di,4)
            if s.opt.get('gnomf'): return "s_nop 3"
            return f"v_mfma_f32_16x16x32_bf16 {d}, {vr(UB[t&1]+4*di,4)}, {vr(BB+4*si,4)}, {d if t else 0}"
        s(f"s_setprio {s.opt.get('gp2', 0)}")
        for t in range(s.opt.get('wa', 0) + s.opt.get('wb', 1), 3):
            for l in dW(t): s(l)
            if (s.opt.get('wpre', 3) >> t) & 1: s("s_waitcnt vmcnt(0)")
        hl = [(28,1,25,sWS,"s57",0)]
        s(f"""s_setprio 3
        s_mul_i32 s55, s{sDT}, 80
        s_lshr_b32 s54, s55, 7
        s_add_u32 s55, s55, 79
        s_lshr_b32 s55, s55, 7
        s_cmp_eq_u32 s54, s55
        s_cselect_b32 s55, 12, 24
        {"s_mov_b32 s55, 36" if s.opt.get('uw', 1) else ""}
        s_lshl_b32 s54, s{sJ}, 3
        s_add_u32 s54, s54, s{sDT}
        s_lshl_b32 s54, s54, 3
        s_and_b32 s57, s{sXC}, {s.opt.get('ur', 8)-1}
        s_add_u32 s54, s54, s57
        s_mul_i32 s54, s54, {FSP}
        s_add_u32 s54, s54, {F_U}
        s_mul_i32 s57, s{sST}, {8*s.hsp}
        s_add_u32 s57, s57, {F_H}
        v_and_b32 v25, 7, v0
        v_mul_u32_u24 v25, {s.hsp}, v25""")
        s.poll_issue(hl)
        s.apoll("s54", "s55", 26, 27, s.opt.get('usl', 4))
        s.poll(hl, sleep=4, pre=0)
        s(f"""s_lshl_b32 s54, s{sTK}, 2
        s_add_u32 s54, s54, {GI}
        v_and_b32 v22, 15, v0
        v_lshlrev_b32 v22, 2, v22
        s_setprio {s.opt.get('gp2', 0)}
        buffer_load_dword v22, v22, {srd(sWS)}, s54 offen sc1""")
        if s.opt.get('tlb', 0) & 1: s(f"buffer_load_dword v166, v19, {srd(sOUT)}, 0 offen")
        s.stamp(6)
        if s.opt.get('dbgy') == 3: s.end_wave()
        for t in range(2):
            for l in lU(t): s(l)
        s("s_waitcnt vmcnt(10)")
        for si in range(4): s(rd(0, si))
        NT = 12
        s(f"""s_mul_i32 s56, s{sJ}, {160*1280}
        s_mul_i32 s54, s{sDT}, 160
        s_add_u32 s56, s56, s54""")
        def wo1(n):
            return f"s_add_u32 m0, s49, {n*1024}\ns_add_u32 s57, s56, {(n//5)*32*1280}\nbuffer_load_dwordx4 v{1+n%5}, {srd(sWO)}, s57 offen lds"
        cnt = []
        for t in range(NT):
            if t == s.opt.get('gp2t', 99): s(f"s_setprio {s.opt.get('gp2b', 0)}")
            nold = s.opt.get('gnold')
            uo = s.opt.get('uo', 1)
            if uo == 1: U = lU(t+1) if 0 < t and t+1 < NT and not nold else []
            else: U = lU(t+2) if t+2 < NT and not nold else []
            W = dW(t+3) if t+3 < NT else [wo1(4*(t-9) + q) for q in range(4)]
            if nold and t+3 < NT: W = []
            X = [wo1(18+t if t < 7 else 6+t)] + ([wo1(12)] if t == 10 else [])
            s(f"s_waitcnt vmcnt({cnt[-1] if t else 5})")
            cnt.append((0 if uo == 1 else len(U)) + len(W) + len(X))
            if t == 9: s.gpost()
            for si in range(4):
                s(f"s_waitcnt lgkmcnt({6 if t+1 < NT else 2*(3-si)})")
                for di in range(5):
                    s(mf(t, si, di if si % 2 == 0 or not s.opt.get('serp', 1) else 4-di))
                    if si == 3 and di < len(W): s(W[di])
                    if si == (2 if uo == 1 else 1) and di < len(X): s(X[di])
                    if uo == 1 and si == 0 and U: s(U[di])
                    if uo == 2 and si == 3 and U: s(lU(t+2, True)[di])
                if t+1 < NT: s(rd(t+1, si))
            if uo == 0:
                for l in U: s(l)
        s.stamp(7)
        if s.opt.get('dbgy') == 1: s.end_wave()
        s("s_setprio 3")
        s.gwait(1)
        ORD = [3, 7, 11, 15] + [t for t in range(20) if t % 4 != 3 or t > 15]
        OB = 64; AC = 24
        FX = s.opt.get('fx', 11)
        FB = [44, 48, 52, 56, 60, 144, 148, 152, 156] + [100 + 4*q for q in range(FX)]; NB = len(FB)
        def rdf(n):
            t, di = divmod(n, 5); b = FB[n % NB]; t = ORD[t]
            if t < 16:
                a = 6 if t < 8 else 7; o = (t % 8)*6400 + 32*di
                return f"ds_read_b64_tr_b16 {vr(b,2)}, v{a} offset:{o}\nds_read_b64_tr_b16 {vr(b+2,2)}, v{a} offset:{o+1280}"
            tp = t-16; a = 8 if tp < 2 else 10; o = (tp % 2)*25600 + 32*di
            return f"ds_read_b64_tr_b16 {vr(b,2)}, v{a} offset:{o}\nds_read_b64_tr_b16 {vr(b+2,2)}, v{a+1} offset:{o}"
        FD = s.opt.get('fd', 9)
        for n in range(FD): s(rdf(n))
        s(f"""v_lshlrev_b32 v13, 4, v0
        s_mul_i32 s54, s{sJ}, 15360
        s_add_u32 s54, s54, {XB}
        v_add_u32 v1, s54, v13
        s_add_u32 s54, s54, 14336
        s_cmp_eq_u32 s{sJ}, 3
        s_cselect_b32 s54, 19200, s54
        v_add_u32 v2, s54, v13""")
        for n in range(1, 4):
            s(f"s_xor_b32 s54, s{sJ}, {n}\ns_mul_i32 s54, s54, 15360\ns_add_u32 s54, s54, {XB + (n-1)*5120}\nv_add_u32 v{2+n}, s54, v13")
        s(f"""s_add_u32 s54, s54, 4096
        s_cmp_eq_u32 s{sJ}, 0
        s_cselect_b32 s54, 19200, s54
        v_add_u32 v13, s54, v13
        v_and_b32 v14, 7, v0
        v_lshlrev_b32 v14, 2, v14
        v_add_u32 v14, {SY_PA}, v14
        v_sub_f32 v22, 1.0, v22
        v_mul_f32 v20, v20, v22
        s_lshl_b32 s56, s{sTK}, 4
        s_add_u32 s56, s56, {OI}
        s_lshr_b32 s54, s{sTK}, 5
        s_lshl_b32 s54, s54, 8
        s_add_u32 s54, s54, {F_O}""")
        s.gpost()
        if s.opt.get('tst'): s.stamp(3)
        s.lds_spin(14, 17, 165, sleep=8)
        s.lds_spin(14, 20, 165, sleep=s.opt.get('esl', 1))
        if s.opt.get('tst'): s.stamp(4)
        for n in range(1, 4):
            for q in range(5):
                e = 5*(n-1) + q
                if e < 14: s(f"ds_write_b128 v1, {vr(ACC+20*n+4*q,4)} offset:{1024*e}")
                else:
                    s.gwait(0)
                    s(f"ds_write_b128 v2, {vr(ACC+20*n+4*q,4)}")
        s("s_waitcnt vmcnt(0)")
        s.gpost()
        ope = s.opt.get('ope', 1)
        if ope == 2: s.apoll_issue("s54", 15, 16); s("s_mov_b64 exec, -1")
        s.gwait(0)
        if ope == 1: s.apoll_issue("s54", 15, 16); s("s_mov_b64 exec, -1")
        if s.opt.get('tst'): s.stamp(5)
        for n in range(1, 4):
            for q in range(5):
                if (n, q) != (3, 4): s(f"ds_read_b128 {vr(ACC+20*n+4*q,4)}, v{2+n} offset:{1024*q}")
                else: s(f"ds_read_b128 {vr(ACC+20*n+4*q,4)}, v13")
        for n in range(1, 4):
            s(f"s_waitcnt lgkmcnt({5*(3-n)})"); s.al8()
            for r in range(0, 20, 2): s(f"v_pk_add_f32 {vr(ACC+r,2)}, {vr(ACC+r,2)}, {vr(ACC+20*n+r,2)}")
        for r in range(0, 20, 2): s(f"v_pk_fma_f32 {vr(AC+r,2)}, {vr(ACC+r,2)}, v[22:23], v[20:21] op_sel_hi:[1,0,0]")
        for n in range(FD, FD+FX): s(rdf(n))
        if s.opt.get('tst'): s.stamp(6)
        s.apoll("s54", 32, 15, 16, s.opt.get('osl', 2), pre=bool(ope))
        s.stamp(8)
        if s.opt.get('dbgy') == 2: s.end_wave()
        def lO(t):
            b = OB+4*(t % NO)
            if ORD[t] < 16: return f"s_add_u32 s57, s56, {ORD[t]*131072}\nbuffer_load_dwordx4 {vr(b,4)}, v12, {srd(sWS)}, s57 offen sc1"
            return f"s_add_u32 s57, s58, {ORD[t]*131072}\nbuffer_load_dwordx2 {vr(b,2)}, v3, {srd(sWS)}, s57 offen sc1\nbuffer_load_dwordx2 {vr(b+2,2)}, v4, {srd(sWS)}, s57 offen sc1"
        def nO(t0, t1): return sum(1 if ORD[t] < 16 else 2 for t in range(t0, t1))
        PD = s.opt.get('opd', 8); NO = 9 if FX else 20
        assert PD < NO
        for t in range(PD): s(lO(t))
        s(f"""s_lshl_b32 s58, s{sTK}, 3
        s_add_u32 s58, s58, {OI}
        v_lshrrev_b32 v3, 4, v0
        v_and_b32 v4, 1, v3
        v_lshl_add_u32 v3, v3, 1, v4
        v_lshlrev_b32 v3, 14, v3
        v_and_b32 v4, 15, v0
        v_lshl_add_u32 v3, v4, 3, v3
        v_xor_b32 v4, 0x4000, v3""")
        if s.opt.get('om', 1):
            s(f"""s_xor_b32 s55, s{sJ}, 1
            s_mul_i32 s55, s55, 15360
            s_add_u32 s55, s55, {XB}
            v_and_b32 v17, 15, v0
            v_mul_u32_u24 v17, 160, v17
            v_lshrrev_b32 v18, 4, v0
            v_lshl_add_u32 v17, v18, 3, v17
            v_add_u32 v17, s55, v17
            v_lshlrev_b32 v18, 4, v0
            v_add_u32 v18, s55, v18""")
            for m in range(3):
                s(f"""v_add_u32 v1, {64*m}, v0
                v_mul_u32_u24 v2, 6554, v1
                v_lshrrev_b32 v2, 16, v2
                v_mul_u32_u24 v2, {1280-160}, v2
                v_lshl_add_u32 v{13+m}, v1, 4, v2""")
        F0 = FD + FX
        pos = {n: ((n-F0)*(99-FD))//(99-F0) for n in range(F0, 100)}
        issued = []
        if FX: s("s_waitcnt lgkmcnt(0)")
        for n in range(100):
            t, di = divmod(n, 5)
            w = []
            if di == 0: w.append(f"vmcnt({nO(t+1, min(t+PD, 20))})")
            wg = {0: (1,1,1,1,1), 1: (3,0,0,2,0), 2: (2,0,2,0,1), 3: (5,0,0,0,0)}[s.opt.get('wg', 1)][di]
            last = n+wg-1
            if wg and last >= F0:
                assert last in issued
                w.append(f"lgkmcnt({min(15, 2*(len(issued)-1-issued.index(last)))})")
            if w: s("s_waitcnt " + " ".join(w))
            if s.opt.get('wst') and n in (0, 25, 50, 75, 99): s.stamp(3 + (n+1)//25)
            d = vr(AC+4*di,4)
            s(f"v_mfma_f32_16x16x32_bf16 {d}, {vr(FB[n % NB],4)}, {vr(OB+4*(t % NO),4)}, {d}")
            for k in sorted(pos):
                if pos[k] == n:
                    assert k - NB <= n
                    s(rdf(k)); issued.append(k)
            if di == 4 and t+PD < 20: s(lO(t+PD))
        osc = ("", " sc1", " nt", " sc0 sc1", " sc1 nt")[s.opt.get('osc', 0)]
        om = s.opt.get('om', 1)
        s(f"s_mul_i32 s54, s{sDT}, 160\ns_nop 7")
        if om == 0:
            for di in range(5):
                s(f"""v_cvt_pk_bf16_f32 v{2+2*di}, v{AC+4*di}, v{AC+4*di+1}
                v_cvt_pk_bf16_f32 v{3+2*di}, v{AC+4*di+2}, v{AC+4*di+3}
                buffer_store_dwordx2 {vr(2+2*di,2)}, v19, {srd(sOUT)}, s54 offen offset:{32*di}{osc}""")
        else:
            for di in range(5):
                s(f"""v_cvt_pk_bf16_f32 v{2+2*di}, v{AC+4*di}, v{AC+4*di+1}
                v_cvt_pk_bf16_f32 v{3+2*di}, v{AC+4*di+2}, v{AC+4*di+3}
                ds_write_b64 v17, {vr(2+2*di,2)} offset:{32*di}""")
            s(f"s_mul_i32 s55, s{sTK}, 1280\ns_add_u32 s54, s54, s55")
            for m in range(3): s(f"ds_read_b128 {vr(44+4*m,4)}, v18 offset:{1024*m}")
            for m in range(3):
                if m == 2: s("s_mov_b32 exec_hi, 0")
                s(f"s_waitcnt lgkmcnt({2-m})\nbuffer_store_dwordx4 {vr(44+4*m,4)}, v{13+m}, {srd(sOUT)}, s54 offen{osc}")

    def text(s):
        s.prologue()
        m = s.opt.get('asc', 0)
        for k, r in enumerate((sX, sWQ, sW1, sW2, sWO)):
            if (m >> k) & 1: s.L = [l.replace(" lds", " sc1 lds") if srd(r) in l and l.endswith(" lds") else l for l in s.L]
        head = f".globl {s.k}\n.p2align 8\n.type {s.k},@function\n{s.k}:\n"
        return head + "\n".join(s.L) + "\n"

def kd(k):
    return f""".amdhsa_kernel {k}
  .amdhsa_next_free_vgpr 168
  .amdhsa_next_free_sgpr 102
  .amdhsa_accum_offset 168
  .amdhsa_group_segment_fixed_size 0
  .amdhsa_kernarg_size 96
  .amdhsa_user_sgpr_count 2
  .amdhsa_user_sgpr_kernarg_segment_ptr 1
  .amdhsa_system_sgpr_workgroup_id_x 1
.end_amdhsa_kernel
"""

HEADER = """; out = g * MHA(x) + (1 - g) * TokenMixer(x), one persistent launch: 256 workgroups of 12 waves, one per CU.
; Kernarg (8-byte pointers): A_x, A_wqkv, A_wo, B_x (unused by the reference), B_w1, B_b1, B_w2, B_b2, gate_w, out, debug, ws.
;
;          128x128 tile of LN(x)^T*w1 over a quarter of the tokens (G waves). G waves first compute LN(x) and the gate for 8 rows.
;  middle: A waves run attention for one head and 256 queries (S^T = K Q^T, exp2, O^T += V^T P^T with the row sum as an extra
;          row of ones). P feeds the sparse MFMA as it leaves v_exp_f32: the index operand selects the high (bf16) halves.
;          Meanwhile the G waves add the split-K partial sums, apply the tanh-form GELU and run the second mixer GEMM.
;  tail  : G waves add (g*o)*wo to (1-g)*(mixer + b2) and store the 64x80 output tile.
; Softmax shift: the main loop uses the shift 0. Each wave then checks that every row sum lies in [2^-30, 2^60] and that all
; accumulators are finite; otherwise it recomputes its rows in two passes with the true row maximum (label *_slow*).
; Hand-offs between workgroups: write-through stores, wait for completion, atomic counter (or flag) in ws; readers poll and use
; sc1 loads. The counters are cleared at the start of every launch; d_debug carries the "cleared" signal. All waits are bounded.
"""

def build(mode="fused", stamps=False, opt=None):
    k = NAME + "_kernel"
    out = HEADER + f"; @launch grid=(256,1,1) block=(768,1,1) lds={LDS_BYTES}\n"
    out += '.amdgcn_target "amdgcn-amd-amdhsa--gfx950"\n.text\ncode_begin:\n'
    out += Gen(k, stamps, opt).text()
    out += 'code_end:\n.section .rodata,"a"\n.p2align 6\n' + kd(k)
    return out

if __name__ == "__main__":
    mode = sys.argv[1] if len(sys.argv) > 1 else "fused"
    stamps = "stamp" in sys.argv[2]
    opt = {}
    for a in sys.argv[3:]:
        k, v = a.split("="); opt[k] = int(v)
    open(sys.argv[2], "w").write(build(mode, stamps, opt))
```
